```python
import torch

def _softmax(x, axis=-1):
    return torch.softmax(x, dim=axis)
def _gelu(x):
    return torch.nn.functional.gelu(x, approximate="tanh")
def _silu(x):
    return torch.nn.functional.silu(x)
def _sigmoid(x):
    return torch.sigmoid(x)
def _layernorm(x, axis=-1, eps=1e-5):
    m = x.mean(dim=axis, keepdim=True)
    v = x.var(dim=axis, keepdim=True, unbiased=False)
    return (x - m) / torch.sqrt(v + eps)
def _scatter_add(tgt, idx, src, axis=0):
    return tgt.clone().index_add_(axis, idx, src)
def _segment_sum(src, seg, n):
    out = torch.zeros((n,) + src.shape[1:], dtype=src.dtype)
    return out.index_add_(0, seg, src)
def _pad(x, pw):
    flat = tuple(v for pair in reversed(pw) for v in pair)
    return torch.nn.functional.pad(x, flat)

kernel_name = 'parallel_sum__ssm_conv_h3__swiglu_ffn__prompt'

def setup_inputs():

    _w = (lambda a: (lambda t: t.to(torch.bfloat16) if t.is_floating_point() else t)(torch.as_tensor(a)))
    def _A_setup():
        B, S, D = 1, 2048, 1024
        ks = 4
        return {
            "q": _w((lambda *s: torch.randn(*s, dtype=torch.bfloat16) * 0.05)(B, S, D)),
            "k": _w((lambda *s: torch.randn(*s, dtype=torch.bfloat16) * 0.8)(B, S, D)),
            "v": _w((lambda *s: torch.randn(*s, dtype=torch.bfloat16) * 0.8)(B, S, D)),
            "shift_k": _w((lambda *s: torch.randn(*s, dtype=torch.bfloat16) * 0.8)(D, ks) * 0.5),
            "ssm_k": _w((lambda *s: torch.randn(*s, dtype=torch.bfloat16) * 0.8)(D, S) * (1.0 / S ** 0.5)),
            "ssm_D": _w((lambda *s: torch.randn(*s, dtype=torch.bfloat16) * 0.8)(D)),
        }
    _A_in = _A_setup()

    def _B_setup():
        B, S, D, F = 1, 2048, 1024, 3584
        return {
            "x": _w((lambda *s: torch.randn(*s, dtype=torch.bfloat16) * 0.05)(B, S, D)),
            "w_gate": _w((lambda *s: torch.randn(*s, dtype=torch.bfloat16) * 0.05)(D, F)),
            "w_up": _w((lambda *s: torch.randn(*s, dtype=torch.bfloat16) * 0.05)(D, F)),
            "w_down": _w((lambda *s: torch.randn(*s, dtype=torch.bfloat16) * 0.05)(F, D)),
        }
    _B_in = _B_setup()

    return {
        "A_q": _A_in["q"],
        "A_k": _A_in["k"],
        "A_v": _A_in["v"],
        "A_shift_k": _A_in["shift_k"],
        "A_ssm_k": _A_in["ssm_k"],
        "A_ssm_D": _A_in["ssm_D"],
        "B_x": _B_in["x"],
        "B_w_gate": _B_in["w_gate"],
        "B_w_up": _B_in["w_up"],
        "B_w_down": _B_in["w_down"],
    }

def reference(A_q, A_k, A_v, A_shift_k, A_ssm_k, A_ssm_D, B_x, B_w_gate, B_w_up, B_w_down):
    def _A_ref(q, k, v, shift_k, ssm_k, ssm_D):
        B, S, D = q.shape
        ks = shift_k.shape[-1]
        k_pad = _pad(k, ((0, 0), (ks - 1, 0), (0, 0)))
        k_shift = torch.zeros_like(k)
        for t in range(ks):
            k_shift = k_shift + k_pad[:, t:t + S, :] * shift_k[:, ks - 1 - t][None, None, :]
        kv = k_shift * v
        L = 2 * S
        kv_pad = _pad(kv, ((0, 0), (0, S), (0, 0)))
        kf_pad = _pad(ssm_k, ((0, 0), (0, S)))
        kv_f = (lambda x, axes=(-2,-1): torch.fft.rfft2(x.float(), dim=axes))(kv_pad[:, None, :, :], axes=(1, 2))
        kf_f = (lambda x, axes=(-2,-1): torch.fft.rfft2(x.float(), dim=axes))(kf_pad[:, None, :], axes=(1, 2))
        kf_f = (lambda x, *d: x.permute(*d))(kf_f, 1, 2, 0)
        y_f = kv_f * kf_f[None, :, :, :]
        y = (lambda x, s, axes=(-2,-1): torch.fft.irfft2(x, s=s, dim=axes).to(torch.bfloat16))(y_f, (1, L), axes=(1, 2))[:, 0, :S, :]
        y = y + kv * ssm_D[None, None, :]
        return q * y

    def _B_ref(x, w_gate, w_up, w_down):
        g = _silu(x @ w_gate)
        u = x @ w_up
        return (g * u) @ w_down

    x = A_q
    xn = _layernorm(x, axis=-1)
    return x + _A_ref(xn, A_k, A_v, A_shift_k, A_ssm_k, A_ssm_D) + _B_ref(xn, B_w_gate, B_w_up, B_w_down)
```

```python
import sys

NAME = "parallel_sum__ssm_conv_h3__swiglu_ffn__prompt"
S, D, F = 2048, 1024, 3584

KA_Q, KA_K, KA_V, KA_SHK, KA_SSMK, KA_SSMD, KA_BX, KA_WG, KA_WU, KA_WD, KA_OUT, KA_DBG, KA_WS = [8 * i for i in range(13)]

XN_OFF = 0
XN_SIZE = S * D * 2
UR_OFF = 4 << 20
UR_PITCH = 4096 + 128
UR_SIZE = D * UR_PITCH
ZT_OFF = 9 << 20
ZT_SIZE = S * D * 2
H_OFF = 16 << 20
H_SIZE = S * F * 2
H_SB = 112 * 1024


class E:
    def __init__(self):
        self.l = []

    def __call__(self, s):
        for ln in s.strip("\n").split("\n"):
            self.l.append("    " + ln.strip())

    def label(self, s):
        self.l.append(s + ":")

    def c(self, s):
        self.l.append("    ; " + s)

    def text(self):
        return "\n".join(self.l) + "\n"


def v(i, n=1):
    return f"v{i}" if n == 1 else f"v[{i}:{i+n-1}]"


def a(i, n=1):
    return f"a{i}" if n == 1 else f"a[{i}:{i+n-1}]"


def s(i, n=1):
    return f"s{i}" if n == 1 else f"s[{i}:{i+n-1}]"


def srd(e, d, base, off, size):
    if off:
        e(f"s_add_u32 s{d}, s{base}, 0x{off:x}")
        e(f"s_addc_u32 s{d+1}, s{base+1}, 0")
    else:
        e(f"s_mov_b32 s{d}, s{base}")
        e(f"s_mov_b32 s{d+1}, s{base+1}")
    e(f"s_mov_b32 s{d+2}, 0x{size:x}")
    e(f"s_mov_b32 s{d+3}, 0x20000")


def kernel_wrap(name, body, vgpr, accum, sgpr=96):
    return f""".globl {name}
.p2align 8
.type {name},@function
{name}:
{body}    s_endpgm
.section .rodata,"a"
.p2align 6
.amdhsa_kernel {name}
  .amdhsa_next_free_vgpr {vgpr}
  .amdhsa_next_free_sgpr {sgpr}
  .amdhsa_accum_offset {accum}
  .amdhsa_group_segment_fixed_size 0
  .amdhsa_kernarg_size 104
  .amdhsa_user_sgpr_count 2
  .amdhsa_user_sgpr_kernarg_segment_ptr 1
  .amdhsa_system_sgpr_workgroup_id_x 1
  .amdhsa_float_denorm_mode_32 3
.end_amdhsa_kernel
.text
"""


def unpack(e, dst, src):
    e(f"v_lshlrev_b32 v{dst}, 16, v{src}")
    e(f"v_and_b32 v{dst+1}, 0xffff0000, v{src}")


def allreduce32(e, r, t):
    e("s_nop 1")
    for m in ("quad_perm:[1,0,3,2]", "quad_perm:[2,3,0,1]", "row_half_mirror", "row_mirror"):
        e(f"v_add_f32_dpp v{r}, v{r}, v{r} {m} row_mask:0xf bank_mask:0xf")
        e("s_nop 1")
    e(f"v_mov_b32 v{t}, v{r}")
    e("s_nop 1")
    e(f"v_permlane16_swap_b32 v{r}, v{t}")
    e("s_nop 1")
    e(f"v_add_f32 v{r}, v{r}, v{t}")


def round_bf16(e, r):
    e(f"v_cvt_pk_bf16_f32 v{r}, v{r}, v{r}")
    e(f"v_lshlrev_b32 v{r}, 16, v{r}")


def gen_prep():
    e = E()
    e("s_cmp_ge_u32 s2, 512")
    e("s_cbranch_scc1 L_prep_end")
    e(f"s_load_dwordx4 s[4:7], s[0:1], {KA_Q}")
    e(f"s_load_dwordx4 s[8:11], s[0:1], {KA_V}")
    e(f"s_load_dwordx2 s[12:13], s[0:1], {KA_WS}")
    e("s_cmp_ge_u32 s2, 256")
    e("s_cbranch_scc1 L_prep_ln")
    e.c("kv tile: st = wg & 31 (64 rows), dt = wg >> 5 (128 ch)")
    e("s_and_b32 s14, s2, 31")
    e("s_lshr_b32 s15, s2, 5")
    e("v_and_b32 v1, 15, v0")
    e("v_lshrrev_b32 v2, 4, v0")
    e("s_lshl_b32 s16, s14, 17")
    e("s_lshl_b32 s17, s15, 8")
    e("s_add_u32 s16, s16, s17")
    e("v_lshlrev_b32 v3, 13, v2")
    e("v_lshl_add_u32 v3, v1, 4, v3")
    e("v_add_u32 v3, s16, v3")
    e("v_add_u32 v4, 0xffffe000, v3")
    e("v_add_u32 v5, 0xfffff000, v3")
    e("v_add_u32 v6, 0x1000, v3")
    e("v_lshlrev_b32 v7, 6, v1")
    e("s_lshl_b32 s17, s15, 10")
    e("v_add_u32 v7, s17, v7")
    e("s_waitcnt lgkmcnt(0)")
    srd(e, 20, 6, 0, S * D * 2)
    srd(e, 24, 8, 0, S * D * 2)
    srd(e, 28, 10, 0, D * 8)
    srd(e, 32, 12, UR_OFF, UR_SIZE)
    KR = 16
    VR = 44
    WR = 60
    kaddr = [(4, 2048), (5, 0), (5, 2048), (3, 0), (3, 2048), (6, 0), (6, 2048)]
    for i in range(4):
        e(f"buffer_load_dwordx4 {v(WR+4*i,4)}, v7, s[28:31], 0 offen offset:{16*i}")
    for i, (r, o) in enumerate(kaddr):
        e(f"buffer_load_dwordx4 {v(KR+4*i,4)}, v{r}, s[20:23], 0 offen offset:{o}")
    for i, (r, o) in enumerate(kaddr[3:]):
        e(f"buffer_load_dwordx4 {v(VR+4*i,4)}, v{r}, s[24:27], 0 offen offset:{o}")
    PITCH = 288
    e(f"v_mul_u32_u24 v8, {4*PITCH}, v2")
    e("v_lshl_add_u32 v8, v1, 4, v8")
    WF = 80
    KF = 88
    VF = 102
    AC = 104
    OUT = 108
    e("s_waitcnt vmcnt(0)")
    for p in range(4):
        c0, c1 = WR + 4 * p, WR + 4 * p + 2
        for j in range(4):
            d0, d1 = c0 + (j >> 1), c1 + (j >> 1)
            if j & 1:
                e(f"v_and_b32 v{WF+2*j}, 0xffff0000, v{d0}")
                e(f"v_and_b32 v{WF+2*j+1}, 0xffff0000, v{d1}")
            else:
                e(f"v_lshlrev_b32 v{WF+2*j}, 16, v{d0}")
                e(f"v_lshlrev_b32 v{WF+2*j+1}, 16, v{d1}")
        for i in range(7):
            unpack(e, KF + 2 * i, KR + 4 * i + p)
        for i in range(4):
            e(f"v_pk_mul_f32 {v(AC,2)}, {v(KF+2*i,2)}, {v(WF+6,2)}")
            for j in (2, 1, 0):
                e(f"v_pk_fma_f32 {v(AC,2)}, {v(KF+2*(i+3-j),2)}, {v(WF+2*j,2)}, {v(AC,2)}")
            unpack(e, VF, VR + 4 * i + p)
            e(f"v_pk_mul_f32 {v(AC,2)}, {v(AC,2)}, {v(VF,2)}")
            e(f"v_cvt_pk_bf16_f32 v{OUT+4*i+p}, v{AC}, v{AC+1}")
    for i in range(4):
        e(f"ds_write_b128 v8, {v(OUT+4*i,4)} offset:{i*PITCH}")
    e("v_and_b32 v1, 63, v0")
    e("v_lshrrev_b32 v2, 6, v0")
    e("v_lshrrev_b32 v3, 4, v1")
    e("v_bfe_u32 v4, v1, 2, 2")
    e("v_and_b32 v5, 3, v1")
    e("v_lshlrev_b32 v6, 3, v3")
    e("v_sub_u32 v6, v6, v4")
    e("v_add_u32 v6, 3, v6")
    e(f"v_mul_u32_u24 v6, {PITCH}, v6")
    e("v_lshl_add_u32 v6, v5, 3, v6")
    e("v_lshl_add_u32 v6, v2, 6, v6")
    e("v_and_b32 v7, 15, v1")
    e("v_lshl_add_u32 v7, v2, 5, v7")
    e("s_lshl_b32 s17, s15, 7")
    e("v_add_u32 v7, s17, v7")
    e(f"s_mov_b32 s18, {UR_PITCH}")
    e("v_mul_lo_u32 v7, v7, s18")
    e("v_mov_b32 v10, v7")
    e("s_lshl_b32 s17, s14, 7")
    e("s_sub_u32 s17, 4016, s17")
    e("v_add_u32 v7, s17, v7")
    e("v_lshlrev_b32 v9, 4, v3")
    e("v_sub_u32 v7, v7, v9")
    e(f"v_add_u32 v9, {16*UR_PITCH}, v7")
    e("s_waitcnt lgkmcnt(0)")
    e("s_barrier")
    T = 16
    n = 0
    for cb in range(2):
        for sh in range(2):
            base = sh * 32 * PITCH + cb * 32
            e(f"ds_read_b64_tr_b16 {v(T+4*n,2)}, v6 offset:{base + 4*PITCH}")
            e(f"ds_read_b64_tr_b16 {v(T+4*n+2,2)}, v6 offset:{base}")
            n += 1
    n = 0
    for cb in range(2):
        for sh in range(2):
            e(f"s_waitcnt lgkmcnt({6-2*n})")
            e(f"buffer_store_dwordx4 {v(T+4*n,4)}, v{9 if cb else 7}, s[32:35], 0 offen offset:{0 if sh else 64}")
            n += 1
    e("s_cmp_lg_u32 s14, 0")
    e("s_cbranch_scc1 L_prep_end")
    e("v_and_b32 v11, 1, v3")
    e(f"v_mul_u32_u24 v11, {16*UR_PITCH}, v11")
    e("v_add_u32 v10, v10, v11")
    e("v_add_u32 v10, 0x1000, v10")
    for i in range(4):
        e(f"v_mov_b32 v{40+i}, 0")
    e("buffer_store_dwordx4 v[40:43], v10, s[32:35], 0 offen")
    e("s_branch L_prep_end")
    e.label("L_prep_ln")
    e("s_sub_u32 s14, s2, 256")
    e("v_lshrrev_b32 v1, 5, v0")
    e("v_and_b32 v2, 31, v0")
    e("s_lshl_b32 s15, s14, 14")
    e("v_lshlrev_b32 v3, 11, v1")
    e("v_lshl_add_u32 v3, v2, 4, v3")
    e("v_add_u32 v3, s15, v3")
    e("s_waitcnt lgkmcnt(0)")
    srd(e, 20, 4, 0, S * D * 2)
    srd(e, 24, 12, XN_OFF, XN_SIZE)
    X = 16
    XF = 32
    for j in range(4):
        e(f"buffer_load_dwordx4 {v(X+4*j,4)}, v3, s[20:23], 0 offen offset:{512*j}")
    e("s_lshr_b32 s15, s14, 5")
    e("s_lshl_b32 s15, s15, 19")
    e("s_bfe_u32 s16, s14, 0x40001")
    e("s_lshl_b32 s16, s16, 10")
    e("s_add_u32 s15, s15, s16")
    e("s_and_b32 s16, s14, 1")
    e("s_lshl_b32 s16, s16, 7")
    e("s_add_u32 s15, s15, s16")
    e("v_lshrrev_b32 v4, 2, v2")
    e("v_lshlrev_b32 v4, 14, v4")
    e("v_and_b32 v5, 3, v2")
    e("v_lshl_add_u32 v4, v5, 8, v4")
    e("v_lshl_add_u32 v4, v1, 4, v4")
    e("v_add_u32 v4, s15, v4")
    e("s_waitcnt vmcnt(0)")
    for i in range(16):
        unpack(e, XF + 2 * i, X + i)
    e(f"v_pk_add_f32 v[6:7], {v(XF,2)}, {v(XF+2,2)}")
    for i in range(2, 16):
        e(f"v_pk_add_f32 v[6:7], v[6:7], {v(XF+2*i,2)}")
    e("v_add_f32 v6, v6, v7")
    allreduce32(e, 6, 7)
    e(f"v_mul_f32 v6, 0x{0x3a800000:x}, v6")
    e("v_sub_f32 v8, 0, v6")
    e("v_mov_b32 v9, v8")
    e(f"v_pk_add_f32 v[12:13], {v(XF,2)}, v[8:9]")
    e("v_pk_mul_f32 v[10:11], v[12:13], v[12:13]")
    for i in range(1, 16):
        e(f"v_pk_add_f32 v[12:13], {v(XF+2*i,2)}, v[8:9]")
        e("v_pk_fma_f32 v[10:11], v[12:13], v[12:13], v[10:11]")
    e("v_add_f32 v10, v10, v11")
    allreduce32(e, 10, 11)
    e(f"v_mul_f32 v10, 0x{0x3a800000:x}, v10")
    round_bf16(e, 10)
    e("v_add_f32 v10, 0x3727c5ac, v10")
    round_bf16(e, 10)
    e("v_sqrt_f32 v10, v10")
    e("s_nop 0")
    round_bf16(e, 10)
    e("v_rcp_f32 v10, v10")
    round_bf16(e, 8)
    e("v_mov_b32 v9, v8")
    e("v_mov_b32 v11, v10")
    for i in range(16):
        e(f"v_pk_add_f32 v[12:13], {v(XF+2*i,2)}, v[8:9]")
        e("v_cvt_pk_bf16_f32 v14, v12, v13")
        unpack(e, 12, 14)
        e("v_pk_mul_f32 v[12:13], v[12:13], v[10:11]")
        e(f"v_cvt_pk_bf16_f32 v{X+i}, v12, v13")
    for j in range(4):
        e(f"s_mov_b32 s16, {j*8*16384}")
        e(f"buffer_store_dwordx4 {v(X+4*j,4)}, v4, s[24:27], s16 offen")
    e.label("L_prep_end")
    return kernel_wrap("prep_kernel", e.text(), 128, 128)


G1_STAGE = 32768
G1_NST = 4
CV_CP = 4160
CV_HZ = 4 * CV_CP
CV_H = CV_HZ + 512
CV_SIZE = CV_H + 4096


def gen_gemm1(opt):
    e = E()
    ACC = 32
    def acc(ai, j):
        return ACC + (ai * 8 + j) * 4
    FA = [0, 60]
    e("s_cmp_ge_u32 s2, 256")
    e("s_cbranch_scc1 L_g1_end")
    e(f"s_load_dwordx4 s[4:7], s[0:1], {KA_WG}")
    e(f"s_load_dwordx2 s[36:37], s[0:1], {KA_WS}")
    e(f"s_load_dwordx4 s[40:43], s[0:1], {KA_SSMK}")
    e("v_lshrrev_b32 v1, 6, v0")
    e("v_and_b32 v0, 63, v0")
    e("v_readfirstlane_b32 s44, v1")
    e("s_and_b32 s45, s2, 7")
    e("s_lshr_b32 s46, s2, 3")
    e("s_and_b32 s47, s46, 7")
    e("s_lshr_b32 s46, s46, 3")
    e("s_lshl_b32 s45, s45, 2")
    e("s_add_u32 s46, s46, s45")
    e("s_lshr_b32 s48, s44, 1")
    e("s_and_b32 s49, s44, 1")
    e("v_lshlrev_b32 v2, 4, v0")
    e("s_lshl_b32 s50, s47, 19")
    e("s_lshl_b32 s51, s44, 12")
    e("s_add_u32 s50, s50, s51")
    e("v_add_u32 v3, s50, v2")
    e("v_lshrrev_b32 v5, 4, v0")
    e("v_bfe_u32 v6, v0, 1, 3")
    e("s_lshl_b32 s51, s49, 2")
    e("v_or_b32 v7, s51, v5")
    e("v_xor_b32 v6, v6, v7")
    e("v_and_b32 v7, 1, v0")
    e("v_lshlrev_b32 v4, 5, v6")
    e("v_lshl_add_u32 v4, v7, 4, v4")
    e("s_lshl_b32 s51, s44, 3")
    e("v_add_u32 v7, s51, v5")
    e("v_mul_u32_u24 v7, 7168, v7")
    e("v_add_u32 v4, v4, v7")
    e("s_mul_i32 s51, s46, 224")
    e("v_add_u32 v4, s51, v4")
    e("v_cmp_eq_u32 vcc, 7, v6")
    e("v_mov_b32 v7, 0x80000000")
    e("s_nop 0")
    e("v_cndmask_b32 v4, v4, v7, vcc")
    e("s_lshl_b32 s51, s48, 13")
    e("v_add_u32 v8, s51, v2")
    e("v_add_u32 v9, 0x10000, v8")
    e("v_bfe_u32 v6, v0, 2, 2")
    e("v_and_b32 v7, 3, v0")
    e("v_lshl_add_u32 v18, v5, 3, v6")
    e("v_lshlrev_b32 v18, 8, v18")
    e("v_add_u32 v18, 16384, v18")
    e("v_and_b32 v19, 1, v5")
    e("v_lshl_or_b32 v19, v19, 2, v6")
    e("s_lshl_b32 s51, s49, 2")
    for t in range(3):
        e(f"s_add_u32 s52, s51, {t}")
        e("v_xor_b32 v20, s52, v19")
        e(f"v_lshl_add_u32 v{10+t}, v20, 5, v18")
        e(f"v_lshl_add_u32 v{10+t}, v7, 3, v{10+t}")
    e("v_xor_b32 v20, 3, v19")
    e("v_lshl_add_u32 v13, v20, 5, v18")
    e("v_and_b32 v20, 1, v7")
    e("v_lshl_add_u32 v13, v20, 3, v13")
    e("v_lshrrev_b32 v20, 1, v7")
    e("v_lshl_add_u32 v13, v20, 13, v13")
    e("s_lshl_b32 s51, s49, 4")
    e("v_add_u32 v13, s51, v13")
    for t in range(4):
        e(f"v_add_u32 v{14+t}, 0x10000, v{10+t}")
    e("s_waitcnt lgkmcnt(0)")
    srd(e, 8, 36, XN_OFF, XN_SIZE)
    srd(e, 12, 4, 0, D * F * 2)
    srd(e, 16, 6, 0, D * F * 2)
    srd(e, 20, 36, H_OFF, H_SIZE)
    srd(e, 24, 36, UR_OFF, UR_SIZE)
    srd(e, 28, 40, 0, D * S * 2)
    srd(e, 32, 36, ZT_OFF, ZT_SIZE)
    e("s_lshl_b32 s53, s44, 12")
    e("s_lshl_b32 s54, s44, 11")
    e("s_add_u32 s54, s54, 16384")
    e("s_mov_b32 s55, 0")
    e("s_mov_b32 s56, 0")
    e("s_mov_b32 s57, 27648")

    def dma_list(st):
        g = []
        sb = st * G1_STAGE
        g.append([f"s_add_u32 m0, s53, {sb}", "s_nop 0", "buffer_load_dwordx4 v3, s[8:11], s55 offen lds"])
        for i in range(1, 4):
            g.append([f"buffer_load_dwordx4 v3, s[8:11], s55 offen offset:{1024*i} lds"])
        g.append([f"s_add_u32 m0, s54, {sb}", "s_add_u32 s55, s55, 16384", "buffer_load_dwordx4 v4, s[12:15], s56 offen lds"])
        g.append(["buffer_load_dwordx4 v4, s[12:15], s57 offen offset:1024 lds"])
        g.append([f"s_add_u32 m0, s54, {sb+8192}", "s_nop 0", "buffer_load_dwordx4 v4, s[16:19], s56 offen lds"])
        g.append(["buffer_load_dwordx4 v4, s[16:19], s57 offen offset:1024 lds",
                  "s_add_u32 s56, s56, 229376", "s_add_u32 s57, s57, 229376"])
        return g

    def read_list(st, fs):
        r = []
        hi = st >= 2
        so = (st & 1) * G1_STAGE
        fa = FA[fs]
        order = []
        for ai in range(7):
            t = ai % 3 if ai < 6 else 3
            m = (ai // 3) if ai < 6 else 0
            ar = (14 if hi else 10) + t
            for h in range(2):
                order.append(("A", ai, f"ds_read_b64_tr_b16 {a(fa+4*ai+2*h,2)}, v{ar} offset:{so + m*8192 + h*1024}"))
        bl = [f"ds_read_b128 {a(fa+28+4*j,4)}, v{9 if hi else 8} offset:{so + j*1024}" for j in range(8)]
        al = [x[2] for x in order]
        r = bl[:1] + al[:2] + bl[1:] + al[2:]
        return r

    def mfma_list(fs):
        fa = FA[fs]
        return [f"v_mfma_f32_16x16x32_bf16 {v(acc(ai,j),4)}, {a(fa+4*ai,4)}, {a(fa+28+4*j,4)}, {v(acc(ai,j),4)}"
                for ai in range(7) for j in range(8)]

    for st in range(4):
        for grp in dma_list(st):
            for x in grp:
                e(x)
    for i in range(224):
        e(f"v_mov_b32 v{ACC+i}, 0")
    e("s_waitcnt vmcnt(24)")
    e("s_barrier")
    for x in read_list(0, 0):
        e(x)

    def body(st, do_read, do_dma, vm):
        fs = st & 1
        e(f"s_waitcnt vmcnt({vm}) lgkmcnt(0)")
        e("s_barrier")
        fill = []
        if do_read:
            fill += [[x] for x in read_list((st + 1) % 4, 1 - fs)]
        if do_dma:
            fill += dma_list(st)
        mf = mfma_list(fs)
        slots = {}
        k = 0
        nread = 22 if do_read else 0
        for i in range(nread):
            slots.setdefault(i, []).extend(fill[i])
        rest = fill[nread:]
        for i, grp in enumerate(rest):
            slots.setdefault(23 + 4 * i, []).extend(grp)
        for i, m in enumerate(mf):
            e(m)
            for x in slots.get(i, []):
                e(x)

    e("s_mov_b32 s58, 0")
    e.label("L_g1_loop")
    for st in range(4):
        body(st, True, True, 16)
    e("s_add_u32 s58, s58, 1")
    e("s_cmp_lt_u32 s58, 7")
    e("s_cbranch_scc1 L_g1_loop")
    body(0, True, False, 16)
    body(1, True, False, 8)
    body(2, True, False, 0)
    body(3, False, False, 0)

    e.c("conv: channel = 4*wg + wave")
    e("s_lshl_b32 s59, s2, 2")
    e("s_add_u32 s59, s59, s44")
    e(f"s_mul_i32 s60, s44, {CV_SIZE}")
    e(f"s_mul_i32 s61, s59, {UR_PITCH}")
    e("s_lshl_b32 s62, s59, 12")
    e("s_lshr_b32 s63, s59, 1")
    e("s_lshl_b32 s63, s63, 2")
    e("s_load_dword s64, s[42:43], s63")
    e(f"s_add_u32 m0, s60, {CV_H}")
    e("s_nop 0")
    for i in range(4):
        e(f"buffer_load_dwordx4 v2, s[28:31], s62 offen offset:{1024*i} lds")
    for c in (0, 2, 1, 3):
        e(f"s_add_u32 m0, s60, {c*CV_CP}")
        e(f"s_add_u32 s65, s61, {2*c}")
        for i in range(4):
            e(f"buffer_load_dwordx4 v2, s[24:27], s65 offen offset:{1024*i} lds")
    e("v_and_b32 v3, 15, v0")
    e("v_lshrrev_b32 v4, 2, v3")
    e(f"v_mul_u32_u24 v4, {CV_CP}, v4")
    e("v_and_b32 v3, 3, v3")
    e("v_lshl_add_u32 v4, v3, 4, v4")
    e("v_add_u32 v4, 4096, v4")
    e(f"v_add_u32 v3, {CV_HZ}, v2")
    e("v_cmp_gt_u32 vcc, 32, v0")
    for i in range(4):
        e(f"v_mov_b32 v{20+i}, 0")
    e("v_cndmask_b32 v3, v4, v3, vcc")
    e("v_add_u32 v3, s60, v3")
    e("ds_write_b128 v3, v[20:23]")

    e.c("SwiGLU epilogue")
    e("s_lshl_b32 s50, s47, 4")
    e("s_lshl_b32 s51, s48, 3")
    e("s_add_u32 s50, s50, s51")
    e(f"s_mul_i32 s50, s50, {H_SB}")
    e("v_add_u32 v3, s50, v2")
    e("v_and_b32 v4, 31, v0")
    e("v_lshlrev_b32 v4, 4, v4")
    e("s_lshl_b32 s51, s49, 9")
    e("s_add_u32 s51, s51, s50")
    e("v_add_u32 v4, s51, v4")
    e("v_lshrrev_b32 v5, 5, v0")
    e(f"v_mul_u32_u24 v5, {H_SB}, v5")
    e("v_add_u32 v4, v4, v5")
    e("s_mul_i32 s50, s46, 7")
    e("s_lshl_b32 s51, s49, 2")
    for t in range(4):
        if t < 3:
            e(f"s_add_u32 s52, s50, s51")
            e(f"s_add_u32 s52, s52, {t}")
        else:
            e("s_add_u32 s52, s50, 3")
        e(f"s_lshr_b32 s{66+t}, s52, 1")
        e(f"s_lshl_b32 s{66+t}, s{66+t}, 10")
        e("s_and_b32 s52, s52, 1")
        e("s_lshl_b32 s52, s52, 3")
        e(f"s_add_u32 s{66+t}, s{66+t}, s52")
    e("v_mov_b32 v6, 0xbfb8aa3b")
    e("v_mov_b32 v7, 0xbfb8aa3b")
    e("v_mov_b32 v8, 1.0")
    e("v_mov_b32 v9, 1.0")
    e("s_nop 7")

    def swiglu(g, u, tmp, out):
        for q in range(2):
            e(f"v_pk_mul_f32 {v(tmp+2*q,2)}, {v(g+2*q,2)}, v[6:7]")
        for q in range(4):
            e(f"v_exp_f32 v{tmp+q}, v{tmp+q}")
        for q in range(2):
            e(f"v_pk_mul_f32 {v(g+2*q,2)}, {v(g+2*q,2)}, {v(u+2*q,2)}")
        for q in range(2):
            e(f"v_pk_add_f32 {v(tmp+2*q,2)}, {v(tmp+2*q,2)}, v[8:9]")
        for q in range(4):
            e(f"v_rcp_f32 v{tmp+q}, v{tmp+q}")
        e("s_nop 0")
        for q in range(2):
            e(f"v_pk_mul_f32 {v(g+2*q,2)}, {v(g+2*q,2)}, {v(tmp+2*q,2)}")
        for q in range(2):
            e(f"v_cvt_pk_bf16_f32 v{out+q}, v{g+2*q}, v{g+2*q+1}")

    n = 0
    for t in range(3):
        for j in range(8):
            o = 24 + 2 * (n % 4)
            swiglu(acc(t, j), acc(3 + t, j), 10 + 4 * (n % 2), o)
            e(f"s_add_u32 s52, s{66+t}, {j*H_SB}")
            e(f"buffer_store_dwordx2 {v(o,2)}, v3, s[20:23], s52 offen")
            n += 1
    for j in range(0, 8, 2):
        X, Y = acc(6, j), acc(6, j + 1)
        for r in range(4):
            e(f"v_permlane32_swap_b32 v{X+r}, v{Y+r}")
        e("s_nop 1")
        o = 24 + 2 * (n % 4)
        swiglu(X, Y, 10 + 4 * (n % 2), o)
        e(f"s_add_u32 s52, s69, {j*H_SB}")
        e(f"buffer_store_dwordx2 {v(o,2)}, v4, s[20:23], s52 offen")
        n += 1

    e.c("long conv")
    CA = 32
    e("v_and_b32 v3, 15, v0")
    e("v_lshrrev_b32 v5, 4, v0")
    e("v_and_b32 v4, 3, v3")
    e("v_sub_u32 v4, 3, v4")
    e(f"v_mul_u32_u24 v10, {CV_CP}, v4")
    e("v_and_b32 v4, 12, v3")
    e("v_lshlrev_b32 v4, 1, v4")
    e("v_sub_u32 v10, v10, v4")
    e("v_lshl_add_u32 v10, v5, 4, v10")
    e(f"s_add_u32 s50, s60, {2*2028 - 3584}")
    e("v_add_u32 v10, s50, v10")
    e("v_lshlrev_b32 v11, 5, v3")
    e("v_lshl_add_u32 v11, v5, 4, v11")
    e(f"s_add_u32 s50, s60, {CV_H - 32}")
    e("v_add_u32 v11, s50, v11")
    for i in range(32):
        e(f"v_mov_b32 v{CA+i}, 0")
    e("s_waitcnt vmcnt(28) lgkmcnt(0)")
    e("s_mov_b32 s58, 0")
    e.label("L_cv_loop")
    for i in range(8):
        e(f"ds_read_b128 {a(32+4*i,4)}, v11 offset:{512*i}")
        e(f"ds_read_b64 {a(4*i,2)}, v10 offset:{(7-i)*512}")
        e(f"ds_read_b64 {a(4*i+2,2)}, v10 offset:{(7-i)*512+8}")
    e("v_subrev_u32 v10, 64, v10")
    e("v_subrev_u32 v11, 64, v11")
    for mx in range(8):
        rem = 3 * (7 - mx)
        e(f"s_waitcnt lgkmcnt({min(rem,15)})")
        prs = [(p, w) for p in range(mx + 1) for w in range(mx + 1) if max(p, w) == mx and p + w <= 7]
        for p, w in prs:
            i = p + w
            e(f"v_mfma_f32_16x16x32_bf16 {v(CA+4*i,4)}, {a(4*p,4)}, {a(32+4*w,4)}, {v(CA+4*i,4)}")
    e("s_add_u32 s58, s58, 1")
    e("s_cmp_lt_u32 s58, 8")
    e("s_cbranch_scc1 L_cv_loop")
    e("v_lshlrev_b32 v12, 5, v3")
    e("v_lshl_add_u32 v12, v5, 3, v12")
    e(f"s_add_u32 s50, s60, {2*2044 - 3584}")
    e("v_sub_u32 v13, s50, v12")
    for i in range(8):
        e(f"ds_read_b64 {v(64+2*i,2)}, v13 offset:{(7-i)*512}")
    e("s_and_b32 s50, s59, 1")
    e("s_lshl_b32 s50, s50, 4")
    e("s_lshr_b32 s64, s64, s50")
    e("s_lshl_b32 s64, s64, 16")
    e("s_waitcnt lgkmcnt(0)")
    for i in range(8):
        u0, u1 = 64 + 2 * i, 64 + 2 * i + 1
        y = CA + 4 * i
        e(f"v_and_b32 v14, 0xffff0000, v{u1}")
        e(f"v_lshlrev_b32 v15, 16, v{u1}")
        e(f"v_and_b32 v16, 0xffff0000, v{u0}")
        e(f"v_lshlrev_b32 v17, 16, v{u0}")
        for q in range(4):
            e(f"v_fmac_f32 v{y+q}, s64, v{14+q}")
        e(f"v_cvt_pk_bf16_f32 v{u0}, v{y}, v{y+1}")
        e(f"v_cvt_pk_bf16_f32 v{u1}, v{y+2}, v{y+3}")
        e(f"buffer_store_dwordx2 {v(u0,2)}, v12, s[32:35], s62 offen offset:{512*i}")
    e.label("L_g1_end")
    return kernel_wrap("gemm1_kernel", e.text(), 256 + 120, 256)


G2_WREG = 24576
G2_Z = 4 * G2_WREG
G2_LDS = G2_Z + 16384


def gen_gemm2(opt):
    e = E()
    ACC = 64
    def acc(dt, jj):
        return ACC + (jj * 4 + dt) * 4
    e("s_cmp_ge_u32 s2, 256")
    e("s_cbranch_scc1 L_g2_end")
    e(f"s_load_dwordx4 s[4:7], s[0:1], {KA_WD}")
    e(f"s_load_dwordx2 s[36:37], s[0:1], {KA_WS}")
    e(f"s_load_dwordx2 s[38:39], s[0:1], {KA_Q}")
    e("v_lshrrev_b32 v1, 6, v0")
    e("v_and_b32 v0, 63, v0")
    e("v_readfirstlane_b32 s44, v1")
    e("s_and_b32 s45, s2, 7")
    e("s_lshr_b32 s46, s2, 3")
    e("s_lshr_b32 s47, s45, 1")
    e("s_lshl_b32 s47, s47, 2")
    e("s_and_b32 s48, s46, 3")
    e("s_add_u32 s47, s47, s48")
    e("s_and_b32 s48, s45, 1")
    e("s_lshl_b32 s48, s48, 3")
    e("s_lshr_b32 s46, s46, 2")
    e("s_add_u32 s46, s46, s48")
    e("v_lshlrev_b32 v2, 4, v0")
    e("s_lshl_b32 s49, s44, 1")
    e("s_lshl_b32 s50, s47, 3")
    for jj in range(8):
        e(f"s_add_u32 s51, s49, {jj}")
        e("s_and_b32 s51, s51, 7")
        e("s_add_u32 s51, s51, s50")
        e(f"s_mul_i32 s51, s51, {H_SB}")
        e(f"v_add_u32 v{8+jj}, s51, v2")
    e("v_lshrrev_b32 v3, 3, v0")
    e("v_bfe_u32 v4, v0, 1, 2")
    e("v_lshrrev_b32 v5, 4, v0")
    e("v_xor_b32 v4, v4, v5")
    e("v_and_b32 v6, 1, v0")
    e("v_lshlrev_b32 v16, 11, v3")
    e("v_lshl_add_u32 v16, v4, 5, v16")
    e("v_lshl_add_u32 v16, v6, 4, v16")
    e("s_lshl_b32 s51, s46, 7")
    e("v_add_u32 v16, s51, v16")
    for jj in range(1, 4):
        e(f"v_add_u32 v{16+jj}, {15360*jj}, v16")
    e(f"s_mul_i32 s52, s44, {G2_WREG}")
    e("v_bfe_u32 v6, v0, 2, 2")
    e("v_and_b32 v7, 3, v0")
    e("v_lshl_add_u32 v3, v5, 2, v6")
    e("v_bfe_u32 v4, v3, 1, 2")
    e("v_lshlrev_b32 v3, 7, v3")
    e("v_lshl_add_u32 v3, v7, 3, v3")
    e("v_add_u32 v3, s52, v3")
    for dt in range(4):
        e(f"v_xor_b32 v24, {dt}, v4")
        e(f"v_lshl_add_u32 v{20+dt}, v24, 5, v3")
    e("s_waitcnt lgkmcnt(0)")
    srd(e, 8, 36, H_OFF, H_SIZE)
    srd(e, 12, 4, 0, F * D * 2)
    srd(e, 16, 6, 0, S * D * 2)
    srd(e, 20, 36, XN_OFF, XN_SIZE)
    srd(e, 24, 36, ZT_OFF, ZT_SIZE)
    srd(e, 28, 38, 0, S * D * 2)
    e("s_lshl_b32 s53, s44, 10")
    e("s_lshl_b32 s54, s44, 16")

    def dma(slot):
        r = [[f"s_add_u32 m0, s52, {slot*4096}", "s_nop 0", "buffer_load_dwordx4 v16, s[12:15], s54 offen lds"]]
        for jj in range(1, 4):
            r.append([f"buffer_load_dwordx4 v{16+jj}, s[12:15], s54 offen offset:{1024*jj} lds"])
        r[-1].append("s_add_u32 s54, s54, 0x40000")
        return r

    def hload(slot, jj):
        r = [f"buffer_load_dwordx4 {a(slot*32+4*jj,4)}, v{8+jj}, s[8:11], s53 offen"]
        if jj == 7:
            r.append("s_add_u32 s53, s53, 4096")
        return r

    def trreads(slot, fs):
        return [f"ds_read_b64_tr_b16 {a(128+16*fs+4*dt+2*h,2)}, v{20+dt} offset:{slot*4096+h*2048}"
                for dt in range(4) for h in range(2)]

    for sl in range(4):
        for grp in dma(sl):
            for x in grp:
                e(x)
        for jj in range(8):
            for x in hload(sl, jj):
                e(x)
    for i in range(128):
        e(f"v_mov_b32 v{ACC+i}, 0")
    e("s_waitcnt vmcnt(44)")
    for x in trreads(0, 0):
        e(x)

    def body(sl, vm, do_read, do_load, extra=None):
        fs = sl & 1
        e(f"s_waitcnt vmcnt({vm}) lgkmcnt(0)")
        slots = {}
        if do_read:
            for i, x in enumerate(trreads((sl + 1) % 4, 1 - fs)):
                slots.setdefault(4 + i, []).append(x)
        if do_load:
            for i, grp in enumerate(dma(sl)):
                slots.setdefault(i, []).extend(grp)
            for jj in range(8):
                slots.setdefault(4 * jj + 3, []).extend(hload(sl, jj))
        if extra:
            for i, grp in enumerate(extra):
                slots.setdefault(2 * i, []).extend(grp)
        n = 0
        for jj in range(8):
            for dt in range(4):
                e(f"v_mfma_f32_16x16x32_bf16 {v(acc(dt,jj),4)}, {a(128+16*fs+4*dt,4)}, {a(sl*32+4*jj,4)}, {v(acc(dt,jj),4)}")
                for x in slots.get(n, []):
                    e(x)
                n += 1

    e("s_mov_b32 s58, 0")
    e.label("L_g2_loop")
    for sl in range(4):
        body(sl, 32, True, True)
    e("s_add_u32 s58, s58, 1")
    e("s_cmp_lt_u32 s58, 6")
    e("s_cbranch_scc1 L_g2_loop")
    e("v_and_b32 v3, 15, v0")
    e("v_and_b32 v6, 1, v5")
    e("v_lshrrev_b32 v7, 1, v5")
    e("v_lshl_or_b32 v6, v6, 1, v7")
    e("s_add_u32 s55, s50, s49")
    e("s_lshl_b32 s56, s55, 15")
    e("s_add_u32 s56, s56, s51")
    e("v_lshlrev_b32 v24, 11, v3")
    e("v_lshl_add_u32 v24, v6, 4, v24")
    e("v_add_u32 v24, s56, v24")
    e("v_add_u32 v25, 0x8000, v24")
    e("s_lshr_b32 s56, s55, 4")
    e("s_lshl_b32 s56, s56, 19")
    e("s_and_b32 s57, s55, 15")
    e("s_lshl_b32 s57, s57, 10")
    e("s_add_u32 s56, s56, s57")
    e("s_lshl_b32 s57, s46, 15")
    e("s_add_u32 s56, s56, s57")
    e("v_lshlrev_b32 v26, 4, v3")
    e("v_lshl_add_u32 v26, v6, 8, v26")
    e("v_add_u32 v26, s56, v26")
    e("v_add_u32 v27, 0x4000, v26")
    e("s_lshl_b32 s56, s46, 6")
    e("s_lshl_b32 s57, s44, 4")
    e("s_add_u32 s56, s56, s57")
    e("s_lshl_b32 s56, s56, 12")
    e("s_lshl_b32 s57, s47, 8")
    e("s_add_u32 s56, s56, s57")
    e("v_lshlrev_b32 v28, 12, v5")
    e("v_lshl_add_u32 v28, v3, 4, v28")
    e("v_add_u32 v28, s56, v28")
    e("s_lshl_b32 s57, s44, 12")
    e(f"s_add_u32 s57, s57, {G2_Z}")
    XR, NR = 192, 208
    extra = [["s_mov_b32 m0, s57", "s_nop 0", "buffer_load_dwordx4 v28, s[24:27], 0 offen lds"]]
    for i in range(1, 4):
        extra.append([f"s_mov_b32 s59, {i*(16384-1024)}", f"buffer_load_dwordx4 v28, s[24:27], s59 offen offset:{1024*i} lds"])
    for e2 in range(2):
        for pr in range(2):
            extra.append([f"buffer_load_dwordx4 {v(XR+4*(2*e2+pr),4)}, v{24+e2}, s[28:31], 0 offen offset:{64*pr}"])
            extra.append([f"buffer_load_dwordx4 {v(NR+4*(2*e2+pr),4)}, v{26+pr}, s[20:23], 0 offen offset:{1024*e2}"])
    body(0, 32, True, False, extra)
    body(1, 20 + 12, True, False)
    body(2, 8 + 12, True, False)
    body(3, 12, False, False)
    e.c("cross-wave reduction")
    e("v_add_u32 v3, s52, v2")
    e("s_nop 7")
    for jj in range(2, 8):
        for dt in range(4):
            e(f"ds_write_b128 v3, {v(acc(dt,jj),4)} offset:{((jj-2)*4+dt)*1024}")
    for dl in range(1, 4):
        e(f"s_sub_u32 s56, s44, {dl}")
        e("s_and_b32 s56, s56, 3")
        e(f"s_mul_i32 s56, s56, {G2_WREG}")
        e(f"s_add_u32 s56, s56, {(2*dl-2)*4096}")
        e(f"v_add_u32 v{28+dl}, s56, v2")
    e("v_bfe_u32 v7, v0, 2, 2")
    e("v_lshl_add_u32 v7, v6, 3, v7")
    e("v_lshlrev_b32 v7, 8, v7")
    e("v_and_b32 v4, 3, v0")
    e("v_lshl_add_u32 v7, v4, 3, v7")
    e("s_lshl_b32 s56, s44, 6")
    e(f"s_add_u32 s56, s56, {G2_Z}")
    e("v_add_u32 v7, s56, v7")
    e("s_waitcnt vmcnt(0) lgkmcnt(0)")
    e("s_barrier")
    RB = ACC + 32
    for dl in range(1, 4):
        for q in range(8):
            e(f"ds_read_b128 {v(RB+((dl-1)*8+q)*4,4)}, v{28+dl} offset:{q*1024}")
        if dl > 1:
            e("s_waitcnt lgkmcnt(8)")
            for q in range(16):
                e(f"v_pk_add_f32 {v(ACC+2*q,2)}, {v(ACC+2*q,2)}, {v(RB+(dl-2)*32+2*q,2)}")
    ZR = 224
    e("s_waitcnt lgkmcnt(0)")
    for e2 in range(2):
        for pr in range(2):
            for hh in range(2):
                e(f"ds_read_b64_tr_b16 {v(ZR+4*(2*e2+pr)+2*hh,2)}, v7 offset:{(32*pr+4*hh)*256 + 32*e2}")
    for q in range(16):
        e(f"v_pk_add_f32 {v(ACC+2*q,2)}, {v(ACC+2*q,2)}, {v(RB+64+2*q,2)}")
    e("s_nop 1")
    for e2 in range(2):
        for pr in range(2):
            for r in range(4):
                e(f"v_permlane16_swap_b32 v{acc(2*pr,e2)+r}, v{acc(2*pr+1,e2)+r}")
    e("s_waitcnt lgkmcnt(0)")
    for e2 in range(2):
        for pr in range(2):
            i = 2 * e2 + pr
            A0 = acc(2 * pr, e2)
            for q in range(4):
                unpack(e, 32, XR + 4 * i + q)
                unpack(e, 34, NR + 4 * i + q)
                unpack(e, 36, ZR + 4 * i + q)
                e("v_pk_fma_f32 v[32:33], v[34:35], v[36:37], v[32:33]")
                e(f"v_pk_add_f32 v[32:33], v[32:33], {v(A0+2*q,2)}")
                e(f"v_cvt_pk_bf16_f32 v{40+4*i+q}, v32, v33")
            e(f"buffer_store_dwordx4 {v(40+4*i,4)}, v{24+e2}, s[16:19], 0 offen offset:{64*pr}")
    e.label("L_g2_end")
    return kernel_wrap("gemm2_kernel", e.text(), 256 + 160, 256)


def main(opt=None):
    opt = opt or {}
    ref = open("cdna_kernels/" + NAME + ".s.ref").read().split("\n")
    hdr = [l for l in ref if l.startswith(";") and "@launch" not in l and "Override" not in l and "grid=ceil" not in l]
    out = "\n".join(hdr) + "\n"
    out += "; @launch kernel=prep_kernel grid=(512,1,1) block=(256,1,1) lds=18432\n"
    out += f"; @launch kernel=gemm1_kernel grid=(256,1,1) block=(256,1,1) lds={G1_STAGE*G1_NST}\n"
    out += f"; @launch kernel=gemm2_kernel grid=(256,1,1) block=(256,1,1) lds={G2_LDS}\n"
    out += '.amdgcn_target "amdgcn-amd-amdhsa--gfx950"\n.text\n'
    out += gen_prep() + gen_gemm1(opt) + gen_gemm2(opt)
    return out


if __name__ == "__main__":
    path = sys.argv[1] if len(sys.argv) > 1 else "cdna_kernels/" + NAME + ".s"
    open(path, "w").write(main())
    print("wrote", path)
```

```python
import sys

NAME = "parallel_sum__ssm_conv_h3__swiglu_ffn__prompt"
S, D, F = 2048, 1024, 3584

KA_Q, KA_K, KA_V, KA_SHK, KA_SSMK, KA_SSMD, KA_BX, KA_WG, KA_WU, KA_WD, KA_OUT, KA_DBG, KA_WS = [8 * i for i in range(13)]

XN_OFF = 0
XN_SIZE = S * D * 2
UR_OFF = 4 << 20
UR_PITCH = 4096 + 128
UR_SIZE = D * UR_PITCH
ZT_OFF = 9 << 20
ZT_SIZE = S * D * 2
H_OFF = 16 << 20
H_SIZE = S * F * 2
H_SB = 112 * 1024


class E:
    def __init__(self):
        self.l = []

    def __call__(self, s):
        for ln in s.strip("\n").split("\n"):
            self.l.append("    " + ln.strip())

    def label(self, s):
        self.l.append(s + ":")

    def c(self, s):
        self.l.append("    ; " + s)

    def text(self):
        return "\n".join(self.l) + "\n"


def v(i, n=1):
    return f"v{i}" if n == 1 else f"v[{i}:{i+n-1}]"


def a(i, n=1):
    return f"a{i}" if n == 1 else f"a[{i}:{i+n-1}]"


def s(i, n=1):
    return f"s{i}" if n == 1 else f"s[{i}:{i+n-1}]"


def srd(e, d, base, off, size):
    if off:
        e(f"s_add_u32 s{d}, s{base}, 0x{off:x}")
        e(f"s_addc_u32 s{d+1}, s{base+1}, 0")
    else:
        e(f"s_mov_b32 s{d}, s{base}")
        e(f"s_mov_b32 s{d+1}, s{base+1}")
    e(f"s_mov_b32 s{d+2}, 0x{size:x}")
    e(f"s_mov_b32 s{d+3}, 0x20000")


STAMP_OFF = 64 << 20
STAMPS = False


def stamp(e, i):
    if not STAMPS:
        return
    e("s_memrealtime s[96:97]")
    e("s_memtime s[98:99]")
    e("s_waitcnt lgkmcnt(0)")
    e(f"s_mov_b32 s{76+2*i}, s96")
    e(f"s_mov_b32 s{77+2*i}, s98")


def stamp_flush(e, kid, wsreg, n):
    if not STAMPS:
        return
    srd(e, 96, wsreg, STAMP_OFF + (kid << 20), 1 << 20)
    e("s_lshl_b32 s100, s2, 3")
    e("s_add_u32 s100, s100, s44")
    e("s_lshl_b32 s100, s100, 7")
    e("v_mov_b32 v1, 0")
    for i in range(2 * n):
        e(f"v_mov_b32 v2, s{76+i}")
        e(f"buffer_store_dword v2, v1, s[96:99], s100 offen offset:{4*i}")


def kernel_wrap(name, body, vgpr, accum, sgpr=102):
    return f""".globl {name}
.p2align 8
.type {name},@function
{name}:
{body}    s_endpgm
.section .rodata,"a"
.p2align 6
.amdhsa_kernel {name}
  .amdhsa_next_free_vgpr {vgpr}
  .amdhsa_next_free_sgpr {sgpr}
  .amdhsa_accum_offset {accum}
  .amdhsa_group_segment_fixed_size 0
  .amdhsa_kernarg_size 104
  .amdhsa_user_sgpr_count 2
  .amdhsa_user_sgpr_kernarg_segment_ptr 1
  .amdhsa_system_sgpr_workgroup_id_x 1
  .amdhsa_float_denorm_mode_32 3
.end_amdhsa_kernel
.text
"""


def unpack(e, dst, src):
    e(f"v_lshlrev_b32 v{dst}, 16, v{src}")
    e(f"v_and_b32 v{dst+1}, 0xffff0000, v{src}")


def allreduce32(e, r, t):
    e("s_nop 1")
    for m in ("quad_perm:[1,0,3,2]", "quad_perm:[2,3,0,1]", "row_half_mirror", "row_mirror"):
        e(f"v_add_f32_dpp v{r}, v{r}, v{r} {m} row_mask:0xf bank_mask:0xf")
        e("s_nop 1")
    e(f"v_mov_b32 v{t}, v{r}")
    e("s_nop 1")
    e(f"v_permlane16_swap_b32 v{r}, v{t}")
    e("s_nop 1")
    e(f"v_add_f32 v{r}, v{r}, v{t}")


def round_bf16(e, r):
    e(f"v_cvt_pk_bf16_f32 v{r}, v{r}, v{r}")
    e(f"v_lshlrev_b32 v{r}, 16, v{r}")


def gen_prep():
    e = E()
    e("s_cmp_ge_u32 s2, 512")
    e("s_cbranch_scc1 L_prep_end")
    e(f"s_load_dwordx4 s[4:7], s[0:1], {KA_Q}")
    e(f"s_load_dwordx4 s[8:11], s[0:1], {KA_V}")
    e(f"s_load_dwordx2 s[12:13], s[0:1], {KA_WS}")
    e("s_cmp_ge_u32 s2, 256")
    e("s_cbranch_scc1 L_prep_ln")
    e.c("kv tile: st = wg & 31 (64 rows), dt = wg >> 5 (128 ch)")
    e("s_and_b32 s14, s2, 31")
    e("s_lshr_b32 s15, s2, 5")
    e("v_and_b32 v1, 15, v0")
    e("v_lshrrev_b32 v2, 4, v0")
    e("s_lshl_b32 s16, s14, 17")
    e("s_lshl_b32 s17, s15, 8")
    e("s_add_u32 s16, s16, s17")
    e("v_lshlrev_b32 v3, 13, v2")
    e("v_lshl_add_u32 v3, v1, 4, v3")
    e("v_add_u32 v3, s16, v3")
    e("v_add_u32 v4, 0xffffe000, v3")
    e("v_add_u32 v5, 0xfffff000, v3")
    e("v_add_u32 v6, 0x1000, v3")
    e("v_lshlrev_b32 v7, 6, v1")
    e("s_lshl_b32 s17, s15, 10")
    e("v_add_u32 v7, s17, v7")
    e("s_waitcnt lgkmcnt(0)")
    srd(e, 20, 6, 0, S * D * 2)
    srd(e, 24, 8, 0, S * D * 2)
    srd(e, 28, 10, 0, D * 8)
    srd(e, 32, 12, UR_OFF, UR_SIZE)
    KR = 16
    VR = 44
    WR = 60
    kaddr = [(4, 2048), (5, 0), (5, 2048), (3, 0), (3, 2048), (6, 0), (6, 2048)]
    for i in range(4):
        e(f"buffer_load_dwordx4 {v(WR+4*i,4)}, v7, s[28:31], 0 offen offset:{16*i}")
    for i, (r, o) in enumerate(kaddr):
        e(f"buffer_load_dwordx4 {v(KR+4*i,4)}, v{r}, s[20:23], 0 offen offset:{o}")
    for i, (r, o) in enumerate(kaddr[3:]):
        e(f"buffer_load_dwordx4 {v(VR+4*i,4)}, v{r}, s[24:27], 0 offen offset:{o}")
    PITCH = 288
    e(f"v_mul_u32_u24 v8, {4*PITCH}, v2")
    e("v_lshl_add_u32 v8, v1, 4, v8")
    WF = 80
    KF = 88
    VF = 102
    AC = 104
    OUT = 108
    e("s_waitcnt vmcnt(0)")
    for p in range(4):
        c0, c1 = WR + 4 * p, WR + 4 * p + 2
        for j in range(4):
            d0, d1 = c0 + (j >> 1), c1 + (j >> 1)
            if j & 1:
                e(f"v_and_b32 v{WF+2*j}, 0xffff0000, v{d0}")
                e(f"v_and_b32 v{WF+2*j+1}, 0xffff0000, v{d1}")
            else:
                e(f"v_lshlrev_b32 v{WF+2*j}, 16, v{d0}")
                e(f"v_lshlrev_b32 v{WF+2*j+1}, 16, v{d1}")
        for i in range(7):
            unpack(e, KF + 2 * i, KR + 4 * i + p)
        for i in range(4):
            e(f"v_pk_mul_f32 {v(AC,2)}, {v(KF+2*i,2)}, {v(WF+6,2)}")
            for j in (2, 1, 0):
                e(f"v_pk_fma_f32 {v(AC,2)}, {v(KF+2*(i+3-j),2)}, {v(WF+2*j,2)}, {v(AC,2)}")
            unpack(e, VF, VR + 4 * i + p)
            e(f"v_pk_mul_f32 {v(AC,2)}, {v(AC,2)}, {v(VF,2)}")
            e(f"v_cvt_pk_bf16_f32 v{OUT+4*i+p}, v{AC}, v{AC+1}")
    for i in range(4):
        e(f"ds_write_b128 v8, {v(OUT+4*i,4)} offset:{i*PITCH}")
    e("v_and_b32 v1, 63, v0")
    e("v_lshrrev_b32 v2, 6, v0")
    e("v_lshrrev_b32 v3, 4, v1")
    e("v_bfe_u32 v4, v1, 2, 2")
    e("v_and_b32 v5, 3, v1")
    e("v_lshlrev_b32 v6, 3, v3")
    e("v_sub_u32 v6, v6, v4")
    e("v_add_u32 v6, 3, v6")
    e(f"v_mul_u32_u24 v6, {PITCH}, v6")
    e("v_lshl_add_u32 v6, v5, 3, v6")
    e("v_lshl_add_u32 v6, v2, 6, v6")
    e("v_and_b32 v7, 15, v1")
    e("v_lshl_add_u32 v7, v2, 5, v7")
    e("s_lshl_b32 s17, s15, 7")
    e("v_add_u32 v7, s17, v7")
    e(f"s_mov_b32 s18, {UR_PITCH}")
    e("v_mul_lo_u32 v7, v7, s18")
    e("v_mov_b32 v10, v7")
    e("s_lshl_b32 s17, s14, 7")
    e("s_sub_u32 s17, 4016, s17")
    e("v_add_u32 v7, s17, v7")
    e("v_lshlrev_b32 v9, 4, v3")
    e("v_sub_u32 v7, v7, v9")
    e(f"v_add_u32 v9, {16*UR_PITCH}, v7")
    e("s_waitcnt lgkmcnt(0)")
    e("s_barrier")
    T = 16
    n = 0
    for cb in range(2):
        for sh in range(2):
            base = sh * 32 * PITCH + cb * 32
            e(f"ds_read_b64_tr_b16 {v(T+4*n,2)}, v6 offset:{base + 4*PITCH}")
            e(f"ds_read_b64_tr_b16 {v(T+4*n+2,2)}, v6 offset:{base}")
            n += 1
    n = 0
    for cb in range(2):
        for sh in range(2):
            e(f"s_waitcnt lgkmcnt({6-2*n})")
            e(f"buffer_store_dwordx4 {v(T+4*n,4)}, v{9 if cb else 7}, s[32:35], 0 offen offset:{0 if sh else 64}")
            n += 1
    e("s_cmp_lg_u32 s14, 0")
    e("s_cbranch_scc1 L_prep_end")
    e("v_and_b32 v11, 1, v3")
    e(f"v_mul_u32_u24 v11, {16*UR_PITCH}, v11")
    e("v_add_u32 v10, v10, v11")
    e("v_add_u32 v10, 0x1000, v10")
    for i in range(4):
        e(f"v_mov_b32 v{40+i}, 0")
    e("buffer_store_dwordx4 v[40:43], v10, s[32:35], 0 offen")
    e("s_branch L_prep_end")
    e.label("L_prep_ln")
    e("s_sub_u32 s14, s2, 256")
    e("v_lshrrev_b32 v1, 5, v0")
    e("v_and_b32 v2, 31, v0")
    e("s_lshl_b32 s15, s14, 14")
    e("v_lshlrev_b32 v3, 11, v1")
    e("v_lshl_add_u32 v3, v2, 4, v3")
    e("v_add_u32 v3, s15, v3")
    e("s_waitcnt lgkmcnt(0)")
    srd(e, 20, 4, 0, S * D * 2)
    srd(e, 24, 12, XN_OFF, XN_SIZE)
    X = 16
    XF = 32
    for j in range(4):
        e(f"buffer_load_dwordx4 {v(X+4*j,4)}, v3, s[20:23], 0 offen offset:{512*j}")
    e("s_lshr_b32 s15, s14, 5")
    e("s_lshl_b32 s15, s15, 19")
    e("s_bfe_u32 s16, s14, 0x40001")
    e("s_lshl_b32 s16, s16, 10")
    e("s_add_u32 s15, s15, s16")
    e("s_and_b32 s16, s14, 1")
    e("s_lshl_b32 s16, s16, 7")
    e("s_add_u32 s15, s15, s16")
    e("v_lshrrev_b32 v4, 2, v2")
    e("v_lshlrev_b32 v4, 14, v4")
    e("v_and_b32 v5, 3, v2")
    e("v_lshl_add_u32 v4, v5, 8, v4")
    e("v_lshl_add_u32 v4, v1, 4, v4")
    e("v_add_u32 v4, s15, v4")
    e("s_waitcnt vmcnt(0)")
    for i in range(16):
        unpack(e, XF + 2 * i, X + i)
    e(f"v_pk_add_f32 v[6:7], {v(XF,2)}, {v(XF+2,2)}")
    for i in range(2, 16):
        e(f"v_pk_add_f32 v[6:7], v[6:7], {v(XF+2*i,2)}")
    e("v_add_f32 v6, v6, v7")
    allreduce32(e, 6, 7)
    e(f"v_mul_f32 v6, 0x{0x3a800000:x}, v6")
    e("v_sub_f32 v8, 0, v6")
    e("v_mov_b32 v9, v8")
    e(f"v_pk_add_f32 v[12:13], {v(XF,2)}, v[8:9]")
    e("v_pk_mul_f32 v[10:11], v[12:13], v[12:13]")
    for i in range(1, 16):
        e(f"v_pk_add_f32 v[12:13], {v(XF+2*i,2)}, v[8:9]")
        e("v_pk_fma_f32 v[10:11], v[12:13], v[12:13], v[10:11]")
    e("v_add_f32 v10, v10, v11")
    allreduce32(e, 10, 11)
    e(f"v_mul_f32 v10, 0x{0x3a800000:x}, v10")
    round_bf16(e, 10)
    e("v_add_f32 v10, 0x3727c5ac, v10")
    round_bf16(e, 10)
    e("v_sqrt_f32 v10, v10")
    e("s_nop 0")
    round_bf16(e, 10)
    e("v_rcp_f32 v10, v10")
    round_bf16(e, 8)
    e("v_mov_b32 v9, v8")
    e("v_mov_b32 v11, v10")
    for i in range(16):
        e(f"v_pk_add_f32 v[12:13], {v(XF+2*i,2)}, v[8:9]")
        e("v_cvt_pk_bf16_f32 v14, v12, v13")
        unpack(e, 12, 14)
        e("v_pk_mul_f32 v[12:13], v[12:13], v[10:11]")
        e(f"v_cvt_pk_bf16_f32 v{X+i}, v12, v13")
    for j in range(4):
        e(f"s_mov_b32 s16, {j*8*16384}")
        e(f"buffer_store_dwordx4 {v(X+4*j,4)}, v4, s[24:27], s16 offen")
    e.label("L_prep_end")
    return kernel_wrap("prep_kernel", e.text(), 128, 128)


G1_STAGE = 32768
G1_NST = 4
CV_CP = 4160
CV_HZ = 4 * CV_CP
CV_H = CV_HZ + 512
CV_SIZE = CV_H + 4096


def gen_gemm1(opt):
    e = E()
    ACC = 32
    def acc(ai, j):
        return ACC + (ai * 8 + j) * 4
    FA = [0, 60]
    e("s_cmp_ge_u32 s2, 256")
    e("s_cbranch_scc1 L_g1_end")
    stamp(e, 0)
    e(f"s_load_dwordx4 s[4:7], s[0:1], {KA_WG}")
    e(f"s_load_dwordx2 s[36:37], s[0:1], {KA_WS}")
    e(f"s_load_dwordx4 s[40:43], s[0:1], {KA_SSMK}")
    e("v_lshrrev_b32 v1, 6, v0")
    e("v_and_b32 v0, 63, v0")
    e("v_readfirstlane_b32 s44, v1")
    e("s_and_b32 s45, s2, 7")
    e("s_lshr_b32 s46, s2, 3")
    e("s_and_b32 s47, s46, 7")
    e("s_lshr_b32 s46, s46, 3")
    e("s_lshl_b32 s45, s45, 2")
    e("s_add_u32 s46, s46, s45")
    e("s_lshr_b32 s48, s44, 1")
    e("s_and_b32 s49, s44, 1")
    e("v_lshlrev_b32 v2, 4, v0")
    e("s_lshl_b32 s50, s47, 19")
    e("s_lshl_b32 s51, s44, 12")
    e("s_add_u32 s50, s50, s51")
    e("v_add_u32 v3, s50, v2")
    e("v_lshrrev_b32 v5, 4, v0")
    e("v_bfe_u32 v6, v0, 1, 3")
    e("s_lshl_b32 s51, s49, 2")
    e("v_or_b32 v7, s51, v5")
    e("v_xor_b32 v6, v6, v7")
    e("v_and_b32 v7, 1, v0")
    e("v_lshlrev_b32 v4, 5, v6")
    e("v_lshl_add_u32 v4, v7, 4, v4")
    e("s_lshl_b32 s51, s44, 3")
    e("v_add_u32 v7, s51, v5")
    e("v_mul_u32_u24 v7, 7168, v7")
    e("v_add_u32 v4, v4, v7")
    e("s_mul_i32 s51, s46, 224")
    e("v_add_u32 v4, s51, v4")
    e("v_cmp_eq_u32 vcc, 7, v6")
    e("v_mov_b32 v7, 0x80000000")
    e("s_nop 0")
    e("v_cndmask_b32 v4, v4, v7, vcc")
    e("s_lshl_b32 s51, s48, 13")
    e("v_add_u32 v8, s51, v2")
    e("v_add_u32 v9, 0x10000, v8")
    e("v_bfe_u32 v6, v0, 2, 2")
    e("v_and_b32 v7, 3, v0")
    e("v_lshl_add_u32 v18, v5, 3, v6")
    e("v_lshlrev_b32 v18, 8, v18")
    e("v_add_u32 v18, 16384, v18")
    e("v_and_b32 v19, 1, v5")
    e("v_lshl_or_b32 v19, v19, 2, v6")
    e("s_lshl_b32 s51, s49, 2")
    for t in range(3):
        e(f"s_add_u32 s52, s51, {t}")
        e("v_xor_b32 v20, s52, v19")
        e(f"v_lshl_add_u32 v{10+t}, v20, 5, v18")
        e(f"v_lshl_add_u32 v{10+t}, v7, 3, v{10+t}")
    e("v_xor_b32 v20, 3, v19")
    e("v_lshl_add_u32 v13, v20, 5, v18")
    e("v_and_b32 v20, 1, v7")
    e("v_lshl_add_u32 v13, v20, 3, v13")
    e("v_lshrrev_b32 v20, 1, v7")
    e("v_lshl_add_u32 v13, v20, 13, v13")
    e("s_lshl_b32 s51, s49, 4")
    e("v_add_u32 v13, s51, v13")
    for t in range(4):
        e(f"v_add_u32 v{14+t}, 0x10000, v{10+t}")
    e("s_waitcnt lgkmcnt(0)")
    srd(e, 8, 36, XN_OFF, XN_SIZE)
    srd(e, 12, 4, 0, D * F * 2)
    srd(e, 16, 6, 0, D * F * 2)
    srd(e, 20, 36, H_OFF, H_SIZE)
    srd(e, 24, 36, UR_OFF, UR_SIZE)
    srd(e, 28, 40, 0, D * S * 2)
    srd(e, 32, 36, ZT_OFF, ZT_SIZE)
    e("s_lshl_b32 s53, s44, 12")
    e("s_lshl_b32 s54, s44, 11")
    e("s_add_u32 s54, s54, 16384")
    e("s_mov_b32 s55, 0")
    e("s_mov_b32 s56, 0")
    e("s_mov_b32 s57, 27648")

    def dma_list(st):
        g = []
        sb = st * G1_STAGE
        g.append([f"s_add_u32 m0, s53, {sb}", "s_nop 0", "buffer_load_dwordx4 v3, s[8:11], s55 offen lds"])
        for i in range(1, 4):
            g.append([f"buffer_load_dwordx4 v3, s[8:11], s55 offen offset:{1024*i} lds"])
        g.append([f"s_add_u32 m0, s54, {sb}", "s_add_u32 s55, s55, 16384", "buffer_load_dwordx4 v4, s[12:15], s56 offen lds"])
        g.append(["buffer_load_dwordx4 v4, s[12:15], s57 offen offset:1024 lds"])
        g.append([f"s_add_u32 m0, s54, {sb+8192}", "s_nop 0", "buffer_load_dwordx4 v4, s[16:19], s56 offen lds"])
        g.append(["buffer_load_dwordx4 v4, s[16:19], s57 offen offset:1024 lds",
                  "s_add_u32 s56, s56, 229376", "s_add_u32 s57, s57, 229376"])
        return g

    def read_list(st, fs):
        r = []
        hi = st >= 2
        so = (st & 1) * G1_STAGE
        fa = FA[fs]
        order = []
        for ai in range(7):
            t = ai % 3 if ai < 6 else 3
            m = (ai // 3) if ai < 6 else 0
            ar = (14 if hi else 10) + t
            for h in range(2):
                order.append(("A", ai, f"ds_read_b64_tr_b16 {a(fa+4*ai+2*h,2)}, v{ar} offset:{so + m*8192 + h*1024}"))
        bl = [f"ds_read_b128 {a(fa+28+4*j,4)}, v{9 if hi else 8} offset:{so + j*1024}" for j in range(8)]
        al = [x[2] for x in order]
        r = bl[:1] + al[:2] + bl[1:] + al[2:]
        return r

    def mfma_list(fs):
        fa = FA[fs]
        return [f"v_mfma_f32_16x16x32_bf16 {v(acc(ai,j),4)}, {a(fa+4*ai,4)}, {a(fa+28+4*j,4)}, {v(acc(ai,j),4)}"
                for ai in range(7) for j in range(8)]

    for st in range(4):
        for grp in dma_list(st):
            for x in grp:
                e(x)
    for i in range(224):
        e(f"v_mov_b32 v{ACC+i}, 0")
    e("s_waitcnt vmcnt(24)")
    e("s_barrier")
    stamp(e, 1)
    for x in read_list(0, 0):
        e(x)
    if opt.get("noread"):
        e("s_waitcnt lgkmcnt(0)")
        for x in read_list(0, 1):
            e(x)

    def body(st, do_read, do_dma, vm):
        fs = st & 1
        if opt.get("noread"):
            do_read = False
        if opt.get("nodma"):
            do_dma = False
        e(f"s_waitcnt vmcnt({vm}) lgkmcnt(0)")
        e("s_barrier")
        fill = []
        if do_read:
            fill += [[x] for x in read_list((st + 1) % 4, 1 - fs)]
        if do_dma:
            fill += dma_list(st)
        mf = mfma_list(fs)
        slots = {}
        k = 0
        nread = 22 if do_read else 0
        for i in range(nread):
            slots.setdefault(i, []).extend(fill[i])
        rest = fill[nread:]
        for i, grp in enumerate(rest):
            slots.setdefault(23 + 4 * i, []).extend(grp)
        for i, m in enumerate(mf):
            e(m)
            for x in slots.get(i, []):
                e(x)

    e("s_mov_b32 s58, 0")
    e.label("L_g1_loop")
    for st in range(4):
        body(st, True, True, 16)
    e("s_add_u32 s58, s58, 1")
    e("s_cmp_lt_u32 s58, 7")
    e("s_cbranch_scc1 L_g1_loop")
    body(0, True, False, 16)
    body(1, True, False, 8)
    body(2, True, False, 0)
    body(3, False, False, 0)

    stamp(e, 2)
    e.c("conv: channel = 4*wg + wave")
    e("s_lshl_b32 s59, s2, 2")
    e("s_add_u32 s59, s59, s44")
    e(f"s_mul_i32 s60, s44, {CV_SIZE}")
    e(f"s_mul_i32 s61, s59, {UR_PITCH}")
    e("s_lshl_b32 s62, s59, 12")
    e("s_lshr_b32 s63, s59, 1")
    e("s_lshl_b32 s63, s63, 2")
    e("s_load_dword s64, s[42:43], s63")
    e(f"s_add_u32 m0, s60, {CV_H}")
    e("s_nop 0")
    for i in range(4):
        e(f"buffer_load_dwordx4 v2, s[28:31], s62 offen offset:{1024*i} lds")
    for c in (0, 2, 1, 3):
        e(f"s_add_u32 m0, s60, {c*CV_CP}")
        e(f"s_add_u32 s65, s61, {2*c}")
        for i in range(4):
            e(f"buffer_load_dwordx4 v2, s[24:27], s65 offen offset:{1024*i} lds")
    e("v_and_b32 v3, 15, v0")
    e("v_lshrrev_b32 v4, 2, v3")
    e(f"v_mul_u32_u24 v4, {CV_CP}, v4")
    e("v_and_b32 v3, 3, v3")
    e("v_lshl_add_u32 v4, v3, 4, v4")
    e("v_add_u32 v4, 4096, v4")
    e(f"v_add_u32 v3, {CV_HZ}, v2")
    e("v_cmp_gt_u32 vcc, 32, v0")
    for i in range(4):
        e(f"v_mov_b32 v{20+i}, 0")
    e("v_cndmask_b32 v3, v4, v3, vcc")
    e("v_add_u32 v3, s60, v3")
    e("ds_write_b128 v3, v[20:23]")

    e.c("SwiGLU epilogue")
    e("s_lshl_b32 s50, s47, 4")
    e("s_lshl_b32 s51, s48, 3")
    e("s_add_u32 s50, s50, s51")
    e(f"s_mul_i32 s50, s50, {H_SB}")
    e("v_add_u32 v3, s50, v2")
    e("v_and_b32 v4, 31, v0")
    e("v_lshlrev_b32 v4, 4, v4")
    e("s_lshl_b32 s51, s49, 9")
    e("s_add_u32 s51, s51, s50")
    e("v_add_u32 v4, s51, v4")
    e("v_lshrrev_b32 v5, 5, v0")
    e(f"v_mul_u32_u24 v5, {H_SB}, v5")
    e("v_add_u32 v4, v4, v5")
    e("s_mul_i32 s50, s46, 7")
    e("s_lshl_b32 s51, s49, 2")
    for t in range(4):
        if t < 3:
            e(f"s_add_u32 s52, s50, s51")
            e(f"s_add_u32 s52, s52, {t}")
        else:
            e("s_add_u32 s52, s50, 3")
        e(f"s_lshr_b32 s{66+t}, s52, 1")
        e(f"s_lshl_b32 s{66+t}, s{66+t}, 10")
        e("s_and_b32 s52, s52, 1")
        e("s_lshl_b32 s52, s52, 3")
        e(f"s_add_u32 s{66+t}, s{66+t}, s52")
    e("v_mov_b32 v6, 0xbfb8aa3b")
    e("v_mov_b32 v7, 0xbfb8aa3b")
    e("v_mov_b32 v8, 1.0")
    e("v_mov_b32 v9, 1.0")
    e("s_nop 7")

    def swiglu(g, u, tmp, out):
        for q in range(2):
            e(f"v_pk_mul_f32 {v(tmp+2*q,2)}, {v(g+2*q,2)}, v[6:7]")
        for q in range(4):
            e(f"v_exp_f32 v{tmp+q}, v{tmp+q}")
        for q in range(2):
            e(f"v_pk_mul_f32 {v(g+2*q,2)}, {v(g+2*q,2)}, {v(u+2*q,2)}")
        for q in range(2):
            e(f"v_pk_add_f32 {v(tmp+2*q,2)}, {v(tmp+2*q,2)}, v[8:9]")
        for q in range(4):
            e(f"v_rcp_f32 v{tmp+q}, v{tmp+q}")
        e("s_nop 0")
        for q in range(2):
            e(f"v_pk_mul_f32 {v(g+2*q,2)}, {v(g+2*q,2)}, {v(tmp+2*q,2)}")
        for q in range(2):
            e(f"v_cvt_pk_bf16_f32 v{out+q}, v{g+2*q}, v{g+2*q+1}")

    n = 0
    for t in range(3):
        for j in range(8):
            o = 24 + 2 * (n % 4)
            swiglu(acc(t, j), acc(3 + t, j), 10 + 4 * (n % 2), o)
            e(f"s_add_u32 s52, s{66+t}, {j*H_SB}")
            e(f"buffer_store_dwordx2 {v(o,2)}, v3, s[20:23], s52 offen")
            n += 1
    for j in range(0, 8, 2):
        X, Y = acc(6, j), acc(6, j + 1)
        for r in range(4):
            e(f"v_permlane32_swap_b32 v{X+r}, v{Y+r}")
        e("s_nop 1")
        o = 24 + 2 * (n % 4)
        swiglu(X, Y, 10 + 4 * (n % 2), o)
        e(f"s_add_u32 s52, s69, {j*H_SB}")
        e(f"buffer_store_dwordx2 {v(o,2)}, v4, s[20:23], s52 offen")
        n += 1

    stamp(e, 3)
    e.c("long conv")
    CA = 32
    e("v_and_b32 v3, 15, v0")
    e("v_lshrrev_b32 v5, 4, v0")
    e("v_and_b32 v4, 3, v3")
    e("v_sub_u32 v4, 3, v4")
    e(f"v_mul_u32_u24 v10, {CV_CP}, v4")
    e("v_and_b32 v4, 12, v3")
    e("v_lshlrev_b32 v4, 1, v4")
    e("v_sub_u32 v10, v10, v4")
    e("v_lshl_add_u32 v10, v5, 4, v10")
    e(f"s_add_u32 s50, s60, {2*2028 - 3584}")
    e("v_add_u32 v10, s50, v10")
    e("v_lshlrev_b32 v11, 5, v3")
    e("v_lshl_add_u32 v11, v5, 4, v11")
    e(f"s_add_u32 s50, s60, {CV_H - 32}")
    e("v_add_u32 v11, s50, v11")
    for i in range(32):
        e(f"v_mov_b32 v{CA+i}, 0")
    e("s_waitcnt vmcnt(28) lgkmcnt(0)")
    stamp(e, 4)
    e("s_mov_b32 s58, 0")
    e.label("L_cv_loop")
    for i in range(8):
        e(f"ds_read_b128 {a(32+4*i,4)}, v11 offset:{512*i}")
        e(f"ds_read_b64 {a(4*i,2)}, v10 offset:{(7-i)*512}")
        e(f"ds_read_b64 {a(4*i+2,2)}, v10 offset:{(7-i)*512+8}")
    e("v_subrev_u32 v10, 64, v10")
    e("v_subrev_u32 v11, 64, v11")
    for mx in range(8):
        rem = 3 * (7 - mx)
        e(f"s_waitcnt lgkmcnt({min(rem,15)})")
        prs = [(p, w) for p in range(mx + 1) for w in range(mx + 1) if max(p, w) == mx and p + w <= 7]
        for p, w in prs:
            i = p + w
            e(f"v_mfma_f32_16x16x32_bf16 {v(CA+4*i,4)}, {a(4*p,4)}, {a(32+4*w,4)}, {v(CA+4*i,4)}")
    e("s_add_u32 s58, s58, 1")
    e("s_cmp_lt_u32 s58, 8")
    e("s_cbranch_scc1 L_cv_loop")
    e("v_lshlrev_b32 v12, 5, v3")
    e("v_lshl_add_u32 v12, v5, 3, v12")
    e(f"s_add_u32 s50, s60, {2*2044 - 3584}")
    e("v_sub_u32 v13, s50, v12")
    for i in range(8):
        e(f"ds_read_b64 {v(64+2*i,2)}, v13 offset:{(7-i)*512}")
    e("s_and_b32 s50, s59, 1")
    e("s_lshl_b32 s50, s50, 4")
    e("s_lshr_b32 s64, s64, s50")
    e("s_lshl_b32 s64, s64, 16")
    e("s_waitcnt lgkmcnt(0)")
    for i in range(8):
        u0, u1 = 64 + 2 * i, 64 + 2 * i + 1
        y = CA + 4 * i
        e(f"v_and_b32 v14, 0xffff0000, v{u1}")
        e(f"v_lshlrev_b32 v15, 16, v{u1}")
        e(f"v_and_b32 v16, 0xffff0000, v{u0}")
        e(f"v_lshlrev_b32 v17, 16, v{u0}")
        for q in range(4):
            e(f"v_fmac_f32 v{y+q}, s64, v{14+q}")
        e(f"v_cvt_pk_bf16_f32 v{u0}, v{y}, v{y+1}")
        e(f"v_cvt_pk_bf16_f32 v{u1}, v{y+2}, v{y+3}")
        e(f"buffer_store_dwordx2 {v(u0,2)}, v12, s[32:35], s62 offen offset:{512*i}")
    stamp(e, 5)
    if STAMPS:
        e("s_waitcnt vmcnt(0)")
    stamp(e, 6)
    stamp_flush(e, 1, 36, 7)
    e.label("L_g1_end")
    return kernel_wrap("gemm1_kernel", e.text(), 256 + 120, 256)


G2_WREG = 24576
G2_Z = 4 * G2_WREG
G2_LDS = G2_Z + 16384


def gen_gemm2(opt):
    e = E()
    ACC = 64
    def acc(dt, jj):
        return ACC + (jj * 4 + dt) * 4
    e("s_cmp_ge_u32 s2, 256")
    e("s_cbranch_scc1 L_g2_end")
    stamp(e, 0)
    e(f"s_load_dwordx4 s[4:7], s[0:1], {KA_WD}")
    e(f"s_load_dwordx2 s[36:37], s[0:1], {KA_WS}")
    e(f"s_load_dwordx2 s[38:39], s[0:1], {KA_Q}")
    e("v_lshrrev_b32 v1, 6, v0")
    e("v_and_b32 v0, 63, v0")
    e("v_readfirstlane_b32 s44, v1")
    e("s_and_b32 s45, s2, 7")
    e("s_lshr_b32 s46, s2, 3")
    e("s_lshr_b32 s47, s45, 1")
    e("s_lshl_b32 s47, s47, 2")
    e("s_and_b32 s48, s46, 3")
    e("s_add_u32 s47, s47, s48")
    e("s_and_b32 s48, s45, 1")
    e("s_lshl_b32 s48, s48, 3")
    e("s_lshr_b32 s46, s46, 2")
    e("s_add_u32 s46, s46, s48")
    e("v_lshlrev_b32 v2, 4, v0")
    e("s_lshl_b32 s49, s44, 1")
    e("s_lshl_b32 s50, s47, 3")
    for jj in range(8):
        e(f"s_add_u32 s51, s49, {jj}")
        e("s_and_b32 s51, s51, 7")
        e("s_add_u32 s51, s51, s50")
        e(f"s_mul_i32 s51, s51, {H_SB}")
        e(f"v_add_u32 v{8+jj}, s51, v2")
    e("v_lshrrev_b32 v3, 3, v0")
    e("v_bfe_u32 v4, v0, 1, 2")
    e("v_lshrrev_b32 v5, 4, v0")
    e("v_xor_b32 v4, v4, v5")
    e("v_and_b32 v6, 1, v0")
    e("v_lshlrev_b32 v16, 11, v3")
    e("v_lshl_add_u32 v16, v4, 5, v16")
    e("v_lshl_add_u32 v16, v6, 4, v16")
    e("s_lshl_b32 s51, s46, 7")
    e("v_add_u32 v16, s51, v16")
    for jj in range(1, 4):
        e(f"v_add_u32 v{16+jj}, {15360*jj}, v16")
    e(f"s_mul_i32 s52, s44, {G2_WREG}")
    e("v_bfe_u32 v6, v0, 2, 2")
    e("v_and_b32 v7, 3, v0")
    e("v_lshl_add_u32 v3, v5, 2, v6")
    e("v_bfe_u32 v4, v3, 1, 2")
    e("v_lshlrev_b32 v3, 7, v3")
    e("v_lshl_add_u32 v3, v7, 3, v3")
    e("v_add_u32 v3, s52, v3")
    for dt in range(4):
        e(f"v_xor_b32 v24, {dt}, v4")
        e(f"v_lshl_add_u32 v{20+dt}, v24, 5, v3")
    e("s_waitcnt lgkmcnt(0)")
    srd(e, 8, 36, H_OFF, H_SIZE)
    srd(e, 12, 4, 0, F * D * 2)
    srd(e, 16, 6, 0, S * D * 2)
    srd(e, 20, 36, XN_OFF, XN_SIZE)
    srd(e, 24, 36, ZT_OFF, ZT_SIZE)
    srd(e, 28, 38, 0, S * D * 2)
    e("s_lshl_b32 s53, s44, 10")
    e("s_lshl_b32 s54, s44, 16")

    def dma(slot):
        r = [[f"s_add_u32 m0, s52, {slot*4096}", "s_nop 0", "buffer_load_dwordx4 v16, s[12:15], s54 offen lds"]]
        for jj in range(1, 4):
            r.append([f"buffer_load_dwordx4 v{16+jj}, s[12:15], s54 offen offset:{1024*jj} lds"])
        r[-1].append("s_add_u32 s54, s54, 0x40000")
        return r

    def hload(slot, jj):
        r = [f"buffer_load_dwordx4 {a(slot*32+4*jj,4)}, v{8+jj}, s[8:11], s53 offen"]
        if jj == 7:
            r.append("s_add_u32 s53, s53, 4096")
        return r

    def trreads(slot, fs):
        return [f"ds_read_b64_tr_b16 {a(128+16*fs+4*dt+2*h,2)}, v{20+dt} offset:{slot*4096+h*2048}"
                for dt in range(4) for h in range(2)]

    for sl in range(4):
        for grp in dma(sl):
            for x in grp:
                e(x)
        for jj in range(8):
            for x in hload(sl, jj):
                e(x)
    for i in range(128):
        e(f"v_mov_b32 v{ACC+i}, 0")
    e("s_waitcnt vmcnt(44)")
    stamp(e, 1)
    for x in trreads(0, 0):
        e(x)

    def body(sl, vm, do_read, do_load, extra=None):
        fs = sl & 1
        e(f"s_waitcnt vmcnt({vm}) lgkmcnt(0)")
        slots = {}
        if do_read:
            for i, x in enumerate(trreads((sl + 1) % 4, 1 - fs)):
                slots.setdefault(4 + i, []).append(x)
        if do_load:
            for i, grp in enumerate(dma(sl)):
                slots.setdefault(i, []).extend(grp)
            for jj in range(8):
                slots.setdefault(4 * jj + 3, []).extend(hload(sl, jj))
        if extra:
            for i, grp in enumerate(extra):
                slots.setdefault(2 * i, []).extend(grp)
        n = 0
        for jj in range(8):
            for dt in range(4):
                e(f"v_mfma_f32_16x16x32_bf16 {v(acc(dt,jj),4)}, {a(128+16*fs+4*dt,4)}, {a(sl*32+4*jj,4)}, {v(acc(dt,jj),4)}")
                for x in slots.get(n, []):
                    e(x)
                n += 1

    e("s_mov_b32 s58, 0")
    e.label("L_g2_loop")
    for sl in range(4):
        body(sl, 32, True, True)
    e("s_add_u32 s58, s58, 1")
    e("s_cmp_lt_u32 s58, 6")
    e("s_cbranch_scc1 L_g2_loop")
    e("v_and_b32 v3, 15, v0")
    e("v_and_b32 v6, 1, v5")
    e("v_lshrrev_b32 v7, 1, v5")
    e("v_lshl_or_b32 v6, v6, 1, v7")
    e("s_add_u32 s55, s50, s49")
    e("s_lshl_b32 s56, s55, 15")
    e("s_add_u32 s56, s56, s51")
    e("v_lshlrev_b32 v24, 11, v3")
    e("v_lshl_add_u32 v24, v6, 4, v24")
    e("v_add_u32 v24, s56, v24")
    e("v_add_u32 v25, 0x8000, v24")
    e("s_lshr_b32 s56, s55, 4")
    e("s_lshl_b32 s56, s56, 19")
    e("s_and_b32 s57, s55, 15")
    e("s_lshl_b32 s57, s57, 10")
    e("s_add_u32 s56, s56, s57")
    e("s_lshl_b32 s57, s46, 15")
    e("s_add_u32 s56, s56, s57")
    e("v_lshlrev_b32 v26, 4, v3")
    e("v_lshl_add_u32 v26, v6, 8, v26")
    e("v_add_u32 v26, s56, v26")
    e("v_add_u32 v27, 0x4000, v26")
    e("s_lshl_b32 s56, s46, 6")
    e("s_lshl_b32 s57, s44, 4")
    e("s_add_u32 s56, s56, s57")
    e("s_lshl_b32 s56, s56, 12")
    e("s_lshl_b32 s57, s47, 8")
    e("s_add_u32 s56, s56, s57")
    e("v_lshlrev_b32 v28, 12, v5")
    e("v_lshl_add_u32 v28, v3, 4, v28")
    e("v_add_u32 v28, s56, v28")
    e("s_lshl_b32 s57, s44, 12")
    e(f"s_add_u32 s57, s57, {G2_Z}")
    XR, NR = 192, 208
    extra = [["s_mov_b32 m0, s57", "s_nop 0", "buffer_load_dwordx4 v28, s[24:27], 0 offen lds"]]
    for i in range(1, 4):
        extra.append([f"s_mov_b32 s59, {i*(16384-1024)}", f"buffer_load_dwordx4 v28, s[24:27], s59 offen offset:{1024*i} lds"])
    for e2 in range(2):
        for pr in range(2):
            extra.append([f"buffer_load_dwordx4 {v(XR+4*(2*e2+pr),4)}, v{24+e2}, s[28:31], 0 offen offset:{64*pr}"])
            extra.append([f"buffer_load_dwordx4 {v(NR+4*(2*e2+pr),4)}, v{26+pr}, s[20:23], 0 offen offset:{1024*e2}"])
    body(0, 32, True, False, extra)
    body(1, 20 + 12, True, False)
    body(2, 8 + 12, True, False)
    body(3, 12, False, False)
    stamp(e, 2)
    e.c("cross-wave reduction")
    e("v_add_u32 v3, s52, v2")
    e("s_nop 7")
    for jj in range(2, 8):
        for dt in range(4):
            e(f"ds_write_b128 v3, {v(acc(dt,jj),4)} offset:{((jj-2)*4+dt)*1024}")
    for dl in range(1, 4):
        e(f"s_sub_u32 s56, s44, {dl}")
        e("s_and_b32 s56, s56, 3")
        e(f"s_mul_i32 s56, s56, {G2_WREG}")
        e(f"s_add_u32 s56, s56, {(2*dl-2)*4096}")
        e(f"v_add_u32 v{28+dl}, s56, v2")
    e("v_bfe_u32 v7, v0, 2, 2")
    e("v_lshl_add_u32 v7, v6, 3, v7")
    e("v_lshlrev_b32 v7, 8, v7")
    e("v_and_b32 v4, 3, v0")
    e("v_lshl_add_u32 v7, v4, 3, v7")
    e("s_lshl_b32 s56, s44, 6")
    e(f"s_add_u32 s56, s56, {G2_Z}")
    e("v_add_u32 v7, s56, v7")
    e("s_waitcnt vmcnt(0) lgkmcnt(0)")
    e("s_barrier")
    stamp(e, 3)
    RB = ACC + 32
    for dl in range(1, 4):
        for q in range(8):
            e(f"ds_read_b128 {v(RB+((dl-1)*8+q)*4,4)}, v{28+dl} offset:{q*1024}")
        if dl > 1:
            e("s_waitcnt lgkmcnt(8)")
            for q in range(16):
                e(f"v_pk_add_f32 {v(ACC+2*q,2)}, {v(ACC+2*q,2)}, {v(RB+(dl-2)*32+2*q,2)}")
    ZR = 224
    e("s_waitcnt lgkmcnt(0)")
    for e2 in range(2):
        for pr in range(2):
            for hh in range(2):
                e(f"ds_read_b64_tr_b16 {v(ZR+4*(2*e2+pr)+2*hh,2)}, v7 offset:{(32*pr+4*hh)*256 + 32*e2}")
    for q in range(16):
        e(f"v_pk_add_f32 {v(ACC+2*q,2)}, {v(ACC+2*q,2)}, {v(RB+64+2*q,2)}")
    e("s_nop 1")
    for e2 in range(2):
        for pr in range(2):
            for r in range(4):
                e(f"v_permlane16_swap_b32 v{acc(2*pr,e2)+r}, v{acc(2*pr+1,e2)+r}")
    e("s_waitcnt lgkmcnt(0)")
    for e2 in range(2):
        for pr in range(2):
            i = 2 * e2 + pr
            A0 = acc(2 * pr, e2)
            for q in range(4):
                unpack(e, 32, XR + 4 * i + q)
                unpack(e, 34, NR + 4 * i + q)
                unpack(e, 36, ZR + 4 * i + q)
                e("v_pk_fma_f32 v[32:33], v[34:35], v[36:37], v[32:33]")
                e(f"v_pk_add_f32 v[32:33], v[32:33], {v(A0+2*q,2)}")
                if opt.get("eps"):
                    import struct
                    c = struct.unpack("<I", struct.pack("<f", 1.0 + opt["eps"] * 1e-3))[0]
                    e(f"v_mul_f32 v32, 0x{c:x}, v32")
                    e(f"v_mul_f32 v33, 0x{c:x}, v33")
                e(f"v_cvt_pk_bf16_f32 v{40+4*i+q}, v32, v33")
            e(f"buffer_store_dwordx4 {v(40+4*i,4)}, v{24+e2}, s[16:19], 0 offen offset:{64*pr}")
    stamp(e, 4)
    if STAMPS:
        e("s_waitcnt vmcnt(0)")
    stamp(e, 5)
    stamp_flush(e, 2, 36, 6)
    e.label("L_g2_end")
    return kernel_wrap("gemm2_kernel", e.text(), 256 + 160, 256)


def main(opt=None):
    opt = opt or {}
    ref = open("cdna_kernels/" + NAME + ".s.ref").read().split("\n")
    hdr = [l for l in ref if l.startswith(";") and "@launch" not in l and "Override" not in l and "grid=ceil" not in l]
    out = "\n".join(hdr) + "\n"
    out += "; @launch kernel=prep_kernel grid=(512,1,1) block=(256,1,1) lds=18432\n"
    out += f"; @launch kernel=gemm1_kernel grid=(256,1,1) block=(256,1,1) lds={G1_STAGE*G1_NST}\n"
    out += f"; @launch kernel=gemm2_kernel grid=(256,1,1) block=(256,1,1) lds={G2_LDS}\n"
    out += '.amdgcn_target "amdgcn-amd-amdhsa--gfx950"\n.text\n'
    out += gen_prep() + gen_gemm1(opt) + gen_gemm2(opt)
    return out


if __name__ == "__main__":
    args = [x for x in sys.argv[1:] if not x.startswith("-")]
    opt = {}
    for x in sys.argv[1:]:
        if x == "-stamps":
            STAMPS = True
        elif x.startswith("-"):
            k, _, val = x[1:].partition("=")
            opt[k] = int(val) if val else 1
    path = args[0] if args else "cdna_kernels/" + NAME + ".s"
    open(path, "w").write(main(opt))
    print("wrote", path)
```

```python
import sys

NAME = "parallel_sum__ssm_conv_h3__swiglu_ffn__prompt"
S, D, F = 2048, 1024, 3584
KA_Q, KA_K, KA_V, KA_SHK, KA_SSMK, KA_SSMD, KA_BX, KA_WG, KA_WU, KA_WD, KA_OUT, KA_DBG, KA_WS = [8 * i for i in range(13)]

MISC_OFF = 0
ST_REL = 0
HF_REL = 16384
ZF_REL = 16384 + 1024
CS_REL = 32768
MISC_SIZE = CS_REL + 32 * 12288
UR_OFF = 4 << 20
UR_PITCH = 4096 + 128
UR_SIZE = D * UR_PITCH
ZT_OFF = 9 << 20
ZT_SIZE = S * D * 2
H_OFF = 16 << 20
H_SIZE = S * F * 2
H_SB = 112 * 1024
STAMP_OFF = 64 << 20

LDS_SIZE = 163840
XWREG = 24576
WB = 4 * XWREG
CV_CP = 4160
CV_HZ = 4 * CV_CP
CV_H = CV_HZ + 512
WSTEP = 32 * 7168
SPIN_LIMIT = 200000

STAMPS = False


class E:
    def __init__(self):
        self.l = []
        self.vm = 0

    def __call__(self, s):
        for ln in s.strip("\n").split("\n"):
            ln = ln.strip()
            if ln.startswith("buffer_") and not ln.startswith("buffer_inv"):
                self.vm += 1
            self.l.append("    " + ln)

    def label(self, s):
        self.l.append(s + ":")

    def c(self, s):
        self.l.append("    ; " + s)

    def text(self):
        return "\n".join(self.l) + "\n"


def v(i, n=1):
    return f"v{i}" if n == 1 else f"v[{i}:{i+n-1}]"


def a(i, n=1):
    return f"a{i}" if n == 1 else f"a[{i}:{i+n-1}]"


def srd(e, d, base, off, size):
    if off:
        e(f"s_add_u32 s{d}, s{base}, 0x{off:x}")
        e(f"s_addc_u32 s{d+1}, s{base+1}, 0")
    else:
        e(f"s_mov_b32 s{d}, s{base}")
        e(f"s_mov_b32 s{d+1}, s{base+1}")
    e(f"s_mov_b32 s{d+2}, 0x{size:x}")
    e(f"s_mov_b32 s{d+3}, 0x20000")


def stamp(e, i):
    if not STAMPS:
        return
    e("s_memrealtime s[96:97]")
    e("s_memtime s[98:99]")
    e("s_waitcnt lgkmcnt(0)")
    e("v_mov_b32 v30, s96")
    e("v_mov_b32 v31, s98")
    e(f"buffer_store_dwordx2 v[30:31], off, s[92:95], s100 offset:{8*i}")


def unpack(e, dst, src):
    e(f"v_lshlrev_b32 v{dst}, 16, v{src}")
    e(f"v_and_b32 v{dst+1}, 0xffff0000, v{src}")


def allreduce32(e, r, t):
    e("s_nop 1")
    for m in ("quad_perm:[1,0,3,2]", "quad_perm:[2,3,0,1]", "row_half_mirror", "row_mirror"):
        e(f"v_add_f32_dpp v{r}, v{r}, v{r} {m} row_mask:0xf bank_mask:0xf")
        e("s_nop 1")
    e(f"v_mov_b32 v{t}, v{r}")
    e("s_nop 1")
    e(f"v_permlane16_swap_b32 v{r}, v{t}")
    e("s_nop 1")
    e(f"v_add_f32 v{r}, v{r}, v{t}")


def round_bf16(e, r):
    e(f"v_cvt_pk_bf16_f32 v{r}, v{r}, v{r}")
    e(f"v_lshlrev_b32 v{r}, 16, v{r}")


R_X, R_WG, R_WU, R_H, R_UR, R_SK, R_ZT, R_MI, R_DB, R_WD, R_OUT, R_K, R_V, R_SH = [f"s[{8+4*i}:{11+4*i}]" for i in range(14)]


def merge(e, mf, slots):
    for i, m in enumerate(mf):
        e(m)
        for x in slots.get(i, []):
            e(x)
    for k in sorted(slots):
        if k >= len(mf):
            for x in slots[k]:
                e(x)


def gen(opt):
    e = E()
    ACC = 32

    def acc(ai, j):
        return ACC + (ai * 4 + j) * 4
    FA = [0, 72]
    CSF, CSS, CSA = 144, 160, 176

    e("s_cmp_ge_u32 s2, 256")
    e("s_cbranch_scc1 L_end")
    if STAMPS:
        e("s_memrealtime s[96:97]")
        e("s_memtime s[98:99]")
    e("s_load_dwordx16 s[64:79], s[0:1], 0")
    e("s_load_dwordx8 s[80:87], s[0:1], 64")
    e("s_load_dwordx2 s[88:89], s[0:1], 96")
    e("v_lshrrev_b32 v1, 6, v0")
    e("v_mov_b32 v29, v0")
    e("v_and_b32 v0, 63, v0")
    e("v_readfirstlane_b32 s3, v1")
    e("v_lshlrev_b32 v2, 4, v0")
    e("s_and_b32 s4, s2, 31")
    e("s_lshr_b32 s5, s2, 5")
    e("v_and_b32 v32, 15, v29")
    e("v_lshrrev_b32 v33, 4, v29")
    e("s_lshl_b32 s6, s4, 17")
    e("s_lshl_b32 s7, s5, 8")
    e("s_add_u32 s6, s6, s7")
    e("v_lshlrev_b32 v34, 13, v33")
    e("v_lshl_add_u32 v34, v32, 4, v34")
    e("v_add_u32 v34, s6, v34")
    e("v_add_u32 v35, 0xffffe000, v34")
    e("v_add_u32 v36, 0xfffff000, v34")
    e("v_add_u32 v37, 0x1000, v34")
    e("v_lshlrev_b32 v38, 6, v32")
    e("s_lshl_b32 s7, s5, 10")
    e("v_add_u32 v38, s7, v38")
    e("v_lshrrev_b32 v39, 5, v29")
    e("v_and_b32 v40, 31, v29")
    e("s_lshl_b32 s7, s2, 14")
    e("v_lshlrev_b32 v41, 11, v39")
    e("v_lshl_add_u32 v41, v40, 4, v41")
    e("v_add_u32 v41, s7, v41")
    e("s_waitcnt lgkmcnt(0)")
    srd(e, 52, 66, 0, S * D * 2)
    srd(e, 56, 68, 0, S * D * 2)
    srd(e, 60, 70, 0, D * 8)
    srd(e, 8, 64, 0, S * D * 2)
    KR, VR, WR, XS = 48, 76, 92, 108
    kaddr = [(35, 2048), (36, 0), (36, 2048), (34, 0), (34, 2048), (37, 0), (37, 2048)]
    for j in range(4):
        e(f"buffer_load_dwordx4 {v(XS+4*j,4)}, v41, {R_X}, 0 offen offset:{512*j}")
    for i in range(4):
        e(f"buffer_load_dwordx4 {v(WR+4*i,4)}, v38, {R_SH}, 0 offen offset:{16*i}")
    for i, (r, o) in enumerate(kaddr):
        e(f"buffer_load_dwordx4 {v(KR+4*i,4)}, v{r}, {R_K}, 0 offen offset:{o}")
    for i, (r, o) in enumerate(kaddr[3:]):
        e(f"buffer_load_dwordx4 {v(VR+4*i,4)}, v{r}, {R_V}, 0 offen offset:{o}")
    vm_p0 = e.vm
    srd(e, 12, 78, 0, D * F * 2)
    srd(e, 16, 80, 0, D * F * 2)
    srd(e, 20, 88, H_OFF, H_SIZE)
    srd(e, 24, 88, UR_OFF, UR_SIZE)
    srd(e, 28, 72, 0, D * S * 2)
    srd(e, 32, 88, ZT_OFF, ZT_SIZE)
    srd(e, 36, 88, MISC_OFF, MISC_SIZE)
    srd(e, 40, 86, 0, 256)
    srd(e, 44, 82, 0, F * D * 2)
    srd(e, 48, 84, 0, S * D * 2)
    if STAMPS:
        srd(e, 92, 88, STAMP_OFF, 1 << 20)
        e("s_lshl_b32 s100, s2, 2")
        e("s_add_u32 s100, s100, s3")
        e("s_lshl_b32 s100, s100, 7")
        e("v_mov_b32 v30, s96")
        e("v_mov_b32 v31, s98")
        e("buffer_store_dwordx2 v[30:31], off, s[92:95], s100")
    e("s_lshl_b32 s69, s2, 2")
    e("s_add_u32 s69, s69, s3")
    e("s_lshr_b32 s6, s69, 1")
    e("s_lshl_b32 s6, s6, 2")
    e("s_load_dword s90, s[74:75], s6")
    e("s_mov_b32 s64, s3")
    e("s_and_b32 s6, s2, 7")
    e("s_lshr_b32 s7, s2, 3")
    e("s_and_b32 s65, s7, 7")
    e("s_lshr_b32 s66, s7, 3")
    e("s_lshl_b32 s78, s6, 2")
    e("s_add_u32 s66, s66, s78")
    e("s_lshr_b32 s67, s6, 1")
    e("s_lshl_b32 s67, s67, 2")
    e("s_and_b32 s78, s7, 3")
    e("s_add_u32 s67, s67, s78")
    e("s_and_b32 s68, s6, 1")
    e("s_lshl_b32 s68, s68, 3")
    e("s_lshr_b32 s78, s7, 2")
    e("s_add_u32 s68, s68, s78")
    e(f"s_mul_i32 s70, s64, {XWREG}")
    e("s_lshl_b32 s71, s64, 11")
    e(f"s_add_u32 s71, s71, {WB}")
    e(f"s_mul_i32 s72, s65, {4*WSTEP}")
    e("s_add_u32 s73, s72, 27648")
    e("v_lshrrev_b32 v22, 4, v0")
    e("v_bfe_u32 v23, v0, 1, 3")
    e("s_and_b32 s78, s64, 1")
    e("s_lshl_b32 s78, s78, 2")
    e("v_or_b32 v24, s78, v22")
    e("v_xor_b32 v23, v23, v24")
    e("s_and_b32 s78, s66, 1")
    e("v_add_u32 v24, s78, v23")
    e("v_cmp_eq_u32 vcc, 7, v24")
    e("v_and_b32 v25, 1, v0")
    e("s_lshl_b32 s78, s64, 3")
    e("v_cndmask_b32 v24, v24, 0, vcc")
    e("v_lshlrev_b32 v3, 5, v24")
    e("v_lshl_add_u32 v3, v25, 4, v3")
    e("v_add_u32 v26, s78, v22")
    e("v_mul_u32_u24 v27, 7168, v26")
    e("v_add_u32 v3, v3, v27")
    e("s_mul_i32 s78, s66, 224")
    e("v_add_u32 v3, s78, v3")
    e("v_cmp_eq_u32 vcc, 7, v23")
    e("v_mov_b32 v27, 0x80000000")
    e("v_lshlrev_b32 v28, 8, v26")
    e("v_cndmask_b32 v3, v3, v27, vcc")
    e("v_lshl_add_u32 v28, v23, 5, v28")
    e("v_lshl_add_u32 v28, v25, 4, v28")
    e("s_mul_i32 s78, s66, 12288")
    e(f"s_add_u32 s78, s78, {CS_REL}")
    e("s_cmp_eq_u32 s64, 3")
    e("s_cselect_b32 s78, 0x80000000, s78")
    e("v_add_u32 v28, s78, v28")
    e("v_lshrrev_b32 v23, 3, v0")
    e("v_and_b32 v24, 7, v0")
    e("v_xor_b32 v24, v24, v22")
    e("s_lshl_b32 s78, s65, 19")
    e("s_lshl_b32 s79, s64, 17")
    e("s_add_u32 s78, s78, s79")
    e("v_lshlrev_b32 v4, 11, v23")
    e("v_add_u32 v4, s78, v4")
    e("v_xor_b32 v25, 4, v24")
    e("v_lshl_add_u32 v5, v25, 4, v4")
    e("v_lshl_add_u32 v4, v24, 4, v4")
    e("v_add_u32 v5, 15360, v5")
    e("v_add_u32 v6, 30720, v4")
    e("v_add_u32 v7, 30720, v5")
    e("s_lshl_b32 s77, s65, 8")
    e("s_add_u32 s76, s70, 16384")
    e(f"s_add_u32 s91, s70, {XWREG}")

    def wdma(u, aug=False):
        g = []
        if aug:
            g.append([f"s_add_u32 m0, s71, {u*16384}", "s_nop 0", f"buffer_load_dwordx4 v28, {R_MI}, 0 offen sc1 lds"])
            g.append([f"buffer_load_dwordx4 v28, {R_MI}, 0 offen offset:1024 sc1 lds"])
            g.append([f"s_add_u32 m0, s71, {u*16384+8192}", "s_movk_i32 s78, 6144", f"buffer_load_dwordx4 v28, {R_MI}, s78 offen sc1 lds"])
            g.append([f"buffer_load_dwordx4 v28, {R_MI}, s78 offen offset:1024 sc1 lds"])
            return g
        g.append([f"s_add_u32 m0, s71, {u*16384}", "s_nop 0", f"buffer_load_dwordx4 v3, {R_WG}, s72 offen lds"])
        g.append([f"buffer_load_dwordx4 v3, {R_WG}, s73 offen offset:1024 lds"])
        g.append([f"s_add_u32 m0, s71, {u*16384+8192}", "s_nop 0", f"buffer_load_dwordx4 v3, {R_WU}, s72 offen lds"])
        g.append([f"buffer_load_dwordx4 v3, {R_WU}, s73 offen offset:1024 lds",
                  f"s_add_u32 s72, s72, {WSTEP}", f"s_cmp_eq_u32 s72, {32*WSTEP}"])
        g.append(["s_cselect_b32 s72, 0, s72", "s_add_u32 s73, s72, 27648"])
        return g

    def xdma(hf):
        g = []
        if hf == 0:
            g.append(["s_mov_b32 m0, s76", "s_nop 0", f"buffer_load_dwordx4 v4, {R_X}, s77 offen lds"])
            so = "s77"
        else:
            g.append(["s_add_u32 m0, s76, 4096", "s_add_u32 s79, s77, 0x10000", f"buffer_load_dwordx4 v4, {R_X}, s79 offen lds"])
            so = "s79"
        for q in range(1, 4):
            g.append([f"buffer_load_dwordx4 v{4+q}, {R_X}, {so} offen offset:{1024*q} lds"])
        if hf == 1:
            g[-1] += ["s_add_u32 s77, s77, 128", "s_and_b32 s77, s77, 0x7ff"]
            g.append(["s_add_u32 s76, s76, 8192", "s_cmp_eq_u32 s76, s91", "s_cselect_b32 s76, s70, s76"])
        return g

    def flat(gs):
        for g in gs:
            for x in g:
                e(x)

    flat(wdma(0)); flat(xdma(0)); flat(xdma(1))
    stamp(e, 1)
    e("v_lshrrev_b32 v22, 4, v0")
    e("v_bfe_u32 v24, v0, 2, 2")
    e("v_and_b32 v25, 3, v0")
    e("v_lshl_add_u32 v26, v22, 3, v24")
    e("v_lshlrev_b32 v26, 8, v26")
    e("v_lshl_add_u32 v26, v25, 3, v26")
    e(f"v_add_u32 v26, {WB}, v26")
    e("v_and_b32 v27, 1, v22")
    e("v_lshl_or_b32 v27, v27, 2, v24")
    for t in range(7):
        e(f"v_xor_b32 v1, {t}, v27")
        e(f"v_lshl_add_u32 v{8+t}, v1, 5, v26")
    e("s_lshr_b32 s78, s64, 1")
    e("s_lshl_b32 s78, s78, 13")
    e("v_add_u32 v26, s78, v26")
    e("s_and_b32 s78, s64, 1")
    e("s_lshl_b32 s78, s78, 2")
    e("v_xor_b32 v27, s78, v27")
    for q in range(4):
        e(f"v_xor_b32 v1, {q}, v27")
        e(f"v_lshl_add_u32 v{18+q}, v1, 5, v26")
    e("v_and_b32 v24, 15, v0")
    e("v_lshrrev_b32 v25, 1, v24")
    e("v_xor_b32 v25, v25, v22")
    e("v_lshlrev_b32 v15, 7, v24")
    e("v_lshl_add_u32 v15, v25, 4, v15")
    e("v_add_u32 v15, s70, v15")
    e("v_xor_b32 v16, 64, v15")
    e("v_and_b32 v24, 3, v0")
    e("v_mov_b32 v25, 0x3f803f80")
    for q in range(4):
        e(f"v_cmp_eq_u32 vcc, {q}, v24")
        e("s_nop 1")
        e("v_cndmask_b32 v26, 0, v25, vcc")
        for r in range(4):
            e(f"v_accvgpr_write_b32 a{CSS+4*q+r}, v26")

    e.c("phase 0: LN stats")
    XF = 128
    e(f"s_waitcnt vmcnt({e.vm - 4})")
    for i in range(16):
        unpack(e, XF + 2 * i, XS + i)
    e(f"v_pk_add_f32 v[42:43], {v(XF,2)}, {v(XF+2,2)}")
    for i in range(2, 16):
        e(f"v_pk_add_f32 v[42:43], v[42:43], {v(XF+2*i,2)}")
    e("v_add_f32 v42, v42, v43")
    allreduce32(e, 42, 43)
    e("v_mul_f32 v42, 0xba800000, v42")
    e(f"v_pk_add_f32 v[46:47], {v(XF,2)}, v[42:43] op_sel_hi:[1,0]")
    e("v_pk_mul_f32 v[44:45], v[46:47], v[46:47]")
    for i in range(1, 16):
        e(f"v_pk_add_f32 v[46:47], {v(XF+2*i,2)}, v[42:43] op_sel_hi:[1,0]")
        e("v_pk_fma_f32 v[44:45], v[46:47], v[46:47], v[44:45]")
    e("v_add_f32 v43, v44, v45")
    allreduce32(e, 43, 44)
    e("v_mul_f32 v43, 0x3a800000, v43")
    round_bf16(e, 43)
    e("v_add_f32 v43, 0x3727c5ac, v43")
    round_bf16(e, 43)
    e("v_sqrt_f32 v43, v43")
    round_bf16(e, 42)
    round_bf16(e, 43)
    e("v_rcp_f32 v43, v43")
    e("s_lshl_b32 s78, s2, 6")
    e("v_lshlrev_b32 v44, 3, v39")
    e("v_add_u32 v44, s78, v44")
    e("v_cmp_eq_u32 vcc, 0, v40")
    e("v_mov_b32 v45, 0x80000000")
    e("v_mov_b32 v46, 0")
    e("v_cndmask_b32 v44, v45, v44, vcc")
    e(f"buffer_store_dwordx2 v[42:43], v44, {R_MI}, 0 offen offset:{ST_REL} sc1")
    e("s_lshl_b32 s78, s65, 5")
    e("s_add_u32 s78, s78, s66")
    e("s_lshl_b32 s78, s78, 2")
    e(f"s_add_u32 s80, s78, {HF_REL}")
    e("s_lshl_b32 s78, s2, 2")
    e(f"s_add_u32 s81, s78, {ZF_REL}")
    e("v_mov_b32 v44, s80")
    e("v_mov_b32 v47, s81")
    e("v_cmp_eq_u32 vcc, 1, v29")
    e("s_nop 1")
    e("v_cndmask_b32 v44, v44, v47, vcc")
    e("v_cmp_gt_u32 vcc, 2, v29")
    e("s_nop 1")
    e("v_cndmask_b32 v44, v45, v44, vcc")
    e(f"buffer_store_dword v46, v44, {R_MI}, 0 offen sc1")

    flat(wdma(1)); flat(xdma(0)); flat(xdma(1))
    e.c("phase 0: kv tile")
    PITCH = 288
    WF, KF, VF, AC, OUT = 128, 136, 150, 152, 156
    e("v_and_b32 v42, 3, v33")
    e(f"v_mul_u32_u24 v42, {4*PITCH}, v42")
    e("v_lshl_add_u32 v42, v32, 4, v42")
    e("s_add_u32 s78, s70, 8192")
    e("v_add_u32 v42, s78, v42")
    e(f"s_waitcnt vmcnt({e.vm - vm_p0})")
    for p in range(4):
        c0, c1 = WR + 4 * p, WR + 4 * p + 2
        for j in range(4):
            d0, d1 = c0 + (j >> 1), c1 + (j >> 1)
            if j & 1:
                e(f"v_and_b32 v{WF+2*j}, 0xffff0000, v{d0}")
                e(f"v_and_b32 v{WF+2*j+1}, 0xffff0000, v{d1}")
            else:
                e(f"v_lshlrev_b32 v{WF+2*j}, 16, v{d0}")
                e(f"v_lshlrev_b32 v{WF+2*j+1}, 16, v{d1}")
        for i in range(7):
            unpack(e, KF + 2 * i, KR + 4 * i + p)
        for i in range(4):
            e(f"v_pk_mul_f32 {v(AC,2)}, {v(KF+2*i,2)}, {v(WF+6,2)}")
            for j in (2, 1, 0):
                e(f"v_pk_fma_f32 {v(AC,2)}, {v(KF+2*(i+3-j),2)}, {v(WF+2*j,2)}, {v(AC,2)}")
            unpack(e, VF, VR + 4 * i + p)
            e(f"v_pk_mul_f32 {v(AC,2)}, {v(AC,2)}, {v(VF,2)}")
            e(f"v_cvt_pk_bf16_f32 v{OUT+4*i+p}, v{AC}, v{AC+1}")
        if p == 0:
            vm_dma = e.vm
        if p in (0, 2):
            flat(wdma(2 + p // 2))
            if p == 0:
                vm_w2 = e.vm
            else:
                vm_w3 = e.vm
    for i in range(4):
        e(f"ds_write_b128 v42, {v(OUT+4*i,4)} offset:{i*PITCH}")
    e("v_bfe_u32 v43, v0, 2, 2")
    e("v_and_b32 v44, 3, v0")
    e("v_and_b32 v45, 1, v22")
    e("v_lshlrev_b32 v45, 3, v45")
    e("v_sub_u32 v45, v45, v43")
    e("v_add_u32 v45, 3, v45")
    e(f"v_mul_u32_u24 v45, {PITCH}, v45")
    e("v_lshrrev_b32 v46, 1, v22")
    e(f"v_mul_u32_u24 v46, {XWREG}, v46")
    e("v_add_u32 v45, v45, v46")
    e("v_lshl_add_u32 v45, v44, 3, v45")
    e("s_lshl_b32 s78, s64, 6")
    e("s_add_u32 s78, s78, 8192")
    e("v_add_u32 v45, s78, v45")
    e("v_and_b32 v46, 15, v0")
    e("s_lshl_b32 s78, s5, 7")
    e("s_lshl_b32 s79, s64, 5")
    e("s_add_u32 s78, s78, s79")
    e("v_add_u32 v46, s78, v46")
    e(f"v_mul_u32_u24 v46, {UR_PITCH}, v46")
    e("v_and_b32 v48, 1, v22")
    e(f"v_mul_u32_u24 v48, {16*UR_PITCH}, v48")
    e("v_add_u32 v48, v48, v46")
    e("s_lshl_b32 s78, s4, 7")
    e("s_sub_u32 s78, 4016, s78")
    e("v_add_u32 v46, s78, v46")
    e("v_lshlrev_b32 v47, 4, v22")
    e("v_sub_u32 v46, v46, v47")
    e(f"v_add_u32 v47, {16*UR_PITCH}, v46")
    e("s_cmp_eq_u32 s4, 0")
    e("s_cselect_b32 s78, 0, 1")
    e("s_lshl_b32 s78, s78, 31")
    e("s_add_u32 s78, s78, 0x1000")
    e("v_add_u32 v48, s78, v48")
    for i in range(4):
        e(f"v_mov_b32 v{72+i}, 0")
    e("s_waitcnt lgkmcnt(0)")
    e("s_barrier")
    T = 52
    n = 0
    for cb in range(2):
        for sh in range(2):
            base = sh * 2 * XWREG + cb * 32
            e(f"ds_read_b64_tr_b16 {v(T+4*n,2)}, v45 offset:{base + 4*PITCH}")
            e(f"ds_read_b64_tr_b16 {v(T+4*n+2,2)}, v45 offset:{base}")
            n += 1
    e(f"buffer_store_dwordx4 v[72:75], v48, {R_UR}, 0 offen sc1")
    n = 0
    for cb in range(2):
        for sh in range(2):
            e(f"s_waitcnt lgkmcnt({6-2*n})")
            e(f"buffer_store_dwordx4 {v(T+4*n,4)}, v{47 if cb else 46}, {R_UR}, 0 offen offset:{0 if sh else 64} sc1")
            n += 1
    e(f"s_waitcnt vmcnt({e.vm - vm_dma})")
    e("s_barrier")
    stamp(e, 2)
    cnt = {}
    m0_ = e.vm
    flat(xdma(0))

    def reads(step_u, fs, hk, cs=False, do_b=True):
        fa = FA[fs]
        al = []
        for ai in range(14):
            for h in range(2):
                al.append(f"ds_read_b64_tr_b16 {a(fa+4*ai+2*h,2)}, v{8+ai%7} offset:{step_u*16384 + (ai//7)*8192 + h*1024}")
        bl = [f"ds_read_b128 {a(fa+56+4*j,4)}, v17 offset:{2048*j}" for j in range(4)] if do_b else []
        cl = []
        if cs:
            for q in range(4):
                for h in range(2):
                    cl.append(f"ds_read_b64_tr_b16 {a(CSF+4*q+2*h,2)}, v{18+q} offset:{step_u*16384 + h*1024}")
        return bl + al + cl

    def mfmas(fs):
        fa = FA[fs]
        return [f"v_mfma_f32_16x16x32_bf16 {v(acc(ai,j),4)}, {a(fa+4*ai,4)}, {a(fa+56+4*j,4)}, {v(acc(ai,j),4)}"
                for ai in range(14) for j in range(4)]

    e("s_movk_i32 s75, 16384")
    e("v_add_u32 v17, s75, v15")
    for x in reads(0, 0, 0, cs=True):
        e(x)
    e("s_nop 1")
    for i in range(224):
        e(f"v_mov_b32 v{ACC+i}, 0")
    cnt[-2] = 0
    cnt[-1] = e.vm - m0_

    def body(i, wd=True, xd=True, rd=True, cs_m=False, cs_r=False, extra=None, pre=None, aug_w=False, do_b=True, vm=None):
        u = i & 3
        fs = i & 1
        start = e.vm
        if vm is None:
            vm = cnt[i - 1] + cnt[i - 2]
        e(f"s_waitcnt vmcnt({vm}) lgkmcnt(0)")
        e("s_barrier")
        if pre:
            pre()
        mf = mfmas(fs)
        if cs_m:
            cm = [f"v_mfma_f32_16x16x32_bf16 {a(CSA,4)}, {a(CSF+4*q,4)}, {a(CSS+4*q,4)}, {'0' if (i == 0 and q == 0) else a(CSA,4)}"
                  for q in range(4)]
            mf = cm + mf
        slots = {}
        groups = []
        if xd:
            groups += xdma(1 - (i & 1))
        if wd:
            groups += wdma(u, aug_w)
        if extra:
            groups += extra
        heavy = [any(x.startswith("buffer_") for x in g) for g in groups]
        nh = max(1, sum(heavy))
        nl = len(groups) - sum(heavy)
        sp = max(1.0, min(7.0, (len(mf) - 4.0 - (nl if nl > 4 else 0)) / nh))
        taken = set()
        pos = 2.0
        nxt = 3.0
        for g, hv in zip(groups, heavy):
            if hv:
                pos = max(pos + 1, nxt)
                nxt = pos + sp
                taken.add(int(pos))
            else:
                pos += 1
            slots.setdefault(int(pos), []).extend(g)
        if rd:
            hk = (i + 1) & 1
            if do_b:
                if hk == 0:
                    slots[0] = ["s_add_u32 s75, s75, 8192", f"s_cmp_eq_u32 s75, {XWREG}"]
                    slots[1] = ["s_cselect_b32 s75, 0, s75", "v_add_u32 v17, s75, v15"]
                else:
                    slots[1] = ["v_add_u32 v17, s75, v16"]
            rl = reads((u + 1) & 3, 1 - fs, hk, cs_r, do_b)
            if do_b:
                rl = rl[4:8] + rl[:4] + rl[8:]
            pos = 0 if not cs_m else 1
            for x in rl:
                while pos in taken and pos < 44:
                    pos += 1
                slots[pos] = [x] + slots.get(pos, [])
                pos += 1
        merge(e, mf, slots)
        cnt[i] = e.vm - start

    touch = [["v_lshlrev_b32 v29, 6, v29", "s_mul_i32 s78, s2, 28672", "s_add_u32 s79, s78, 12288"],
             [f"buffer_load_dword a255, v29, {R_WD}, s78 offen"],
             [f"buffer_load_dword a255, v29, {R_WD}, s79 offen", "v_lshlrev_b32 v29, 6, v0", "s_lshl_b32 s78, s69, 12"],
             [f"buffer_load_dword a255, v29, {R_SK}, s78 offen"]]
    for i in range(4):
        vmi = {0: 63, 1: e.vm - vm_w2, 2: e.vm - vm_w3, 3: None}[i]
        body(i, cs_m=True, cs_r=(i < 3), vm=vmi, extra=(touch if i == 3 else None))
    e.c("colsum -> 3 bf16 pieces -> W_aug")
    m0_ = e.vm
    for r in range(4):
        e(f"v_accvgpr_read_b32 v{22+r}, a{CSA+r}")
    e("v_cvt_pk_bf16_f32 v26, v22, v23")
    e("v_cvt_pk_bf16_f32 v27, v24, v25")
    unpack(e, 18, 26); unpack(e, 20, 27)
    for r in range(4):
        e(f"v_sub_f32 v{22+r}, v{22+r}, v{18+r}")
    e("v_bfe_u32 v1, v0, 2, 2")
    e("v_cmp_eq_u32 vcc, 1, v1")
    e("v_cvt_pk_bf16_f32 v18, v22, v23")
    e("v_cvt_pk_bf16_f32 v19, v24, v25")
    e("v_cndmask_b32 v26, v26, v18, vcc")
    e("v_cndmask_b32 v27, v27, v19, vcc")
    unpack(e, 20, 18)
    e("v_sub_f32 v22, v22, v20")
    e("v_sub_f32 v23, v23, v21")
    unpack(e, 20, 19)
    e("v_sub_f32 v24, v24, v20")
    e("v_sub_f32 v25, v25, v21")
    e("v_cmp_eq_u32 vcc, 2, v1")
    e("v_cvt_pk_bf16_f32 v18, v22, v23")
    e("v_cvt_pk_bf16_f32 v19, v24, v25")
    e("v_cndmask_b32 v26, v26, v18, vcc")
    e("v_cndmask_b32 v27, v27, v19, vcc")
    e("s_mul_i32 s78, s66, 12288")
    e("s_lshr_b32 s79, s64, 1")
    e("s_mul_i32 s79, s79, 6144")
    e("s_add_u32 s78, s78, s79")
    e("s_lshl_b32 s79, s65, 8")
    e("s_add_u32 s78, s78, s79")
    e("s_and_b32 s79, s64, 1")
    e("s_lshl_b32 s79, s79, 7")
    e("s_add_u32 s78, s78, s79")
    e(f"s_add_u32 s78, s78, {CS_REL}")
    e("v_lshlrev_b32 v18, 11, v1")
    e("v_and_b32 v19, 3, v0")
    e("v_lshl_add_u32 v18, v19, 5, v18")
    e("v_lshrrev_b32 v19, 4, v0")
    e("v_lshl_add_u32 v18, v19, 3, v18")
    e("v_cmp_eq_u32 vcc, 3, v1")
    e("v_mov_b32 v19, 0x80000000")
    e("v_add_u32 v18, s78, v18")
    e("v_cndmask_b32 v18, v18, v19, vcc")
    e(f"buffer_store_dwordx2 v[26:27], v18, {R_MI}, 0 offen sc1")
    stamp(e, 12)
    e("s_mov_b32 s82, 1")
    e.label("L_g1_loop")
    for i in range(4, 8):
        body(i, vm=16)
    e("s_cmp_lg_u32 s82, 1")
    e("s_cbranch_scc1 L_g1_nosig")
    e("s_cmp_lg_u32 s64, 0")
    e("s_cbranch_scc1 L_g1_nosig")
    e("v_mov_b32 v1, 1")
    e("s_mov_b64 exec, 1")
    e(f"buffer_atomic_add v1, off, {R_DB}, 0 sc1")
    e("s_mov_b64 exec, -1")
    e.label("L_g1_nosig")
    e("s_add_u32 s82, s82, 1")
    e("s_cmp_lt_u32 s82, 6")
    e("s_cbranch_scc1 L_g1_loop")
    cnt[22] = cnt[23] = 8
    stamp(e, 13)

    def poll(vreg, loadins, cond, lab):
        e("s_mov_b32 s82, 0")
        e.label(f"L_{lab}_chk")
        cond()
        e(f"s_cbranch_scc1 L_{lab}_ok")
        e("s_sleep 1")
        e.l.append("    " + loadins)
        e("s_waitcnt vmcnt(0)")
        e("s_add_u32 s82, s82, 1")
        e(f"s_cmp_lt_u32 s82, {SPIN_LIMIT}")
        e(f"s_cbranch_scc1 L_{lab}_chk")
        e.label(f"L_{lab}_ok")

    f0_load = f"buffer_load_dword v18, off, {R_DB}, 0 sc1"

    def f0_cond():
        e("v_readfirstlane_b32 s78, v18")
        e("s_nop 1")
        e("s_cmp_ge_u32 s78, 256")

    def cvdma(c, qs):
        pos = ((c & 1) ^ 1) * 2 + (c >> 1)
        g = []
        for k, q in enumerate(qs):
            pre = [f"s_add_u32 m0, s70, {pos*CV_CP}", f"s_add_u32 s79, s83, {2*c}"]
            g.append(pre + [f"buffer_load_dwordx4 v2, {R_UR}, s79 offen offset:{1024*q} sc1 lds"])
        return g

    body(24, extra=[[f0_load]])
    body(25)
    body(26)
    e(f"s_mul_i32 s83, s69, {UR_PITCH}")
    e("s_lshl_b32 s84, s69, 12")
    e("v_and_b32 v19, 15, v0")
    e("v_lshlrev_b32 v19, 3, v19")
    e("s_lshl_b32 s85, s65, 11")
    e("s_lshl_b32 s78, s64, 9")
    e("s_add_u32 s85, s85, s78")
    stl = [[f"buffer_load_dwordx2 {v(20+2*j,2)}, v19, {R_MI}, s85 offen offset:{ST_REL+128*j} sc1"] for j in range(4)]
    body(27, xd=False, pre=lambda: poll(18, f0_load, f0_cond, "f0"), extra=stl + cvdma(1, range(4)))
    body(28, xd=False, aug_w=True, extra=cvdma(3, range(3)))
    body(29, xd=False, wd=False, extra=cvdma(3, [3]) + cvdma(0, range(4)))
    body(30, xd=False, wd=False, extra=cvdma(2, range(3)))
    hd = [[f"s_add_u32 m0, s70, {CV_H}", "s_nop 0", f"buffer_load_dwordx4 v2, {R_SK}, s84 offen lds"]]
    hd += [[f"buffer_load_dwordx4 v2, {R_SK}, s84 offen offset:{1024*q} lds"] for q in range(1, 4)]
    bb = [["v_cmp_gt_u32 vcc, 48, v0"]]
    for j in range(4):
        bb.append([f"v_lshrrev_b32 v1, 16, v{20+2*j}", f"v_or_b32 v1, v1, v{20+2*j}"])
        bb.append(["v_cndmask_b32 v1, 0, v1, vcc", f"v_accvgpr_write_b32 a{FA[0]+56+4*j}, v1"])
        bb.append([f"v_accvgpr_write_b32 a{FA[0]+56+4*j+1}, v1", f"v_accvgpr_write_b32 a{FA[0]+56+4*j+2}, v1"])
        bb.append([f"v_accvgpr_write_b32 a{FA[0]+56+4*j+3}, v1"])
    body(31, xd=False, wd=False, do_b=False, extra=cvdma(2, [3]) + hd + bb)
    ex = []
    for j in range(4):
        ex.append([f"v_mul_f32 v{20+2*j}, 0xbfb8aa3b, v{21+2*j}", f"v_mul_f32 v{21+2*j}, v{21+2*j}, v{21+2*j}"])
        ex.append([f"v_rcp_f32 v{21+2*j}, v{21+2*j}"])
    ex += [["v_and_b32 v3, 15, v0", "v_lshrrev_b32 v4, 2, v3"],
           [f"v_mul_u32_u24 v4, {CV_CP}, v4", "v_and_b32 v3, 3, v3"],
           ["v_lshl_add_u32 v4, v3, 4, v4", "v_add_u32 v4, 4096, v4"],
           [f"v_add_u32 v3, {CV_HZ}, v2", "v_cmp_gt_u32 vcc, 32, v0"],
           ["v_mov_b32 v8, 0", "v_mov_b32 v9, 0"], ["v_mov_b32 v10, 0", "v_mov_b32 v11, 0"],
           ["v_cndmask_b32 v3, v4, v3, vcc", "v_add_u32 v3, s70, v3"],
           ["ds_write_b128 v3, v[8:11]"],
           ["s_lshl_b32 s78, s65, 4", "s_lshl_b32 s79, s64, 2", "s_add_u32 s78, s78, s79"],
           [f"s_mul_i32 s78, s78, {H_SB}", "s_mul_i32 s79, s66, 7", "s_add_u32 s79, s79, 1"],
           ["s_lshr_b32 s79, s79, 1", "s_lshl_b32 s79, s79, 10", "s_add_u32 s78, s78, s79"],
           ["v_add_u32 v18, s78, v2", "s_bitcmp1_b32 s66, 0", "s_movk_i32 s79, 3072"],
           ["s_cselect_b32 s79, 0xfffffc08, s79", "v_add_u32 v19, s79, v18"]]
    body(32, xd=False, wd=False, rd=False, extra=ex, vm=63)
    stamp(e, 3)

    e.c("SwiGLU epilogue")
    vm_e0 = e.vm

    def swiglu(g, u, tmp, out, kc):
        for q in range(2):
            e(f"v_pk_mul_f32 {v(tmp+2*q,2)}, {v(g+2*q,2)}, {v(kc,2)} op_sel_hi:[1,0]")
        for q in range(4):
            e(f"v_exp_f32 v{tmp+q}, v{tmp+q}")
        for q in range(2):
            e(f"v_pk_mul_f32 {v(g+2*q,2)}, {v(g+2*q,2)}, {v(u+2*q,2)}")
        for q in range(2):
            e(f"v_pk_fma_f32 {v(tmp+2*q,2)}, {v(tmp+2*q,2)}, {v(kc,2)}, {v(kc,2)} op_sel:[0,1,1] op_sel_hi:[1,1,1]")
        for q in range(4):
            e(f"v_rcp_f32 v{tmp+q}, v{tmp+q}")
        yield
        for q in range(2):
            e(f"v_pk_mul_f32 {v(g+2*q,2)}, {v(g+2*q,2)}, {v(tmp+2*q,2)}")
        for q in range(2):
            e(f"v_cvt_pk_bf16_f32 v{out+q}, v{g+2*q}, v{g+2*q+1}")

    e("s_nop 4")
    n = 0
    for j in range(4):
        e(f"s_mov_b32 s78, {j*H_SB}")
        for i in range(4):
            o = 8 + 4 * (n & 1)
            for k in range(2 if i < 3 else 1):
                t = 2 * i + k
                gsw = swiglu(acc(t, j), acc(7 + t, j), 4, o + 2 * k, 20 + 2 * j)
                next(gsw)
                e("s_nop 0")
                for _ in gsw:
                    pass
            if i < 3:
                e(f"buffer_store_dwordx4 {v(o,4)}, v18, {R_H}, s78 offen offset:{1024*i} sc1")
            else:
                e(f"buffer_store_dwordx2 {v(o,2)}, v19, {R_H}, s78 offen sc1")
            n += 1
    stamp(e, 4)

    e.c("long conv")
    CA = 32
    e("v_and_b32 v3, 15, v0")
    e("v_lshrrev_b32 v5, 4, v0")
    e("v_and_b32 v4, 3, v3")
    e("v_sub_u32 v4, 3, v4")
    e("v_and_b32 v6, 1, v4")
    e("v_xor_b32 v6, 1, v6")
    e("v_lshrrev_b32 v4, 1, v4")
    e("v_lshl_add_u32 v4, v6, 1, v4")
    e(f"v_mul_u32_u24 v16, {CV_CP}, v4")
    e("v_and_b32 v4, 12, v3")
    e("v_lshlrev_b32 v4, 1, v4")
    e("v_sub_u32 v16, v16, v4")
    e("v_lshl_add_u32 v16, v5, 4, v16")
    e(f"s_add_u32 s78, s70, {2*2028 - 3584}")
    e("v_add_u32 v16, s78, v16")
    e("v_lshlrev_b32 v17, 5, v3")
    e("v_lshl_add_u32 v17, v5, 4, v17")
    e(f"s_add_u32 s78, s70, {CV_H - 32}")
    e("v_add_u32 v17, s78, v17")
    for i in range(32):
        e(f"v_mov_b32 v{CA+i}, 0")
    e(f"s_waitcnt vmcnt({e.vm - vm_e0}) lgkmcnt(0)")
    stamp(e, 5)

    def cv_reads(fs):
        o = 64 * fs
        r = []
        for i in range(8):
            r.append(f"ds_read_b128 {a(o+32+4*i,4)}, v17 offset:{512*i}")
            r.append(f"ds_read_b64 {a(o+4*i,2)}, v16 offset:{(7-i)*512}")
            r.append(f"ds_read_b64 {a(o+4*i+2,2)}, v16 offset:{(7-i)*512+8}")
        r += ["v_subrev_u32 v16, 64, v16", "v_subrev_u32 v17, 64, v17"]
        return r

    def cv_mfmas(fs):
        o = 64 * fs
        prs = [(p, w) for p in range(8) for w in range(8) if p + w <= 7]
        prs.sort(key=lambda x: (x[0], x[1]))
        return [f"v_mfma_f32_16x16x32_bf16 {v(CA+4*(p+w),4)}, {a(o+4*p,4)}, {a(o+32+4*w,4)}, {v(CA+4*(p+w),4)}" for p, w in prs]

    def cv_body(fs, rd=True, extra=None, early=None):
        e("s_waitcnt lgkmcnt(0)")
        slots = {}
        if early:
            slots[0] = list(early)
        if rd:
            for k, x in enumerate(cv_reads(1 - fs)):
                slots.setdefault(k, []).append(x)
        if extra:
            for k, g in enumerate(extra):
                slots.setdefault(k * 2 if not rd else 26 + k, []).extend(g)
        merge(e, cv_mfmas(fs), slots)

    G_H, G_WD, G_TR = 192, 200, 204
    g2s = []
    g2s.append(["s_lshl_b32 s72, s64, 1", "s_lshl_b32 s73, s67, 3"])
    for jj in range(8):
        g2s.append([f"s_add_u32 s78, s72, {jj}", "s_and_b32 s78, s78, 7", "s_add_u32 s78, s78, s73"])
        g2s.append([f"s_mul_i32 s78, s78, {H_SB}", f"v_add_u32 v{G_H+jj}, s78, v2"])
    g2s += [["v_lshrrev_b32 v6, 3, v0", "v_bfe_u32 v7, v0, 1, 2"],
            ["v_xor_b32 v7, v7, v5", "v_and_b32 v8, 1, v0"],
            [f"v_lshlrev_b32 v{G_WD}, 11, v6", f"v_lshl_add_u32 v{G_WD}, v7, 5, v{G_WD}"],
            [f"v_lshl_add_u32 v{G_WD}, v8, 4, v{G_WD}", "s_lshl_b32 s74, s68, 7"],
            [f"v_add_u32 v{G_WD}, s74, v{G_WD}", f"v_add_u32 v{G_WD+1}, 15360, v{G_WD}"],
            [f"v_add_u32 v{G_WD+2}, 30720, v{G_WD}", f"v_add_u32 v{G_WD+3}, 46080, v{G_WD}"],
            ["s_lshl_b32 s71, s64, 14", f"s_add_u32 s71, s71, {WB}", "v_bfe_u32 v6, v0, 2, 2"],
            ["v_and_b32 v7, 3, v0", "v_lshl_add_u32 v6, v5, 2, v6"],
            ["v_bfe_u32 v8, v6, 1, 2", "v_lshlrev_b32 v6, 7, v6"],
            ["v_lshl_add_u32 v6, v7, 3, v6", "v_add_u32 v6, s71, v6"]]
    for dt in range(4):
        g2s.append([f"v_xor_b32 v7, {dt}, v8", f"v_lshl_add_u32 v{G_TR+dt}, v7, 5, v6"])
    g2s.append(["s_lshl_b32 s75, s64, 10", "s_lshl_b32 s76, s64, 16"])
    g2s.append(["v_and_b32 v9, 31, v0", "v_lshlrev_b32 v9, 2, v9"])
    g2s.append(["s_lshr_b32 s77, s67, 1", "s_lshl_b32 s77, s77, 7", f"s_add_u32 s77, s77, {HF_REL}"])

    def g2dma(slot):
        r = [[f"s_add_u32 m0, s71, {slot*4096}", "s_nop 0", f"buffer_load_dwordx4 v{G_WD}, {R_WD}, s76 offen lds"]]
        for jj in range(1, 4):
            r.append([f"buffer_load_dwordx4 v{G_WD+jj}, {R_WD}, s76 offen offset:{1024*jj} lds"])
        r[-1].append("s_add_u32 s76, s76, 0x40000")
        return r

    HR, WF2 = 128, 0
    def hload(slot, jj):
        r = [f"buffer_load_dwordx4 {a(HR+slot*32+4*jj,4)}, v{G_H+jj}, {R_H}, s75 offen sc1"]
        if jj == 7:
            r.append("s_add_u32 s75, s75, 4096")
        return r

    for x in cv_reads(0):
        e(x)
    cv_body(0, extra=g2s[:10])
    cv_body(1, extra=g2s[10:20])
    cv_body(0, extra=g2s[20:30])
    e("s_waitcnt vmcnt(0)")
    e("s_barrier")
    e("s_cmp_lg_u32 s64, 0")
    e("s_cbranch_scc1 L_f1_nosig")
    e("v_mov_b32 v1, 1")
    e("s_mov_b64 exec, 1")
    e(f"buffer_store_dword v1, off, {R_MI}, s80 sc1")
    e("s_mov_b64 exec, -1")
    e.label("L_f1_nosig")
    cv_body(1, extra=g2s[30:])
    cv_body(0, extra=g2dma(0) + g2dma(1))
    f1_load = f"buffer_load_dword v10, v9, {R_MI}, s77 offen sc1"
    cv_body(1, extra=g2dma(2) + g2dma(3))
    cv_body(0, early=[f1_load])

    def f1_cond():
        e("v_cmp_ne_u32 vcc, 0, v10")
        e("s_cmp_eq_u64 vcc, exec")

    e("s_waitcnt vmcnt(0)")
    poll(10, f1_load, f1_cond, "f1")
    stamp(e, 6)
    hl = []
    for sl in range(4):
        for jj in range(0, 8, 2):
            hl.append(hload(sl, jj) + hload(sl, jj + 1))
    m0_ = e.vm
    cv_body(1, rd=False, extra=hl)
    e("v_lshlrev_b32 v12, 5, v3")
    e("v_lshl_add_u32 v12, v5, 3, v12")
    e(f"s_add_u32 s78, s70, {2*CV_CP + 2*2044 - 3584}")
    e("v_sub_u32 v13, s78, v12")
    for i in range(8):
        e(f"ds_read_b64 {v(64+2*i,2)}, v13 offset:{(7-i)*512}")
    e("s_and_b32 s78, s69, 1")
    e("s_lshl_b32 s78, s78, 4")
    e("s_lshr_b32 s90, s90, s78")
    e("s_lshl_b32 s90, s90, 16")
    e("v_lshlrev_b32 v12, 5, v3")
    e("v_lshrrev_b32 v13, 1, v5")
    e("v_lshl_add_u32 v12, v13, 4, v12")
    e("v_and_b32 v13, 1, v5")
    e("v_lshl_add_u32 v12, v13, 9, v12")
    e("s_waitcnt lgkmcnt(0)")
    for i in range(8):
        u0, u1 = 64 + 2 * i, 64 + 2 * i + 1
        y = CA + 4 * i
        e(f"v_and_b32 v14, 0xffff0000, v{u1}")
        e(f"v_lshlrev_b32 v15, 16, v{u1}")
        e(f"v_and_b32 v16, 0xffff0000, v{u0}")
        e(f"v_lshlrev_b32 v17, 16, v{u0}")
        for q in range(4):
            e(f"v_fmac_f32 v{y+q}, s90, v{14+q}")
        e(f"v_cvt_pk_bf16_f32 v{u0}, v{y}, v{y+1}")
        e(f"v_cvt_pk_bf16_f32 v{u1}, v{y+2}, v{y+3}")
    e("s_nop 1")
    for k in range(4):
        b = 64 + 4 * k
        e(f"v_permlane16_swap_b32 v{b}, v{b+2}")
        e(f"v_permlane16_swap_b32 v{b+1}, v{b+3}")
        e(f"buffer_store_dwordx4 {v(b,4)}, v12, {R_ZT}, s84 offen offset:{1024*k} sc1")
    nz = 4
    stamp(e, 7)
    nz = e.vm - m0_ - 32

    e.c("GEMM2")
    A2 = 64

    def acc2(dt, jj):
        return A2 + (jj * 4 + dt) * 4

    def trreads(slot, fs):
        return [f"ds_read_b64_tr_b16 {a(WF2+16*fs+4*dt+2*h,2)}, v{G_TR+dt} offset:{slot*4096+h*2048}"
                for dt in range(4) for h in range(2)]

    for x in trreads(0, 0):
        e(x)
    e("s_nop 1")
    for i in range(16, 128):
        e(f"v_mov_b32 v{A2+i}, 0")
    for i in range(16):
        e(f"v_mov_b32 v{A2+i}, 0")

    def body2(sl, vm, do_read, do_load, extra=None, pre=None):
        fs = sl & 1
        e(f"s_waitcnt vmcnt({vm}) lgkmcnt(0)")
        if pre:
            pre()
        slots = {}
        if do_read:
            for i, x in enumerate(trreads((sl + 1) % 4, 1 - fs)):
                slots.setdefault(4 + i, []).append(x)
        if do_load:
            for i, grp in enumerate(g2dma(sl)):
                slots.setdefault(i, []).extend(grp)
            for jj in range(8):
                slots.setdefault(4 * jj + 3, []).extend(hload(sl, jj))
        if extra:
            for i, grp in enumerate(extra):
                slots.setdefault(2 * i, []).extend(grp)
        mf = [f"v_mfma_f32_16x16x32_bf16 {v(acc2(dt,jj),4)}, {a(WF2+16*fs+4*dt,4)}, {a(HR+sl*32+4*jj,4)}, {v(acc2(dt,jj),4)}"
              for jj in range(8) for dt in range(4)]
        merge(e, mf, slots)

    body2(0, 24 + nz, True, True)
    body2(1, 16 + nz + 12, True, True)
    body2(2, 8 + nz + 24, True, True)
    body2(3, 32, True, True)
    e("s_barrier")
    e("s_cmp_lg_u32 s64, 0")
    e("s_cbranch_scc1 L_f2_nosig")
    e("v_mov_b32 v1, 1")
    e("s_mov_b64 exec, 1")
    e(f"buffer_store_dword v1, off, {R_MI}, s81 sc1")
    e("s_mov_b64 exec, -1")
    e.label("L_f2_nosig")
    e("s_mov_b32 s82, 1")
    e.label("L_g2_loop")
    for sl in range(4):
        body2(sl, 32, True, True)
    e("s_add_u32 s82, s82, 1")
    e("s_cmp_lt_u32 s82, 6")
    e("s_cbranch_scc1 L_g2_loop")
    e("v_and_b32 v6, 1, v5")
    e("v_lshrrev_b32 v7, 1, v5")
    e("v_lshl_or_b32 v6, v6, 1, v7")
    e("s_add_u32 s85, s73, s72")
    e("s_lshl_b32 s78, s85, 15")
    e("s_add_u32 s78, s78, s74")
    e("v_lshlrev_b32 v24, 11, v3")
    e("v_lshl_add_u32 v24, v6, 4, v24")
    e("v_add_u32 v24, s78, v24")
    e("v_add_u32 v25, 0x8000, v24")
    e("v_lshlrev_b32 v26, 3, v3")
    e("s_lshl_b32 s86, s85, 7")
    e("v_lshlrev_b32 v9, 2, v3")
    e("s_lshl_b32 s77, s68, 6")
    e(f"s_add_u32 s77, s77, {ZF_REL}")
    e("v_lshrrev_b32 v28, 2, v0")
    e("v_lshlrev_b32 v28, 12, v28")
    e("v_and_b32 v27, 3, v0")
    e("v_lshl_add_u32 v28, v27, 4, v28")
    e("s_lshl_b32 s78, s68, 18")
    e("s_lshl_b32 s79, s85, 5")
    e("s_add_u32 s78, s78, s79")
    e("v_add_u32 v28, s78, v28")
    XR, SR = 208, 224
    f2_load = f"buffer_load_dword v10, v9, {R_MI}, s77 offen sc1"
    extra = [[f2_load]]
    for e2 in range(2):
        for pr in range(2):
            extra.append([f"buffer_load_dwordx4 {v(XR+4*(2*e2+pr),4)}, v{24+e2}, {R_X}, 0 offen offset:{64*pr}"])
        extra.append([f"buffer_load_dwordx2 {v(SR+2*e2,2)}, v26, {R_MI}, s86 offen offset:{ST_REL+128*e2} sc1"])
    body2(0, 32, True, False, extra)
    body2(1, 20 + 7, True, False)
    body2(2, 8 + 7, True, False)
    zd = [["s_mov_b32 m0, s71", "s_nop 0", f"buffer_load_dwordx4 v28, {R_ZT}, 0 offen sc1 lds"]]
    for i in range(1, 4):
        zd.append([f"s_mov_b32 s78, {i*(65536-1024)}", f"buffer_load_dwordx4 v28, {R_ZT}, s78 offen offset:{1024*i} sc1 lds"])
    body2(3, 0, False, False, extra=zd, pre=lambda: poll(10, f2_load, f1_cond, "f2"))
    stamp(e, 8)
    e.c("cross-wave reduction")
    e("v_add_u32 v4, s70, v2")
    e("s_nop 7")
    for jj in range(2, 8):
        for dt in range(4):
            e(f"ds_write_b128 v4, {v(acc2(dt,jj),4)} offset:{((jj-2)*4+dt)*1024}")
    for dl in range(1, 4):
        e(f"s_sub_u32 s78, s64, {dl}")
        e("s_and_b32 s78, s78, 3")
        e(f"s_mul_i32 s78, s78, {XWREG}")
        e(f"s_add_u32 s78, s78, {(2*dl-2)*4096}")
        e(f"v_add_u32 v{12+dl}, s78, v2")
    e("v_bfe_u32 v7, v0, 2, 2")
    e("v_lshl_add_u32 v7, v6, 3, v7")
    e("v_lshlrev_b32 v7, 6, v7")
    e("v_lshl_add_u32 v7, v27, 3, v7")
    e("v_add_u32 v7, s71, v7")
    e("s_waitcnt lgkmcnt(0)")
    e("s_barrier")
    stamp(e, 9)
    RB = A2 + 32
    for dl in range(1, 4):
        for q in range(8):
            e(f"ds_read_b128 {v(RB+((dl-1)*8+q)*4,4)}, v{12+dl} offset:{q*1024}")
        if dl > 1:
            e("s_waitcnt lgkmcnt(8)")
            for q in range(16):
                e(f"v_pk_add_f32 {v(A2+2*q,2)}, {v(A2+2*q,2)}, {v(RB+(dl-2)*32+2*q,2)}")
    ZR = 232
    e("s_waitcnt vmcnt(0) lgkmcnt(0)")
    for e2 in range(2):
        for pr in range(2):
            for hh in range(2):
                e(f"ds_read_b64_tr_b16 {v(ZR+4*(2*e2+pr)+2*hh,2)}, v7 offset:{(32*pr+4*hh)*64 + 32*e2}")
    for q in range(16):
        e(f"v_pk_add_f32 {v(A2+2*q,2)}, {v(A2+2*q,2)}, {v(RB+64+2*q,2)}")
    e("s_nop 1")
    for e2 in range(2):
        for pr in range(2):
            for r in range(4):
                e(f"v_permlane16_swap_b32 v{acc2(2*pr,e2)+r}, v{acc2(2*pr+1,e2)+r}")
    e("s_waitcnt lgkmcnt(0)")
    for e2 in range(2):
        st = SR + 2 * e2
        for pr in range(2):
            i = 2 * e2 + pr
            A0 = acc2(2 * pr, e2)
            for q in range(4):
                unpack(e, 32, XR + 4 * i + q)
                unpack(e, 36, ZR + 4 * i + q)
                e(f"v_pk_add_f32 v[34:35], v[32:33], {v(st,2)} op_sel_hi:[1,0]")
                e(f"v_pk_add_f32 v[32:33], v[32:33], {v(A0+2*q,2)}")
                e(f"v_pk_mul_f32 v[34:35], v[34:35], {v(st,2)} op_sel:[0,1] op_sel_hi:[1,1]")
                e("v_pk_fma_f32 v[32:33], v[34:35], v[36:37], v[32:33]")
                e(f"v_cvt_pk_bf16_f32 v{40+4*i+q}, v32, v33")
            e(f"buffer_store_dwordx4 {v(40+4*i,4)}, v{24+e2}, {R_OUT}, 0 offen offset:{64*pr}")
    stamp(e, 10)
    if STAMPS:
        e("s_waitcnt vmcnt(0)")
    stamp(e, 11)
    e.label("L_end")
    name = NAME + "_kernel"
    return f""".globl {name}
.p2align 8
.type {name},@function
{name}:
{e.text()}    s_endpgm
.section .rodata,"a"
.p2align 6
.amdhsa_kernel {name}
  .amdhsa_next_free_vgpr 512
  .amdhsa_next_free_sgpr 102
  .amdhsa_accum_offset 256
  .amdhsa_group_segment_fixed_size 0
  .amdhsa_kernarg_size 104
  .amdhsa_user_sgpr_count 2
  .amdhsa_user_sgpr_kernarg_segment_ptr 1
  .amdhsa_system_sgpr_workgroup_id_x 1
  .amdhsa_float_denorm_mode_32 3
.end_amdhsa_kernel
"""


def main(opt=None):
    opt = opt or {}
    ref = open("cdna_kernels/" + NAME + ".s.ref").read().split("\n")
    hdr = [l for l in ref if l.startswith(";") and "@launch" not in l]
    out = "\n".join(hdr) + "\n"
    out += f"; @launch grid=(256,1,1) block=(256,1,1) lds={LDS_SIZE}\n"
    out += '.amdgcn_target "amdgcn-amd-amdhsa--gfx950"\n.text\n'
    out += gen(opt)
    return out


if __name__ == "__main__":
    args = [x for x in sys.argv[1:] if not x.startswith("-")]
    opt = {}
    for x in sys.argv[1:]:
        if x == "-stamps":
            STAMPS = True
        elif x.startswith("-"):
            k, _, val = x[1:].partition("=")
            opt[k] = int(val) if val else 1
    path = args[0] if args else "cdna_kernels/" + NAME + ".s"
    open(path, "w").write(main(opt))
    print("wrote", path)
```

```python
import sys

NAME = "parallel_sum__ssm_conv_h3__swiglu_ffn__prompt"
S, D, F = 2048, 1024, 3584
KA_Q, KA_K, KA_V, KA_SHK, KA_SSMK, KA_SSMD, KA_BX, KA_WG, KA_WU, KA_WD, KA_OUT, KA_DBG, KA_WS = [8 * i for i in range(13)]

MISC_OFF = 0
ST_REL = 0
HF_REL = 16384
ZF_REL = 16384 + 1024
KF_REL = 16384 + 2048
CS_REL = 32768
MISC_SIZE = CS_REL + 32 * 12288
UR_OFF = 4 << 20
UR_PITCH = 4096 + 128
UR_SIZE = D * UR_PITCH
ZT_OFF = 9 << 20
ZT_SIZE = S * D * 2
H_OFF = 16 << 20
H_SIZE = S * F * 2
H_SB = 112 * 1024
STAMP_OFF = 64 << 20

LDS_SIZE = 163840
XWREG = 24576
WB = 4 * XWREG
CV_CP = 4160
CV_HZ = 4 * CV_CP
CV_H = CV_HZ + 512
WSTEP = 32 * 7168
SPIN_LIMIT = 200000

STAMPS = False


class E:
    def __init__(self):
        self.l = []
        self.vm = 0
        self.vm_done = 0
        self.lg = 0
        self.lg_done = 0
        self.tag = {}

    def __call__(self, s, tag=None):
        for ln in s.strip("\n").split("\n"):
            ln = ln.strip()
            if ln.startswith("buffer_"):
                self.vm += 1
                if tag:
                    self.tag[tag] = ("v", self.vm)
            elif ln.startswith("ds_"):
                self.lg += 1
                if tag:
                    self.tag[tag] = ("l", self.lg)
            self.l.append("    " + ln)

    def mark(self, tag, kind):
        self.tag[tag] = (kind, self.vm if kind == "v" else self.lg)

    def need(self, *tags):
        nv = max([self.tag[t][1] for t in tags if self.tag[t][0] == "v"] + [0])
        nl = max([self.tag[t][1] for t in tags if self.tag[t][0] == "l"] + [0])
        w = []
        if nv > self.vm_done:
            n = min(self.vm - nv, 63)
            w.append(f"vmcnt({n})")
            self.vm_done = self.vm - n
        if nl > self.lg_done:
            n = min(self.lg - nl, 15)
            w.append(f"lgkmcnt({n})")
            self.lg_done = self.lg - n
        if w:
            self.l.append("    s_waitcnt " + " ".join(w))

    def wait(self, vm=None, lg=None):
        w = []
        if vm is not None:
            w.append(f"vmcnt({vm})")
            self.vm_done = max(self.vm_done, self.vm - vm)
        if lg is not None:
            w.append(f"lgkmcnt({lg})")
            self.lg_done = max(self.lg_done, self.lg - lg)
        self.l.append("    s_waitcnt " + " ".join(w))

    def label(self, s):
        self.l.append(s + ":")

    def c(self, s):
        self.l.append("    ; " + s)

    def text(self):
        return "\n".join(self.l) + "\n"


def v(i, n=1):
    return f"v{i}" if n == 1 else f"v[{i}:{i+n-1}]"


def a(i, n=1):
    return f"a{i}" if n == 1 else f"a[{i}:{i+n-1}]"


def stamp(e, i):
    if not STAMPS:
        return
    e("s_memrealtime s[96:97]")
    e("s_memtime s[98:99]")
    e.wait(lg=0)
    e("v_mov_b32 v30, s96")
    e("v_mov_b32 v31, s98")
    e(f"buffer_store_dwordx2 v[30:31], off, s[92:95], s100 offset:{8*i}")


def unpack(e, dst, src):
    e(f"v_lshlrev_b32 v{dst}, 16, v{src}")
    e(f"v_and_b32 v{dst+1}, 0xffff0000, v{src}")


def allreduce32(e, r, t):
    e("s_nop 1")
    for m in ("quad_perm:[1,0,3,2]", "quad_perm:[2,3,0,1]", "row_half_mirror", "row_mirror"):
        e(f"v_add_f32_dpp v{r}, v{r}, v{r} {m} row_mask:0xf bank_mask:0xf")
        e("s_nop 1")
    e(f"v_mov_b32 v{t}, v{r}")
    e("s_nop 1")
    e(f"v_permlane16_swap_b32 v{r}, v{t}")
    e("s_nop 1")
    e(f"v_add_f32 v{r}, v{r}, v{t}")


def round_bf16(e, r):
    e(f"v_cvt_pk_bf16_f32 v{r}, v{r}, v{r}")
    e(f"v_lshlrev_b32 v{r}, 16, v{r}")


R_X, R_WG, R_WU, R_H, R_UR, R_SK, R_ZT, R_MI, R_DB, R_WD, R_OUT, R_K, R_V, R_SH = [f"s[{8+4*i}:{11+4*i}]" for i in range(14)]
MF = "v_mfma_f32_16x16x32_bf16"


def merge(e, mf, slots):
    def do(x):
        if callable(x):
            x()
        else:
            e(x)
    for i, m in enumerate(mf):
        e(m)
        for x in slots.get(i, []):
            do(x)
    for k in sorted(slots):
        if k >= len(mf):
            for x in slots[k]:
                do(x)


def signal(e, lab, ins):
    e("s_cmp_lg_u32 s64, 0")
    e(f"s_cbranch_scc1 L_{lab}_nosig")
    e("v_mov_b32 v1, 1")
    e("s_mov_b64 exec, 1")
    e.l.append("    " + ins)
    e("s_mov_b64 exec, -1")
    e.label(f"L_{lab}_nosig")


def gen(opt):
    e = E()
    ACC = 32

    AC6 = 180

    def acc(ai, j):
        t, m = ai % 7, ai // 7
        assert t < 6
        return ACC + ((m * 6 + t) * 4 + j) * 4

    def accr(ai, j):
        if ai % 7 == 6:
            return a(AC6 + (ai // 7) * 16 + 4 * j, 4)
        return v(acc(ai, j), 4)
    FA = [0, 72]
    CSF, CSS, CSA = 144, 160, 176

    e("s_cmp_ge_u32 s2, 256")
    e("s_cbranch_scc1 L_end")
    if STAMPS:
        e("s_memrealtime s[96:97]")
        e("s_memtime s[98:99]")
    for reg, off in ((8, KA_Q), (12, KA_WG), (16, KA_WU), (88, KA_WS), (28, KA_SSMK), (40, KA_DBG), (44, KA_WD),
                     (48, KA_OUT), (52, KA_K), (56, KA_V), (60, KA_SHK), (86, KA_SSMD)):
        e(f"s_load_dwordx2 s[{reg}:{reg+1}], s[0:1], {off}")
    if opt.get("cpf", 1):
        e("s_getpc_b64 s[82:83]")
        e.label("L_pc")
        e("s_lshr_b32 s78, s2, 3")
        e("s_and_b32 s78, s78, 3")
        e("s_lshl_b32 s78, s78, 14")
        e("v_lshlrev_b32 v50, 6, v0")
        e("v_add_u32 v50, s78, v50")
        e("v_min_u32 v50, L_end-L_pc, v50")
        e("v_mov_b32 v51, s83")
        e("v_add_co_u32 v50, vcc, s82, v50")
        e("s_nop 1")
        e("v_addc_co_u32 v51, vcc, 0, v51, vcc")
        e.l.append("    global_load_dword v245, v[50:51], off")
        e.vm += 1
    e("v_lshrrev_b32 v1, 6, v0")
    e("v_mov_b32 v29, v0")
    e("v_and_b32 v0, 63, v0")
    e("v_readfirstlane_b32 s64, v1")
    e("v_lshlrev_b32 v2, 4, v0")
    e("v_lshrrev_b32 v39, 5, v29")
    e("v_and_b32 v40, 31, v29")
    e("s_lshl_b32 s7, s2, 14")
    e("v_lshlrev_b32 v41, 11, v39")
    e("v_lshl_add_u32 v41, v40, 4, v41")
    e("v_add_u32 v41, s7, v41")
    for reg, size in ((8, S * D * 2), (12, D * F * 2), (16, D * F * 2)):
        e(f"s_mov_b32 s{reg+2}, 0x{size:x}")
        e(f"s_mov_b32 s{reg+3}, 0x20000")
    e("s_and_b32 s6, s2, 7")
    e("s_lshr_b32 s7, s2, 3")
    e("s_and_b32 s65, s7, 7")
    e("s_lshr_b32 s66, s7, 3")
    e("s_lshl_b32 s78, s6, 2")
    e("s_add_u32 s66, s66, s78")
    e(f"s_mul_i32 s70, s64, {XWREG}")
    e("s_lshl_b32 s71, s64, 11")
    e(f"s_add_u32 s71, s71, {WB}")
    ROT = opt.get("rot", 8)
    NCS = 32 // ROT
    e(f"s_lshr_b32 s3, s65, {1 if ROT == 4 else 0}")
    e(f"s_mul_i32 s72, s3, {NCS*WSTEP}")
    e("s_add_u32 s73, s72, 27648")
    e("v_lshrrev_b32 v22, 4, v0")
    e("v_bfe_u32 v23, v0, 1, 3")
    e("s_and_b32 s78, s64, 1")
    e("s_lshl_b32 s78, s78, 2")
    e("v_or_b32 v24, s78, v22")
    e("v_xor_b32 v23, v23, v24")
    e("s_and_b32 s78, s66, 1")
    e("v_add_u32 v24, s78, v23")
    e("v_cmp_eq_u32 vcc, 7, v24")
    e("v_and_b32 v25, 1, v0")
    e("s_lshl_b32 s78, s64, 3")
    e("v_cndmask_b32 v24, v24, 0, vcc")
    e("v_lshlrev_b32 v3, 5, v24")
    e("v_lshl_add_u32 v3, v25, 4, v3")
    e("v_add_u32 v26, s78, v22")
    e("v_mul_u32_u24 v27, 7168, v26")
    e("v_add_u32 v3, v3, v27")
    e("s_mul_i32 s78, s66, 224")
    e("v_add_u32 v3, s78, v3")
    e("v_cmp_eq_u32 vcc, 7, v23")
    e("v_mov_b32 v27, 0x80000000")
    e("v_lshlrev_b32 v28, 8, v26")
    e("v_cndmask_b32 v3, v3, v27, vcc")
    e("v_lshl_add_u32 v28, v23, 5, v28")
    e("v_lshl_add_u32 v28, v25, 4, v28")
    e("v_lshrrev_b32 v23, 3, v0")
    e("v_and_b32 v24, 7, v0")
    e("v_xor_b32 v24, v24, v22")
    e("s_lshl_b32 s78, s65, 19")
    e("s_lshl_b32 s79, s64, 17")
    e("s_add_u32 s78, s78, s79")
    e("v_lshlrev_b32 v4, 11, v23")
    e("v_add_u32 v4, s78, v4")
    e("v_xor_b32 v25, 4, v24")
    e("v_lshl_add_u32 v5, v25, 4, v4")
    e("v_lshl_add_u32 v4, v24, 4, v4")
    e("v_add_u32 v5, 15360, v5")
    e("v_add_u32 v6, 30720, v4")
    e("v_add_u32 v7, 30720, v5")
    e(f"s_mul_i32 s77, s3, {NCS*64}")
    e("s_add_u32 s76, s70, 16384")
    e(f"s_add_u32 s91, s70, {XWREG}")

    wstep = [0]

    def wdma(u, aug=False):
        g = []
        nt = " nt" if (opt.get("ntw", 1) == 2 or (opt.get("ntw", 1) == 1 and wstep[0] < NCS)) else ""
        wstep[0] += 1
        if aug:
            g.append([f"s_add_u32 m0, s71, {u*16384}", "s_nop 0", f"buffer_load_dwordx4 v28, {R_MI}, 0 offen sc1 lds"])
            g.append([f"buffer_load_dwordx4 v28, {R_MI}, 0 offen offset:1024 sc1 lds"])
            g.append([f"s_add_u32 m0, s71, {u*16384+8192}", "s_movk_i32 s78, 6144", f"buffer_load_dwordx4 v28, {R_MI}, s78 offen sc1 lds"])
            g.append([f"buffer_load_dwordx4 v28, {R_MI}, s78 offen offset:1024 sc1 lds"])
            return g
        g.append([f"s_add_u32 m0, s71, {u*16384}", "s_nop 0", f"buffer_load_dwordx4 v3, {R_WG}, s72 offen{nt} lds"])
        g.append([f"buffer_load_dwordx4 v3, {R_WG}, s73 offen offset:1024{nt} lds"])
        g.append([f"s_add_u32 m0, s71, {u*16384+8192}", "s_nop 0", f"buffer_load_dwordx4 v3, {R_WU}, s72 offen{nt} lds"])
        g.append([f"buffer_load_dwordx4 v3, {R_WU}, s73 offen offset:1024{nt} lds", f"s_add_u32 s72, s72, {WSTEP}"])
        g.append([f"s_cmp_eq_u32 s72, {32*WSTEP}", "s_cselect_b32 s72, 0, s72", "s_add_u32 s73, s72, 27648"])
        return g

    def xdma(hf):
        g = []
        if hf == 0:
            g.append(["s_mov_b32 m0, s76", "s_nop 0", f"buffer_load_dwordx4 v4, {R_X}, s77 offen lds"])
            so = "s77"
        else:
            g.append(["s_add_u32 m0, s76, 4096", "s_add_u32 s79, s77, 0x10000", f"buffer_load_dwordx4 v4, {R_X}, s79 offen lds"])
            so = "s79"
        for q in range(1, 4):
            g.append([f"buffer_load_dwordx4 v{4+q}, {R_X}, {so} offen offset:{1024*q} lds"])
        if hf == 1:
            g[-1] += ["s_add_u32 s77, s77, 128", "s_and_b32 s77, s77, 0x7ff"]
            g.append(["s_add_u32 s76, s76, 8192", "s_cmp_eq_u32 s76, s91", "s_cselect_b32 s76, s70, s76"])
        return g

    def flat(gs):
        for g in gs:
            for x in g:
                e(x)

    e.wait(lg=0)
    XS = 224
    flat(wdma(0)); flat(xdma(0)); flat(xdma(1)); e.mark("w0", "v")
    flat(wdma(1)); e.mark("w1", "v")
    for j in range(4):
        e(f"buffer_load_dwordx4 {v(XS+4*j,4)}, v41, {R_X}, 0 offen offset:{512*j}", tag="xs")
    for reg, size in ((52, S * D * 2), (56, S * D * 2)):
        e(f"s_mov_b32 s{reg+2}, 0x{size:x}")
        e(f"s_mov_b32 s{reg+3}, 0x20000")
    e("s_and_b32 s4, s2, 31")
    e("s_lshr_b32 s5, s2, 5")
    e("s_lshl_b32 s78, s4, 17")
    e("s_lshl_b32 s79, s5, 8")
    e("s_add_u32 s78, s78, s79")
    e("s_lshl_b32 s79, s64, 6")
    e("s_add_u32 s78, s78, s79")
    e("v_and_b32 v52, 3, v0")
    e("v_lshrrev_b32 v248, 2, v0")
    e("v_lshlrev_b32 v248, 13, v248")
    e("v_lshl_add_u32 v248, v52, 4, v248")
    e("v_add_u32 v248, s78, v248")
    e("v_add_u32 v249, 0xffffe000, v248")
    e("v_add_u32 v250, 0xfffff000, v248")
    e("v_add_u32 v251, 0x1000, v248")
    KR, VR, WR = [212 + 4 * i for i in range(7)], [240 + 4 * i for i in range(4)], [144 + 4 * i for i in range(4)]
    kaddr = [(249, 2048), (250, 0), (250, 2048), (248, 0), (248, 2048), (251, 0), (251, 2048)]
    ntk = " nt" if opt.get("ntkv", 1) else ""
    kvl = [[f"buffer_load_dwordx4 {a(VR[i],4)}, v{r}, {R_V}, 0 offen offset:{o}{ntk}"] for i, (r, o) in enumerate(kaddr[3:])]
    kvl += [[f"buffer_load_dwordx4 {a(KR[i],4)}, v{r}, {R_K}, 0 offen offset:{o}{ntk}"] for i, (r, o) in enumerate(kaddr)]
    kvl[-1].append(lambda: e.mark("kv", "v"))
    for reg, size in ((28, D * S * 2), (40, 256), (44, F * D * 2), (48, S * D * 2), (60, D * 8)):
        e(f"s_mov_b32 s{reg+2}, 0x{size:x}")
        e(f"s_mov_b32 s{reg+3}, 0x20000")
    wsr = [(20, H_OFF, H_SIZE), (24, UR_OFF, UR_SIZE), (32, ZT_OFF, ZT_SIZE), (36, MISC_OFF, MISC_SIZE)]
    if STAMPS:
        wsr.append((92, STAMP_OFF, 1 << 20))
    for reg, off, size in wsr:
        e(f"s_add_u32 s{reg}, s88, 0x{off:x}")
        e(f"s_addc_u32 s{reg+1}, s89, 0")
        e(f"s_mov_b32 s{reg+2}, 0x{size:x}")
        e(f"s_mov_b32 s{reg+3}, 0x20000")
    if STAMPS:
        e("s_lshl_b32 s100, s2, 2")
        e("s_add_u32 s100, s100, s64")
        e("s_lshl_b32 s100, s100, 7")
        e("v_mov_b32 v30, s96")
        e("v_mov_b32 v31, s98")
        e("buffer_store_dwordx2 v[30:31], off, s[92:95], s100")
    e("s_lshl_b32 s69, s2, 2")
    e("s_add_u32 s69, s69, s64")
    e("s_lshr_b32 s78, s69, 1")
    e("s_lshl_b32 s78, s78, 2")
    e("s_load_dword s90, s[86:87], s78")
    e("s_lshr_b32 s67, s6, 1")
    e("s_lshl_b32 s67, s67, 2")
    e("s_and_b32 s78, s7, 3")
    e("s_add_u32 s67, s67, s78")
    e("s_and_b32 s68, s6, 1")
    e("s_lshl_b32 s68, s68, 3")
    e("s_lshr_b32 s78, s7, 2")
    e("s_add_u32 s68, s68, s78")
    e("s_mul_i32 s78, s66, 12288")
    e(f"s_add_u32 s78, s78, {CS_REL}")
    e("s_cmp_eq_u32 s64, 3")
    e("s_cselect_b32 s78, 0x80000000, s78")
    e("v_add_u32 v28, s78, v28")
    e("v_bfe_u32 v24, v0, 2, 2")
    e("v_and_b32 v25, 3, v0")
    e("v_lshl_add_u32 v26, v22, 3, v24")
    e("v_lshlrev_b32 v26, 8, v26")
    e("v_lshl_add_u32 v26, v25, 3, v26")
    e(f"v_add_u32 v26, {WB}, v26")
    e("v_and_b32 v27, 1, v22")
    e("v_lshl_or_b32 v27, v27, 2, v24")
    for t in range(7):
        e(f"v_xor_b32 v1, {t}, v27")
        e(f"v_lshl_add_u32 v{8+t}, v1, 5, v26")
    e("s_lshr_b32 s78, s64, 1")
    e("s_lshl_b32 s78, s78, 13")
    e("v_add_u32 v26, s78, v26")
    e("s_and_b32 s78, s64, 1")
    e("s_lshl_b32 s78, s78, 2")
    e("v_xor_b32 v27, s78, v27")
    for q in range(4):
        e(f"v_xor_b32 v1, {q}, v27")
        e(f"v_lshl_add_u32 v{18+q}, v1, 5, v26")
    e("v_and_b32 v24, 15, v0")
    e("v_lshrrev_b32 v25, 1, v24")
    e("v_xor_b32 v25, v25, v22")
    e("v_lshlrev_b32 v15, 7, v24")
    e("v_lshl_add_u32 v15, v25, 4, v15")
    e("v_add_u32 v15, s70, v15")
    e("v_xor_b32 v16, 64, v15")
    e("v_and_b32 v24, 3, v0")
    if ROT == 4:
        e("s_bitcmp1_b32 s65, 0")
        e("s_cselect_b32 s78, 0, 0x3f803f80")
        e("v_mov_b32 v25, s78")
    else:
        e("v_mov_b32 v25, 0x3f803f80")
    for q in range(4):
        e(f"v_cmp_eq_u32 vcc, {q}, v24")
        e("s_nop 1")
        e("v_cndmask_b32 v26, 0, v25, vcc")
        for r in range(4):
            e(f"v_accvgpr_write_b32 a{CSS+4*q+r}, v26")
    e("s_lshl_b32 s78, s65, 5")
    e("s_add_u32 s78, s78, s66")
    e("s_lshl_b32 s78, s78, 2")
    e(f"s_add_u32 s80, s78, {HF_REL}")
    e("s_lshl_b32 s78, s2, 2")
    e(f"s_add_u32 s81, s78, {ZF_REL}")
    e("v_lshlrev_b32 v48, 10, v29")
    e(f"v_add_u32 v48, s81, v48")
    e("v_mov_b32 v47, s80")
    e("v_cmp_eq_u32 vcc, 2, v29")
    e("v_mov_b32 v45, 0x80000000")
    e("v_mov_b32 v46, 0")
    e("v_cndmask_b32 v48, v48, v47, vcc")
    e("v_cmp_gt_u32 vcc, 3, v29")
    e("s_lshl_b32 s78, s2, 6")
    e("v_lshlrev_b32 v49, 3, v39")
    e("v_cndmask_b32 v48, v45, v48, vcc")
    e("v_add_u32 v49, s78, v49")
    e("v_cmp_eq_u32 vcc, 0, v40")
    e(f"buffer_store_dword v46, v48, {R_MI}, 0 offen sc1")
    e("s_nop 0")
    e("v_cndmask_b32 v244, v45, v49, vcc")
    stamp(e, 1)

    flat(xdma(0)); flat(xdma(1)); flat(wdma(2)); e.mark("w2", "v")
    e.need("w0")
    e.wait(lg=0)
    e("s_barrier")
    stamp(e, 2)

    def ared(r, tmp):
        o = []
        for m in ("quad_perm:[1,0,3,2]", "quad_perm:[2,3,0,1]", "row_half_mirror", "row_mirror"):
            o += ["s_nop 1", f"v_add_f32_dpp v{r}, v{r}, v{r} {m} row_mask:0xf bank_mask:0xf"]
        o += [f"v_mov_b32 v{tmp}, v{r}", "s_nop 1", f"v_permlane16_swap_b32 v{r}, v{tmp}", "s_nop 1", f"v_add_f32 v{r}, v{r}, v{tmp}"]
        return o
    rb = lambda r: [f"v_cvt_pk_bf16_f32 v{r}, v{r}, v{r}", f"v_lshlrev_b32 v{r}, 16, v{r}"]
    sts = [f"v_lshlrev_b32 v240, 16, v{XS}", f"v_and_b32 v241, 0xffff0000, v{XS}"]
    for i in range(1, 16):
        sts += [f"v_lshlrev_b32 v242, 16, v{XS+i}", f"v_and_b32 v243, 0xffff0000, v{XS+i}",
                "v_add_f32 v240, v240, v242", "v_add_f32 v241, v241, v243"]
    sts += ["v_add_f32 v246, v240, v241"] + ared(246, 242) + ["v_mul_f32 v246, 0xba800000, v246"]
    for i in range(16):
        sts += [f"v_lshlrev_b32 v242, 16, v{XS+i}", f"v_and_b32 v243, 0xffff0000, v{XS+i}",
                "v_add_f32 v242, v242, v246", "v_add_f32 v243, v243, v246"]
        sts += (["v_mul_f32 v240, v242, v242", "v_mul_f32 v241, v243, v243"] if i == 0 else
                ["v_fmac_f32 v240, v242, v242", "v_fmac_f32 v241, v243, v243"])
    sts += ["v_add_f32 v247, v240, v241"] + ared(247, 242) + ["v_mul_f32 v247, 0x3a800000, v247"] + rb(247)
    sts += ["v_add_f32 v247, 0x3727c5ac, v247"] + rb(247) + ["v_sqrt_f32 v247, v247"] + rb(246) + rb(247)
    sts += ["v_rcp_f32 v247, v247", "s_nop 0"]
    st_store = [f"buffer_store_dwordx2 v[246:247], v244, {R_MI}, 0 offen offset:{ST_REL} sc1"]

    def reads(step_u, fs, cs=False, do_b=True):
        fa = FA[fs]
        al = []
        for ai in range(14):
            for h in range(2):
                al.append(f"ds_read_b64_tr_b16 {a(fa+4*ai+2*h,2)}, v{8+ai%7} offset:{step_u*16384 + (ai//7)*8192 + h*1024}")
        bl = [f"ds_read_b128 {a(fa+56+4*j,4)}, v17 offset:{2048*j}" for j in range(4)] if do_b else []
        cl = []
        if cs:
            for q in range(4):
                for h in range(2):
                    cl.append(f"ds_read_b64_tr_b16 {a(CSF+4*q+2*h,2)}, v{18+q} offset:{step_u*16384 + h*1024}")
        return bl + al + cl

    def mfmas(fs, first=False):
        fa = FA[fs]
        return [f"{MF} {accr(ai,j)}, {a(fa+4*ai,4)}, {a(fa+56+4*j,4)}, {'0' if first else accr(ai,j)}"
                for ai in range(14) for j in range(4)]

    e("s_movk_i32 s75, 16384")
    e("v_add_u32 v17, s75, v15")
    for x in reads(0, 0, cs=True):
        e(x)
    flat(wdma(3)); e.mark("w3", "v")
    flat(xdma(0))

    def body(i, wd=True, xd=True, rd=True, cs_m=False, cs_r=False, extra=None, pre=None, aug_w=False, do_b=True,
             vm=None, side=None, side0=12, needs=()):
        u = i & 3
        fs = i & 1
        if vm is None:
            tags = [t_ for t_ in [f"it{i-3}"] + list(needs) if t_ in e.tag]
            vm = min(63, e.vm - max(e.tag[t_][1] for t_ in tags))
        e.wait(vm=vm, lg=0)
        e("s_barrier")
        if pre:
            pre()
        mf = mfmas(fs, first=(i == 0))
        if cs_m:
            cm = [f"{MF} {a(CSA,4)}, {a(CSF+4*q,4)}, {a(CSS+4*q,4)}, {'0' if (i == 0 and q == 0) else a(CSA,4)}" for q in range(4)]
            mf = cm + mf
        slots = {}
        groups = []
        if xd:
            groups += xdma(1 - (i & 1))
        if wd:
            groups += wdma(u, aug_w)
        groups.append([lambda: e.mark(f"it{i}", "v")])
        if extra:
            groups += extra
        isb = lambda x: isinstance(x, str) and x.startswith("buffer_")
        heavy = [any(isb(x) for x in g) for g in groups]
        nh = max(1, sum(heavy))
        sp = max(1.0, min(7.0, (len(mf) - 5.0) / nh))
        taken = set()
        pos = 2.0
        nxt = 3.0
        for g, hv in zip(groups, heavy):
            if hv:
                pos = max(pos + 1, nxt)
                nxt = pos + sp
                taken.add(int(pos))
            elif not callable(g[0]):
                pos += 1
            slots.setdefault(int(pos), []).extend(g)
        if rd:
            hk = (i + 1) & 1
            if do_b:
                if hk == 0:
                    slots[0] = ["s_add_u32 s75, s75, 8192", f"s_cmp_eq_u32 s75, {XWREG}", "s_cselect_b32 s75, 0, s75"]
                    slots[1] = ["v_add_u32 v17, s75, v15"]
                    taken.add(0)
                else:
                    slots[1] = ["v_add_u32 v17, s75, v16"]
            rl = reads((u + 1) & 3, 1 - fs, cs_r, do_b)
            if do_b:
                rl = rl[4:8] + rl[:4] + rl[8:]
            pos = 0 if not cs_m else 1
            for x in rl:
                while pos in taken and pos < 44:
                    pos += 1
                slots[pos] = [x] + slots.get(pos, [])
                pos += 1
        if side:
            room = len(mf) - side0
            for k, x in enumerate(side):
                slots.setdefault(side0 + (k * room) // len(side), []).append(x)
        merge(e, mf, slots)

    C = 224
    cs = [f"v_accvgpr_read_b32 v{C+r}, a{CSA+r}" for r in range(4)]
    cs += [f"v_cvt_pk_bf16_f32 v{C+4}, v{C}, v{C+1}", f"v_cvt_pk_bf16_f32 v{C+5}, v{C+2}, v{C+3}",
           f"v_lshlrev_b32 v{C+6}, 16, v{C+4}", f"v_and_b32 v{C+7}, 0xffff0000, v{C+4}",
           f"v_lshlrev_b32 v{C+8}, 16, v{C+5}", f"v_and_b32 v{C+9}, 0xffff0000, v{C+5}"]
    cs += [f"v_sub_f32 v{C+r}, v{C+r}, v{C+6+r}" for r in range(4)]
    cs += ["v_bfe_u32 v1, v0, 2, 2", "v_cmp_eq_u32 vcc, 1, v1",
           f"v_cvt_pk_bf16_f32 v{C+10}, v{C}, v{C+1}", f"v_cvt_pk_bf16_f32 v{C+11}, v{C+2}, v{C+3}",
           f"v_cndmask_b32 v{C+4}, v{C+4}, v{C+10}, vcc", f"v_cndmask_b32 v{C+5}, v{C+5}, v{C+11}, vcc",
           f"v_lshlrev_b32 v{C+6}, 16, v{C+10}", f"v_and_b32 v{C+7}, 0xffff0000, v{C+10}",
           f"v_lshlrev_b32 v{C+8}, 16, v{C+11}", f"v_and_b32 v{C+9}, 0xffff0000, v{C+11}"]
    cs += [f"v_sub_f32 v{C+r}, v{C+r}, v{C+6+r}" for r in range(4)]
    cs += ["v_cmp_eq_u32 vcc, 2, v1",
           f"v_cvt_pk_bf16_f32 v{C+10}, v{C}, v{C+1}", f"v_cvt_pk_bf16_f32 v{C+11}, v{C+2}, v{C+3}",
           f"v_cndmask_b32 v{C+4}, v{C+4}, v{C+10}, vcc", f"v_cndmask_b32 v{C+5}, v{C+5}, v{C+11}, vcc"]
    csa = ["s_mul_i32 s3, s66, 12288", "s_lshr_b32 s6, s64, 1", "s_mul_i32 s6, s6, 6144", "s_add_u32 s3, s3, s6",
           *(["s_lshr_b32 s6, s65, 1", "s_lshl_b32 s6, s6, 8", "s_add_u32 s3, s3, s6", "s_and_b32 s6, s65, 1",
              "s_lshl_b32 s6, s6, 10", "s_add_u32 s3, s3, s6"] if ROT == 4 else ["s_lshl_b32 s6, s65, 8", "s_add_u32 s3, s3, s6"]),
           "s_and_b32 s6, s64, 1", "s_lshl_b32 s6, s6, 7",
           "s_add_u32 s3, s3, s6", f"s_add_u32 s3, s3, {CS_REL}",
           "v_bfe_u32 v1, v0, 2, 2", f"v_lshlrev_b32 v{C+12}, 11, v1", f"v_and_b32 v{C+13}, 3, v0",
           f"v_lshl_add_u32 v{C+12}, v{C+13}, 5, v{C+12}", f"v_lshrrev_b32 v{C+13}, 4, v0",
           f"v_lshl_add_u32 v{C+12}, v{C+13}, 3, v{C+12}", "v_cmp_eq_u32 vcc, 3, v1", f"v_mov_b32 v{C+13}, 0x80000000",
           f"v_add_u32 v{C+12}, s3, v{C+12}", f"v_cndmask_b32 v{C+12}, v{C+12}, v{C+13}, vcc"]
    cs_store = [f"buffer_store_dwordx2 {v(C+4,2)}, v{C+12}, {R_MI}, 0 offen sc1"]
    kva = ["v_and_b32 v26, 3, v0", "v_lshlrev_b32 v22, 3, v26", "v_lshlrev_b32 v26, 6, v26",
           "s_lshl_b32 s74, s5, 10", "s_lshl_b32 s3, s64, 8", "s_add_u32 s74, s74, s3",
           "s_lshr_b32 s3, s74, 3", "v_add_u32 v22, s3, v22", f"v_mul_u32_u24 v22, {UR_PITCH}, v22",
           "v_lshrrev_b32 v23, 2, v0", "v_lshlrev_b32 v23, 3, v23", "v_sub_u32 v22, v22, v23",
           "s_lshl_b32 s6, s4, 7", "s_sub_u32 s6, 4088, s6", "v_add_u32 v22, s6, v22",
           "s_lshl_b32 s3, s5, 7", "v_add_u32 v23, s3, v29", f"v_mul_u32_u24 v23, {UR_PITCH}, v23",
           "v_add_u32 v23, 0x1000, v23", "s_lshl_b32 s6, s4, 8", "v_add_u32 v24, s6, v29", "s_movk_i32 s6, 128",
           "v_cmp_gt_u32 vcc, s6, v24", "v_mov_b32 v25, 0x80000000", "s_nop 0", "v_cndmask_b32 v23, v25, v23, vcc"]
    wl = [[f"buffer_load_dwordx4 {a(WR[i],4)}, v26, {R_SH}, s74 offen offset:{16*i}"] for i in range(4)]
    assert NCS == 4
    q4 = -(-len(sts) // 4)
    sides = {0: kva, 1: sts[:q4], 2: sts[q4:2*q4], 3: sts[2*q4:3*q4], 4: sts[3*q4:], 5: csa, 6: cs}
    extras = {4: wl, 5: [st_store], 7: [cs_store]}
    KVI = opt.get("kvi", 8)
    KVB = opt.get("kvb", 12)
    extras[KVI] = extras.get(KVI, []) + kvl
    for i in range(KVB):
        tg = {0: "w1", 1: "w2", 2: "w3"}.get(i)
        vmi = min(63, e.vm - e.tag[tg][1]) if tg else None
        body(i, cs_m=(i < NCS), cs_r=(i < NCS - 1), vm=vmi, side=sides.get(i), side0=2, extra=extras.get(i))
        if i == 3:
            stamp(e, 12)
    stamp(e, 14)
    e.need("kv")
    e.c("kv tile: short conv * v, packed along (reversed) time")
    WF, KF, VF, TMP = 224, [232 + 2 * i for i in range(7)], 246, 1
    OUT = [248, 250, 252, 254, 24, 26, 18, 20]
    for p in range(4):
        for h in range(2):
            for d in range(2):
                e(f"v_accvgpr_read_b32 v{TMP}, a{WR[p]+2*h+d}")
                e(f"v_lshlrev_b32 v{WF+4*d+h}, 16, v{TMP}")
                e(f"v_and_b32 v{WF+4*d+2+h}, 0xffff0000, v{TMP}")
        for i in range(7):
            e(f"v_accvgpr_read_b32 v{TMP}, a{KR[i]+p}")
            unpack(e, KF[i], TMP)
        for i in range(4):
            e(f"v_accvgpr_read_b32 v{TMP}, a{VR[i]+p}")
            e(f"v_pk_mul_f32 {v(KF[i],2)}, {v(KF[i],2)}, {v(WF+6,2)}")
            unpack(e, VF, TMP)
            for j in (2, 1, 0):
                e(f"v_pk_fma_f32 {v(KF[i],2)}, {v(KF[i+3-j],2)}, {v(WF+2*j,2)}, {v(KF[i],2)}")
            e(f"v_pk_mul_f32 {v(KF[i],2)}, {v(KF[i],2)}, {v(VF,2)}")
        for h in range(2):
            ch = 2 * p + h
            o = OUT[ch]
            e(f"v_cvt_pk_bf16_f32 v{o}, v{KF[3]+h}, v{KF[2]+h}")
            e(f"v_cvt_pk_bf16_f32 v{o+1}, v{KF[1]+h}, v{KF[0]+h}")
            e(f"s_mov_b32 s3, {ch*UR_PITCH}")
            e(f"buffer_store_dwordx2 {v(o,2)}, v22, {R_UR}, s3 offen sc1")
    for i in range(4):
        e(f"v_mov_b32 v{WF+i}, 0")
    e(f"buffer_store_dwordx4 {v(WF,4)}, v23, {R_UR}, 0 offen sc1")
    stamp(e, 15)
    for i in range(KVB, 12):
        body(i)
    e("s_mov_b32 s82, 0")
    e.label("L_g1_loop")
    for i in range(12, 16):
        body(i, vm=16)
    e("s_cmp_lg_u32 s82, 0")
    e("s_cbranch_scc1 L_f0_nosig")
    signal(e, "f0", f"buffer_atomic_add v1, off, {R_DB}, 0 sc1")
    e("s_add_u32 s82, s82, 1")
    e("s_cmp_lt_u32 s82, 3")
    e("s_cbranch_scc1 L_g1_loop")
    for k in range(3):
        e.tag[f"it{21+k}"] = e.tag[f"it{13+k}"]
    e.vm_done = 0
    stamp(e, 13)

    def poll(loadins, cond, lab):
        e("s_mov_b32 s82, 0")
        e.label(f"L_{lab}_chk")
        cond()
        e(f"s_cbranch_scc1 L_{lab}_ok")
        e("s_sleep 1")
        e.l.append("    " + loadins)
        e.l.append("    s_waitcnt vmcnt(0)")
        e("s_add_u32 s82, s82, 1")
        e(f"s_cmp_lt_u32 s82, {SPIN_LIMIT}")
        e(f"s_cbranch_scc1 L_{lab}_chk")
        e.label(f"L_{lab}_ok")

    f0_load = f"buffer_load_dword v18, off, {R_DB}, 0 sc1"

    def f0_cond():
        e("v_readfirstlane_b32 s78, v18")
        e("s_nop 1")
        e("s_cmp_ge_u32 s78, 256")

    def I(s_, tag=None):
        return lambda: e(s_, tag=tag)

    def urdma(c):
        g = [[f"s_add_u32 m0, s70, {c*CV_CP}", f"s_add_u32 s79, s83, {2*c}", f"buffer_load_dwordx4 v2, {R_UR}, s79 offen sc1 lds"]]
        g += [[f"buffer_load_dwordx4 v2, {R_UR}, s79 offen offset:{1024*q} sc1 lds"] for q in range(1, 4)]
        g[-1].append(lambda: e.mark(f"ur{c}", "v"))
        return g

    body(24)
    body(25, extra=[[f0_load, lambda: e.mark("f0", "v")]])
    body(26, side=["v_and_b32 v19, 15, v0", "v_lshlrev_b32 v19, 3, v19",
                   "s_lshl_b32 s85, s65, 11", "s_lshl_b32 s3, s64, 9", "s_add_u32 s85, s85, s3",
                   f"s_mul_i32 s83, s69, {UR_PITCH}", "s_lshl_b32 s84, s69, 12"])
    stl = [[f"buffer_load_dwordx2 {v(20+2*j,2)}, v19, {R_MI}, s85 offen offset:{ST_REL+128*j} sc1"] for j in range(4)]
    stl[-1].append(lambda: e.mark("st", "v"))
    body(27, xd=False)
    body(28, xd=False, aug_w=True, pre=lambda: poll(f0_load, f0_cond, "f0"), extra=stl, needs=["f0"])
    body(29, xd=False, wd=False, extra=urdma(0) + urdma(2))
    body(30, xd=False, wd=False,
         side=["v_and_b32 v3, 15, v0", "v_lshrrev_b32 v28, 4, v0",
               "v_lshrrev_b32 v4, 2, v3", f"v_mul_u32_u24 v4, {CV_CP}, v4", "v_and_b32 v6, 3, v0",
               "v_lshl_add_u32 v4, v6, 4, v4", "v_add_u32 v4, 4096, v4", f"v_add_u32 v5, {CV_HZ}, v2",
               "v_cmp_gt_u32 vcc, 32, v0", "v_add_u32 v29, s70, v2", "v_mov_b32 v248, 0", "v_mov_b32 v249, 0",
               "v_cndmask_b32 v5, v4, v5, vcc", "v_add_u32 v5, s70, v5", "v_mov_b32 v250, 0", "v_mov_b32 v251, 0"])
    hd = [[f"s_add_u32 m0, s70, {CV_H}", "s_nop 0", f"buffer_load_dwordx4 v2, {R_SK}, s84 offen lds"]]
    hd += [[f"buffer_load_dwordx4 v2, {R_SK}, s84 offen offset:{1024*q} lds"] for q in range(1, 4)]
    hd[-1].append(lambda: e.mark("hk", "v"))
    hd = [[x.replace(" lds", " nt lds") if isinstance(x, str) else x for x in g] for g in hd]
    wdpf = [["s_mul_i32 s74, s69, 7168"]]
    wdpf += [[f"buffer_load_dwordx4 a[252:255], v2, {R_WD}, s74 offen offset:{1024*(q&3)}"] + (["s_add_u32 s74, s74, 4096"] if q == 3 else []) for q in range(7)]
    WPF = opt.get("wpf", 31)
    if WPF == 31:
        hd += wdpf
    bb = ["v_cmp_gt_u32 vcc, 48, v0", "ds_write_b128 v5, v[248:251]"]
    for j in range(4):
        bb += [f"v_lshrrev_b32 v1, 16, v{20+2*j}", f"v_or_b32 v1, v1, v{20+2*j}", "v_cndmask_b32 v1, 0, v1, vcc"]
        bb += [f"v_accvgpr_write_b32 a{FA[0]+56+4*j+r}, v1" for r in range(4)]
    for j in range(4):
        bb += [f"v_mul_f32 v{20+2*j}, 0xbfb8aa3b, v{21+2*j}", f"v_mul_f32 v{21+2*j}, v{21+2*j}, v{21+2*j}",
               f"v_rcp_f32 v{21+2*j}, v{21+2*j}"]
    body(31, xd=False, wd=False, do_b=False, extra=hd, side=bb, side0=4, needs=["st"])
    TB = [224, 236]
    def odr(q):
        b = TB[q & 1]
        return [I(f"ds_read_b128 {v(b,4)}, v29 offset:{1024*q}"),
                I(f"ds_read_b128 {v(b+4,4)}, v29 offset:{2*CV_CP+1024*q}"),
                I(f"ds_read_b32 v{b+8}, v29 offset:{2*CV_CP+1024*q+16}", tag=f"od{q}")]
    def odc(q):
        b = TB[q & 1]
        r = [lambda: e.need(f"od{q}")]
        r += [I(f"v_alignbit_b32 v{b+i}, v{b+4+i}, v{b+i}, 16") for i in range(4)]
        r.append(I(f"ds_write_b128 v29, {v(b,4)} offset:{CV_CP+1024*q}"))
        r += [I(f"v_alignbit_b32 v{b+4+i}, v{b+5+i}, v{b+4+i}, 16") for i in range(4)]
        r.append(I(f"ds_write_b128 v29, {v(b+4,4)} offset:{3*CV_CP+1024*q}"))
        return r
    ha = ["s_lshl_b32 s3, s65, 4", "s_lshl_b32 s6, s64, 2", "s_add_u32 s3, s3, s6",
          f"s_mul_i32 s3, s3, {H_SB}", "s_mul_i32 s6, s66, 7", "s_add_u32 s6, s6, 1",
          "s_lshr_b32 s6, s6, 1", "s_lshl_b32 s6, s6, 10", "s_add_u32 s3, s3, s6",
          "v_add_u32 v18, s3, v2", "s_movk_i32 s6, 3072", "s_bitcmp1_b32 s66, 0",
          "s_cselect_b32 s6, 0xfffffc08, s6", "v_add_u32 v19, s6, v18"]
    ca = ["v_and_b32 v4, 3, v3", "v_sub_u32 v4, 3, v4", f"v_mul_u32_u24 v16, {CV_CP}, v4",
          "v_and_b32 v4, 12, v3", "v_lshlrev_b32 v4, 1, v4", "v_sub_u32 v16, v16, v4",
          "v_lshl_add_u32 v16, v28, 4, v16", f"s_add_u32 s3, s70, {2*2028 - 3584}", "v_add_u32 v16, s3, v16",
          "v_lshlrev_b32 v17, 5, v3", "v_lshl_add_u32 v17, v28, 4, v17", f"s_add_u32 s3, s70, {CV_H - 32}",
          "v_add_u32 v17, s3, v17"]
    seq = odr(0) + odr(1) + ha + odc(0) + odr(2) + odc(1) + odr(3) + ca[:6] + odc(2) + ca[6:] + odc(3)
    body(32, xd=False, wd=False, rd=False, side=seq, side0=0, needs=["ur2"])
    stamp(e, 3)

    e.c("SwiGLU epilogue")

    def swiglu(g, u, tmp, out, kc):
        for q in range(2):
            e(f"v_pk_mul_f32 {v(tmp+2*q,2)}, {v(g+2*q,2)}, {v(kc,2)} op_sel_hi:[1,0]")
        for q in range(4):
            e(f"v_exp_f32 v{tmp+q}, v{tmp+q}")
        for q in range(2):
            e(f"v_pk_mul_f32 {v(g+2*q,2)}, {v(g+2*q,2)}, {v(u+2*q,2)}")
        for q in range(2):
            e(f"v_pk_fma_f32 {v(tmp+2*q,2)}, {v(tmp+2*q,2)}, {v(kc,2)}, {v(kc,2)} op_sel:[0,1,1] op_sel_hi:[1,1,1]")
        for q in (2, 3, 0, 1):
            e(f"v_rcp_f32 v{tmp+q}, v{tmp+q}")
        for q in (1, 0):
            e(f"v_pk_mul_f32 {v(g+2*q,2)}, {v(g+2*q,2)}, {v(tmp+2*q,2)}")
        for q in (1, 0):
            e(f"v_cvt_pk_bf16_f32 v{out+q}, v{g+2*q}, v{g+2*q+1}")

    def cv_reads(fs):
        o = 64 * fs
        r = []
        for i in range(8):
            r.append(f"ds_read_b128 {a(o+32+4*i,4)}, v17 offset:{512*i}")
            r.append(f"ds_read_b64 {a(o+4*i,2)}, v16 offset:{(7-i)*512}")
            r.append(f"ds_read_b64 {a(o+4*i+2,2)}, v16 offset:{(7-i)*512+8}")
        r += ["v_subrev_u32 v16, 64, v16", "v_subrev_u32 v17, 64, v17"]
        return r

    e("s_nop 4")
    n = 0
    for j in range(4):
        e(f"s_mov_b32 s78, {j*H_SB}")
        for i in range(4):
            o = 8 + 4 * (n & 1)
            if i < 3:
                for k in range(2):
                    t_ = 2 * i + k
                    swiglu(acc(t_, j), acc(7 + t_, j), 4, o + 2 * k, 20 + 2 * j)
                e(f"buffer_store_dwordx4 {v(o,4)}, v18, {R_H}, s78 offen offset:{1024*i} sc1", tag="hst")
            else:
                for r in range(4):
                    e(f"v_accvgpr_read_b32 v{248+r}, a{AC6+4*j+r}")
                    e(f"v_accvgpr_read_b32 v{252+r}, a{AC6+16+4*j+r}")
                swiglu(248, 252, 4, o, 20 + 2 * j)
                e(f"buffer_store_dwordx2 {v(o,2)}, v19, {R_H}, s78 offen sc1", tag="hst")
            n += 1
        if j == opt.get("cvj", 3):
            e.need("hk")
            for x in cv_reads(0):
                e(x)
    if WPF == 33:
        flat(wdpf)
    stamp(e, 4)

    e.c("long conv")
    CA = 32

    def cv_mfmas(fs, first):
        o = 64 * fs
        prs = [(p, w) for p in range(8) for w in range(8) if p + w <= 7]
        return [f"{MF} {v(CA+4*(p+w),4)}, {a(o+4*p,4)}, {a(o+32+4*w,4)}, {'0' if (first and p == 0) else v(CA+4*(p+w),4)}"
                for p, w in prs]

    def cv_body(r, rd=True, extra=None, early=None):
        fs = r & 1
        e.wait(lg=0)
        slots = {}
        if early:
            slots[0] = list(early)
        if rd:
            for k, x in enumerate(cv_reads(1 - fs)):
                slots.setdefault(k, []).append(x)
        if extra:
            for k, g in enumerate(extra):
                slots.setdefault(k * 2 if not rd else 26 + k, []).extend(g)
        merge(e, cv_mfmas(fs, r == 0), slots)

    G_H, G_WD, G_TR = 192, 200, 204
    g2s = [["s_lshl_b32 s72, s64, 1", "s_lshl_b32 s73, s67, 3"],
           ["v_lshrrev_b32 v6, 3, v0", "v_bfe_u32 v7, v0, 1, 2"],
           ["v_xor_b32 v7, v7, v28", "v_and_b32 v4, 1, v0"],
           [f"v_lshlrev_b32 v{G_WD}, 11, v6", f"v_lshl_add_u32 v{G_WD}, v7, 5, v{G_WD}"],
           [f"v_lshl_add_u32 v{G_WD}, v4, 4, v{G_WD}", "s_lshl_b32 s87, s68, 7"],
           [f"v_add_u32 v{G_WD}, s87, v{G_WD}", f"v_add_u32 v{G_WD+1}, 15360, v{G_WD}"],
           [f"v_add_u32 v{G_WD+2}, 30720, v{G_WD}", f"v_add_u32 v{G_WD+3}, 46080, v{G_WD}"],
           ["s_lshl_b32 s71, s64, 14", f"s_add_u32 s71, s71, {WB}", "v_bfe_u32 v6, v0, 2, 2"],
           ["s_lshl_b32 s75, s64, 10", "s_lshl_b32 s76, s64, 16"],
           ["v_and_b32 v7, 3, v0", "v_lshl_add_u32 v6, v28, 2, v6"],
           ["v_bfe_u32 v4, v6, 1, 2", "v_lshlrev_b32 v6, 7, v6"],
           ["v_lshl_add_u32 v6, v7, 3, v6", "v_add_u32 v6, s71, v6"]]
    for dt in range(4):
        g2s.append([f"v_xor_b32 v7, {dt}, v4", f"v_lshl_add_u32 v{G_TR+dt}, v7, 5, v6"])
    g2s.append(["v_and_b32 v23, 31, v0", "v_lshlrev_b32 v23, 2, v23"])
    g2s.append(["s_lshr_b32 s77, s67, 1", "s_lshl_b32 s77, s77, 7", f"s_add_u32 s77, s77, {HF_REL}"])
    for jj in range(8):
        g2s.append([f"s_add_u32 s78, s72, {jj}", "s_and_b32 s78, s78, 7", "s_add_u32 s78, s78, s73"])
        g2s.append([f"s_mul_i32 s78, s78, {H_SB}", f"v_add_u32 v{G_H+jj}, s78, v2"])

    def g2dma(slot):
        r = [[f"s_add_u32 m0, s71, {slot*4096}", "s_nop 0", f"buffer_load_dwordx4 v{G_WD}, {R_WD}, s76 offen lds"]]
        for jj in range(1, 4):
            r.append([f"buffer_load_dwordx4 v{G_WD+jj}, {R_WD}, s76 offen offset:{1024*jj} lds"])
        r[-1].append("s_add_u32 s76, s76, 0x40000")
        return r

    HR, WF2 = 128, 0

    def hload(slot, jj):
        r = [f"buffer_load_dwordx4 {a(HR+slot*32+4*jj,4)}, v{G_H+jj}, {R_H}, s75 offen sc1"]
        if jj == 7:
            r.append("s_add_u32 s75, s75, 4096")
        return r

    fl_load = f"buffer_load_dword v22, v23, {R_MI}, s77 offen sc1"

    def flag_cond():
        e("v_cmp_ne_u32 vcc, 0, v22")
        e("s_cmp_eq_u64 vcc, exec")

    R_SIG = opt.get("rsig", 3)
    R_POLL = opt.get("rpoll", 6)
    ex_by_r = {0: g2s[:10], 1: g2s[10:20], 2: g2s[20:30], 3: g2s[30:], 4: g2dma(0) + g2dma(1), 5: g2dma(2) + g2dma(3)}
    for r in range(7):
        if r == R_SIG:
            e.need("hst")
            e("s_barrier")
            signal(e, "f1", f"buffer_store_dword v1, off, {R_MI}, s80 sc1")
            stamp(e, 5)
        cv_body(r, extra=ex_by_r.get(r), early=([fl_load] if r == R_POLL else None))
    e.wait(vm=0)
    poll(fl_load, flag_cond, "f1")
    stamp(e, 6)
    hl = []
    for sl in range(4):
        for jj in range(0, 8, 2):
            hl.append(hload(sl, jj) + hload(sl, jj + 1))
    m0_ = e.vm
    UZ = 224
    pre_z = ["v_lshlrev_b32 v12, 5, v3", "v_lshl_add_u32 v12, v28, 3, v12", f"s_add_u32 s78, s70, {2*2044 - 3584}",
             "v_sub_u32 v13, s78, v12"] + [f"ds_read_b64 {v(UZ+2*i,2)}, v13 offset:{(7-i)*512}" for i in range(8)]
    for k, x in enumerate(pre_z):
        hl[k].append(x)
    cv_body(7, rd=False, extra=hl)

    def trreads(slot, fs):
        return [f"ds_read_b64_tr_b16 {a(WF2+16*fs+4*dt+2*h,2)}, v{G_TR+dt} offset:{slot*4096+h*2048}"
                for dt in range(4) for h in range(2)]

    e("s_and_b32 s78, s69, 1")
    e("s_lshl_b32 s78, s78, 4")
    e("s_lshr_b32 s90, s90, s78")
    e("s_lshl_b32 s90, s90, 16")
    e("v_lshlrev_b32 v12, 5, v3")
    e("v_lshrrev_b32 v13, 1, v28")
    e("v_lshl_add_u32 v12, v13, 4, v12")
    e("v_and_b32 v13, 1, v28")
    e("v_lshl_add_u32 v12, v13, 9, v12")
    e.wait(lg=0)
    for x in trreads(0, 0):
        e(x)
    for i in range(8):
        u0, u1 = UZ + 2 * i, UZ + 2 * i + 1
        y = CA + 4 * i
        e(f"v_and_b32 v4, 0xffff0000, v{u1}")
        e(f"v_lshlrev_b32 v5, 16, v{u1}")
        e(f"v_and_b32 v6, 0xffff0000, v{u0}")
        e(f"v_lshlrev_b32 v7, 16, v{u0}")
        for q in range(4):
            e(f"v_fmac_f32 v{y+q}, s90, v{4+q}")
        e(f"v_cvt_pk_bf16_f32 v{u0}, v{y}, v{y+1}")
        e(f"v_cvt_pk_bf16_f32 v{u1}, v{y+2}, v{y+3}")
    e("s_nop 1")
    for k in range(4):
        b = UZ + 4 * k
        e(f"v_permlane16_swap_b32 v{b}, v{b+2}")
        e(f"v_permlane16_swap_b32 v{b+1}, v{b+3}")
        e(f"buffer_store_dwordx4 {v(b,4)}, v12, {R_ZT}, s84 offen offset:{1024*k} sc1")
    stamp(e, 7)
    nz = e.vm - m0_ - 32

    e.c("GEMM2")
    A2 = 64

    def acc2(dt, jj):
        return A2 + (jj * 4 + dt) * 4

    def body2(sl, vm, do_read, do_load, extra=None, pre=None, first=False, side=None):
        fs = sl & 1
        e.wait(vm=vm, lg=0)
        if pre:
            pre()
        slots = {}
        if do_read:
            for i, x in enumerate(trreads((sl + 1) % 4, 1 - fs)):
                slots.setdefault(4 + i + i // 3, []).append(x)
        if do_load:
            for i, grp in enumerate(g2dma(sl)):
                slots.setdefault(i, []).extend(grp)
            for jj in range(8):
                slots.setdefault(4 * jj + 3, []).extend(hload(sl, jj))
        if extra:
            for i, grp in enumerate(extra):
                slots.setdefault(2 * i, []).extend(grp)
        if side:
            for k, x in enumerate(side):
                slots.setdefault((k * 32) // len(side), []).append(x)
        mf = [f"{MF} {v(acc2(dt,jj),4)}, {a(WF2+16*fs+4*dt,4)}, {a(HR+sl*32+4*jj,4)}, {'0' if first else v(acc2(dt,jj),4)}"
              for jj in range(8) for dt in range(4)]
        merge(e, mf, slots)

    XR, SR, ZR = 32, 48, 224
    fa = ["v_and_b32 v6, 1, v28", "v_lshrrev_b32 v7, 1, v28", "v_lshl_or_b32 v6, v6, 1, v7",
          "s_add_u32 s85, s73, s72", "s_lshl_b32 s78, s85, 15", "s_add_u32 s78, s78, s87",
          "v_lshlrev_b32 v24, 11, v3", "v_lshl_add_u32 v24, v6, 4, v24", "v_add_u32 v24, s78, v24",
          "v_add_u32 v25, 0x8000, v24", "v_lshlrev_b32 v26, 3, v3", "s_lshl_b32 s86, s85, 7",
          "v_lshlrev_b32 v23, 2, v3", "s_lshl_b32 s77, s68, 6", f"s_add_u32 s77, s77, {ZF_REL}",
          "v_lshrrev_b32 v21, 2, v0", "v_lshlrev_b32 v21, 12, v21", "v_and_b32 v27, 3, v0",
          "v_lshl_add_u32 v21, v27, 4, v21", "s_lshl_b32 s78, s68, 18", "s_lshl_b32 s79, s85, 5",
          "s_add_u32 s78, s78, s79", "v_add_u32 v21, s78, v21",
          "v_bfe_u32 v7, v0, 2, 2", "v_lshl_add_u32 v7, v6, 3, v7", "v_lshlrev_b32 v7, 6, v7",
          "v_lshl_add_u32 v7, v27, 3, v7", "v_add_u32 v7, s71, v7"]
    for dl in range(1, 4):
        fa += [f"s_sub_u32 s78, s64, {dl}", "s_and_b32 s78, s78, 3", f"s_mul_i32 s78, s78, {XWREG}",
               f"s_add_u32 s78, s78, {(2*dl-2)*4096}", f"v_add_u32 v{12+dl}, s78, v2"]
    body2(0, 24 + nz, True, True, first=True)
    body2(1, 16 + nz + 12, True, True, side=fa[:22])
    body2(2, 8 + nz + 24, True, True, side=fa[22:])
    body2(3, 32, True, True)
    e("s_barrier")
    signal(e, "f2", f"buffer_store_dword v1, off, {R_MI}, s81 sc1")
    e("s_mov_b32 s82, 1")
    e.label("L_g2_loop")
    for sl in range(4):
        body2(sl, 32, True, True)
    e("s_add_u32 s82, s82, 1")
    e("s_cmp_lt_u32 s82, 6")
    e("s_cbranch_scc1 L_g2_loop")
    extra = [[fl_load]]
    for e2 in range(2):
        for pr in range(2):
            extra.append([f"buffer_load_dwordx4 {v(XR+4*(2*e2+pr),4)}, v{24+e2}, {R_X}, 0 offen offset:{64*pr}"])
        extra.append([f"buffer_load_dwordx2 {v(SR+2*e2,2)}, v26, {R_MI}, s86 offen offset:{ST_REL+128*e2} sc1"])
    body2(0, 32, True, False, extra)
    body2(1, 20 + 7, True, False)
    body2(2, 8 + 7, True, False)
    zd = [["s_mov_b32 m0, s71", "s_nop 0", f"buffer_load_dwordx4 v21, {R_ZT}, 0 offen sc1 lds"]]
    for i in range(1, 4):
        zd.append([f"s_mov_b32 s78, {i*(65536-1024)}", f"buffer_load_dwordx4 v21, {R_ZT}, s78 offen offset:{1024*i} sc1 lds"])
    body2(3, 6, False, False, extra=zd, pre=lambda: poll(fl_load, flag_cond, "f2"))
    stamp(e, 8)
    e.c("cross-wave reduction")
    e("s_nop 7")
    for jj in range(2, 8):
        for dt in range(4):
            e(f"ds_write_b128 v29, {v(acc2(dt,jj),4)} offset:{((jj-2)*4+dt)*1024}")
    e.wait(lg=0)
    e("s_barrier")
    stamp(e, 9)
    RB = A2 + 32
    for dl in range(1, 4):
        for q in range(8):
            e(f"ds_read_b128 {v(RB+((dl-1)*8+q)*4,4)}, v{12+dl} offset:{q*1024}")
        if dl > 1:
            e.wait(lg=8)
            for q in range(16):
                e(f"v_pk_add_f32 {v(A2+2*q,2)}, {v(A2+2*q,2)}, {v(RB+(dl-2)*32+2*q,2)}")
    e.wait(vm=0, lg=0)
    for e2 in range(2):
        for pr in range(2):
            for hh in range(2):
                e(f"ds_read_b64_tr_b16 {v(ZR+4*(2*e2+pr)+2*hh,2)}, v7 offset:{(32*pr+4*hh)*64 + 32*e2}")
    for q in range(16):
        e(f"v_pk_add_f32 {v(A2+2*q,2)}, {v(A2+2*q,2)}, {v(RB+64+2*q,2)}")
    e("s_nop 1")
    for e2 in range(2):
        for pr in range(2):
            for r in range(4):
                e(f"v_permlane16_swap_b32 v{acc2(2*pr,e2)+r}, v{acc2(2*pr+1,e2)+r}")
    e.wait(lg=0)
    for e2 in range(2):
        st = SR + 2 * e2
        for pr in range(2):
            i = 2 * e2 + pr
            A0 = acc2(2 * pr, e2)
            for q in range(4):
                unpack(e, 52, XR + 4 * i + q)
                unpack(e, 56, ZR + 4 * i + q)
                e(f"v_pk_add_f32 v[54:55], v[52:53], {v(st,2)} op_sel_hi:[1,0]")
                e(f"v_pk_add_f32 v[52:53], v[52:53], {v(A0+2*q,2)}")
                e(f"v_pk_mul_f32 v[54:55], v[54:55], {v(st,2)} op_sel:[0,1] op_sel_hi:[1,1]")
                e("v_pk_fma_f32 v[52:53], v[54:55], v[56:57], v[52:53]")
                e(f"v_cvt_pk_bf16_f32 v{RB+4*i+q}, v52, v53")
            e(f"buffer_store_dwordx4 {v(RB+4*i,4)}, v{24+e2}, {R_OUT}, 0 offen offset:{64*pr}")
    stamp(e, 10)
    if STAMPS:
        e.wait(vm=0)
    stamp(e, 11)
    e.label("L_end")
    name = NAME + "_kernel"
    return f""".globl {name}
.p2align 8
.type {name},@function
{name}:
{e.text()}    s_endpgm
.section .rodata,"a"
.p2align 6
.amdhsa_kernel {name}
  .amdhsa_next_free_vgpr 512
  .amdhsa_next_free_sgpr 102
  .amdhsa_accum_offset 256
  .amdhsa_group_segment_fixed_size 0
  .amdhsa_kernarg_size 104
  .amdhsa_user_sgpr_count 2
  .amdhsa_user_sgpr_kernarg_segment_ptr 1
  .amdhsa_system_sgpr_workgroup_id_x 1
  .amdhsa_float_denorm_mode_32 3
.end_amdhsa_kernel
"""


def main(opt=None):
    opt = opt or {}
    ref = open("cdna_kernels/" + NAME + ".s.ref").read().split("\n")
    hdr = [l for l in ref if l.startswith(";") and "@launch" not in l]
    out = "\n".join(hdr) + "\n"
    out += f"; @launch grid=(256,1,1) block=(256,1,1) lds={LDS_SIZE}\n"
    out += '.amdgcn_target "amdgcn-amd-amdhsa--gfx950"\n.text\n'
    out += gen(opt)
    return out


if __name__ == "__main__":
    args = [x for x in sys.argv[1:] if not x.startswith("-")]
    opt = {}
    for x in sys.argv[1:]:
        if x == "-stamps":
            STAMPS = True
        elif x.startswith("-"):
            k, _, val = x[1:].partition("=")
            opt[k] = int(val) if val else 1
    path = args[0] if args else "cdna_kernels/" + NAME + ".s"
    open(path, "w").write(main(opt))
    print("wrote", path)
```

```python
import sys

NAME = "parallel_sum__ssm_conv_h3__swiglu_ffn__prompt"
S, D, F = 2048, 1024, 3584
KA_Q, KA_K, KA_V, KA_SHK, KA_SSMK, KA_SSMD, KA_BX, KA_WG, KA_WU, KA_WD, KA_OUT, KA_DBG, KA_WS = [8 * i for i in range(13)]

MISC_OFF = 0
ST_REL = 0
HF_REL = 16384
ZF_REL = 16384 + 1024
KF_REL = 16384 + 2048
CS_REL = 32768
MISC_SIZE = CS_REL + 32 * 12288
UR_OFF = 4 << 20
UR_PITCH = 4096 + 128
UR_SIZE = D * UR_PITCH
ZT_OFF = 9 << 20
ZT_SIZE = S * D * 2
H_OFF = 16 << 20
H_SIZE = S * F * 2
H_SB = 112 * 1024
STAMP_OFF = 64 << 20

LDS_SIZE = 163840
XWREG = 24576
WB = 4 * XWREG
CV_CP = 4160
CV_HZ = 4 * CV_CP
CV_H = CV_HZ + 512
WSTEP = 32 * 7168
SPIN_LIMIT = 200000

STAMPS = False


class E:
    def __init__(self):
        self.l = []
        self.vm = 0
        self.vm_done = 0
        self.lg = 0
        self.lg_done = 0
        self.tag = {}

    def __call__(self, s, tag=None):
        for ln in s.strip("\n").split("\n"):
            ln = ln.strip()
            if ln.startswith("buffer_"):
                self.vm += 1
                if tag:
                    self.tag[tag] = ("v", self.vm)
            elif ln.startswith("ds_"):
                self.lg += 1
                if tag:
                    self.tag[tag] = ("l", self.lg)
            self.l.append("    " + ln)

    def mark(self, tag, kind):
        self.tag[tag] = (kind, self.vm if kind == "v" else self.lg)

    def need(self, *tags):
        nv = max([self.tag[t][1] for t in tags if self.tag[t][0] == "v"] + [0])
        nl = max([self.tag[t][1] for t in tags if self.tag[t][0] == "l"] + [0])
        w = []
        if nv > self.vm_done:
            n = min(self.vm - nv, 63)
            w.append(f"vmcnt({n})")
            self.vm_done = self.vm - n
        if nl > self.lg_done:
            n = min(self.lg - nl, 15)
            w.append(f"lgkmcnt({n})")
            self.lg_done = self.lg - n
        if w:
            self.l.append("    s_waitcnt " + " ".join(w))

    def wait(self, vm=None, lg=None):
        w = []
        if vm is not None:
            w.append(f"vmcnt({vm})")
            self.vm_done = max(self.vm_done, self.vm - vm)
        if lg is not None:
            w.append(f"lgkmcnt({lg})")
            self.lg_done = max(self.lg_done, self.lg - lg)
        self.l.append("    s_waitcnt " + " ".join(w))

    def label(self, s):
        self.l.append(s + ":")

    def c(self, s):
        self.l.append("    ; " + s)

    def text(self):
        return "\n".join(self.l) + "\n"


def v(i, n=1):
    return f"v{i}" if n == 1 else f"v[{i}:{i+n-1}]"


def a(i, n=1):
    return f"a{i}" if n == 1 else f"a[{i}:{i+n-1}]"


DST = False
DMAP = {2: 2, 12: 3, 14: 4, 15: 5, 13: 6, 3: 7, 4: 8, 5: 9, 6: 10, 7: 11, 8: 12, 9: 13, 10: 14, 11: 15}


def stamp(e, i):
    if DST and i in DMAP:
        e("s_memrealtime s[96:97]")
        e.wait(lg=0)
        e("v_mov_b32 v30, s96")
        e("s_mov_b64 exec, 1")
        e(f"buffer_atomic_umax v30, off, s[40:43], 0 offset:{4*DMAP[i]} sc1")
        e("s_mov_b64 exec, -1")
        if i == 2:
            e("s_not_b32 s98, s98")
            e("v_mov_b32 v30, s98")
            e("s_mov_b64 exec, 1")
            e(f"buffer_atomic_umax v30, off, s[40:43], 0 offset:4 sc1")
            e("s_mov_b64 exec, -1")
        return
    if not STAMPS:
        return
    e("s_memrealtime s[96:97]")
    e("s_memtime s[98:99]")
    e.wait(lg=0)
    e("v_mov_b32 v30, s96")
    e("v_mov_b32 v31, s98")
    e(f"buffer_store_dwordx2 v[30:31], off, s[92:95], s100 offset:{8*i}")


def unpack(e, dst, src):
    e(f"v_lshlrev_b32 v{dst}, 16, v{src}")
    e(f"v_and_b32 v{dst+1}, 0xffff0000, v{src}")


def allreduce32(e, r, t):
    e("s_nop 1")
    for m in ("quad_perm:[1,0,3,2]", "quad_perm:[2,3,0,1]", "row_half_mirror", "row_mirror"):
        e(f"v_add_f32_dpp v{r}, v{r}, v{r} {m} row_mask:0xf bank_mask:0xf")
        e("s_nop 1")
    e(f"v_mov_b32 v{t}, v{r}")
    e("s_nop 1")
    e(f"v_permlane16_swap_b32 v{r}, v{t}")
    e("s_nop 1")
    e(f"v_add_f32 v{r}, v{r}, v{t}")


def round_bf16(e, r):
    e(f"v_cvt_pk_bf16_f32 v{r}, v{r}, v{r}")
    e(f"v_lshlrev_b32 v{r}, 16, v{r}")


R_X, R_WG, R_WU, R_H, R_UR, R_SK, R_ZT, R_MI, R_DB, R_WD, R_OUT, R_K, R_V, R_SH = [f"s[{8+4*i}:{11+4*i}]" for i in range(14)]
MF = "v_mfma_f32_16x16x32_bf16"


def merge(e, mf, slots):
    def do(x):
        if callable(x):
            x()
        else:
            e(x)
    for i, m in enumerate(mf):
        e(m)
        for x in slots.get(i, []):
            do(x)
    for k in sorted(slots):
        if k >= len(mf):
            for x in slots[k]:
                do(x)


def signal(e, lab, ins):
    e("s_cmp_lg_u32 s64, 0")
    e(f"s_cbranch_scc1 L_{lab}_nosig")
    e("v_mov_b32 v1, 1")
    e("s_mov_b64 exec, 1")
    e.l.append("    " + ins)
    e("s_mov_b64 exec, -1")
    e.label(f"L_{lab}_nosig")


def gen(opt):
    e = E()
    ACC = 32

    AC6 = 180

    def acc(ai, j):
        t, m = ai % 7, ai // 7
        assert t < 6
        return ACC + ((m * 6 + t) * 4 + j) * 4

    def accr(ai, j):
        if ai % 7 == 6:
            return a(AC6 + (ai // 7) * 16 + 4 * j, 4)
        return v(acc(ai, j), 4)
    FA = [0, 72]
    CSF, CSS, CSA = 144, 160, 176

    e("s_cmp_ge_u32 s2, 256")
    e("s_cbranch_scc1 L_end")
    if STAMPS:
        e("s_memrealtime s[96:97]")
        e("s_memtime s[98:99]")
    if DST:
        e("s_memrealtime s[98:99]")
    for reg, off in ((8, KA_Q), (12, KA_WG), (16, KA_WU), (88, KA_WS), (28, KA_SSMK), (40, KA_DBG), (44, KA_WD),
                     (48, KA_OUT), (52, KA_K), (56, KA_V), (60, KA_SHK), (86, KA_SSMD)):
        e(f"s_load_dwordx2 s[{reg}:{reg+1}], s[0:1], {off}")
    if opt.get("cpf", 1):
        e("s_getpc_b64 s[82:83]")
        e.label("L_pc")
        e("s_lshr_b32 s78, s2, 3")
        e("s_and_b32 s78, s78, 3")
        e("s_lshl_b32 s78, s78, 14")
        e("v_lshlrev_b32 v50, 6, v0")
        e("v_add_u32 v50, s78, v50")
        e("v_min_u32 v50, L_end-L_pc, v50")
        e("v_mov_b32 v51, s83")
        e("v_add_co_u32 v50, vcc, s82, v50")
        e("s_nop 1")
        e("v_addc_co_u32 v51, vcc, 0, v51, vcc")
        e.l.append("    global_load_dword v245, v[50:51], off")
        e.vm += 1
    e("v_lshrrev_b32 v1, 6, v0")
    e("v_mov_b32 v29, v0")
    e("v_and_b32 v0, 63, v0")
    e("v_readfirstlane_b32 s64, v1")
    e("v_lshlrev_b32 v2, 4, v0")
    e("v_lshrrev_b32 v39, 5, v29")
    e("v_and_b32 v40, 31, v29")
    e("s_lshl_b32 s7, s2, 14")
    e("v_lshlrev_b32 v41, 11, v39")
    e("v_lshl_add_u32 v41, v40, 4, v41")
    e("v_add_u32 v41, s7, v41")
    for reg, size in ((8, S * D * 2), (12, D * F * 2), (16, D * F * 2)):
        e(f"s_mov_b32 s{reg+2}, 0x{size:x}")
        e(f"s_mov_b32 s{reg+3}, 0x20000")
    e("s_and_b32 s6, s2, 7")
    e("s_lshr_b32 s7, s2, 3")
    e("s_and_b32 s65, s7, 7")
    e("s_lshr_b32 s66, s7, 3")
    e("s_lshl_b32 s78, s6, 2")
    e("s_add_u32 s66, s66, s78")
    e(f"s_mul_i32 s70, s64, {XWREG}")
    e("s_lshl_b32 s71, s64, 11")
    e(f"s_add_u32 s71, s71, {WB}")
    ROT = opt.get("rot", 8)
    NCS = 32 // ROT
    e(f"s_lshr_b32 s3, s65, {1 if ROT == 4 else 0}")
    e(f"s_mul_i32 s72, s3, {NCS*WSTEP}")
    e("s_add_u32 s73, s72, 27648")
    e("v_lshrrev_b32 v22, 4, v0")
    e("v_bfe_u32 v23, v0, 1, 3")
    e("s_and_b32 s78, s64, 1")
    e("s_lshl_b32 s78, s78, 2")
    e("v_or_b32 v24, s78, v22")
    e("v_xor_b32 v23, v23, v24")
    e("s_and_b32 s78, s66, 1")
    e("v_add_u32 v24, s78, v23")
    e("v_cmp_eq_u32 vcc, 7, v24")
    e("v_and_b32 v25, 1, v0")
    e("s_lshl_b32 s78, s64, 3")
    e("v_cndmask_b32 v24, v24, 0, vcc")
    e("v_lshlrev_b32 v3, 5, v24")
    e("v_lshl_add_u32 v3, v25, 4, v3")
    e("v_add_u32 v26, s78, v22")
    e("v_mul_u32_u24 v27, 7168, v26")
    e("v_add_u32 v3, v3, v27")
    e("s_mul_i32 s78, s66, 224")
    e("v_add_u32 v3, s78, v3")
    e("v_cmp_eq_u32 vcc, 7, v23")
    e("v_mov_b32 v27, 0x80000000")
    e("v_lshlrev_b32 v28, 8, v26")
    e("v_cndmask_b32 v3, v3, v27, vcc")
    e("v_lshl_add_u32 v28, v23, 5, v28")
    e("v_lshl_add_u32 v28, v25, 4, v28")
    e("v_lshrrev_b32 v23, 3, v0")
    e("v_and_b32 v24, 7, v0")
    e("v_xor_b32 v24, v24, v22")
    e("s_lshl_b32 s78, s65, 19")
    e("s_lshl_b32 s79, s64, 17")
    e("s_add_u32 s78, s78, s79")
    e("v_lshlrev_b32 v4, 11, v23")
    e("v_add_u32 v4, s78, v4")
    e("v_xor_b32 v25, 4, v24")
    e("v_lshl_add_u32 v5, v25, 4, v4")
    e("v_lshl_add_u32 v4, v24, 4, v4")
    e("v_add_u32 v5, 15360, v5")
    e("v_add_u32 v6, 30720, v4")
    e("v_add_u32 v7, 30720, v5")
    e(f"s_mul_i32 s77, s3, {NCS*64}")
    e("s_add_u32 s76, s70, 16384")
    e(f"s_add_u32 s91, s70, {XWREG}")

    wstep = [0]

    def wdma(u, aug=False):
        g = []
        nt = " nt" if (opt.get("ntw", 1) == 2 or (opt.get("ntw", 1) == 1 and wstep[0] < NCS)) else ""
        wstep[0] += 1
        if aug:
            g.append([f"s_add_u32 m0, s71, {u*16384}", "s_nop 0", f"buffer_load_dwordx4 v28, {R_MI}, 0 offen sc1 lds"])
            g.append([f"buffer_load_dwordx4 v28, {R_MI}, 0 offen offset:1024 sc1 lds"])
            g.append([f"s_add_u32 m0, s71, {u*16384+8192}", "s_movk_i32 s78, 6144", f"buffer_load_dwordx4 v28, {R_MI}, s78 offen sc1 lds"])
            g.append([f"buffer_load_dwordx4 v28, {R_MI}, s78 offen offset:1024 sc1 lds"])
            return g
        g.append([f"s_add_u32 m0, s71, {u*16384}", "s_nop 0", f"buffer_load_dwordx4 v3, {R_WG}, s72 offen{nt} lds"])
        g.append([f"buffer_load_dwordx4 v3, {R_WG}, s73 offen offset:1024{nt} lds"])
        g.append([f"s_add_u32 m0, s71, {u*16384+8192}", "s_nop 0", f"buffer_load_dwordx4 v3, {R_WU}, s72 offen{nt} lds"])
        g.append([f"buffer_load_dwordx4 v3, {R_WU}, s73 offen offset:1024{nt} lds", f"s_add_u32 s72, s72, {WSTEP}"])
        g.append([f"s_cmp_eq_u32 s72, {32*WSTEP}", "s_cselect_b32 s72, 0, s72", "s_add_u32 s73, s72, 27648"])
        return g

    def xdma(hf):
        g = []
        if hf == 0:
            g.append(["s_mov_b32 m0, s76", "s_nop 0", f"buffer_load_dwordx4 v4, {R_X}, s77 offen lds"])
            so = "s77"
        else:
            g.append(["s_add_u32 m0, s76, 4096", "s_add_u32 s79, s77, 0x10000", f"buffer_load_dwordx4 v4, {R_X}, s79 offen lds"])
            so = "s79"
        for q in range(1, 4):
            g.append([f"buffer_load_dwordx4 v{4+q}, {R_X}, {so} offen offset:{1024*q} lds"])
        if hf == 1:
            g[-1] += ["s_add_u32 s77, s77, 128", "s_and_b32 s77, s77, 0x7ff"]
            g.append(["s_add_u32 s76, s76, 8192", "s_cmp_eq_u32 s76, s91", "s_cselect_b32 s76, s70, s76"])
        return g

    def flat(gs):
        for g in gs:
            for x in g:
                e(x)

    e.wait(lg=0)
    XS = 224
    flat(wdma(0)); flat(xdma(0)); flat(xdma(1)); e.mark("w0", "v")
    flat(wdma(1)); e.mark("w1", "v")
    for j in range(4):
        e(f"buffer_load_dwordx4 {v(XS+4*j,4)}, v41, {R_X}, 0 offen offset:{512*j}", tag="xs")
    for reg, size in ((52, S * D * 2), (56, S * D * 2)):
        e(f"s_mov_b32 s{reg+2}, 0x{size:x}")
        e(f"s_mov_b32 s{reg+3}, 0x20000")
    e("s_and_b32 s4, s2, 31")
    e("s_lshr_b32 s5, s2, 5")
    e("s_lshl_b32 s78, s4, 17")
    e("s_lshl_b32 s79, s5, 8")
    e("s_add_u32 s78, s78, s79")
    e("s_lshl_b32 s79, s64, 6")
    e("s_add_u32 s78, s78, s79")
    e("v_and_b32 v52, 3, v0")
    e("v_lshrrev_b32 v248, 2, v0")
    e("v_lshlrev_b32 v248, 13, v248")
    e("v_lshl_add_u32 v248, v52, 4, v248")
    e("v_add_u32 v248, s78, v248")
    e("v_add_u32 v249, 0xffffe000, v248")
    e("v_add_u32 v250, 0xfffff000, v248")
    e("v_add_u32 v251, 0x1000, v248")
    KR, VR, WR = [212 + 4 * i for i in range(7)], [240 + 4 * i for i in range(4)], [144 + 4 * i for i in range(4)]
    kaddr = [(249, 2048), (250, 0), (250, 2048), (248, 0), (248, 2048), (251, 0), (251, 2048)]
    ntk = " nt" if opt.get("ntkv", 1) else ""
    kvl = [[f"buffer_load_dwordx4 {a(VR[i],4)}, v{r}, {R_V}, 0 offen offset:{o}{ntk}"] for i, (r, o) in enumerate(kaddr[3:])]
    kvl += [[f"buffer_load_dwordx4 {a(KR[i],4)}, v{r}, {R_K}, 0 offen offset:{o}{ntk}"] for i, (r, o) in enumerate(kaddr)]
    kvl[-1].append(lambda: e.mark("kv", "v"))
    for reg, size in ((28, D * S * 2), (40, 256), (44, F * D * 2), (48, S * D * 2), (60, D * 8)):
        e(f"s_mov_b32 s{reg+2}, 0x{size:x}")
        e(f"s_mov_b32 s{reg+3}, 0x20000")
    wsr = [(20, H_OFF, H_SIZE), (24, UR_OFF, UR_SIZE), (32, ZT_OFF, ZT_SIZE), (36, MISC_OFF, MISC_SIZE)]
    if STAMPS:
        wsr.append((92, STAMP_OFF, 1 << 20))
    for reg, off, size in wsr:
        e(f"s_add_u32 s{reg}, s88, 0x{off:x}")
        e(f"s_addc_u32 s{reg+1}, s89, 0")
        e(f"s_mov_b32 s{reg+2}, 0x{size:x}")
        e(f"s_mov_b32 s{reg+3}, 0x20000")
    if STAMPS:
        e("s_lshl_b32 s100, s2, 2")
        e("s_add_u32 s100, s100, s64")
        e("s_lshl_b32 s100, s100, 7")
        e("v_mov_b32 v30, s96")
        e("v_mov_b32 v31, s98")
        e("buffer_store_dwordx2 v[30:31], off, s[92:95], s100")
    e("s_lshl_b32 s69, s2, 2")
    e("s_add_u32 s69, s69, s64")
    e("s_lshr_b32 s78, s69, 1")
    e("s_lshl_b32 s78, s78, 2")
    e("s_load_dword s90, s[86:87], s78")
    e("s_lshr_b32 s67, s6, 1")
    e("s_lshl_b32 s67, s67, 2")
    e("s_and_b32 s78, s7, 3")
    e("s_add_u32 s67, s67, s78")
    e("s_and_b32 s68, s6, 1")
    e("s_lshl_b32 s68, s68, 3")
    e("s_lshr_b32 s78, s7, 2")
    e("s_add_u32 s68, s68, s78")
    e("s_mul_i32 s78, s66, 12288")
    e(f"s_add_u32 s78, s78, {CS_REL}")
    e("s_cmp_eq_u32 s64, 3")
    e("s_cselect_b32 s78, 0x80000000, s78")
    e("v_add_u32 v28, s78, v28")
    e("v_bfe_u32 v24, v0, 2, 2")
    e("v_and_b32 v25, 3, v0")
    e("v_lshl_add_u32 v26, v22, 3, v24")
    e("v_lshlrev_b32 v26, 8, v26")
    e("v_lshl_add_u32 v26, v25, 3, v26")
    e(f"v_add_u32 v26, {WB}, v26")
    e("v_and_b32 v27, 1, v22")
    e("v_lshl_or_b32 v27, v27, 2, v24")
    for t in range(7):
        e(f"v_xor_b32 v1, {t}, v27")
        e(f"v_lshl_add_u32 v{8+t}, v1, 5, v26")
    e("s_lshr_b32 s78, s64, 1")
    e("s_lshl_b32 s78, s78, 13")
    e("v_add_u32 v26, s78, v26")
    e("s_and_b32 s78, s64, 1")
    e("s_lshl_b32 s78, s78, 2")
    e("v_xor_b32 v27, s78, v27")
    for q in range(4):
        e(f"v_xor_b32 v1, {q}, v27")
        e(f"v_lshl_add_u32 v{18+q}, v1, 5, v26")
    e("v_and_b32 v24, 15, v0")
    e("v_lshrrev_b32 v25, 1, v24")
    e("v_xor_b32 v25, v25, v22")
    e("v_lshlrev_b32 v15, 7, v24")
    e("v_lshl_add_u32 v15, v25, 4, v15")
    e("v_add_u32 v15, s70, v15")
    e("v_xor_b32 v16, 64, v15")
    e("v_and_b32 v24, 3, v0")
    if ROT == 4:
        e("s_bitcmp1_b32 s65, 0")
        e("s_cselect_b32 s78, 0, 0x3f803f80")
        e("v_mov_b32 v25, s78")
    else:
        e("v_mov_b32 v25, 0x3f803f80")
    for q in range(4):
        e(f"v_cmp_eq_u32 vcc, {q}, v24")
        e("s_nop 1")
        e("v_cndmask_b32 v26, 0, v25, vcc")
        for r in range(4):
            e(f"v_accvgpr_write_b32 a{CSS+4*q+r}, v26")
    e("s_lshl_b32 s78, s65, 5")
    e("s_add_u32 s78, s78, s66")
    e("s_lshl_b32 s78, s78, 2")
    e(f"s_add_u32 s80, s78, {HF_REL}")
    e("s_lshl_b32 s78, s2, 2")
    e(f"s_add_u32 s81, s78, {ZF_REL}")
    e("v_lshlrev_b32 v48, 10, v29")
    e(f"v_add_u32 v48, s81, v48")
    e("v_mov_b32 v47, s80")
    e("v_cmp_eq_u32 vcc, 2, v29")
    e("v_mov_b32 v45, 0x80000000")
    e("v_mov_b32 v46, 0")
    e("v_cndmask_b32 v48, v48, v47, vcc")
    e("v_cmp_gt_u32 vcc, 3, v29")
    e("s_lshl_b32 s78, s2, 6")
    e("v_lshlrev_b32 v49, 3, v39")
    e("v_cndmask_b32 v48, v45, v48, vcc")
    e("v_add_u32 v49, s78, v49")
    e("v_cmp_eq_u32 vcc, 0, v40")
    e(f"buffer_store_dword v46, v48, {R_MI}, 0 offen sc1")
    e("s_nop 0")
    e("v_cndmask_b32 v244, v45, v49, vcc")
    stamp(e, 1)

    flat(xdma(0)); flat(xdma(1)); flat(wdma(2)); e.mark("w2", "v")
    e.need("w0")
    e.wait(lg=0)
    e("s_barrier")
    stamp(e, 2)

    def ared(r, tmp):
        o = []
        for m in ("quad_perm:[1,0,3,2]", "quad_perm:[2,3,0,1]", "row_half_mirror", "row_mirror"):
            o += ["s_nop 1", f"v_add_f32_dpp v{r}, v{r}, v{r} {m} row_mask:0xf bank_mask:0xf"]
        o += [f"v_mov_b32 v{tmp}, v{r}", "s_nop 1", f"v_permlane16_swap_b32 v{r}, v{tmp}", "s_nop 1", f"v_add_f32 v{r}, v{r}, v{tmp}"]
        return o
    rb = lambda r: [f"v_cvt_pk_bf16_f32 v{r}, v{r}, v{r}", f"v_lshlrev_b32 v{r}, 16, v{r}"]
    sts = [f"v_lshlrev_b32 v240, 16, v{XS}", f"v_and_b32 v241, 0xffff0000, v{XS}"]
    for i in range(1, 16):
        sts += [f"v_lshlrev_b32 v242, 16, v{XS+i}", f"v_and_b32 v243, 0xffff0000, v{XS+i}",
                "v_add_f32 v240, v240, v242", "v_add_f32 v241, v241, v243"]
    sts += ["v_add_f32 v246, v240, v241"] + ared(246, 242) + ["v_mul_f32 v246, 0xba800000, v246"]
    for i in range(16):
        sts += [f"v_lshlrev_b32 v242, 16, v{XS+i}", f"v_and_b32 v243, 0xffff0000, v{XS+i}",
                "v_add_f32 v242, v242, v246", "v_add_f32 v243, v243, v246"]
        sts += (["v_mul_f32 v240, v242, v242", "v_mul_f32 v241, v243, v243"] if i == 0 else
                ["v_fmac_f32 v240, v242, v242", "v_fmac_f32 v241, v243, v243"])
    sts += ["v_add_f32 v247, v240, v241"] + ared(247, 242) + ["v_mul_f32 v247, 0x3a800000, v247"] + rb(247)
    sts += ["v_add_f32 v247, 0x3727c5ac, v247"] + rb(247) + ["v_sqrt_f32 v247, v247"] + rb(246) + rb(247)
    sts += ["v_rcp_f32 v247, v247", "s_nop 0"]
    st_store = [f"buffer_store_dwordx2 v[246:247], v244, {R_MI}, 0 offen offset:{ST_REL} sc1"]

    def reads(step_u, fs, cs=False, do_b=True):
        fa = FA[fs]
        al = []
        for ai in range(14):
            for h in range(2):
                al.append(f"ds_read_b64_tr_b16 {a(fa+4*ai+2*h,2)}, v{8+ai%7} offset:{step_u*16384 + (ai//7)*8192 + h*1024}")
        bl = [f"ds_read_b128 {a(fa+56+4*j,4)}, v17 offset:{2048*j}" for j in range(4)] if do_b else []
        cl = []
        if cs:
            for q in range(4):
                for h in range(2):
                    cl.append(f"ds_read_b64_tr_b16 {a(CSF+4*q+2*h,2)}, v{18+q} offset:{step_u*16384 + h*1024}")
        return bl + al + cl

    def mfmas(fs, first=False):
        fa = FA[fs]
        return [f"{MF} {accr(ai,j)}, {a(fa+4*ai,4)}, {a(fa+56+4*j,4)}, {'0' if first else accr(ai,j)}"
                for ai in range(14) for j in range(4)]

    e("s_movk_i32 s75, 16384")
    e("v_add_u32 v17, s75, v15")
    for x in reads(0, 0, cs=True):
        e(x)
    flat(wdma(3)); e.mark("w3", "v")
    flat(xdma(0))

    def body(i, wd=True, xd=True, rd=True, cs_m=False, cs_r=False, extra=None, pre=None, aug_w=False, do_b=True,
             vm=None, side=None, side0=12, needs=()):
        u = i & 3
        fs = i & 1
        if vm is None:
            tags = [t_ for t_ in [f"it{i-3}"] + list(needs) if t_ in e.tag]
            vm = min(63, e.vm - max(e.tag[t_][1] for t_ in tags))
        e.wait(vm=vm, lg=0)
        e("s_barrier")
        if pre:
            pre()
        mf = mfmas(fs, first=(i == 0))
        if cs_m:
            cm = [f"{MF} {a(CSA,4)}, {a(CSF+4*q,4)}, {a(CSS+4*q,4)}, {'0' if (i == 0 and q == 0) else a(CSA,4)}" for q in range(4)]
            mf = cm + mf
        slots = {}
        groups = []
        if xd:
            groups += xdma(1 - (i & 1))
        if wd:
            groups += wdma(u, aug_w)
        groups.append([lambda: e.mark(f"it{i}", "v")])
        if extra:
            groups += extra
        isb = lambda x: isinstance(x, str) and x.startswith("buffer_")
        heavy = [any(isb(x) for x in g) for g in groups]
        nh = max(1, sum(heavy))
        sp = max(1.0, min(7.0, (len(mf) - 5.0) / nh))
        taken = set()
        pos = 2.0
        nxt = 3.0
        for g, hv in zip(groups, heavy):
            if hv:
                pos = max(pos + 1, nxt)
                nxt = pos + sp
                taken.add(int(pos))
            elif not callable(g[0]):
                pos += 1
            slots.setdefault(int(pos), []).extend(g)
        if rd:
            hk = (i + 1) & 1
            if do_b:
                if hk == 0:
                    slots[0] = ["s_add_u32 s75, s75, 8192", f"s_cmp_eq_u32 s75, {XWREG}", "s_cselect_b32 s75, 0, s75"]
                    slots[1] = ["v_add_u32 v17, s75, v15"]
                    taken.add(0)
                else:
                    slots[1] = ["v_add_u32 v17, s75, v16"]
            rl = reads((u + 1) & 3, 1 - fs, cs_r, do_b)
            if do_b:
                rl = rl[4:8] + rl[:4] + rl[8:]
            pos = 0 if not cs_m else 1
            for x in rl:
                while pos in taken and pos < 44:
                    pos += 1
                slots[pos] = [x] + slots.get(pos, [])
                pos += 1
        if side:
            room = len(mf) - side0
            for k, x in enumerate(side):
                slots.setdefault(side0 + (k * room) // len(side), []).append(x)
        merge(e, mf, slots)

    C = 224
    cs = [f"v_accvgpr_read_b32 v{C+r}, a{CSA+r}" for r in range(4)]
    cs += [f"v_cvt_pk_bf16_f32 v{C+4}, v{C}, v{C+1}", f"v_cvt_pk_bf16_f32 v{C+5}, v{C+2}, v{C+3}",
           f"v_lshlrev_b32 v{C+6}, 16, v{C+4}", f"v_and_b32 v{C+7}, 0xffff0000, v{C+4}",
           f"v_lshlrev_b32 v{C+8}, 16, v{C+5}", f"v_and_b32 v{C+9}, 0xffff0000, v{C+5}"]
    cs += [f"v_sub_f32 v{C+r}, v{C+r}, v{C+6+r}" for r in range(4)]
    cs += ["v_bfe_u32 v1, v0, 2, 2", "v_cmp_eq_u32 vcc, 1, v1",
           f"v_cvt_pk_bf16_f32 v{C+10}, v{C}, v{C+1}", f"v_cvt_pk_bf16_f32 v{C+11}, v{C+2}, v{C+3}",
           f"v_cndmask_b32 v{C+4}, v{C+4}, v{C+10}, vcc", f"v_cndmask_b32 v{C+5}, v{C+5}, v{C+11}, vcc",
           f"v_lshlrev_b32 v{C+6}, 16, v{C+10}", f"v_and_b32 v{C+7}, 0xffff0000, v{C+10}",
           f"v_lshlrev_b32 v{C+8}, 16, v{C+11}", f"v_and_b32 v{C+9}, 0xffff0000, v{C+11}"]
    cs += [f"v_sub_f32 v{C+r}, v{C+r}, v{C+6+r}" for r in range(4)]
    cs += ["v_cmp_eq_u32 vcc, 2, v1",
           f"v_cvt_pk_bf16_f32 v{C+10}, v{C}, v{C+1}", f"v_cvt_pk_bf16_f32 v{C+11}, v{C+2}, v{C+3}",
           f"v_cndmask_b32 v{C+4}, v{C+4}, v{C+10}, vcc", f"v_cndmask_b32 v{C+5}, v{C+5}, v{C+11}, vcc"]
    csa = ["s_mul_i32 s3, s66, 12288", "s_lshr_b32 s6, s64, 1", "s_mul_i32 s6, s6, 6144", "s_add_u32 s3, s3, s6",
           *(["s_lshr_b32 s6, s65, 1", "s_lshl_b32 s6, s6, 8", "s_add_u32 s3, s3, s6", "s_and_b32 s6, s65, 1",
              "s_lshl_b32 s6, s6, 10", "s_add_u32 s3, s3, s6"] if ROT == 4 else ["s_lshl_b32 s6, s65, 8", "s_add_u32 s3, s3, s6"]),
           "s_and_b32 s6, s64, 1", "s_lshl_b32 s6, s6, 7",
           "s_add_u32 s3, s3, s6", f"s_add_u32 s3, s3, {CS_REL}",
           "v_bfe_u32 v1, v0, 2, 2", f"v_lshlrev_b32 v{C+12}, 11, v1", f"v_and_b32 v{C+13}, 3, v0",
           f"v_lshl_add_u32 v{C+12}, v{C+13}, 5, v{C+12}", f"v_lshrrev_b32 v{C+13}, 4, v0",
           f"v_lshl_add_u32 v{C+12}, v{C+13}, 3, v{C+12}", "v_cmp_eq_u32 vcc, 3, v1", f"v_mov_b32 v{C+13}, 0x80000000",
           f"v_add_u32 v{C+12}, s3, v{C+12}", f"v_cndmask_b32 v{C+12}, v{C+12}, v{C+13}, vcc"]
    cs_store = [f"buffer_store_dwordx2 {v(C+4,2)}, v{C+12}, {R_MI}, 0 offen sc1"]
    kva = ["v_and_b32 v26, 3, v0", "v_lshlrev_b32 v22, 3, v26", "v_lshlrev_b32 v26, 6, v26",
           "s_lshl_b32 s74, s5, 10", "s_lshl_b32 s3, s64, 8", "s_add_u32 s74, s74, s3",
           "s_lshr_b32 s3, s74, 3", "v_add_u32 v22, s3, v22", f"v_mul_u32_u24 v22, {UR_PITCH}, v22",
           "v_lshrrev_b32 v23, 2, v0", "v_lshlrev_b32 v23, 3, v23", "v_sub_u32 v22, v22, v23",
           "s_lshl_b32 s6, s4, 7", "s_sub_u32 s6, 4088, s6", "v_add_u32 v22, s6, v22",
           "s_lshl_b32 s3, s5, 7", "v_add_u32 v23, s3, v29", f"v_mul_u32_u24 v23, {UR_PITCH}, v23",
           "v_add_u32 v23, 0x1000, v23", "s_lshl_b32 s6, s4, 8", "v_add_u32 v24, s6, v29", "s_movk_i32 s6, 128",
           "v_cmp_gt_u32 vcc, s6, v24", "v_mov_b32 v25, 0x80000000", "s_nop 0", "v_cndmask_b32 v23, v25, v23, vcc"]
    wl = [[f"buffer_load_dwordx4 {a(WR[i],4)}, v26, {R_SH}, s74 offen offset:{16*i}"] for i in range(4)]
    assert NCS == 4
    q4 = -(-len(sts) // 4)
    sides = {0: kva, 1: sts[:q4], 2: sts[q4:2*q4], 3: sts[2*q4:3*q4], 4: sts[3*q4:], 5: csa, 6: cs}
    extras = {4: wl, 5: [st_store], 7: [cs_store]}
    KVI = opt.get("kvi", 8)
    KVB = opt.get("kvb", 12)
    extras[KVI] = extras.get(KVI, []) + kvl
    for i in range(KVB):
        tg = {0: "w1", 1: "w2", 2: "w3"}.get(i)
        vmi = min(63, e.vm - e.tag[tg][1]) if tg else None
        body(i, cs_m=(i < NCS), cs_r=(i < NCS - 1), vm=vmi, side=sides.get(i), side0=2, extra=extras.get(i))
        if i == 3:
            stamp(e, 12)
    stamp(e, 14)
    e.need("kv")
    e.c("kv tile: short conv * v, packed along (reversed) time")
    WF, KF, VF, TMP = 224, [232 + 2 * i for i in range(7)], 246, 1
    OUT = [248, 250, 252, 254, 24, 26, 18, 20]
    for p in range(4):
        for h in range(2):
            for d in range(2):
                e(f"v_accvgpr_read_b32 v{TMP}, a{WR[p]+2*h+d}")
                e(f"v_lshlrev_b32 v{WF+4*d+h}, 16, v{TMP}")
                e(f"v_and_b32 v{WF+4*d+2+h}, 0xffff0000, v{TMP}")
        for i in range(7):
            e(f"v_accvgpr_read_b32 v{TMP}, a{KR[i]+p}")
            unpack(e, KF[i], TMP)
        for i in range(4):
            e(f"v_accvgpr_read_b32 v{TMP}, a{VR[i]+p}")
            e(f"v_pk_mul_f32 {v(KF[i],2)}, {v(KF[i],2)}, {v(WF+6,2)}")
            unpack(e, VF, TMP)
            for j in (2, 1, 0):
                e(f"v_pk_fma_f32 {v(KF[i],2)}, {v(KF[i+3-j],2)}, {v(WF+2*j,2)}, {v(KF[i],2)}")
            e(f"v_pk_mul_f32 {v(KF[i],2)}, {v(KF[i],2)}, {v(VF,2)}")
        for h in range(2):
            ch = 2 * p + h
            o = OUT[ch]
            e(f"v_cvt_pk_bf16_f32 v{o}, v{KF[3]+h}, v{KF[2]+h}")
            e(f"v_cvt_pk_bf16_f32 v{o+1}, v{KF[1]+h}, v{KF[0]+h}")
            e(f"s_mov_b32 s3, {ch*UR_PITCH}")
            e(f"buffer_store_dwordx2 {v(o,2)}, v22, {R_UR}, s3 offen sc1")
    for i in range(4):
        e(f"v_mov_b32 v{WF+i}, 0")
    e(f"buffer_store_dwordx4 {v(WF,4)}, v23, {R_UR}, 0 offen sc1")
    stamp(e, 15)
    for i in range(KVB, 12):
        body(i)
    e("s_mov_b32 s82, 0")
    e.label("L_g1_loop")
    for i in range(12, 16):
        body(i, vm=16)
    e("s_cmp_lg_u32 s82, 0")
    e("s_cbranch_scc1 L_f0_nosig")
    signal(e, "f0", f"buffer_atomic_add v1, off, {R_DB}, 0 sc1")
    e("s_add_u32 s82, s82, 1")
    e("s_cmp_lt_u32 s82, 3")
    e("s_cbranch_scc1 L_g1_loop")
    for k in range(3):
        e.tag[f"it{21+k}"] = e.tag[f"it{13+k}"]
    e.vm_done = 0
    stamp(e, 13)

    def poll(loadins, cond, lab):
        e("s_mov_b32 s82, 0")
        e.label(f"L_{lab}_chk")
        cond()
        e(f"s_cbranch_scc1 L_{lab}_ok")
        e("s_sleep 1")
        e.l.append("    " + loadins)
        e.l.append("    s_waitcnt vmcnt(0)")
        e("s_add_u32 s82, s82, 1")
        e(f"s_cmp_lt_u32 s82, {SPIN_LIMIT}")
        e(f"s_cbranch_scc1 L_{lab}_chk")
        e.label(f"L_{lab}_ok")

    f0_load = f"buffer_load_dword v18, off, {R_DB}, 0 sc1"

    def f0_cond():
        e("v_readfirstlane_b32 s78, v18")
        e("s_nop 1")
        e("s_cmp_ge_u32 s78, 256")

    def I(s_, tag=None):
        return lambda: e(s_, tag=tag)

    def urdma(c):
        g = [[f"s_add_u32 m0, s70, {c*CV_CP}", f"s_add_u32 s79, s83, {2*c}", f"buffer_load_dwordx4 v2, {R_UR}, s79 offen sc1 lds"]]
        g += [[f"buffer_load_dwordx4 v2, {R_UR}, s79 offen offset:{1024*q} sc1 lds"] for q in range(1, 4)]
        g[-1].append(lambda: e.mark(f"ur{c}", "v"))
        return g

    body(24)
    body(25, extra=[[f0_load, lambda: e.mark("f0", "v")]])
    body(26, side=["v_and_b32 v19, 15, v0", "v_lshlrev_b32 v19, 3, v19",
                   "s_lshl_b32 s85, s65, 11", "s_lshl_b32 s3, s64, 9", "s_add_u32 s85, s85, s3",
                   f"s_mul_i32 s83, s69, {UR_PITCH}", "s_lshl_b32 s84, s69, 12"])
    stl = [[f"buffer_load_dwordx2 {v(20+2*j,2)}, v19, {R_MI}, s85 offen offset:{ST_REL+128*j} sc1"] for j in range(4)]
    stl[-1].append(lambda: e.mark("st", "v"))
    body(27, xd=False)
    body(28, xd=False, aug_w=True, pre=lambda: poll(f0_load, f0_cond, "f0"), extra=stl, needs=["f0"])
    body(29, xd=False, wd=False, extra=urdma(0) + urdma(2))
    body(30, xd=False, wd=False,
         side=["v_and_b32 v3, 15, v0", "v_lshrrev_b32 v28, 4, v0",
               "v_lshrrev_b32 v4, 2, v3", f"v_mul_u32_u24 v4, {CV_CP}, v4", "v_and_b32 v6, 3, v0",
               "v_lshl_add_u32 v4, v6, 4, v4", "v_add_u32 v4, 4096, v4", f"v_add_u32 v5, {CV_HZ}, v2",
               "v_cmp_gt_u32 vcc, 32, v0", "v_add_u32 v29, s70, v2", "v_mov_b32 v248, 0", "v_mov_b32 v249, 0",
               "v_cndmask_b32 v5, v4, v5, vcc", "v_add_u32 v5, s70, v5", "v_mov_b32 v250, 0", "v_mov_b32 v251, 0"])
    hd = [[f"s_add_u32 m0, s70, {CV_H}", "s_nop 0", f"buffer_load_dwordx4 v2, {R_SK}, s84 offen lds"]]
    hd += [[f"buffer_load_dwordx4 v2, {R_SK}, s84 offen offset:{1024*q} lds"] for q in range(1, 4)]
    hd[-1].append(lambda: e.mark("hk", "v"))
    hd = [[x.replace(" lds", " nt lds") if isinstance(x, str) else x for x in g] for g in hd]
    wdpf = [["s_mul_i32 s74, s69, 7168"]]
    wdpf += [[f"buffer_load_dwordx4 a[252:255], v2, {R_WD}, s74 offen offset:{1024*(q&3)}"] + (["s_add_u32 s74, s74, 4096"] if q == 3 else []) for q in range(7)]
    WPF = opt.get("wpf", 31)
    if WPF == 31:
        hd += wdpf
    bb = ["v_cmp_gt_u32 vcc, 48, v0", "ds_write_b128 v5, v[248:251]"]
    for j in range(4):
        bb += [f"v_lshrrev_b32 v1, 16, v{20+2*j}", f"v_or_b32 v1, v1, v{20+2*j}", "v_cndmask_b32 v1, 0, v1, vcc"]
        bb += [f"v_accvgpr_write_b32 a{FA[0]+56+4*j+r}, v1" for r in range(4)]
    for j in range(4):
        bb += [f"v_mul_f32 v{20+2*j}, 0xbfb8aa3b, v{21+2*j}", f"v_mul_f32 v{21+2*j}, v{21+2*j}, v{21+2*j}",
               f"v_rcp_f32 v{21+2*j}, v{21+2*j}"]
    body(31, xd=False, wd=False, do_b=False, extra=hd, side=bb, side0=4, needs=["st"])
    TB = [224, 236]
    def odr(q):
        b = TB[q & 1]
        return [I(f"ds_read_b128 {v(b,4)}, v29 offset:{1024*q}"),
                I(f"ds_read_b128 {v(b+4,4)}, v29 offset:{2*CV_CP+1024*q}"),
                I(f"ds_read_b32 v{b+8}, v29 offset:{2*CV_CP+1024*q+16}", tag=f"od{q}")]
    def odc(q):
        b = TB[q & 1]
        r = [lambda: e.need(f"od{q}")]
        r += [I(f"v_alignbit_b32 v{b+i}, v{b+4+i}, v{b+i}, 16") for i in range(4)]
        r.append(I(f"ds_write_b128 v29, {v(b,4)} offset:{CV_CP+1024*q}"))
        r += [I(f"v_alignbit_b32 v{b+4+i}, v{b+5+i}, v{b+4+i}, 16") for i in range(4)]
        r.append(I(f"ds_write_b128 v29, {v(b+4,4)} offset:{3*CV_CP+1024*q}"))
        return r
    ha = ["s_lshl_b32 s3, s65, 4", "s_lshl_b32 s6, s64, 2", "s_add_u32 s3, s3, s6",
          f"s_mul_i32 s3, s3, {H_SB}", "s_mul_i32 s6, s66, 7", "s_add_u32 s6, s6, 1",
          "s_lshr_b32 s6, s6, 1", "s_lshl_b32 s6, s6, 10", "s_add_u32 s3, s3, s6",
          "v_add_u32 v18, s3, v2", "s_movk_i32 s6, 3072", "s_bitcmp1_b32 s66, 0",
          "s_cselect_b32 s6, 0xfffffc08, s6", "v_add_u32 v19, s6, v18"]
    ca = ["v_and_b32 v4, 3, v3", "v_sub_u32 v4, 3, v4", f"v_mul_u32_u24 v16, {CV_CP}, v4",
          "v_and_b32 v4, 12, v3", "v_lshlrev_b32 v4, 1, v4", "v_sub_u32 v16, v16, v4",
          "v_lshl_add_u32 v16, v28, 4, v16", f"s_add_u32 s3, s70, {2*2028 - 3584}", "v_add_u32 v16, s3, v16",
          "v_lshlrev_b32 v17, 5, v3", "v_lshl_add_u32 v17, v28, 4, v17", f"s_add_u32 s3, s70, {CV_H - 32}",
          "v_add_u32 v17, s3, v17"]
    seq = odr(0) + odr(1) + ha + odc(0) + odr(2) + odc(1) + odr(3) + ca[:6] + odc(2) + ca[6:] + odc(3)
    body(32, xd=False, wd=False, rd=False, side=seq, side0=0, needs=["ur2"])
    stamp(e, 3)

    e.c("SwiGLU epilogue")

    def swiglu(g, u, tmp, out, kc):
        for q in range(2):
            e(f"v_pk_mul_f32 {v(tmp+2*q,2)}, {v(g+2*q,2)}, {v(kc,2)} op_sel_hi:[1,0]")
        for q in range(4):
            e(f"v_exp_f32 v{tmp+q}, v{tmp+q}")
        for q in range(2):
            e(f"v_pk_mul_f32 {v(g+2*q,2)}, {v(g+2*q,2)}, {v(u+2*q,2)}")
        for q in range(2):
            e(f"v_pk_fma_f32 {v(tmp+2*q,2)}, {v(tmp+2*q,2)}, {v(kc,2)}, {v(kc,2)} op_sel:[0,1,1] op_sel_hi:[1,1,1]")
        for q in (2, 3, 0, 1):
            e(f"v_rcp_f32 v{tmp+q}, v{tmp+q}")
        for q in (1, 0):
            e(f"v_pk_mul_f32 {v(g+2*q,2)}, {v(g+2*q,2)}, {v(tmp+2*q,2)}")
        for q in (1, 0):
            e(f"v_cvt_pk_bf16_f32 v{out+q}, v{g+2*q}, v{g+2*q+1}")

    def cv_reads(fs):
        o = 64 * fs
        r = []
        for i in range(8):
            r.append(f"ds_read_b128 {a(o+32+4*i,4)}, v17 offset:{512*i}")
            r.append(f"ds_read_b64 {a(o+4*i,2)}, v16 offset:{(7-i)*512}")
            r.append(f"ds_read_b64 {a(o+4*i+2,2)}, v16 offset:{(7-i)*512+8}")
        r += ["v_subrev_u32 v16, 64, v16", "v_subrev_u32 v17, 64, v17"]
        return r

    e("s_nop 4")
    n = 0
    for j in range(4):
        e(f"s_mov_b32 s78, {j*H_SB}")
        for i in range(4):
            o = 8 + 4 * (n & 1)
            if i < 3:
                for k in range(2):
                    t_ = 2 * i + k
                    swiglu(acc(t_, j), acc(7 + t_, j), 4, o + 2 * k, 20 + 2 * j)
                e(f"buffer_store_dwordx4 {v(o,4)}, v18, {R_H}, s78 offen offset:{1024*i} sc1", tag="hst")
            else:
                for r in range(4):
                    e(f"v_accvgpr_read_b32 v{248+r}, a{AC6+4*j+r}")
                    e(f"v_accvgpr_read_b32 v{252+r}, a{AC6+16+4*j+r}")
                swiglu(248, 252, 4, o, 20 + 2 * j)
                e(f"buffer_store_dwordx2 {v(o,2)}, v19, {R_H}, s78 offen sc1", tag="hst")
            n += 1
        if j == opt.get("cvj", 3):
            e.need("hk")
            for x in cv_reads(0):
                e(x)
    if WPF == 33:
        flat(wdpf)
    stamp(e, 4)

    e.c("long conv")
    CA = 32

    def cv_mfmas(fs, first):
        o = 64 * fs
        prs = [(p, w) for p in range(8) for w in range(8) if p + w <= 7]
        return [f"{MF} {v(CA+4*(p+w),4)}, {a(o+4*p,4)}, {a(o+32+4*w,4)}, {'0' if (first and p == 0) else v(CA+4*(p+w),4)}"
                for p, w in prs]

    def cv_body(r, rd=True, extra=None, early=None):
        fs = r & 1
        e.wait(lg=0)
        slots = {}
        if early:
            slots[0] = list(early)
        if rd:
            for k, x in enumerate(cv_reads(1 - fs)):
                slots.setdefault(k, []).append(x)
        if extra:
            for k, g in enumerate(extra):
                slots.setdefault(k * 2 if not rd else 26 + k, []).extend(g)
        merge(e, cv_mfmas(fs, r == 0), slots)

    G_H, G_WD, G_TR = 192, 200, 204
    g2s = [["s_lshl_b32 s72, s64, 1", "s_lshl_b32 s73, s67, 3"],
           ["v_lshrrev_b32 v6, 3, v0", "v_bfe_u32 v7, v0, 1, 2"],
           ["v_xor_b32 v7, v7, v28", "v_and_b32 v4, 1, v0"],
           [f"v_lshlrev_b32 v{G_WD}, 11, v6", f"v_lshl_add_u32 v{G_WD}, v7, 5, v{G_WD}"],
           [f"v_lshl_add_u32 v{G_WD}, v4, 4, v{G_WD}", "s_lshl_b32 s87, s68, 7"],
           [f"v_add_u32 v{G_WD}, s87, v{G_WD}", f"v_add_u32 v{G_WD+1}, 15360, v{G_WD}"],
           [f"v_add_u32 v{G_WD+2}, 30720, v{G_WD}", f"v_add_u32 v{G_WD+3}, 46080, v{G_WD}"],
           ["s_lshl_b32 s71, s64, 14", f"s_add_u32 s71, s71, {WB}", "v_bfe_u32 v6, v0, 2, 2"],
           ["s_lshl_b32 s75, s64, 10", "s_lshl_b32 s76, s64, 16"],
           ["v_and_b32 v7, 3, v0", "v_lshl_add_u32 v6, v28, 2, v6"],
           ["v_bfe_u32 v4, v6, 1, 2", "v_lshlrev_b32 v6, 7, v6"],
           ["v_lshl_add_u32 v6, v7, 3, v6", "v_add_u32 v6, s71, v6"]]
    for dt in range(4):
        g2s.append([f"v_xor_b32 v7, {dt}, v4", f"v_lshl_add_u32 v{G_TR+dt}, v7, 5, v6"])
    g2s.append(["v_and_b32 v23, 31, v0", "v_lshlrev_b32 v23, 2, v23"])
    g2s.append(["s_lshr_b32 s77, s67, 1", "s_lshl_b32 s77, s77, 7", f"s_add_u32 s77, s77, {HF_REL}"])
    for jj in range(8):
        g2s.append([f"s_add_u32 s78, s72, {jj}", "s_and_b32 s78, s78, 7", "s_add_u32 s78, s78, s73"])
        g2s.append([f"s_mul_i32 s78, s78, {H_SB}", f"v_add_u32 v{G_H+jj}, s78, v2"])

    def g2dma(slot):
        r = [[f"s_add_u32 m0, s71, {slot*4096}", "s_nop 0", f"buffer_load_dwordx4 v{G_WD}, {R_WD}, s76 offen lds"]]
        for jj in range(1, 4):
            r.append([f"buffer_load_dwordx4 v{G_WD+jj}, {R_WD}, s76 offen offset:{1024*jj} lds"])
        r[-1].append("s_add_u32 s76, s76, 0x40000")
        return r

    HR, WF2 = 128, 0

    def hload(slot, jj):
        r = [f"buffer_load_dwordx4 {a(HR+slot*32+4*jj,4)}, v{G_H+jj}, {R_H}, s75 offen sc1"]
        if jj == 7:
            r.append("s_add_u32 s75, s75, 4096")
        return r

    fl_load = f"buffer_load_dword v22, v23, {R_MI}, s77 offen sc1"

    def flag_cond():
        e("v_cmp_ne_u32 vcc, 0, v22")
        e("s_cmp_eq_u64 vcc, exec")

    R_SIG = opt.get("rsig", 3)
    R_POLL = opt.get("rpoll", 6)
    ex_by_r = {0: g2s[:10], 1: g2s[10:20], 2: g2s[20:30], 3: g2s[30:], 4: g2dma(0) + g2dma(1), 5: g2dma(2) + g2dma(3)}
    for r in range(7):
        if r == R_SIG:
            e.need("hst")
            e("s_barrier")
            signal(e, "f1", f"buffer_store_dword v1, off, {R_MI}, s80 sc1")
            stamp(e, 5)
        cv_body(r, extra=ex_by_r.get(r), early=([fl_load] if r == R_POLL else None))
    e.wait(vm=0)
    poll(fl_load, flag_cond, "f1")
    stamp(e, 6)
    hl = []
    for sl in range(4):
        for jj in range(0, 8, 2):
            hl.append(hload(sl, jj) + hload(sl, jj + 1))
    m0_ = e.vm
    UZ = 224
    pre_z = ["v_lshlrev_b32 v12, 5, v3", "v_lshl_add_u32 v12, v28, 3, v12", f"s_add_u32 s78, s70, {2*2044 - 3584}",
             "v_sub_u32 v13, s78, v12"] + [f"ds_read_b64 {v(UZ+2*i,2)}, v13 offset:{(7-i)*512}" for i in range(8)]
    for k, x in enumerate(pre_z):
        hl[k].append(x)
    cv_body(7, rd=False, extra=hl)

    def trreads(slot, fs):
        return [f"ds_read_b64_tr_b16 {a(WF2+16*fs+4*dt+2*h,2)}, v{G_TR+dt} offset:{slot*4096+h*2048}"
                for dt in range(4) for h in range(2)]

    e("s_and_b32 s78, s69, 1")
    e("s_lshl_b32 s78, s78, 4")
    e("s_lshr_b32 s90, s90, s78")
    e("s_lshl_b32 s90, s90, 16")
    e("v_lshlrev_b32 v12, 5, v3")
    e("v_lshrrev_b32 v13, 1, v28")
    e("v_lshl_add_u32 v12, v13, 4, v12")
    e("v_and_b32 v13, 1, v28")
    e("v_lshl_add_u32 v12, v13, 9, v12")
    e.wait(lg=0)
    for x in trreads(0, 0):
        e(x)
    for i in range(8):
        u0, u1 = UZ + 2 * i, UZ + 2 * i + 1
        y = CA + 4 * i
        e(f"v_and_b32 v4, 0xffff0000, v{u1}")
        e(f"v_lshlrev_b32 v5, 16, v{u1}")
        e(f"v_and_b32 v6, 0xffff0000, v{u0}")
        e(f"v_lshlrev_b32 v7, 16, v{u0}")
        for q in range(4):
            e(f"v_fmac_f32 v{y+q}, s90, v{4+q}")
        e(f"v_cvt_pk_bf16_f32 v{u0}, v{y}, v{y+1}")
        e(f"v_cvt_pk_bf16_f32 v{u1}, v{y+2}, v{y+3}")
    e("s_nop 1")
    for k in range(4):
        b = UZ + 4 * k
        e(f"v_permlane16_swap_b32 v{b}, v{b+2}")
        e(f"v_permlane16_swap_b32 v{b+1}, v{b+3}")
        e(f"buffer_store_dwordx4 {v(b,4)}, v12, {R_ZT}, s84 offen offset:{1024*k} sc1")
    stamp(e, 7)
    nz = e.vm - m0_ - 32

    e.c("GEMM2")
    A2 = 64

    def acc2(dt, jj):
        return A2 + (jj * 4 + dt) * 4

    def body2(sl, vm, do_read, do_load, extra=None, pre=None, first=False, side=None):
        fs = sl & 1
        e.wait(vm=vm, lg=0)
        if pre:
            pre()
        slots = {}
        if do_read:
            for i, x in enumerate(trreads((sl + 1) % 4, 1 - fs)):
                slots.setdefault(4 + i + i // 3, []).append(x)
        if do_load:
            for i, grp in enumerate(g2dma(sl)):
                slots.setdefault(i, []).extend(grp)
            for jj in range(8):
                slots.setdefault(4 * jj + 3, []).extend(hload(sl, jj))
        if extra:
            for i, grp in enumerate(extra):
                slots.setdefault(2 * i, []).extend(grp)
        if side:
            for k, x in enumerate(side):
                slots.setdefault((k * 32) // len(side), []).append(x)
        mf = [f"{MF} {v(acc2(dt,jj),4)}, {a(WF2+16*fs+4*dt,4)}, {a(HR+sl*32+4*jj,4)}, {'0' if first else v(acc2(dt,jj),4)}"
              for jj in range(8) for dt in range(4)]
        merge(e, mf, slots)

    XR, SR, ZR = 32, 48, 224
    fa = ["v_and_b32 v6, 1, v28", "v_lshrrev_b32 v7, 1, v28", "v_lshl_or_b32 v6, v6, 1, v7",
          "s_add_u32 s85, s73, s72", "s_lshl_b32 s78, s85, 15", "s_add_u32 s78, s78, s87",
          "v_lshlrev_b32 v24, 11, v3", "v_lshl_add_u32 v24, v6, 4, v24", "v_add_u32 v24, s78, v24",
          "v_add_u32 v25, 0x8000, v24", "v_lshlrev_b32 v26, 3, v3", "s_lshl_b32 s86, s85, 7",
          "v_lshlrev_b32 v23, 2, v3", "s_lshl_b32 s77, s68, 6", f"s_add_u32 s77, s77, {ZF_REL}",
          "v_lshrrev_b32 v21, 2, v0", "v_lshlrev_b32 v21, 12, v21", "v_and_b32 v27, 3, v0",
          "v_lshl_add_u32 v21, v27, 4, v21", "s_lshl_b32 s78, s68, 18", "s_lshl_b32 s79, s85, 5",
          "s_add_u32 s78, s78, s79", "v_add_u32 v21, s78, v21",
          "v_bfe_u32 v7, v0, 2, 2", "v_lshl_add_u32 v7, v6, 3, v7", "v_lshlrev_b32 v7, 6, v7",
          "v_lshl_add_u32 v7, v27, 3, v7", "v_add_u32 v7, s71, v7"]
    for dl in range(1, 4):
        fa += [f"s_sub_u32 s78, s64, {dl}", "s_and_b32 s78, s78, 3", f"s_mul_i32 s78, s78, {XWREG}",
               f"s_add_u32 s78, s78, {(2*dl-2)*4096}", f"v_add_u32 v{12+dl}, s78, v2"]
    body2(0, 24 + nz, True, True, first=True)
    body2(1, 16 + nz + 12, True, True, side=fa[:22])
    body2(2, 8 + nz + 24, True, True, side=fa[22:])
    body2(3, 32, True, True)
    e("s_barrier")
    signal(e, "f2", f"buffer_store_dword v1, off, {R_MI}, s81 sc1")
    e("s_mov_b32 s82, 1")
    e.label("L_g2_loop")
    for sl in range(4):
        body2(sl, 32, True, True)
    e("s_add_u32 s82, s82, 1")
    e("s_cmp_lt_u32 s82, 6")
    e("s_cbranch_scc1 L_g2_loop")
    extra = [[fl_load]]
    for e2 in range(2):
        for pr in range(2):
            extra.append([f"buffer_load_dwordx4 {v(XR+4*(2*e2+pr),4)}, v{24+e2}, {R_X}, 0 offen offset:{64*pr}"])
        extra.append([f"buffer_load_dwordx2 {v(SR+2*e2,2)}, v26, {R_MI}, s86 offen offset:{ST_REL+128*e2} sc1"])
    body2(0, 32, True, False, extra)
    body2(1, 20 + 7, True, False)
    body2(2, 8 + 7, True, False)
    zd = [["s_mov_b32 m0, s71", "s_nop 0", f"buffer_load_dwordx4 v21, {R_ZT}, 0 offen sc1 lds"]]
    for i in range(1, 4):
        zd.append([f"s_mov_b32 s78, {i*(65536-1024)}", f"buffer_load_dwordx4 v21, {R_ZT}, s78 offen offset:{1024*i} sc1 lds"])
    body2(3, 6, False, False, extra=zd, pre=lambda: poll(fl_load, flag_cond, "f2"))
    stamp(e, 8)
    e.c("cross-wave reduction")
    e("s_nop 7")
    for jj in range(2, 8):
        for dt in range(4):
            e(f"ds_write_b128 v29, {v(acc2(dt,jj),4)} offset:{((jj-2)*4+dt)*1024}")
    e.wait(lg=0)
    e("s_barrier")
    stamp(e, 9)
    RB = A2 + 32
    for dl in range(1, 4):
        for q in range(8):
            e(f"ds_read_b128 {v(RB+((dl-1)*8+q)*4,4)}, v{12+dl} offset:{q*1024}")
        if dl > 1:
            e.wait(lg=8)
            for q in range(16):
                e(f"v_pk_add_f32 {v(A2+2*q,2)}, {v(A2+2*q,2)}, {v(RB+(dl-2)*32+2*q,2)}")
    e.wait(vm=0, lg=0)
    for e2 in range(2):
        for pr in range(2):
            for hh in range(2):
                e(f"ds_read_b64_tr_b16 {v(ZR+4*(2*e2+pr)+2*hh,2)}, v7 offset:{(32*pr+4*hh)*64 + 32*e2}")
    for q in range(16):
        e(f"v_pk_add_f32 {v(A2+2*q,2)}, {v(A2+2*q,2)}, {v(RB+64+2*q,2)}")
    e("s_nop 1")
    for e2 in range(2):
        for pr in range(2):
            for r in range(4):
                e(f"v_permlane16_swap_b32 v{acc2(2*pr,e2)+r}, v{acc2(2*pr+1,e2)+r}")
    e.wait(lg=0)
    for e2 in range(2):
        st = SR + 2 * e2
        for pr in range(2):
            i = 2 * e2 + pr
            A0 = acc2(2 * pr, e2)
            for q in range(4):
                unpack(e, 52, XR + 4 * i + q)
                unpack(e, 56, ZR + 4 * i + q)
                e(f"v_pk_add_f32 v[54:55], v[52:53], {v(st,2)} op_sel_hi:[1,0]")
                e(f"v_pk_add_f32 v[52:53], v[52:53], {v(A0+2*q,2)}")
                e(f"v_pk_mul_f32 v[54:55], v[54:55], {v(st,2)} op_sel:[0,1] op_sel_hi:[1,1]")
                e("v_pk_fma_f32 v[52:53], v[54:55], v[56:57], v[52:53]")
                e(f"v_cvt_pk_bf16_f32 v{RB+4*i+q}, v52, v53")
            e(f"buffer_store_dwordx4 {v(RB+4*i,4)}, v{24+e2}, {R_OUT}, 0 offen offset:{64*pr}")
    stamp(e, 10)
    if STAMPS or DST:
        e.wait(vm=0)
    stamp(e, 11)
    e.label("L_end")
    name = NAME + "_kernel"
    return f""".globl {name}
.p2align 8
.type {name},@function
{name}:
{e.text()}    s_endpgm
.section .rodata,"a"
.p2align 6
.amdhsa_kernel {name}
  .amdhsa_next_free_vgpr 512
  .amdhsa_next_free_sgpr 102
  .amdhsa_accum_offset 256
  .amdhsa_group_segment_fixed_size 0
  .amdhsa_kernarg_size 104
  .amdhsa_user_sgpr_count 2
  .amdhsa_user_sgpr_kernarg_segment_ptr 1
  .amdhsa_system_sgpr_workgroup_id_x 1
  .amdhsa_float_denorm_mode_32 3
.end_amdhsa_kernel
"""


def main(opt=None):
    opt = opt or {}
    ref = open("cdna_kernels/" + NAME + ".s.ref").read().split("\n")
    hdr = [l for l in ref if l.startswith(";") and "@launch" not in l]
    out = "\n".join(hdr) + "\n"
    out += f"; @launch grid=(256,1,1) block=(256,1,1) lds={LDS_SIZE}\n"
    out += '.amdgcn_target "amdgcn-amd-amdhsa--gfx950"\n.text\n'
    out += gen(opt)
    return out


if __name__ == "__main__":
    args = [x for x in sys.argv[1:] if not x.startswith("-")]
    opt = {}
    for x in sys.argv[1:]:
        if x == "-stamps":
            STAMPS = True
        elif x == "-dst":
            DST = True
        elif x.startswith("-"):
            k, _, val = x[1:].partition("=")
            opt[k] = int(val) if val else 1
    path = args[0] if args else "cdna_kernels/" + NAME + ".s"
    open(path, "w").write(main(opt))
    print("wrote", path)
```

```python
import sys

NAME = "parallel_sum__ssm_conv_h3__swiglu_ffn__prompt"
S, D, F = 2048, 1024, 3584
KA_Q, KA_K, KA_V, KA_SHK, KA_SSMK, KA_SSMD, KA_BX, KA_WG, KA_WU, KA_WD, KA_OUT, KA_DBG, KA_WS = [8 * i for i in range(13)]

MISC_OFF = 0
ST_REL = 0
HF_REL = 16384
ZF_REL = 16384 + 1024
KF_REL = 16384 + 2048
CS_REL = 32768
MISC_SIZE = CS_REL + 32 * 12288
UR_OFF = 4 << 20
UR_PITCH = 4096 + 128
UR_SIZE = D * UR_PITCH
ZT_OFF = 9 << 20
ZT_SIZE = S * D * 2
H_OFF = 16 << 20
H_SIZE = S * F * 2
H_SB = 112 * 1024
STAMP_OFF = 64 << 20

LDS_SIZE = 163840
XWREG = 24576
WB = 4 * XWREG
CV_CP = 4160
CV_HZ = 4 * CV_CP
CV_H = CV_HZ + 512
WSTEP = 32 * 7168
SPIN_LIMIT = 200000

STAMPS = False


class E:
    def __init__(self):
        self.l = []
        self.vm = 0
        self.vm_done = 0
        self.lg = 0
        self.lg_done = 0
        self.tag = {}

    def __call__(self, s, tag=None):
        for ln in s.strip("\n").split("\n"):
            ln = ln.strip()
            if ln.startswith("buffer_"):
                self.vm += 1
                if tag:
                    self.tag[tag] = ("v", self.vm)
            elif ln.startswith("ds_"):
                self.lg += 1
                if tag:
                    self.tag[tag] = ("l", self.lg)
            self.l.append("    " + ln)

    def mark(self, tag, kind):
        self.tag[tag] = (kind, self.vm if kind == "v" else self.lg)

    def need(self, *tags):
        nv = max([self.tag[t][1] for t in tags if self.tag[t][0] == "v"] + [0])
        nl = max([self.tag[t][1] for t in tags if self.tag[t][0] == "l"] + [0])
        w = []
        if nv > self.vm_done:
            n = min(self.vm - nv, 63)
            w.append(f"vmcnt({n})")
            self.vm_done = self.vm - n
        if nl > self.lg_done:
            n = min(self.lg - nl, 15)
            w.append(f"lgkmcnt({n})")
            self.lg_done = self.lg - n
        if w:
            self.l.append("    s_waitcnt " + " ".join(w))

    def wait(self, vm=None, lg=None):
        w = []
        if vm is not None:
            w.append(f"vmcnt({vm})")
            self.vm_done = max(self.vm_done, self.vm - vm)
        if lg is not None:
            w.append(f"lgkmcnt({lg})")
            self.lg_done = max(self.lg_done, self.lg - lg)
        self.l.append("    s_waitcnt " + " ".join(w))

    def label(self, s):
        self.l.append(s + ":")

    def c(self, s):
        self.l.append("    ; " + s)

    def text(self):
        return "\n".join(self.l) + "\n"


def v(i, n=1):
    return f"v{i}" if n == 1 else f"v[{i}:{i+n-1}]"


def a(i, n=1):
    return f"a{i}" if n == 1 else f"a[{i}:{i+n-1}]"


DST = False
DMAP = {2: 2, 12: 3, 14: 4, 15: 5, 13: 6, 3: 7, 4: 8, 5: 9, 6: 10, 7: 11, 8: 12, 9: 13, 10: 14, 11: 15}


def stamp(e, i):
    if DST and i in DMAP:
        e("s_memrealtime s[96:97]")
        e.wait(lg=0)
        e("s_sub_u32 s96, s96, s98")
        e(f"v_writelane_b32 v31, s96, {DMAP[i]}")
        if i == 11:
            e(f"s_cmp_lg_u32 s69, {DST}")
            e("s_cbranch_scc1 L_end")
            e("v_lshlrev_b32 v30, 2, v0")
            e("s_mov_b64 exec, 0xfffc")
            e("buffer_store_dword v31, v30, s[40:43], 0 offen")
        return
    if not STAMPS:
        return
    e("s_memrealtime s[96:97]")
    e("s_memtime s[98:99]")
    e.wait(lg=0)
    e("v_mov_b32 v30, s96")
    e("v_mov_b32 v31, s98")
    e(f"buffer_store_dwordx2 v[30:31], off, s[92:95], s100 offset:{8*i}")


def unpack(e, dst, src):
    e(f"v_lshlrev_b32 v{dst}, 16, v{src}")
    e(f"v_and_b32 v{dst+1}, 0xffff0000, v{src}")


def allreduce32(e, r, t):
    e("s_nop 1")
    for m in ("quad_perm:[1,0,3,2]", "quad_perm:[2,3,0,1]", "row_half_mirror", "row_mirror"):
        e(f"v_add_f32_dpp v{r}, v{r}, v{r} {m} row_mask:0xf bank_mask:0xf")
        e("s_nop 1")
    e(f"v_mov_b32 v{t}, v{r}")
    e("s_nop 1")
    e(f"v_permlane16_swap_b32 v{r}, v{t}")
    e("s_nop 1")
    e(f"v_add_f32 v{r}, v{r}, v{t}")


def round_bf16(e, r):
    e(f"v_cvt_pk_bf16_f32 v{r}, v{r}, v{r}")
    e(f"v_lshlrev_b32 v{r}, 16, v{r}")


R_X, R_WG, R_WU, R_H, R_UR, R_SK, R_ZT, R_MI, R_DB, R_WD, R_OUT, R_K, R_V, R_SH = [f"s[{8+4*i}:{11+4*i}]" for i in range(14)]
MF = "v_mfma_f32_16x16x32_bf16"


def merge(e, mf, slots):
    def do(x):
        if callable(x):
            x()
        else:
            e(x)
    for i, m in enumerate(mf):
        e(m)
        for x in slots.get(i, []):
            do(x)
    for k in sorted(slots):
        if k >= len(mf):
            for x in slots[k]:
                do(x)


def signal(e, lab, ins):
    e("s_cmp_lg_u32 s64, 0")
    e(f"s_cbranch_scc1 L_{lab}_nosig")
    e("v_mov_b32 v1, 1")
    e("s_mov_b64 exec, 1")
    e.l.append("    " + ins)
    e("s_mov_b64 exec, -1")
    e.label(f"L_{lab}_nosig")


def gen(opt):
    e = E()
    ACC = 32

    AC6 = 180

    def acc(ai, j):
        t, m = ai % 7, ai // 7
        assert t < 6
        return ACC + ((m * 6 + t) * 4 + j) * 4

    def accr(ai, j):
        if ai % 7 == 6:
            return a(AC6 + (ai // 7) * 16 + 4 * j, 4)
        return v(acc(ai, j), 4)
    FA = [0, 72]
    CSF, CSS, CSA = 144, 160, 176

    e("s_cmp_ge_u32 s2, 256")
    e("s_cbranch_scc1 L_end")
    if STAMPS:
        e("s_memrealtime s[96:97]")
        e("s_memtime s[98:99]")
    if DST:
        e("s_memrealtime s[98:99]")
        e("v_mov_b32 v31, 0")
    for reg, off in ((8, KA_Q), (12, KA_WG), (16, KA_WU), (88, KA_WS), (28, KA_SSMK), (40, KA_DBG), (44, KA_WD),
                     (48, KA_OUT), (52, KA_K), (56, KA_V), (60, KA_SHK), (86, KA_SSMD)):
        e(f"s_load_dwordx2 s[{reg}:{reg+1}], s[0:1], {off}")
    if opt.get("cpf", 1):
        e("s_getpc_b64 s[82:83]")
        e.label("L_pc")
        e("s_lshr_b32 s78, s2, 3")
        e("s_and_b32 s78, s78, 3")
        e("s_lshl_b32 s78, s78, 14")
        e("v_lshlrev_b32 v50, 6, v0")
        e("v_add_u32 v50, s78, v50")
        e("v_min_u32 v50, L_end-L_pc, v50")
        e("v_mov_b32 v51, s83")
        e("v_add_co_u32 v50, vcc, s82, v50")
        e("s_nop 1")
        e("v_addc_co_u32 v51, vcc, 0, v51, vcc")
        e.l.append("    global_load_dword v245, v[50:51], off")
        e.vm += 1
    e("v_lshrrev_b32 v1, 6, v0")
    e("v_mov_b32 v29, v0")
    e("v_and_b32 v0, 63, v0")
    e("v_readfirstlane_b32 s64, v1")
    e("v_lshlrev_b32 v2, 4, v0")
    e("v_lshrrev_b32 v39, 5, v29")
    e("v_and_b32 v40, 31, v29")
    e("s_lshl_b32 s7, s2, 14")
    e("v_lshlrev_b32 v41, 11, v39")
    e("v_lshl_add_u32 v41, v40, 4, v41")
    e("v_add_u32 v41, s7, v41")
    for reg, size in ((8, S * D * 2), (12, D * F * 2), (16, D * F * 2)):
        e(f"s_mov_b32 s{reg+2}, 0x{size:x}")
        e(f"s_mov_b32 s{reg+3}, 0x20000")
    e("s_and_b32 s6, s2, 7")
    e("s_lshr_b32 s7, s2, 3")
    e("s_and_b32 s65, s7, 7")
    e("s_lshr_b32 s66, s7, 3")
    e("s_lshl_b32 s78, s6, 2")
    e("s_add_u32 s66, s66, s78")
    e(f"s_mul_i32 s70, s64, {XWREG}")
    e("s_lshl_b32 s71, s64, 11")
    e(f"s_add_u32 s71, s71, {WB}")
    ROT = opt.get("rot", 8)
    NCS = 32 // ROT
    e(f"s_lshr_b32 s3, s65, {1 if ROT == 4 else 0}")
    e(f"s_mul_i32 s72, s3, {NCS*WSTEP}")
    e("s_add_u32 s73, s72, 27648")
    e("v_lshrrev_b32 v22, 4, v0")
    e("v_bfe_u32 v23, v0, 1, 3")
    e("s_and_b32 s78, s64, 1")
    e("s_lshl_b32 s78, s78, 2")
    e("v_or_b32 v24, s78, v22")
    e("v_xor_b32 v23, v23, v24")
    e("s_and_b32 s78, s66, 1")
    e("v_add_u32 v24, s78, v23")
    e("v_cmp_eq_u32 vcc, 7, v24")
    e("v_and_b32 v25, 1, v0")
    e("s_lshl_b32 s78, s64, 3")
    e("v_cndmask_b32 v24, v24, 0, vcc")
    e("v_lshlrev_b32 v3, 5, v24")
    e("v_lshl_add_u32 v3, v25, 4, v3")
    e("v_add_u32 v26, s78, v22")
    e("v_mul_u32_u24 v27, 7168, v26")
    e("v_add_u32 v3, v3, v27")
    e("s_mul_i32 s78, s66, 224")
    e("v_add_u32 v3, s78, v3")
    e("v_cmp_eq_u32 vcc, 7, v23")
    e("v_mov_b32 v27, 0x80000000")
    e("v_lshlrev_b32 v28, 8, v26")
    e("v_cndmask_b32 v3, v3, v27, vcc")
    e("v_lshl_add_u32 v28, v23, 5, v28")
    e("v_lshl_add_u32 v28, v25, 4, v28")
    e("v_lshrrev_b32 v23, 3, v0")
    e("v_and_b32 v24, 7, v0")
    e("v_xor_b32 v24, v24, v22")
    e("s_lshl_b32 s78, s65, 19")
    e("s_lshl_b32 s79, s64, 17")
    e("s_add_u32 s78, s78, s79")
    e("v_lshlrev_b32 v4, 11, v23")
    e("v_add_u32 v4, s78, v4")
    e("v_xor_b32 v25, 4, v24")
    e("v_lshl_add_u32 v5, v25, 4, v4")
    e("v_lshl_add_u32 v4, v24, 4, v4")
    e("v_add_u32 v5, 15360, v5")
    e("v_add_u32 v6, 30720, v4")
    e("v_add_u32 v7, 30720, v5")
    e(f"s_mul_i32 s77, s3, {NCS*64}")
    e("s_add_u32 s76, s70, 16384")
    e(f"s_add_u32 s91, s70, {XWREG}")

    wstep = [0]

    def wdma(u, aug=False):
        g = []
        nt = " nt" if (opt.get("ntw", 1) == 2 or (opt.get("ntw", 1) == 1 and wstep[0] < NCS)) else ""
        wstep[0] += 1
        if aug:
            g.append([f"s_add_u32 m0, s71, {u*16384}", "s_nop 0", f"buffer_load_dwordx4 v28, {R_MI}, 0 offen sc1 lds"])
            g.append([f"buffer_load_dwordx4 v28, {R_MI}, 0 offen offset:1024 sc1 lds"])
            g.append([f"s_add_u32 m0, s71, {u*16384+8192}", "s_movk_i32 s78, 6144", f"buffer_load_dwordx4 v28, {R_MI}, s78 offen sc1 lds"])
            g.append([f"buffer_load_dwordx4 v28, {R_MI}, s78 offen offset:1024 sc1 lds"])
            return g
        g.append([f"s_add_u32 m0, s71, {u*16384}", "s_nop 0", f"buffer_load_dwordx4 v3, {R_WG}, s72 offen{nt} lds"])
        g.append([f"buffer_load_dwordx4 v3, {R_WG}, s73 offen offset:1024{nt} lds"])
        g.append([f"s_add_u32 m0, s71, {u*16384+8192}", "s_nop 0", f"buffer_load_dwordx4 v3, {R_WU}, s72 offen{nt} lds"])
        g.append([f"buffer_load_dwordx4 v3, {R_WU}, s73 offen offset:1024{nt} lds", f"s_add_u32 s72, s72, {WSTEP}"])
        g.append([f"s_cmp_eq_u32 s72, {32*WSTEP}", "s_cselect_b32 s72, 0, s72", "s_add_u32 s73, s72, 27648"])
        return g

    def xdma(hf):
        g = []
        if hf == 0:
            g.append(["s_mov_b32 m0, s76", "s_nop 0", f"buffer_load_dwordx4 v4, {R_X}, s77 offen lds"])
            so = "s77"
        else:
            g.append(["s_add_u32 m0, s76, 4096", "s_add_u32 s79, s77, 0x10000", f"buffer_load_dwordx4 v4, {R_X}, s79 offen lds"])
            so = "s79"
        for q in range(1, 4):
            g.append([f"buffer_load_dwordx4 v{4+q}, {R_X}, {so} offen offset:{1024*q} lds"])
        if hf == 1:
            g[-1] += ["s_add_u32 s77, s77, 128", "s_and_b32 s77, s77, 0x7ff"]
            g.append(["s_add_u32 s76, s76, 8192", "s_cmp_eq_u32 s76, s91", "s_cselect_b32 s76, s70, s76"])
        return g

    def flat(gs):
        for g in gs:
            for x in g:
                e(x)

    e.wait(lg=0)
    XS = 224
    flat(wdma(0)); flat(xdma(0)); flat(xdma(1)); e.mark("w0", "v")
    flat(wdma(1)); e.mark("w1", "v")
    for j in range(4):
        e(f"buffer_load_dwordx4 {v(XS+4*j,4)}, v41, {R_X}, 0 offen offset:{512*j}", tag="xs")
    for reg, size in ((52, S * D * 2), (56, S * D * 2)):
        e(f"s_mov_b32 s{reg+2}, 0x{size:x}")
        e(f"s_mov_b32 s{reg+3}, 0x20000")
    e("s_and_b32 s4, s2, 31")
    e("s_lshr_b32 s5, s2, 5")
    e("s_lshl_b32 s78, s4, 17")
    e("s_lshl_b32 s79, s5, 8")
    e("s_add_u32 s78, s78, s79")
    e("s_lshl_b32 s79, s64, 6")
    e("s_add_u32 s78, s78, s79")
    e("v_and_b32 v52, 3, v0")
    e("v_lshrrev_b32 v248, 2, v0")
    e("v_lshlrev_b32 v248, 13, v248")
    e("v_lshl_add_u32 v248, v52, 4, v248")
    e("v_add_u32 v248, s78, v248")
    e("v_add_u32 v249, 0xffffe000, v248")
    e("v_add_u32 v250, 0xfffff000, v248")
    e("v_add_u32 v251, 0x1000, v248")
    KR, VR, WR = [212 + 4 * i for i in range(7)], [240 + 4 * i for i in range(4)], [144 + 4 * i for i in range(4)]
    kaddr = [(249, 2048), (250, 0), (250, 2048), (248, 0), (248, 2048), (251, 0), (251, 2048)]
    ntk = " nt" if opt.get("ntkv", 1) else ""
    kvl = [[f"buffer_load_dwordx4 {a(VR[i],4)}, v{r}, {R_V}, 0 offen offset:{o}{ntk}"] for i, (r, o) in enumerate(kaddr[3:])]
    kvl += [[f"buffer_load_dwordx4 {a(KR[i],4)}, v{r}, {R_K}, 0 offen offset:{o}{ntk}"] for i, (r, o) in enumerate(kaddr)]
    kvl[-1].append(lambda: e.mark("kv", "v"))
    for reg, size in ((28, D * S * 2), (40, 256), (44, F * D * 2), (48, S * D * 2), (60, D * 8)):
        e(f"s_mov_b32 s{reg+2}, 0x{size:x}")
        e(f"s_mov_b32 s{reg+3}, 0x20000")
    wsr = [(20, H_OFF, H_SIZE), (24, UR_OFF, UR_SIZE), (32, ZT_OFF, ZT_SIZE), (36, MISC_OFF, MISC_SIZE)]
    if STAMPS:
        wsr.append((92, STAMP_OFF, 1 << 20))
    for reg, off, size in wsr:
        e(f"s_add_u32 s{reg}, s88, 0x{off:x}")
        e(f"s_addc_u32 s{reg+1}, s89, 0")
        e(f"s_mov_b32 s{reg+2}, 0x{size:x}")
        e(f"s_mov_b32 s{reg+3}, 0x20000")
    if STAMPS:
        e("s_lshl_b32 s100, s2, 2")
        e("s_add_u32 s100, s100, s64")
        e("s_lshl_b32 s100, s100, 7")
        e("v_mov_b32 v30, s96")
        e("v_mov_b32 v31, s98")
        e("buffer_store_dwordx2 v[30:31], off, s[92:95], s100")
    e("s_lshl_b32 s69, s2, 2")
    e("s_add_u32 s69, s69, s64")
    e("s_lshr_b32 s78, s69, 1")
    e("s_lshl_b32 s78, s78, 2")
    e("s_load_dword s90, s[86:87], s78")
    e("s_lshr_b32 s67, s6, 1")
    e("s_lshl_b32 s67, s67, 2")
    e("s_and_b32 s78, s7, 3")
    e("s_add_u32 s67, s67, s78")
    e("s_and_b32 s68, s6, 1")
    e("s_lshl_b32 s68, s68, 3")
    e("s_lshr_b32 s78, s7, 2")
    e("s_add_u32 s68, s68, s78")
    e("s_mul_i32 s78, s66, 12288")
    e(f"s_add_u32 s78, s78, {CS_REL}")
    e("s_cmp_eq_u32 s64, 3")
    e("s_cselect_b32 s78, 0x80000000, s78")
    e("v_add_u32 v28, s78, v28")
    e("v_bfe_u32 v24, v0, 2, 2")
    e("v_and_b32 v25, 3, v0")
    e("v_lshl_add_u32 v26, v22, 3, v24")
    e("v_lshlrev_b32 v26, 8, v26")
    e("v_lshl_add_u32 v26, v25, 3, v26")
    e(f"v_add_u32 v26, {WB}, v26")
    e("v_and_b32 v27, 1, v22")
    e("v_lshl_or_b32 v27, v27, 2, v24")
    for t in range(7):
        e(f"v_xor_b32 v1, {t}, v27")
        e(f"v_lshl_add_u32 v{8+t}, v1, 5, v26")
    e("s_lshr_b32 s78, s64, 1")
    e("s_lshl_b32 s78, s78, 13")
    e("v_add_u32 v26, s78, v26")
    e("s_and_b32 s78, s64, 1")
    e("s_lshl_b32 s78, s78, 2")
    e("v_xor_b32 v27, s78, v27")
    for q in range(4):
        e(f"v_xor_b32 v1, {q}, v27")
        e(f"v_lshl_add_u32 v{18+q}, v1, 5, v26")
    e("v_and_b32 v24, 15, v0")
    e("v_lshrrev_b32 v25, 1, v24")
    e("v_xor_b32 v25, v25, v22")
    e("v_lshlrev_b32 v15, 7, v24")
    e("v_lshl_add_u32 v15, v25, 4, v15")
    e("v_add_u32 v15, s70, v15")
    e("v_xor_b32 v16, 64, v15")
    e("v_and_b32 v24, 3, v0")
    if ROT == 4:
        e("s_bitcmp1_b32 s65, 0")
        e("s_cselect_b32 s78, 0, 0x3f803f80")
        e("v_mov_b32 v25, s78")
    else:
        e("v_mov_b32 v25, 0x3f803f80")
    for q in range(4):
        e(f"v_cmp_eq_u32 vcc, {q}, v24")
        e("s_nop 1")
        e("v_cndmask_b32 v26, 0, v25, vcc")
        for r in range(4):
            e(f"v_accvgpr_write_b32 a{CSS+4*q+r}, v26")
    e("s_lshl_b32 s78, s65, 5")
    e("s_add_u32 s78, s78, s66")
    e("s_lshl_b32 s78, s78, 2")
    e(f"s_add_u32 s80, s78, {HF_REL}")
    e("s_lshl_b32 s78, s2, 2")
    e(f"s_add_u32 s81, s78, {ZF_REL}")
    e("v_lshlrev_b32 v48, 10, v29")
    e(f"v_add_u32 v48, s81, v48")
    e("v_mov_b32 v47, s80")
    e("v_cmp_eq_u32 vcc, 2, v29")
    e("v_mov_b32 v45, 0x80000000")
    e("v_mov_b32 v46, 0")
    e("v_cndmask_b32 v48, v48, v47, vcc")
    e("v_cmp_gt_u32 vcc, 3, v29")
    e("s_lshl_b32 s78, s2, 6")
    e("v_lshlrev_b32 v49, 3, v39")
    e("v_cndmask_b32 v48, v45, v48, vcc")
    e("v_add_u32 v49, s78, v49")
    e("v_cmp_eq_u32 vcc, 0, v40")
    e(f"buffer_store_dword v46, v48, {R_MI}, 0 offen sc1")
    e("s_nop 0")
    e("v_cndmask_b32 v244, v45, v49, vcc")
    stamp(e, 1)

    flat(xdma(0)); flat(xdma(1)); flat(wdma(2)); e.mark("w2", "v")
    e.need("w0")
    e.wait(lg=0)
    e("s_barrier")
    stamp(e, 2)

    def ared(r, tmp):
        o = []
        for m in ("quad_perm:[1,0,3,2]", "quad_perm:[2,3,0,1]", "row_half_mirror", "row_mirror"):
            o += ["s_nop 1", f"v_add_f32_dpp v{r}, v{r}, v{r} {m} row_mask:0xf bank_mask:0xf"]
        o += [f"v_mov_b32 v{tmp}, v{r}", "s_nop 1", f"v_permlane16_swap_b32 v{r}, v{tmp}", "s_nop 1", f"v_add_f32 v{r}, v{r}, v{tmp}"]
        return o
    rb = lambda r: [f"v_cvt_pk_bf16_f32 v{r}, v{r}, v{r}", f"v_lshlrev_b32 v{r}, 16, v{r}"]
    sts = [f"v_lshlrev_b32 v240, 16, v{XS}", f"v_and_b32 v241, 0xffff0000, v{XS}"]
    for i in range(1, 16):
        sts += [f"v_lshlrev_b32 v242, 16, v{XS+i}", f"v_and_b32 v243, 0xffff0000, v{XS+i}",
                "v_add_f32 v240, v240, v242", "v_add_f32 v241, v241, v243"]
    sts += ["v_add_f32 v246, v240, v241"] + ared(246, 242) + ["v_mul_f32 v246, 0xba800000, v246"]
    for i in range(16):
        sts += [f"v_lshlrev_b32 v242, 16, v{XS+i}", f"v_and_b32 v243, 0xffff0000, v{XS+i}",
                "v_add_f32 v242, v242, v246", "v_add_f32 v243, v243, v246"]
        sts += (["v_mul_f32 v240, v242, v242", "v_mul_f32 v241, v243, v243"] if i == 0 else
                ["v_fmac_f32 v240, v242, v242", "v_fmac_f32 v241, v243, v243"])
    sts += ["v_add_f32 v247, v240, v241"] + ared(247, 242) + ["v_mul_f32 v247, 0x3a800000, v247"] + rb(247)
    sts += ["v_add_f32 v247, 0x3727c5ac, v247"] + rb(247) + ["v_sqrt_f32 v247, v247"] + rb(246) + rb(247)
    sts += ["v_rcp_f32 v247, v247", "s_nop 0"]
    st_store = [f"buffer_store_dwordx2 v[246:247], v244, {R_MI}, 0 offen offset:{ST_REL} sc1"]

    def reads(step_u, fs, cs=False, do_b=True):
        fa = FA[fs]
        al = []
        for ai in range(14):
            for h in range(2):
                al.append(f"ds_read_b64_tr_b16 {a(fa+4*ai+2*h,2)}, v{8+ai%7} offset:{step_u*16384 + (ai//7)*8192 + h*1024}")
        bl = [f"ds_read_b128 {a(fa+56+4*j,4)}, v17 offset:{2048*j}" for j in range(4)] if do_b else []
        cl = []
        if cs:
            for q in range(4):
                for h in range(2):
                    cl.append(f"ds_read_b64_tr_b16 {a(CSF+4*q+2*h,2)}, v{18+q} offset:{step_u*16384 + h*1024}")
        return bl + al + cl

    def mfmas(fs, first=False):
        fa = FA[fs]
        return [f"{MF} {accr(ai,j)}, {a(fa+4*ai,4)}, {a(fa+56+4*j,4)}, {'0' if first else accr(ai,j)}"
                for ai in range(14) for j in range(4)]

    e("s_movk_i32 s75, 16384")
    e("v_add_u32 v17, s75, v15")
    for x in reads(0, 0, cs=True):
        e(x)
    flat(wdma(3)); e.mark("w3", "v")
    flat(xdma(0))

    def body(i, wd=True, xd=True, rd=True, cs_m=False, cs_r=False, extra=None, pre=None, aug_w=False, do_b=True,
             vm=None, side=None, side0=12, needs=()):
        u = i & 3
        fs = i & 1
        if vm is None:
            tags = [t_ for t_ in [f"it{i-3}"] + list(needs) if t_ in e.tag]
            vm = min(63, e.vm - max(e.tag[t_][1] for t_ in tags))
        e.wait(vm=vm, lg=0)
        e("s_barrier")
        if pre:
            pre()
        mf = mfmas(fs, first=(i == 0))
        if cs_m:
            cm = [f"{MF} {a(CSA,4)}, {a(CSF+4*q,4)}, {a(CSS+4*q,4)}, {'0' if (i == 0 and q == 0) else a(CSA,4)}" for q in range(4)]
            mf = cm + mf
        slots = {}
        groups = []
        if xd:
            groups += xdma(1 - (i & 1))
        if wd:
            groups += wdma(u, aug_w)
        groups.append([lambda: e.mark(f"it{i}", "v")])
        if extra:
            groups += extra
        isb = lambda x: isinstance(x, str) and x.startswith("buffer_")
        heavy = [any(isb(x) for x in g) for g in groups]
        nh = max(1, sum(heavy))
        sp = max(1.0, min(7.0, (len(mf) - 5.0) / nh))
        taken = set()
        pos = 2.0
        nxt = 3.0
        for g, hv in zip(groups, heavy):
            if hv:
                pos = max(pos + 1, nxt)
                nxt = pos + sp
                taken.add(int(pos))
            elif not callable(g[0]):
                pos += 1
            slots.setdefault(int(pos), []).extend(g)
        if rd:
            hk = (i + 1) & 1
            if do_b:
                if hk == 0:
                    slots[0] = ["s_add_u32 s75, s75, 8192", f"s_cmp_eq_u32 s75, {XWREG}", "s_cselect_b32 s75, 0, s75"]
                    slots[1] = ["v_add_u32 v17, s75, v15"]
                    taken.add(0)
                else:
                    slots[1] = ["v_add_u32 v17, s75, v16"]
            rl = reads((u + 1) & 3, 1 - fs, cs_r, do_b)
            if do_b:
                rl = rl[4:8] + rl[:4] + rl[8:]
            pos = 0 if not cs_m else 1
            for x in rl:
                while pos in taken and pos < 44:
                    pos += 1
                slots[pos] = [x] + slots.get(pos, [])
                pos += 1
        if side:
            room = len(mf) - side0
            for k, x in enumerate(side):
                slots.setdefault(side0 + (k * room) // len(side), []).append(x)
        merge(e, mf, slots)

    C = 224
    cs = [f"v_accvgpr_read_b32 v{C+r}, a{CSA+r}" for r in range(4)]
    cs += [f"v_cvt_pk_bf16_f32 v{C+4}, v{C}, v{C+1}", f"v_cvt_pk_bf16_f32 v{C+5}, v{C+2}, v{C+3}",
           f"v_lshlrev_b32 v{C+6}, 16, v{C+4}", f"v_and_b32 v{C+7}, 0xffff0000, v{C+4}",
           f"v_lshlrev_b32 v{C+8}, 16, v{C+5}", f"v_and_b32 v{C+9}, 0xffff0000, v{C+5}"]
    cs += [f"v_sub_f32 v{C+r}, v{C+r}, v{C+6+r}" for r in range(4)]
    cs += ["v_bfe_u32 v1, v0, 2, 2", "v_cmp_eq_u32 vcc, 1, v1",
           f"v_cvt_pk_bf16_f32 v{C+10}, v{C}, v{C+1}", f"v_cvt_pk_bf16_f32 v{C+11}, v{C+2}, v{C+3}",
           f"v_cndmask_b32 v{C+4}, v{C+4}, v{C+10}, vcc", f"v_cndmask_b32 v{C+5}, v{C+5}, v{C+11}, vcc",
           f"v_lshlrev_b32 v{C+6}, 16, v{C+10}", f"v_and_b32 v{C+7}, 0xffff0000, v{C+10}",
           f"v_lshlrev_b32 v{C+8}, 16, v{C+11}", f"v_and_b32 v{C+9}, 0xffff0000, v{C+11}"]
    cs += [f"v_sub_f32 v{C+r}, v{C+r}, v{C+6+r}" for r in range(4)]
    cs += ["v_cmp_eq_u32 vcc, 2, v1",
           f"v_cvt_pk_bf16_f32 v{C+10}, v{C}, v{C+1}", f"v_cvt_pk_bf16_f32 v{C+11}, v{C+2}, v{C+3}",
           f"v_cndmask_b32 v{C+4}, v{C+4}, v{C+10}, vcc", f"v_cndmask_b32 v{C+5}, v{C+5}, v{C+11}, vcc"]
    csa = ["s_mul_i32 s3, s66, 12288", "s_lshr_b32 s6, s64, 1", "s_mul_i32 s6, s6, 6144", "s_add_u32 s3, s3, s6",
           *(["s_lshr_b32 s6, s65, 1", "s_lshl_b32 s6, s6, 8", "s_add_u32 s3, s3, s6", "s_and_b32 s6, s65, 1",
              "s_lshl_b32 s6, s6, 10", "s_add_u32 s3, s3, s6"] if ROT == 4 else ["s_lshl_b32 s6, s65, 8", "s_add_u32 s3, s3, s6"]),
           "s_and_b32 s6, s64, 1", "s_lshl_b32 s6, s6, 7",
           "s_add_u32 s3, s3, s6", f"s_add_u32 s3, s3, {CS_REL}",
           "v_bfe_u32 v1, v0, 2, 2", f"v_lshlrev_b32 v{C+12}, 11, v1", f"v_and_b32 v{C+13}, 3, v0",
           f"v_lshl_add_u32 v{C+12}, v{C+13}, 5, v{C+12}", f"v_lshrrev_b32 v{C+13}, 4, v0",
           f"v_lshl_add_u32 v{C+12}, v{C+13}, 3, v{C+12}", "v_cmp_eq_u32 vcc, 3, v1", f"v_mov_b32 v{C+13}, 0x80000000",
           f"v_add_u32 v{C+12}, s3, v{C+12}", f"v_cndmask_b32 v{C+12}, v{C+12}, v{C+13}, vcc"]
    cs_store = [f"buffer_store_dwordx2 {v(C+4,2)}, v{C+12}, {R_MI}, 0 offen sc1"]
    kva = ["v_and_b32 v26, 3, v0", "v_lshlrev_b32 v22, 3, v26", "v_lshlrev_b32 v26, 6, v26",
           "s_lshl_b32 s74, s5, 10", "s_lshl_b32 s3, s64, 8", "s_add_u32 s74, s74, s3",
           "s_lshr_b32 s3, s74, 3", "v_add_u32 v22, s3, v22", f"v_mul_u32_u24 v22, {UR_PITCH}, v22",
           "v_lshrrev_b32 v23, 2, v0", "v_lshlrev_b32 v23, 3, v23", "v_sub_u32 v22, v22, v23",
           "s_lshl_b32 s6, s4, 7", "s_sub_u32 s6, 4088, s6", "v_add_u32 v22, s6, v22",
           "s_lshl_b32 s3, s5, 7", "v_add_u32 v23, s3, v29", f"v_mul_u32_u24 v23, {UR_PITCH}, v23",
           "v_add_u32 v23, 0x1000, v23", "s_lshl_b32 s6, s4, 8", "v_add_u32 v24, s6, v29", "s_movk_i32 s6, 128",
           "v_cmp_gt_u32 vcc, s6, v24", "v_mov_b32 v25, 0x80000000", "s_nop 0", "v_cndmask_b32 v23, v25, v23, vcc"]
    wl = [[f"buffer_load_dwordx4 {a(WR[i],4)}, v26, {R_SH}, s74 offen offset:{16*i}"] for i in range(4)]
    assert NCS == 4
    q4 = -(-len(sts) // 4)
    sides = {0: kva, 1: sts[:q4], 2: sts[q4:2*q4], 3: sts[2*q4:3*q4], 4: sts[3*q4:], 5: csa, 6: cs}
    extras = {4: wl, 5: [st_store], 7: [cs_store]}
    KVI = opt.get("kvi", 8)
    KVB = opt.get("kvb", 12)
    extras[KVI] = extras.get(KVI, []) + kvl
    for i in range(KVB):
        tg = {0: "w1", 1: "w2", 2: "w3"}.get(i)
        vmi = min(63, e.vm - e.tag[tg][1]) if tg else None
        body(i, cs_m=(i < NCS), cs_r=(i < NCS - 1), vm=vmi, side=sides.get(i), side0=2, extra=extras.get(i))
        if i == 3:
            stamp(e, 12)
    stamp(e, 14)
    e.need("kv")
    e.c("kv tile: short conv * v, packed along (reversed) time")
    WF, KF, VF, TMP = 224, [232 + 2 * i for i in range(7)], 246, 1
    OUT = [248, 250, 252, 254, 24, 26, 18, 20]
    for p in range(4):
        for h in range(2):
            for d in range(2):
                e(f"v_accvgpr_read_b32 v{TMP}, a{WR[p]+2*h+d}")
                e(f"v_lshlrev_b32 v{WF+4*d+h}, 16, v{TMP}")
                e(f"v_and_b32 v{WF+4*d+2+h}, 0xffff0000, v{TMP}")
        for i in range(7):
            e(f"v_accvgpr_read_b32 v{TMP}, a{KR[i]+p}")
            unpack(e, KF[i], TMP)
        for i in range(4):
            e(f"v_accvgpr_read_b32 v{TMP}, a{VR[i]+p}")
            e(f"v_pk_mul_f32 {v(KF[i],2)}, {v(KF[i],2)}, {v(WF+6,2)}")
            unpack(e, VF, TMP)
            for j in (2, 1, 0):
                e(f"v_pk_fma_f32 {v(KF[i],2)}, {v(KF[i+3-j],2)}, {v(WF+2*j,2)}, {v(KF[i],2)}")
            e(f"v_pk_mul_f32 {v(KF[i],2)}, {v(KF[i],2)}, {v(VF,2)}")
        for h in range(2):
            ch = 2 * p + h
            o = OUT[ch]
            e(f"v_cvt_pk_bf16_f32 v{o}, v{KF[3]+h}, v{KF[2]+h}")
            e(f"v_cvt_pk_bf16_f32 v{o+1}, v{KF[1]+h}, v{KF[0]+h}")
            e(f"s_mov_b32 s3, {ch*UR_PITCH}")
            e(f"buffer_store_dwordx2 {v(o,2)}, v22, {R_UR}, s3 offen sc1")
    for i in range(4):
        e(f"v_mov_b32 v{WF+i}, 0")
    e(f"buffer_store_dwordx4 {v(WF,4)}, v23, {R_UR}, 0 offen sc1")
    stamp(e, 15)
    for i in range(KVB, 12):
        body(i)
    e("s_mov_b32 s82, 0")
    e.label("L_g1_loop")
    for i in range(12, 16):
        body(i, vm=16)
    e("s_cmp_lg_u32 s82, 0")
    e("s_cbranch_scc1 L_f0_nosig")
    signal(e, "f0", f"buffer_atomic_add v1, off, {R_DB}, 0 sc1")
    e("s_add_u32 s82, s82, 1")
    e("s_cmp_lt_u32 s82, 3")
    e("s_cbranch_scc1 L_g1_loop")
    for k in range(3):
        e.tag[f"it{21+k}"] = e.tag[f"it{13+k}"]
    e.vm_done = 0
    stamp(e, 13)

    def poll(loadins, cond, lab):
        e("s_mov_b32 s82, 0")
        e.label(f"L_{lab}_chk")
        cond()
        e(f"s_cbranch_scc1 L_{lab}_ok")
        e("s_sleep 1")
        e.l.append("    " + loadins)
        e.l.append("    s_waitcnt vmcnt(0)")
        e("s_add_u32 s82, s82, 1")
        e(f"s_cmp_lt_u32 s82, {SPIN_LIMIT}")
        e(f"s_cbranch_scc1 L_{lab}_chk")
        e.label(f"L_{lab}_ok")

    f0_load = f"buffer_load_dword v18, off, {R_DB}, 0 sc1"

    def f0_cond():
        e("v_readfirstlane_b32 s78, v18")
        e("s_nop 1")
        e("s_cmp_ge_u32 s78, 256")

    def I(s_, tag=None):
        return lambda: e(s_, tag=tag)

    def urdma(c):
        g = [[f"s_add_u32 m0, s70, {c*CV_CP}", f"s_add_u32 s79, s83, {2*c}", f"buffer_load_dwordx4 v2, {R_UR}, s79 offen sc1 lds"]]
        g += [[f"buffer_load_dwordx4 v2, {R_UR}, s79 offen offset:{1024*q} sc1 lds"] for q in range(1, 4)]
        g[-1].append(lambda: e.mark(f"ur{c}", "v"))
        return g

    body(24)
    body(25, extra=[[f0_load, lambda: e.mark("f0", "v")]])
    body(26, side=["v_and_b32 v19, 15, v0", "v_lshlrev_b32 v19, 3, v19",
                   "s_lshl_b32 s85, s65, 11", "s_lshl_b32 s3, s64, 9", "s_add_u32 s85, s85, s3",
                   f"s_mul_i32 s83, s69, {UR_PITCH}", "s_lshl_b32 s84, s69, 12"])
    stl = [[f"buffer_load_dwordx2 {v(20+2*j,2)}, v19, {R_MI}, s85 offen offset:{ST_REL+128*j} sc1"] for j in range(4)]
    stl[-1].append(lambda: e.mark("st", "v"))
    body(27, xd=False)
    body(28, xd=False, aug_w=True, pre=lambda: poll(f0_load, f0_cond, "f0"), extra=stl, needs=["f0"])
    body(29, xd=False, wd=False, extra=urdma(0) + urdma(2))
    body(30, xd=False, wd=False,
         side=["v_and_b32 v3, 15, v0", "v_lshrrev_b32 v28, 4, v0",
               "v_lshrrev_b32 v4, 2, v3", f"v_mul_u32_u24 v4, {CV_CP}, v4", "v_and_b32 v6, 3, v0",
               "v_lshl_add_u32 v4, v6, 4, v4", "v_add_u32 v4, 4096, v4", f"v_add_u32 v5, {CV_HZ}, v2",
               "v_cmp_gt_u32 vcc, 32, v0", "v_add_u32 v29, s70, v2", "v_mov_b32 v248, 0", "v_mov_b32 v249, 0",
               "v_cndmask_b32 v5, v4, v5, vcc", "v_add_u32 v5, s70, v5", "v_mov_b32 v250, 0", "v_mov_b32 v251, 0"])
    hd = [[f"s_add_u32 m0, s70, {CV_H}", "s_nop 0", f"buffer_load_dwordx4 v2, {R_SK}, s84 offen lds"]]
    hd += [[f"buffer_load_dwordx4 v2, {R_SK}, s84 offen offset:{1024*q} lds"] for q in range(1, 4)]
    hd[-1].append(lambda: e.mark("hk", "v"))
    hd = [[x.replace(" lds", " nt lds") if isinstance(x, str) else x for x in g] for g in hd]
    wdpf = [["s_mul_i32 s74, s69, 7168"]]
    wdpf += [[f"buffer_load_dwordx4 a[252:255], v2, {R_WD}, s74 offen offset:{1024*(q&3)}"] + (["s_add_u32 s74, s74, 4096"] if q == 3 else []) for q in range(7)]
    WPF = opt.get("wpf", 31)
    if WPF == 31:
        hd += wdpf
    bb = ["v_cmp_gt_u32 vcc, 48, v0", "ds_write_b128 v5, v[248:251]"]
    for j in range(4):
        bb += [f"v_lshrrev_b32 v1, 16, v{20+2*j}", f"v_or_b32 v1, v1, v{20+2*j}", "v_cndmask_b32 v1, 0, v1, vcc"]
        bb += [f"v_accvgpr_write_b32 a{FA[0]+56+4*j+r}, v1" for r in range(4)]
    for j in range(4):
        bb += [f"v_mul_f32 v{20+2*j}, 0xbfb8aa3b, v{21+2*j}", f"v_mul_f32 v{21+2*j}, v{21+2*j}, v{21+2*j}",
               f"v_rcp_f32 v{21+2*j}, v{21+2*j}"]
    body(31, xd=False, wd=False, do_b=False, extra=hd, side=bb, side0=4, needs=["st"])
    TB = [224, 236]
    def odr(q):
        b = TB[q & 1]
        return [I(f"ds_read_b128 {v(b,4)}, v29 offset:{1024*q}"),
                I(f"ds_read_b128 {v(b+4,4)}, v29 offset:{2*CV_CP+1024*q}"),
                I(f"ds_read_b32 v{b+8}, v29 offset:{2*CV_CP+1024*q+16}", tag=f"od{q}")]
    def odc(q):
        b = TB[q & 1]
        r = [lambda: e.need(f"od{q}")]
        r += [I(f"v_alignbit_b32 v{b+i}, v{b+4+i}, v{b+i}, 16") for i in range(4)]
        r.append(I(f"ds_write_b128 v29, {v(b,4)} offset:{CV_CP+1024*q}"))
        r += [I(f"v_alignbit_b32 v{b+4+i}, v{b+5+i}, v{b+4+i}, 16") for i in range(4)]
        r.append(I(f"ds_write_b128 v29, {v(b+4,4)} offset:{3*CV_CP+1024*q}"))
        return r
    ha = ["s_lshl_b32 s3, s65, 4", "s_lshl_b32 s6, s64, 2", "s_add_u32 s3, s3, s6",
          f"s_mul_i32 s3, s3, {H_SB}", "s_mul_i32 s6, s66, 7", "s_add_u32 s6, s6, 1",
          "s_lshr_b32 s6, s6, 1", "s_lshl_b32 s6, s6, 10", "s_add_u32 s3, s3, s6",
          "v_add_u32 v18, s3, v2", "s_movk_i32 s6, 3072", "s_bitcmp1_b32 s66, 0",
          "s_cselect_b32 s6, 0xfffffc08, s6", "v_add_u32 v19, s6, v18"]
    ca = ["v_and_b32 v4, 3, v3", "v_sub_u32 v4, 3, v4", f"v_mul_u32_u24 v16, {CV_CP}, v4",
          "v_and_b32 v4, 12, v3", "v_lshlrev_b32 v4, 1, v4", "v_sub_u32 v16, v16, v4",
          "v_lshl_add_u32 v16, v28, 4, v16", f"s_add_u32 s3, s70, {2*2028 - 3584}", "v_add_u32 v16, s3, v16",
          "v_lshlrev_b32 v17, 5, v3", "v_lshl_add_u32 v17, v28, 4, v17", f"s_add_u32 s3, s70, {CV_H - 32}",
          "v_add_u32 v17, s3, v17"]
    seq = odr(0) + odr(1) + ha + odc(0) + odr(2) + odc(1) + odr(3) + ca[:6] + odc(2) + ca[6:] + odc(3)
    body(32, xd=False, wd=False, rd=False, side=seq, side0=0, needs=["ur2"])
    stamp(e, 3)

    e.c("SwiGLU epilogue")

    def swiglu(g, u, tmp, out, kc):
        for q in range(2):
            e(f"v_pk_mul_f32 {v(tmp+2*q,2)}, {v(g+2*q,2)}, {v(kc,2)} op_sel_hi:[1,0]")
        for q in range(4):
            e(f"v_exp_f32 v{tmp+q}, v{tmp+q}")
        for q in range(2):
            e(f"v_pk_mul_f32 {v(g+2*q,2)}, {v(g+2*q,2)}, {v(u+2*q,2)}")
        for q in range(2):
            e(f"v_pk_fma_f32 {v(tmp+2*q,2)}, {v(tmp+2*q,2)}, {v(kc,2)}, {v(kc,2)} op_sel:[0,1,1] op_sel_hi:[1,1,1]")
        for q in (2, 3, 0, 1):
            e(f"v_rcp_f32 v{tmp+q}, v{tmp+q}")
        for q in (1, 0):
            e(f"v_pk_mul_f32 {v(g+2*q,2)}, {v(g+2*q,2)}, {v(tmp+2*q,2)}")
        for q in (1, 0):
            e(f"v_cvt_pk_bf16_f32 v{out+q}, v{g+2*q}, v{g+2*q+1}")

    def cv_reads(fs):
        o = 64 * fs
        r = []
        for i in range(8):
            r.append(f"ds_read_b128 {a(o+32+4*i,4)}, v17 offset:{512*i}")
            r.append(f"ds_read_b64 {a(o+4*i,2)}, v16 offset:{(7-i)*512}")
            r.append(f"ds_read_b64 {a(o+4*i+2,2)}, v16 offset:{(7-i)*512+8}")
        r += ["v_subrev_u32 v16, 64, v16", "v_subrev_u32 v17, 64, v17"]
        return r

    e("s_nop 4")
    n = 0
    for j in range(4):
        e(f"s_mov_b32 s78, {j*H_SB}")
        for i in range(4):
            o = 8 + 4 * (n & 1)
            if i < 3:
                for k in range(2):
                    t_ = 2 * i + k
                    swiglu(acc(t_, j), acc(7 + t_, j), 4, o + 2 * k, 20 + 2 * j)
                e(f"buffer_store_dwordx4 {v(o,4)}, v18, {R_H}, s78 offen offset:{1024*i} sc1", tag="hst")
            else:
                for r in range(4):
                    e(f"v_accvgpr_read_b32 v{248+r}, a{AC6+4*j+r}")
                    e(f"v_accvgpr_read_b32 v{252+r}, a{AC6+16+4*j+r}")
                swiglu(248, 252, 4, o, 20 + 2 * j)
                e(f"buffer_store_dwordx2 {v(o,2)}, v19, {R_H}, s78 offen sc1", tag="hst")
            n += 1
        if j == opt.get("cvj", 3):
            e.need("hk")
            for x in cv_reads(0):
                e(x)
    if WPF == 33:
        flat(wdpf)
    stamp(e, 4)

    e.c("long conv")
    CA = 32

    def cv_mfmas(fs, first):
        o = 64 * fs
        prs = [(p, w) for p in range(8) for w in range(8) if p + w <= 7]
        return [f"{MF} {v(CA+4*(p+w),4)}, {a(o+4*p,4)}, {a(o+32+4*w,4)}, {'0' if (first and p == 0) else v(CA+4*(p+w),4)}"
                for p, w in prs]

    def cv_body(r, rd=True, extra=None, early=None):
        fs = r & 1
        e.wait(lg=0)
        slots = {}
        if early:
            slots[0] = list(early)
        if rd:
            for k, x in enumerate(cv_reads(1 - fs)):
                slots.setdefault(k, []).append(x)
        if extra:
            for k, g in enumerate(extra):
                slots.setdefault(k * 2 if not rd else 26 + k, []).extend(g)
        merge(e, cv_mfmas(fs, r == 0), slots)

    G_H, G_WD, G_TR = 192, 200, 204
    g2s = [["s_lshl_b32 s72, s64, 1", "s_lshl_b32 s73, s67, 3"],
           ["v_lshrrev_b32 v6, 3, v0", "v_bfe_u32 v7, v0, 1, 2"],
           ["v_xor_b32 v7, v7, v28", "v_and_b32 v4, 1, v0"],
           [f"v_lshlrev_b32 v{G_WD}, 11, v6", f"v_lshl_add_u32 v{G_WD}, v7, 5, v{G_WD}"],
           [f"v_lshl_add_u32 v{G_WD}, v4, 4, v{G_WD}", "s_lshl_b32 s87, s68, 7"],
           [f"v_add_u32 v{G_WD}, s87, v{G_WD}", f"v_add_u32 v{G_WD+1}, 15360, v{G_WD}"],
           [f"v_add_u32 v{G_WD+2}, 30720, v{G_WD}", f"v_add_u32 v{G_WD+3}, 46080, v{G_WD}"],
           ["s_lshl_b32 s71, s64, 14", f"s_add_u32 s71, s71, {WB}", "v_bfe_u32 v6, v0, 2, 2"],
           ["s_lshl_b32 s75, s64, 10", "s_lshl_b32 s76, s64, 16"],
           ["v_and_b32 v7, 3, v0", "v_lshl_add_u32 v6, v28, 2, v6"],
           ["v_bfe_u32 v4, v6, 1, 2", "v_lshlrev_b32 v6, 7, v6"],
           ["v_lshl_add_u32 v6, v7, 3, v6", "v_add_u32 v6, s71, v6"]]
    for dt in range(4):
        g2s.append([f"v_xor_b32 v7, {dt}, v4", f"v_lshl_add_u32 v{G_TR+dt}, v7, 5, v6"])
    g2s.append(["v_and_b32 v23, 31, v0", "v_lshlrev_b32 v23, 2, v23"])
    g2s.append(["s_lshr_b32 s77, s67, 1", "s_lshl_b32 s77, s77, 7", f"s_add_u32 s77, s77, {HF_REL}"])
    for jj in range(8):
        g2s.append([f"s_add_u32 s78, s72, {jj}", "s_and_b32 s78, s78, 7", "s_add_u32 s78, s78, s73"])
        g2s.append([f"s_mul_i32 s78, s78, {H_SB}", f"v_add_u32 v{G_H+jj}, s78, v2"])

    def g2dma(slot):
        r = [[f"s_add_u32 m0, s71, {slot*4096}", "s_nop 0", f"buffer_load_dwordx4 v{G_WD}, {R_WD}, s76 offen lds"]]
        for jj in range(1, 4):
            r.append([f"buffer_load_dwordx4 v{G_WD+jj}, {R_WD}, s76 offen offset:{1024*jj} lds"])
        r[-1].append("s_add_u32 s76, s76, 0x40000")
        return r

    HR, WF2 = 128, 0

    def hload(slot, jj):
        r = [f"buffer_load_dwordx4 {a(HR+slot*32+4*jj,4)}, v{G_H+jj}, {R_H}, s75 offen sc1"]
        if jj == 7:
            r.append("s_add_u32 s75, s75, 4096")
        return r

    fl_load = f"buffer_load_dword v22, v23, {R_MI}, s77 offen sc1"

    def flag_cond():
        e("v_cmp_ne_u32 vcc, 0, v22")
        e("s_cmp_eq_u64 vcc, exec")

    R_SIG = opt.get("rsig", 3)
    R_POLL = opt.get("rpoll", 6)
    ex_by_r = {0: g2s[:10], 1: g2s[10:20], 2: g2s[20:30], 3: g2s[30:], 4: g2dma(0) + g2dma(1), 5: g2dma(2) + g2dma(3)}
    for r in range(7):
        if r == R_SIG:
            e.need("hst")
            e("s_barrier")
            signal(e, "f1", f"buffer_store_dword v1, off, {R_MI}, s80 sc1")
            stamp(e, 5)
        cv_body(r, extra=ex_by_r.get(r), early=([fl_load] if r == R_POLL else None))
    e.wait(vm=0)
    poll(fl_load, flag_cond, "f1")
    stamp(e, 6)
    hl = []
    for sl in range(4):
        for jj in range(0, 8, 2):
            hl.append(hload(sl, jj) + hload(sl, jj + 1))
    m0_ = e.vm
    UZ = 224
    pre_z = ["v_lshlrev_b32 v12, 5, v3", "v_lshl_add_u32 v12, v28, 3, v12", f"s_add_u32 s78, s70, {2*2044 - 3584}",
             "v_sub_u32 v13, s78, v12"] + [f"ds_read_b64 {v(UZ+2*i,2)}, v13 offset:{(7-i)*512}" for i in range(8)]
    for k, x in enumerate(pre_z):
        hl[k].append(x)
    cv_body(7, rd=False, extra=hl)

    def trreads(slot, fs):
        return [f"ds_read_b64_tr_b16 {a(WF2+16*fs+4*dt+2*h,2)}, v{G_TR+dt} offset:{slot*4096+h*2048}"
                for dt in range(4) for h in range(2)]

    e("s_and_b32 s78, s69, 1")
    e("s_lshl_b32 s78, s78, 4")
    e("s_lshr_b32 s90, s90, s78")
    e("s_lshl_b32 s90, s90, 16")
    e("v_lshlrev_b32 v12, 5, v3")
    e("v_lshrrev_b32 v13, 1, v28")
    e("v_lshl_add_u32 v12, v13, 4, v12")
    e("v_and_b32 v13, 1, v28")
    e("v_lshl_add_u32 v12, v13, 9, v12")
    e.wait(lg=0)
    for x in trreads(0, 0):
        e(x)
    for i in range(8):
        u0, u1 = UZ + 2 * i, UZ + 2 * i + 1
        y = CA + 4 * i
        e(f"v_and_b32 v4, 0xffff0000, v{u1}")
        e(f"v_lshlrev_b32 v5, 16, v{u1}")
        e(f"v_and_b32 v6, 0xffff0000, v{u0}")
        e(f"v_lshlrev_b32 v7, 16, v{u0}")
        for q in range(4):
            e(f"v_fmac_f32 v{y+q}, s90, v{4+q}")
        e(f"v_cvt_pk_bf16_f32 v{u0}, v{y}, v{y+1}")
        e(f"v_cvt_pk_bf16_f32 v{u1}, v{y+2}, v{y+3}")
    e("s_nop 1")
    for k in range(4):
        b = UZ + 4 * k
        e(f"v_permlane16_swap_b32 v{b}, v{b+2}")
        e(f"v_permlane16_swap_b32 v{b+1}, v{b+3}")
        e(f"buffer_store_dwordx4 {v(b,4)}, v12, {R_ZT}, s84 offen offset:{1024*k} sc1")
    stamp(e, 7)
    nz = e.vm - m0_ - 32

    e.c("GEMM2")
    A2 = 64

    def acc2(dt, jj):
        return A2 + (jj * 4 + dt) * 4

    def body2(sl, vm, do_read, do_load, extra=None, pre=None, first=False, side=None):
        fs = sl & 1
        e.wait(vm=vm, lg=0)
        if pre:
            pre()
        slots = {}
        if do_read:
            for i, x in enumerate(trreads((sl + 1) % 4, 1 - fs)):
                slots.setdefault(4 + i + i // 3, []).append(x)
        if do_load:
            for i, grp in enumerate(g2dma(sl)):
                slots.setdefault(i, []).extend(grp)
            for jj in range(8):
                slots.setdefault(4 * jj + 3, []).extend(hload(sl, jj))
        if extra:
            for i, grp in enumerate(extra):
                slots.setdefault(2 * i, []).extend(grp)
        if side:
            for k, x in enumerate(side):
                slots.setdefault((k * 32) // len(side), []).append(x)
        mf = [f"{MF} {v(acc2(dt,jj),4)}, {a(WF2+16*fs+4*dt,4)}, {a(HR+sl*32+4*jj,4)}, {'0' if first else v(acc2(dt,jj),4)}"
              for jj in range(8) for dt in range(4)]
        merge(e, mf, slots)

    XR, SR, ZR = 32, 48, 224
    fa = ["v_and_b32 v6, 1, v28", "v_lshrrev_b32 v7, 1, v28", "v_lshl_or_b32 v6, v6, 1, v7",
          "s_add_u32 s85, s73, s72", "s_lshl_b32 s78, s85, 15", "s_add_u32 s78, s78, s87",
          "v_lshlrev_b32 v24, 11, v3", "v_lshl_add_u32 v24, v6, 4, v24", "v_add_u32 v24, s78, v24",
          "v_add_u32 v25, 0x8000, v24", "v_lshlrev_b32 v26, 3, v3", "s_lshl_b32 s86, s85, 7",
          "v_lshlrev_b32 v23, 2, v3", "s_lshl_b32 s77, s68, 6", f"s_add_u32 s77, s77, {ZF_REL}",
          "v_lshrrev_b32 v21, 2, v0", "v_lshlrev_b32 v21, 12, v21", "v_and_b32 v27, 3, v0",
          "v_lshl_add_u32 v21, v27, 4, v21", "s_lshl_b32 s78, s68, 18", "s_lshl_b32 s79, s85, 5",
          "s_add_u32 s78, s78, s79", "v_add_u32 v21, s78, v21",
          "v_bfe_u32 v7, v0, 2, 2", "v_lshl_add_u32 v7, v6, 3, v7", "v_lshlrev_b32 v7, 6, v7",
          "v_lshl_add_u32 v7, v27, 3, v7", "v_add_u32 v7, s71, v7"]
    for dl in range(1, 4):
        fa += [f"s_sub_u32 s78, s64, {dl}", "s_and_b32 s78, s78, 3", f"s_mul_i32 s78, s78, {XWREG}",
               f"s_add_u32 s78, s78, {(2*dl-2)*4096}", f"v_add_u32 v{12+dl}, s78, v2"]
    body2(0, 24 + nz, True, True, first=True)
    body2(1, 16 + nz + 12, True, True, side=fa[:22])
    body2(2, 8 + nz + 24, True, True, side=fa[22:])
    body2(3, 32, True, True)
    e("s_barrier")
    signal(e, "f2", f"buffer_store_dword v1, off, {R_MI}, s81 sc1")
    e("s_mov_b32 s82, 1")
    e.label("L_g2_loop")
    for sl in range(4):
        body2(sl, 32, True, True)
    e("s_add_u32 s82, s82, 1")
    e("s_cmp_lt_u32 s82, 6")
    e("s_cbranch_scc1 L_g2_loop")
    extra = [[fl_load]]
    for e2 in range(2):
        for pr in range(2):
            extra.append([f"buffer_load_dwordx4 {v(XR+4*(2*e2+pr),4)}, v{24+e2}, {R_X}, 0 offen offset:{64*pr}"])
        extra.append([f"buffer_load_dwordx2 {v(SR+2*e2,2)}, v26, {R_MI}, s86 offen offset:{ST_REL+128*e2} sc1"])
    body2(0, 32, True, False, extra)
    body2(1, 20 + 7, True, False)
    body2(2, 8 + 7, True, False)
    zd = [["s_mov_b32 m0, s71", "s_nop 0", f"buffer_load_dwordx4 v21, {R_ZT}, 0 offen sc1 lds"]]
    for i in range(1, 4):
        zd.append([f"s_mov_b32 s78, {i*(65536-1024)}", f"buffer_load_dwordx4 v21, {R_ZT}, s78 offen offset:{1024*i} sc1 lds"])
    body2(3, 6, False, False, extra=zd, pre=lambda: poll(fl_load, flag_cond, "f2"))
    stamp(e, 8)
    e.c("cross-wave reduction")
    e("s_nop 7")
    for jj in range(2, 8):
        for dt in range(4):
            e(f"ds_write_b128 v29, {v(acc2(dt,jj),4)} offset:{((jj-2)*4+dt)*1024}")
    e.wait(lg=0)
    e("s_barrier")
    stamp(e, 9)
    RB = A2 + 32
    for dl in range(1, 4):
        for q in range(8):
            e(f"ds_read_b128 {v(RB+((dl-1)*8+q)*4,4)}, v{12+dl} offset:{q*1024}")
        if dl > 1:
            e.wait(lg=8)
            for q in range(16):
                e(f"v_pk_add_f32 {v(A2+2*q,2)}, {v(A2+2*q,2)}, {v(RB+(dl-2)*32+2*q,2)}")
    e.wait(vm=0, lg=0)
    for e2 in range(2):
        for pr in range(2):
            for hh in range(2):
                e(f"ds_read_b64_tr_b16 {v(ZR+4*(2*e2+pr)+2*hh,2)}, v7 offset:{(32*pr+4*hh)*64 + 32*e2}")
    for q in range(16):
        e(f"v_pk_add_f32 {v(A2+2*q,2)}, {v(A2+2*q,2)}, {v(RB+64+2*q,2)}")
    e("s_nop 1")
    for e2 in range(2):
        for pr in range(2):
            for r in range(4):
                e(f"v_permlane16_swap_b32 v{acc2(2*pr,e2)+r}, v{acc2(2*pr+1,e2)+r}")
    e.wait(lg=0)
    for e2 in range(2):
        st = SR + 2 * e2
        for pr in range(2):
            i = 2 * e2 + pr
            A0 = acc2(2 * pr, e2)
            for q in range(4):
                unpack(e, 52, XR + 4 * i + q)
                unpack(e, 56, ZR + 4 * i + q)
                e(f"v_pk_add_f32 v[54:55], v[52:53], {v(st,2)} op_sel_hi:[1,0]")
                e(f"v_pk_add_f32 v[52:53], v[52:53], {v(A0+2*q,2)}")
                e(f"v_pk_mul_f32 v[54:55], v[54:55], {v(st,2)} op_sel:[0,1] op_sel_hi:[1,1]")
                e("v_pk_fma_f32 v[52:53], v[54:55], v[56:57], v[52:53]")
                e(f"v_cvt_pk_bf16_f32 v{RB+4*i+q}, v52, v53")
            e(f"buffer_store_dwordx4 {v(RB+4*i,4)}, v{24+e2}, {R_OUT}, 0 offen offset:{64*pr}")
    stamp(e, 10)
    if STAMPS or DST:
        e.wait(vm=0)
    stamp(e, 11)
    e.label("L_end")
    name = NAME + "_kernel"
    return f""".globl {name}
.p2align 8
.type {name},@function
{name}:
{e.text()}    s_endpgm
.section .rodata,"a"
.p2align 6
.amdhsa_kernel {name}
  .amdhsa_next_free_vgpr 512
  .amdhsa_next_free_sgpr 102
  .amdhsa_accum_offset 256
  .amdhsa_group_segment_fixed_size 0
  .amdhsa_kernarg_size 104
  .amdhsa_user_sgpr_count 2
  .amdhsa_user_sgpr_kernarg_segment_ptr 1
  .amdhsa_system_sgpr_workgroup_id_x 1
  .amdhsa_float_denorm_mode_32 3
.end_amdhsa_kernel
"""


def main(opt=None):
    opt = opt or {}
    ref = open("cdna_kernels/" + NAME + ".s.ref").read().split("\n")
    hdr = [l for l in ref if l.startswith(";") and "@launch" not in l]
    out = "\n".join(hdr) + "\n"
    out += f"; @launch grid=(256,1,1) block=(256,1,1) lds={LDS_SIZE}\n"
    out += '.amdgcn_target "amdgcn-amd-amdhsa--gfx950"\n.text\n'
    out += gen(opt)
    return out


if __name__ == "__main__":
    args = [x for x in sys.argv[1:] if not x.startswith("-")]
    opt = {}
    for x in sys.argv[1:]:
        if x == "-stamps":
            STAMPS = True
        elif x.startswith("-dst"):
            DST = int(x.split("=")[1])
        elif x.startswith("-"):
            k, _, val = x[1:].partition("=")
            opt[k] = int(val) if val else 1
    path = args[0] if args else "cdna_kernels/" + NAME + ".s"
    open(path, "w").write(main(opt))
    print("wrote", path)
```

```python
import sys

NAME = "parallel_sum__ssm_conv_h3__swiglu_ffn__prompt"
S, D, F = 2048, 1024, 3584
KA_Q, KA_K, KA_V, KA_SHK, KA_SSMK, KA_SSMD, KA_BX, KA_WG, KA_WU, KA_WD, KA_OUT, KA_DBG, KA_WS = [8 * i for i in range(13)]

MISC_OFF = 0
ST_REL = 0
HF_REL = 16384
ZF_REL = 16384 + 1024
KF_REL = 16384 + 2048
CS_REL = 32768
MISC_SIZE = CS_REL + 32 * 12288
UR_OFF = 4 << 20
UR_PITCH = 4096 + 128
UR_SIZE = D * UR_PITCH
ZT_OFF = 9 << 20
ZT_SIZE = S * D * 2
H_OFF = 16 << 20
H_SIZE = S * F * 2
H_SB = 112 * 1024
STAMP_OFF = 64 << 20

LDS_SIZE = 163840
XWREG = 24576
WB = 4 * XWREG
CV_CP = 4160
CV_HZ = 4 * CV_CP
CV_H = CV_HZ + 512
WSTEP = 32 * 7168
SPIN_LIMIT = 200000

STAMPS = False


class E:
    def __init__(self):
        self.l = []
        self.vm = 0
        self.vm_done = 0
        self.lg = 0
        self.lg_done = 0
        self.tag = {}

    def __call__(self, s, tag=None):
        for ln in s.strip("\n").split("\n"):
            ln = ln.strip()
            if ln.startswith("buffer_"):
                self.vm += 1
                if tag:
                    self.tag[tag] = ("v", self.vm)
            elif ln.startswith("ds_"):
                self.lg += 1
                if tag:
                    self.tag[tag] = ("l", self.lg)
            self.l.append("    " + ln)

    def mark(self, tag, kind):
        self.tag[tag] = (kind, self.vm if kind == "v" else self.lg)

    def need(self, *tags):
        nv = max([self.tag[t][1] for t in tags if self.tag[t][0] == "v"] + [0])
        nl = max([self.tag[t][1] for t in tags if self.tag[t][0] == "l"] + [0])
        w = []
        if nv > self.vm_done:
            n = min(self.vm - nv, 63)
            w.append(f"vmcnt({n})")
            self.vm_done = self.vm - n
        if nl > self.lg_done:
            n = min(self.lg - nl, 15)
            w.append(f"lgkmcnt({n})")
            self.lg_done = self.lg - n
        if w:
            self.l.append("    s_waitcnt " + " ".join(w))

    def wait(self, vm=None, lg=None):
        w = []
        if vm is not None:
            w.append(f"vmcnt({vm})")
            self.vm_done = max(self.vm_done, self.vm - vm)
        if lg is not None:
            w.append(f"lgkmcnt({lg})")
            self.lg_done = max(self.lg_done, self.lg - lg)
        self.l.append("    s_waitcnt " + " ".join(w))

    def label(self, s):
        self.l.append(s + ":")

    def c(self, s):
        self.l.append("    ; " + s)

    def text(self):
        return "\n".join(self.l) + "\n"


def v(i, n=1):
    return f"v{i}" if n == 1 else f"v[{i}:{i+n-1}]"


def a(i, n=1):
    return f"a{i}" if n == 1 else f"a[{i}:{i+n-1}]"


DST = False
LIGHT = False
DMAP = {2: 2, 12: 3, 14: 4, 15: 5, 13: 6, 3: 7, 4: 8, 5: 9, 6: 10, 7: 11, 8: 12, 9: 13, 10: 14, 11: 15}


def stamp(e, i):
    if DST and i in DMAP:
        e("s_memrealtime s[96:97]")
        e.wait(lg=0)
        e("s_sub_u32 s96, s96, s98")
        e(f"v_writelane_b32 v31, s96, {DMAP[i]}")
        if i == 11:
            e(f"s_cmp_lg_u32 s69, {DST}")
            e("s_cbranch_scc1 L_end")
            e("v_lshlrev_b32 v30, 2, v0")
            e("s_mov_b64 exec, 0xfffc")
            e("buffer_store_dword v31, v30, s[40:43], 0 offen")
        return
    if not STAMPS or (LIGHT and i not in (3, 7, 11)):
        return
    e("s_memrealtime s[96:97]")
    e("s_memtime s[98:99]")
    e.wait(lg=0)
    e("v_mov_b32 v30, s96")
    e("v_mov_b32 v31, s98")
    e(f"buffer_store_dwordx2 v[30:31], off, s[92:95], s100 offset:{8*i}")


def unpack(e, dst, src):
    e(f"v_lshlrev_b32 v{dst}, 16, v{src}")
    e(f"v_and_b32 v{dst+1}, 0xffff0000, v{src}")


def allreduce32(e, r, t):
    e("s_nop 1")
    for m in ("quad_perm:[1,0,3,2]", "quad_perm:[2,3,0,1]", "row_half_mirror", "row_mirror"):
        e(f"v_add_f32_dpp v{r}, v{r}, v{r} {m} row_mask:0xf bank_mask:0xf")
        e("s_nop 1")
    e(f"v_mov_b32 v{t}, v{r}")
    e("s_nop 1")
    e(f"v_permlane16_swap_b32 v{r}, v{t}")
    e("s_nop 1")
    e(f"v_add_f32 v{r}, v{r}, v{t}")


def round_bf16(e, r):
    e(f"v_cvt_pk_bf16_f32 v{r}, v{r}, v{r}")
    e(f"v_lshlrev_b32 v{r}, 16, v{r}")


R_X, R_WG, R_WU, R_H, R_UR, R_SK, R_ZT, R_MI, R_DB, R_WD, R_OUT, R_K, R_V, R_SH = [f"s[{8+4*i}:{11+4*i}]" for i in range(14)]
MF = "v_mfma_f32_16x16x32_bf16"


def merge(e, mf, slots):
    def do(x):
        if callable(x):
            x()
        else:
            e(x)
    for i, m in enumerate(mf):
        e(m)
        for x in slots.get(i, []):
            do(x)
    for k in sorted(slots):
        if k >= len(mf):
            for x in slots[k]:
                do(x)


def signal(e, lab, ins):
    e("s_cmp_lg_u32 s64, 0")
    e(f"s_cbranch_scc1 L_{lab}_nosig")
    e("v_mov_b32 v1, 1")
    e("s_mov_b64 exec, 1")
    e.l.append("    " + ins)
    e("s_mov_b64 exec, -1")
    e.label(f"L_{lab}_nosig")


def gen(opt):
    e = E()
    ACC = 32

    AC6 = 180

    def acc(ai, j):
        t, m = ai % 7, ai // 7
        assert t < 6
        return ACC + ((m * 6 + t) * 4 + j) * 4

    def accr(ai, j):
        if ai % 7 == 6:
            return a(AC6 + (ai // 7) * 16 + 4 * j, 4)
        return v(acc(ai, j), 4)
    FA = [0, 72]
    CSF, CSS, CSA = 144, 160, 176

    e("s_cmp_ge_u32 s2, 256")
    e("s_cbranch_scc1 L_end")
    if STAMPS:
        e("s_memrealtime s[96:97]")
        e("s_memtime s[98:99]")
    if DST:
        e("s_memrealtime s[98:99]")
        e("v_mov_b32 v31, 0")
    for reg, off in ((8, KA_Q), (12, KA_WG), (16, KA_WU), (88, KA_WS), (28, KA_SSMK), (40, KA_DBG), (44, KA_WD),
                     (48, KA_OUT), (52, KA_K), (56, KA_V), (60, KA_SHK), (86, KA_SSMD)):
        e(f"s_load_dwordx2 s[{reg}:{reg+1}], s[0:1], {off}")
    if opt.get("cpf", 1):
        e("s_getpc_b64 s[82:83]")
        e.label("L_pc")
        e("s_lshr_b32 s78, s2, 3")
        e("s_and_b32 s78, s78, 3")
        e("s_lshl_b32 s78, s78, 14")
        e("v_lshlrev_b32 v50, 6, v0")
        e("v_add_u32 v50, s78, v50")
        e("v_min_u32 v50, L_end-L_pc, v50")
        e("v_mov_b32 v51, s83")
        e("v_add_co_u32 v50, vcc, s82, v50")
        e("s_nop 1")
        e("v_addc_co_u32 v51, vcc, 0, v51, vcc")
        e.l.append("    global_load_dword v245, v[50:51], off")
        e.vm += 1
    e("v_lshrrev_b32 v1, 6, v0")
    e("v_mov_b32 v29, v0")
    e("v_and_b32 v0, 63, v0")
    e("v_readfirstlane_b32 s64, v1")
    e("v_lshlrev_b32 v2, 4, v0")
    e("v_lshrrev_b32 v39, 5, v29")
    e("v_and_b32 v40, 31, v29")
    e("s_lshl_b32 s7, s2, 14")
    e("v_lshlrev_b32 v41, 11, v39")
    e("v_lshl_add_u32 v41, v40, 4, v41")
    e("v_add_u32 v41, s7, v41")
    for reg, size in ((8, S * D * 2), (12, D * F * 2), (16, D * F * 2)):
        e(f"s_mov_b32 s{reg+2}, 0x{size:x}")
        e(f"s_mov_b32 s{reg+3}, 0x20000")
    e("s_and_b32 s6, s2, 7")
    e("s_lshr_b32 s7, s2, 3")
    if opt.get("map1", 0) == 1:
        e("s_and_b32 s65, s7, 3")
        e("s_lshl_b32 s65, s65, 1")
        e("s_and_b32 s78, s6, 1")
        e("s_add_u32 s65, s65, s78")
        e("s_lshr_b32 s66, s7, 2")
        e("s_lshr_b32 s78, s6, 1")
        e("s_lshl_b32 s78, s78, 3")
        e("s_add_u32 s66, s66, s78")
    elif opt.get("map1", 0) == 2:
        e("s_and_b32 s65, s7, 1")
        e("s_lshl_b32 s65, s65, 2")
        e("s_and_b32 s78, s6, 3")
        e("s_add_u32 s65, s65, s78")
        e("s_lshr_b32 s66, s7, 1")
        e("s_lshr_b32 s78, s6, 2")
        e("s_lshl_b32 s78, s78, 4")
        e("s_add_u32 s66, s66, s78")
    else:
        e("s_and_b32 s65, s7, 7")
        e("s_lshr_b32 s66, s7, 3")
        e("s_lshl_b32 s78, s6, 2")
        e("s_add_u32 s66, s66, s78")
    e(f"s_mul_i32 s70, s64, {XWREG}")
    e("s_lshl_b32 s71, s64, 11")
    e(f"s_add_u32 s71, s71, {WB}")
    ROT = opt.get("rot", 8)
    NCS = 32 // ROT
    e(f"s_lshr_b32 s3, s65, {1 if ROT == 4 else 0}")
    e(f"s_mul_i32 s72, s3, {NCS*WSTEP}")
    e("s_add_u32 s73, s72, 27648")
    e("v_lshrrev_b32 v22, 4, v0")
    e("v_bfe_u32 v23, v0, 1, 3")
    e("s_and_b32 s78, s64, 1")
    e("s_lshl_b32 s78, s78, 2")
    e("v_or_b32 v24, s78, v22")
    e("v_xor_b32 v23, v23, v24")
    e("s_and_b32 s78, s66, 1")
    e("v_add_u32 v24, s78, v23")
    e("v_cmp_eq_u32 vcc, 7, v24")
    e("v_and_b32 v25, 1, v0")
    e("s_lshl_b32 s78, s64, 3")
    e("v_cndmask_b32 v24, v24, 0, vcc")
    e("v_lshlrev_b32 v3, 5, v24")
    e("v_lshl_add_u32 v3, v25, 4, v3")
    e("v_add_u32 v26, s78, v22")
    e("v_mul_u32_u24 v27, 7168, v26")
    e("v_add_u32 v3, v3, v27")
    e("s_mul_i32 s78, s66, 224")
    e("v_add_u32 v3, s78, v3")
    e("v_cmp_eq_u32 vcc, 7, v23")
    e("v_mov_b32 v27, 0x80000000")
    e("v_lshlrev_b32 v28, 8, v26")
    e("v_cndmask_b32 v3, v3, v27, vcc")
    e("v_lshl_add_u32 v28, v23, 5, v28")
    e("v_lshl_add_u32 v28, v25, 4, v28")
    e("v_lshrrev_b32 v23, 3, v0")
    e("v_and_b32 v24, 7, v0")
    e("v_xor_b32 v24, v24, v22")
    e("s_lshl_b32 s78, s65, 19")
    e("s_lshl_b32 s79, s64, 17")
    e("s_add_u32 s78, s78, s79")
    e("v_lshlrev_b32 v4, 11, v23")
    e("v_add_u32 v4, s78, v4")
    e("v_xor_b32 v25, 4, v24")
    e("v_lshl_add_u32 v5, v25, 4, v4")
    e("v_lshl_add_u32 v4, v24, 4, v4")
    e("v_add_u32 v5, 15360, v5")
    e("v_add_u32 v6, 30720, v4")
    e("v_add_u32 v7, 30720, v5")
    e(f"s_mul_i32 s77, s3, {NCS*64}")
    e("s_add_u32 s76, s70, 16384")
    e(f"s_add_u32 s91, s70, {XWREG}")

    wstep = [0]

    def wdma(u, aug=False):
        g = []
        nt = " nt" if (opt.get("ntw", 0) == 2 or (opt.get("ntw", 0) == 1 and wstep[0] < NCS)) else ""
        wstep[0] += 1
        if aug:
            g.append([f"s_add_u32 m0, s71, {u*16384}", "s_nop 0", f"buffer_load_dwordx4 v28, {R_MI}, 0 offen sc1 lds"])
            g.append([f"buffer_load_dwordx4 v28, {R_MI}, 0 offen offset:1024 sc1 lds"])
            g.append([f"s_add_u32 m0, s71, {u*16384+8192}", "s_movk_i32 s78, 6144", f"buffer_load_dwordx4 v28, {R_MI}, s78 offen sc1 lds"])
            g.append([f"buffer_load_dwordx4 v28, {R_MI}, s78 offen offset:1024 sc1 lds"])
            return g
        g.append([f"s_add_u32 m0, s71, {u*16384}", "s_nop 0", f"buffer_load_dwordx4 v3, {R_WG}, s72 offen{nt} lds"])
        g.append([f"buffer_load_dwordx4 v3, {R_WG}, s73 offen offset:1024{nt} lds"])
        g.append([f"s_add_u32 m0, s71, {u*16384+8192}", "s_nop 0", f"buffer_load_dwordx4 v3, {R_WU}, s72 offen{nt} lds"])
        g.append([f"buffer_load_dwordx4 v3, {R_WU}, s73 offen offset:1024{nt} lds", f"s_add_u32 s72, s72, {WSTEP}"])
        g.append([f"s_cmp_eq_u32 s72, {32*WSTEP}", "s_cselect_b32 s72, 0, s72", "s_add_u32 s73, s72, 27648"])
        return g

    def xdma(hf):
        g = []
        if hf == 0:
            g.append(["s_mov_b32 m0, s76", "s_nop 0", f"buffer_load_dwordx4 v4, {R_X}, s77 offen lds"])
            so = "s77"
        else:
            g.append(["s_add_u32 m0, s76, 4096", "s_add_u32 s79, s77, 0x10000", f"buffer_load_dwordx4 v4, {R_X}, s79 offen lds"])
            so = "s79"
        for q in range(1, 4):
            g.append([f"buffer_load_dwordx4 v{4+q}, {R_X}, {so} offen offset:{1024*q} lds"])
        if hf == 1:
            g[-1] += ["s_add_u32 s77, s77, 128", "s_and_b32 s77, s77, 0x7ff"]
            g.append(["s_add_u32 s76, s76, 8192", "s_cmp_eq_u32 s76, s91", "s_cselect_b32 s76, s70, s76"])
        return g

    def flat(gs):
        for g in gs:
            for x in g:
                e(x)

    e.wait(lg=0)
    XS = 224
    flat(wdma(0)); flat(xdma(0)); flat(xdma(1)); e.mark("w0", "v")
    flat(wdma(1)); e.mark("w1", "v")
    for j in range(4):
        e(f"buffer_load_dwordx4 {v(XS+4*j,4)}, v41, {R_X}, 0 offen offset:{512*j}", tag="xs")
    for reg, size in ((52, S * D * 2), (56, S * D * 2)):
        e(f"s_mov_b32 s{reg+2}, 0x{size:x}")
        e(f"s_mov_b32 s{reg+3}, 0x20000")
    e("s_and_b32 s4, s2, 31")
    e("s_lshr_b32 s5, s2, 5")
    e("s_lshl_b32 s78, s4, 17")
    e("s_lshl_b32 s79, s5, 8")
    e("s_add_u32 s78, s78, s79")
    e("s_lshl_b32 s79, s64, 6")
    e("s_add_u32 s78, s78, s79")
    e("v_and_b32 v52, 3, v0")
    e("v_lshrrev_b32 v248, 2, v0")
    e("v_lshlrev_b32 v248, 13, v248")
    e("v_lshl_add_u32 v248, v52, 4, v248")
    e("v_add_u32 v248, s78, v248")
    e("v_add_u32 v249, 0xffffe000, v248")
    e("v_add_u32 v250, 0xfffff000, v248")
    e("v_add_u32 v251, 0x1000, v248")
    KR, VR, WR = [212 + 4 * i for i in range(7)], [240 + 4 * i for i in range(4)], [144 + 4 * i for i in range(4)]
    kaddr = [(249, 2048), (250, 0), (250, 2048), (248, 0), (248, 2048), (251, 0), (251, 2048)]
    ntk = " nt" if opt.get("ntkv", 1) else ""
    kvl = [[f"buffer_load_dwordx4 {a(VR[i],4)}, v{r}, {R_V}, 0 offen offset:{o}{ntk}"] for i, (r, o) in enumerate(kaddr[3:])]
    kvl += [[f"buffer_load_dwordx4 {a(KR[i],4)}, v{r}, {R_K}, 0 offen offset:{o}{ntk}"] for i, (r, o) in enumerate(kaddr)]
    kvl[-1].append(lambda: e.mark("kv", "v"))
    for reg, size in ((28, D * S * 2), (40, 256), (44, F * D * 2), (48, S * D * 2), (60, D * 8)):
        e(f"s_mov_b32 s{reg+2}, 0x{size:x}")
        e(f"s_mov_b32 s{reg+3}, 0x20000")
    wsr = [(20, H_OFF, H_SIZE), (24, UR_OFF, UR_SIZE), (32, ZT_OFF, ZT_SIZE), (36, MISC_OFF, MISC_SIZE)]
    if STAMPS:
        wsr.append((92, STAMP_OFF, 1 << 20))
    for reg, off, size in wsr:
        e(f"s_add_u32 s{reg}, s88, 0x{off:x}")
        e(f"s_addc_u32 s{reg+1}, s89, 0")
        e(f"s_mov_b32 s{reg+2}, 0x{size:x}")
        e(f"s_mov_b32 s{reg+3}, 0x20000")
    if STAMPS:
        e("s_lshl_b32 s100, s2, 2")
        e("s_add_u32 s100, s100, s64")
        e("s_lshl_b32 s100, s100, 7")
        e("v_mov_b32 v30, s96")
        e("v_mov_b32 v31, s98")
        e("buffer_store_dwordx2 v[30:31], off, s[92:95], s100")
    e("s_lshl_b32 s69, s2, 2")
    e("s_add_u32 s69, s69, s64")
    e("s_lshr_b32 s78, s69, 1")
    e("s_lshl_b32 s78, s78, 2")
    e("s_load_dword s90, s[86:87], s78")
    if opt.get("map2", 0) == 3:
        e("s_and_b32 s67, s6, 1")
        e("s_lshl_b32 s67, s67, 3")
        e("s_and_b32 s78, s7, 7")
        e("s_add_u32 s67, s67, s78")
        e("s_lshr_b32 s68, s6, 1")
        e("s_lshl_b32 s68, s68, 2")
        e("s_lshr_b32 s78, s7, 3")
        e("s_add_u32 s68, s68, s78")
    elif opt.get("map2", 0) == 4:
        e("s_and_b32 s67, s7, 15")
        e("s_lshl_b32 s68, s6, 1")
        e("s_lshr_b32 s78, s7, 4")
        e("s_add_u32 s68, s68, s78")
    elif opt.get("map2", 0) == 1:
        e("s_lshl_b32 s67, s6, 1")
        e("s_and_b32 s78, s7, 1")
        e("s_add_u32 s67, s67, s78")
        e("s_lshr_b32 s68, s7, 1")
    else:
        e("s_lshr_b32 s67, s6, 1")
        e("s_lshl_b32 s67, s67, 2")
        e("s_and_b32 s78, s7, 3")
        e("s_add_u32 s67, s67, s78")
        e("s_and_b32 s68, s6, 1")
        e("s_lshl_b32 s68, s68, 3")
        e("s_lshr_b32 s78, s7, 2")
        if opt.get("map2") == 2:
            e("s_xor_b32 s78, s78, 5")
        e("s_add_u32 s68, s68, s78")
    e("s_mul_i32 s78, s66, 12288")
    e(f"s_add_u32 s78, s78, {CS_REL}")
    e("s_cmp_eq_u32 s64, 3")
    e("s_cselect_b32 s78, 0x80000000, s78")
    e("v_add_u32 v28, s78, v28")
    e("v_bfe_u32 v24, v0, 2, 2")
    e("v_and_b32 v25, 3, v0")
    e("v_lshl_add_u32 v26, v22, 3, v24")
    e("v_lshlrev_b32 v26, 8, v26")
    e("v_lshl_add_u32 v26, v25, 3, v26")
    e(f"v_add_u32 v26, {WB}, v26")
    e("v_and_b32 v27, 1, v22")
    e("v_lshl_or_b32 v27, v27, 2, v24")
    for t in range(7):
        e(f"v_xor_b32 v1, {t}, v27")
        e(f"v_lshl_add_u32 v{8+t}, v1, 5, v26")
    e("s_lshr_b32 s78, s64, 1")
    e("s_lshl_b32 s78, s78, 13")
    e("v_add_u32 v26, s78, v26")
    e("s_and_b32 s78, s64, 1")
    e("s_lshl_b32 s78, s78, 2")
    e("v_xor_b32 v27, s78, v27")
    for q in range(4):
        e(f"v_xor_b32 v1, {q}, v27")
        e(f"v_lshl_add_u32 v{18+q}, v1, 5, v26")
    e("v_and_b32 v24, 15, v0")
    e("v_lshrrev_b32 v25, 1, v24")
    e("v_xor_b32 v25, v25, v22")
    e("v_lshlrev_b32 v15, 7, v24")
    e("v_lshl_add_u32 v15, v25, 4, v15")
    e("v_add_u32 v15, s70, v15")
    e("v_xor_b32 v16, 64, v15")
    e("v_and_b32 v24, 3, v0")
    if ROT == 4:
        e("s_bitcmp1_b32 s65, 0")
        e("s_cselect_b32 s78, 0, 0x3f803f80")
        e("v_mov_b32 v25, s78")
    else:
        e("v_mov_b32 v25, 0x3f803f80")
    for q in range(4):
        e(f"v_cmp_eq_u32 vcc, {q}, v24")
        e("s_nop 1")
        e("v_cndmask_b32 v26, 0, v25, vcc")
        for r in range(4):
            e(f"v_accvgpr_write_b32 a{CSS+4*q+r}, v26")
    e("s_lshl_b32 s78, s65, 5")
    e("s_add_u32 s78, s78, s66")
    e("s_lshl_b32 s78, s78, 2")
    e(f"s_add_u32 s80, s78, {HF_REL}")
    e("s_lshl_b32 s78, s2, 2")
    e(f"s_add_u32 s81, s78, {ZF_REL}")
    e("v_lshlrev_b32 v48, 10, v29")
    e(f"v_add_u32 v48, s81, v48")
    e("v_mov_b32 v47, s80")
    e("v_cmp_eq_u32 vcc, 2, v29")
    e("v_mov_b32 v45, 0x80000000")
    e("v_mov_b32 v46, 0")
    e("v_cndmask_b32 v48, v48, v47, vcc")
    e("v_cmp_gt_u32 vcc, 3, v29")
    e("s_lshl_b32 s78, s2, 6")
    e("v_lshlrev_b32 v49, 3, v39")
    e("v_cndmask_b32 v48, v45, v48, vcc")
    e("v_add_u32 v49, s78, v49")
    e("v_cmp_eq_u32 vcc, 0, v40")
    e(f"buffer_store_dword v46, v48, {R_MI}, 0 offen sc1")
    e("s_nop 0")
    e("v_cndmask_b32 v244, v45, v49, vcc")
    stamp(e, 1)

    flat(xdma(0)); flat(xdma(1)); flat(wdma(2)); e.mark("w2", "v")
    e.need("w0")
    e.wait(lg=0)
    e("s_barrier")
    stamp(e, 2)

    def ared(r, tmp):
        o = []
        for m in ("quad_perm:[1,0,3,2]", "quad_perm:[2,3,0,1]", "row_half_mirror", "row_mirror"):
            o += ["s_nop 1", f"v_add_f32_dpp v{r}, v{r}, v{r} {m} row_mask:0xf bank_mask:0xf"]
        o += [f"v_mov_b32 v{tmp}, v{r}", "s_nop 1", f"v_permlane16_swap_b32 v{r}, v{tmp}", "s_nop 1", f"v_add_f32 v{r}, v{r}, v{tmp}"]
        return o
    rb = lambda r: [f"v_cvt_pk_bf16_f32 v{r}, v{r}, v{r}", f"v_lshlrev_b32 v{r}, 16, v{r}"]
    sts = [f"v_lshlrev_b32 v240, 16, v{XS}", f"v_and_b32 v241, 0xffff0000, v{XS}"]
    for i in range(1, 16):
        sts += [f"v_lshlrev_b32 v242, 16, v{XS+i}", f"v_and_b32 v243, 0xffff0000, v{XS+i}",
                "v_add_f32 v240, v240, v242", "v_add_f32 v241, v241, v243"]
    sts += ["v_add_f32 v246, v240, v241"] + ared(246, 242) + ["v_mul_f32 v246, 0xba800000, v246"]
    for i in range(16):
        sts += [f"v_lshlrev_b32 v242, 16, v{XS+i}", f"v_and_b32 v243, 0xffff0000, v{XS+i}",
                "v_add_f32 v242, v242, v246", "v_add_f32 v243, v243, v246"]
        sts += (["v_mul_f32 v240, v242, v242", "v_mul_f32 v241, v243, v243"] if i == 0 else
                ["v_fmac_f32 v240, v242, v242", "v_fmac_f32 v241, v243, v243"])
    sts += ["v_add_f32 v247, v240, v241"] + ared(247, 242) + ["v_mul_f32 v247, 0x3a800000, v247"] + rb(247)
    sts += ["v_add_f32 v247, 0x3727c5ac, v247"] + rb(247) + ["v_sqrt_f32 v247, v247"] + rb(246) + rb(247)
    sts += ["v_rcp_f32 v247, v247", "s_nop 0"]
    st_store = [f"buffer_store_dwordx2 v[246:247], v244, {R_MI}, 0 offen offset:{ST_REL} sc1"]

    def reads(step_u, fs, cs=False, do_b=True):
        fa = FA[fs]
        al = []
        for ai in range(14):
            for h in range(2):
                al.append(f"ds_read_b64_tr_b16 {a(fa+4*ai+2*h,2)}, v{8+ai%7} offset:{step_u*16384 + (ai//7)*8192 + h*1024}")
        bl = [f"ds_read_b128 {a(fa+56+4*j,4)}, v17 offset:{2048*j}" for j in range(4)] if do_b else []
        cl = []
        if cs:
            for q in range(4):
                for h in range(2):
                    cl.append(f"ds_read_b64_tr_b16 {a(CSF+4*q+2*h,2)}, v{18+q} offset:{step_u*16384 + h*1024}")
        return bl + al + cl

    def mfmas(fs, first=False):
        fa = FA[fs]
        return [f"{MF} {accr(ai,j)}, {a(fa+4*ai,4)}, {a(fa+56+4*j,4)}, {'0' if first else accr(ai,j)}"
                for ai in range(14) for j in range(4)]

    e("s_movk_i32 s75, 16384")
    e("v_add_u32 v17, s75, v15")
    for x in reads(0, 0, cs=True):
        e(x)
    flat(wdma(3)); e.mark("w3", "v")
    flat(xdma(0))

    def body(i, wd=True, xd=True, rd=True, cs_m=False, cs_r=False, extra=None, pre=None, aug_w=False, do_b=True,
             vm=None, side=None, side0=12, needs=()):
        u = i & 3
        fs = i & 1
        if vm is None:
            tags = [t_ for t_ in [f"it{i-3}"] + list(needs) if t_ in e.tag]
            vm = min(63, e.vm - max(e.tag[t_][1] for t_ in tags))
        e.wait(vm=vm, lg=0)
        e("s_barrier")
        if pre:
            pre()
        mf = mfmas(fs, first=(i == 0))
        if cs_m:
            cm = [f"{MF} {a(CSA,4)}, {a(CSF+4*q,4)}, {a(CSS+4*q,4)}, {'0' if (i == 0 and q == 0) else a(CSA,4)}" for q in range(4)]
            mf = cm + mf
        slots = {}
        groups = []
        if xd:
            groups += xdma(1 - (i & 1))
        if wd:
            groups += wdma(u, aug_w)
        groups.append([lambda: e.mark(f"it{i}", "v")])
        if extra:
            groups += extra
        isb = lambda x: isinstance(x, str) and x.startswith("buffer_")
        heavy = [any(isb(x) for x in g) for g in groups]
        nh = max(1, sum(heavy))
        sp = max(1.0, min(7.0, (len(mf) - 5.0) / nh))
        taken = set()
        pos = 2.0
        nxt = 3.0
        for g, hv in zip(groups, heavy):
            if hv:
                pos = max(pos + 1, nxt)
                nxt = pos + sp
                taken.add(int(pos))
            elif not callable(g[0]):
                pos += 1
            slots.setdefault(int(pos), []).extend(g)
        if rd:
            hk = (i + 1) & 1
            if do_b:
                if hk == 0:
                    slots[0] = ["s_add_u32 s75, s75, 8192", f"s_cmp_eq_u32 s75, {XWREG}", "s_cselect_b32 s75, 0, s75"]
                    slots[1] = ["v_add_u32 v17, s75, v15"]
                    taken.add(0)
                else:
                    slots[1] = ["v_add_u32 v17, s75, v16"]
            rl = reads((u + 1) & 3, 1 - fs, cs_r, do_b)
            if do_b:
                rl = rl[4:8] + rl[:4] + rl[8:]
            pos = 0 if not cs_m else 1
            for x in rl:
                while pos in taken and pos < 44:
                    pos += 1
                slots[pos] = [x] + slots.get(pos, [])
                pos += 1
        if side:
            room = len(mf) - side0
            for k, x in enumerate(side):
                slots.setdefault(side0 + (k * room) // len(side), []).append(x)
        merge(e, mf, slots)

    C = 224
    cs = [f"v_accvgpr_read_b32 v{C+r}, a{CSA+r}" for r in range(4)]
    cs += [f"v_cvt_pk_bf16_f32 v{C+4}, v{C}, v{C+1}", f"v_cvt_pk_bf16_f32 v{C+5}, v{C+2}, v{C+3}",
           f"v_lshlrev_b32 v{C+6}, 16, v{C+4}", f"v_and_b32 v{C+7}, 0xffff0000, v{C+4}",
           f"v_lshlrev_b32 v{C+8}, 16, v{C+5}", f"v_and_b32 v{C+9}, 0xffff0000, v{C+5}"]
    cs += [f"v_sub_f32 v{C+r}, v{C+r}, v{C+6+r}" for r in range(4)]
    cs += ["v_bfe_u32 v1, v0, 2, 2", "v_cmp_eq_u32 vcc, 1, v1",
           f"v_cvt_pk_bf16_f32 v{C+10}, v{C}, v{C+1}", f"v_cvt_pk_bf16_f32 v{C+11}, v{C+2}, v{C+3}",
           f"v_cndmask_b32 v{C+4}, v{C+4}, v{C+10}, vcc", f"v_cndmask_b32 v{C+5}, v{C+5}, v{C+11}, vcc",
           f"v_lshlrev_b32 v{C+6}, 16, v{C+10}", f"v_and_b32 v{C+7}, 0xffff0000, v{C+10}",
           f"v_lshlrev_b32 v{C+8}, 16, v{C+11}", f"v_and_b32 v{C+9}, 0xffff0000, v{C+11}"]
    cs += [f"v_sub_f32 v{C+r}, v{C+r}, v{C+6+r}" for r in range(4)]
    cs += ["v_cmp_eq_u32 vcc, 2, v1",
           f"v_cvt_pk_bf16_f32 v{C+10}, v{C}, v{C+1}", f"v_cvt_pk_bf16_f32 v{C+11}, v{C+2}, v{C+3}",
           f"v_cndmask_b32 v{C+4}, v{C+4}, v{C+10}, vcc", f"v_cndmask_b32 v{C+5}, v{C+5}, v{C+11}, vcc"]
    csa = ["s_mul_i32 s3, s66, 12288", "s_lshr_b32 s6, s64, 1", "s_mul_i32 s6, s6, 6144", "s_add_u32 s3, s3, s6",
           *(["s_lshr_b32 s6, s65, 1", "s_lshl_b32 s6, s6, 8", "s_add_u32 s3, s3, s6", "s_and_b32 s6, s65, 1",
              "s_lshl_b32 s6, s6, 10", "s_add_u32 s3, s3, s6"] if ROT == 4 else ["s_lshl_b32 s6, s65, 8", "s_add_u32 s3, s3, s6"]),
           "s_and_b32 s6, s64, 1", "s_lshl_b32 s6, s6, 7",
           "s_add_u32 s3, s3, s6", f"s_add_u32 s3, s3, {CS_REL}",
           "v_bfe_u32 v1, v0, 2, 2", f"v_lshlrev_b32 v{C+12}, 11, v1", f"v_and_b32 v{C+13}, 3, v0",
           f"v_lshl_add_u32 v{C+12}, v{C+13}, 5, v{C+12}", f"v_lshrrev_b32 v{C+13}, 4, v0",
           f"v_lshl_add_u32 v{C+12}, v{C+13}, 3, v{C+12}", "v_cmp_eq_u32 vcc, 3, v1", f"v_mov_b32 v{C+13}, 0x80000000",
           f"v_add_u32 v{C+12}, s3, v{C+12}", f"v_cndmask_b32 v{C+12}, v{C+12}, v{C+13}, vcc"]
    cs_store = [f"buffer_store_dwordx2 {v(C+4,2)}, v{C+12}, {R_MI}, 0 offen sc1"]
    kva = ["v_and_b32 v26, 3, v0", "v_lshlrev_b32 v22, 3, v26", "v_lshlrev_b32 v26, 6, v26",
           "s_lshl_b32 s74, s5, 10", "s_lshl_b32 s3, s64, 8", "s_add_u32 s74, s74, s3",
           "s_lshr_b32 s3, s74, 3", "v_add_u32 v22, s3, v22", f"v_mul_u32_u24 v22, {UR_PITCH}, v22",
           "v_lshrrev_b32 v23, 2, v0", "v_lshlrev_b32 v23, 3, v23", "v_sub_u32 v22, v22, v23",
           "s_lshl_b32 s6, s4, 7", "s_sub_u32 s6, 4088, s6", "v_add_u32 v22, s6, v22",
           "s_lshl_b32 s3, s5, 7", "v_add_u32 v23, s3, v29", f"v_mul_u32_u24 v23, {UR_PITCH}, v23",
           "v_add_u32 v23, 0x1000, v23", "s_lshl_b32 s6, s4, 8", "v_add_u32 v24, s6, v29", "s_movk_i32 s6, 128",
           "v_cmp_gt_u32 vcc, s6, v24", "v_mov_b32 v25, 0x80000000", "s_nop 0", "v_cndmask_b32 v23, v25, v23, vcc"]
    wl = [[f"buffer_load_dwordx4 {a(WR[i],4)}, v26, {R_SH}, s74 offen offset:{16*i}"] for i in range(4)]
    assert NCS == 4
    q4 = -(-len(sts) // 4)
    sides = {0: kva, 1: sts[:q4], 2: sts[q4:2*q4], 3: sts[2*q4:3*q4], 4: sts[3*q4:], 5: csa, 6: cs}
    extras = {4: wl, 5: [st_store], 7: [cs_store]}
    KVI = opt.get("kvi", 8)
    KVB = opt.get("kvb", 12)
    extras[KVI] = extras.get(KVI, []) + kvl
    for i in range(KVB):
        tg = {0: "w1", 1: "w2", 2: "w3"}.get(i)
        vmi = min(63, e.vm - e.tag[tg][1]) if tg else None
        body(i, cs_m=(i < NCS), cs_r=(i < NCS - 1), vm=vmi, side=sides.get(i), side0=2, extra=extras.get(i))
        if i == 3:
            stamp(e, 12)
    stamp(e, 14)
    e.need("kv")
    e.c("kv tile: short conv * v, packed along (reversed) time")
    WF, KF, VF, TMP = 224, [232 + 2 * i for i in range(7)], 246, 1
    OUT = [248, 250, 252, 254, 24, 26, 18, 20]
    for p in range(4):
        for h in range(2):
            for d in range(2):
                e(f"v_accvgpr_read_b32 v{TMP}, a{WR[p]+2*h+d}")
                e(f"v_lshlrev_b32 v{WF+4*d+h}, 16, v{TMP}")
                e(f"v_and_b32 v{WF+4*d+2+h}, 0xffff0000, v{TMP}")
        for i in range(7):
            e(f"v_accvgpr_read_b32 v{TMP}, a{KR[i]+p}")
            unpack(e, KF[i], TMP)
        for i in range(4):
            e(f"v_accvgpr_read_b32 v{TMP}, a{VR[i]+p}")
            e(f"v_pk_mul_f32 {v(KF[i],2)}, {v(KF[i],2)}, {v(WF+6,2)}")
            unpack(e, VF, TMP)
            for j in (2, 1, 0):
                e(f"v_pk_fma_f32 {v(KF[i],2)}, {v(KF[i+3-j],2)}, {v(WF+2*j,2)}, {v(KF[i],2)}")
            e(f"v_pk_mul_f32 {v(KF[i],2)}, {v(KF[i],2)}, {v(VF,2)}")
        for h in range(2):
            ch = 2 * p + h
            o = OUT[ch]
            e(f"v_cvt_pk_bf16_f32 v{o}, v{KF[3]+h}, v{KF[2]+h}")
            e(f"v_cvt_pk_bf16_f32 v{o+1}, v{KF[1]+h}, v{KF[0]+h}")
            e(f"s_mov_b32 s3, {ch*UR_PITCH}")
            e(f"buffer_store_dwordx2 {v(o,2)}, v22, {R_UR}, s3 offen sc1")
    for i in range(4):
        e(f"v_mov_b32 v{WF+i}, 0")
    e(f"buffer_store_dwordx4 {v(WF,4)}, v23, {R_UR}, 0 offen sc1")
    stamp(e, 15)
    for i in range(KVB, 12):
        body(i)
    e("s_mov_b32 s82, 0")
    e.label("L_g1_loop")
    for i in range(12, 16):
        body(i, vm=16)
    e("s_cmp_lg_u32 s82, 0")
    e("s_cbranch_scc1 L_f0_nosig")
    signal(e, "f0", f"buffer_atomic_add v1, off, {R_DB}, 0 sc1")
    e("s_add_u32 s82, s82, 1")
    e("s_cmp_lt_u32 s82, 3")
    e("s_cbranch_scc1 L_g1_loop")
    for k in range(3):
        e.tag[f"it{21+k}"] = e.tag[f"it{13+k}"]
    e.vm_done = 0
    stamp(e, 13)

    def poll(loadins, cond, lab):
        e("s_mov_b32 s82, 0")
        e.label(f"L_{lab}_chk")
        cond()
        e(f"s_cbranch_scc1 L_{lab}_ok")
        e("s_sleep 1")
        e.l.append("    " + loadins)
        e.l.append("    s_waitcnt vmcnt(0)")
        e("s_add_u32 s82, s82, 1")
        e(f"s_cmp_lt_u32 s82, {SPIN_LIMIT}")
        e(f"s_cbranch_scc1 L_{lab}_chk")
        e.label(f"L_{lab}_ok")

    f0_load = f"buffer_load_dword v18, off, {R_DB}, 0 sc1"

    def f0_cond():
        e("v_readfirstlane_b32 s78, v18")
        e("s_nop 1")
        e("s_cmp_ge_u32 s78, 256")

    def I(s_, tag=None):
        return lambda: e(s_, tag=tag)

    def urdma(c):
        g = [[f"s_add_u32 m0, s70, {c*CV_CP}", f"s_add_u32 s79, s83, {2*c}", f"buffer_load_dwordx4 v2, {R_UR}, s79 offen sc1 lds"]]
        g += [[f"buffer_load_dwordx4 v2, {R_UR}, s79 offen offset:{1024*q} sc1 lds"] for q in range(1, 4)]
        g[-1].append(lambda: e.mark(f"ur{c}", "v"))
        return g

    body(24)
    body(25, extra=[[f0_load, lambda: e.mark("f0", "v")]])
    body(26, side=["v_and_b32 v19, 15, v0", "v_lshlrev_b32 v19, 3, v19",
                   "s_lshl_b32 s85, s65, 11", "s_lshl_b32 s3, s64, 9", "s_add_u32 s85, s85, s3",
                   f"s_mul_i32 s83, s69, {UR_PITCH}", "s_lshl_b32 s84, s69, 12"])
    stl = [[f"buffer_load_dwordx2 {v(20+2*j,2)}, v19, {R_MI}, s85 offen offset:{ST_REL+128*j} sc1"] for j in range(4)]
    stl[-1].append(lambda: e.mark("st", "v"))
    body(27, xd=False)
    body(28, xd=False, aug_w=True, pre=lambda: poll(f0_load, f0_cond, "f0"), extra=stl, needs=["f0"])
    body(29, xd=False, wd=False, extra=urdma(0) + urdma(2))
    body(30, xd=False, wd=False,
         side=["v_and_b32 v3, 15, v0", "v_lshrrev_b32 v28, 4, v0",
               "v_lshrrev_b32 v4, 2, v3", f"v_mul_u32_u24 v4, {CV_CP}, v4", "v_and_b32 v6, 3, v0",
               "v_lshl_add_u32 v4, v6, 4, v4", "v_add_u32 v4, 4096, v4", f"v_add_u32 v5, {CV_HZ}, v2",
               "v_cmp_gt_u32 vcc, 32, v0", "v_add_u32 v29, s70, v2", "v_mov_b32 v248, 0", "v_mov_b32 v249, 0",
               "v_cndmask_b32 v5, v4, v5, vcc", "v_add_u32 v5, s70, v5", "v_mov_b32 v250, 0", "v_mov_b32 v251, 0"])
    hd = [[f"s_add_u32 m0, s70, {CV_H}", "s_nop 0", f"buffer_load_dwordx4 v2, {R_SK}, s84 offen lds"]]
    hd += [[f"buffer_load_dwordx4 v2, {R_SK}, s84 offen offset:{1024*q} lds"] for q in range(1, 4)]
    hd[-1].append(lambda: e.mark("hk", "v"))
    hd = [[x.replace(" lds", " nt lds") if isinstance(x, str) else x for x in g] for g in hd]
    wdpf = [["s_mul_i32 s74, s69, 7168"]]
    wdpf += [[f"buffer_load_dwordx4 a[252:255], v2, {R_WD}, s74 offen offset:{1024*(q&3)}"] + (["s_add_u32 s74, s74, 4096"] if q == 3 else []) for q in range(7)]
    WPF = opt.get("wpf", 33)
    if WPF == 31:
        hd += wdpf
    bb = ["v_cmp_gt_u32 vcc, 48, v0", "ds_write_b128 v5, v[248:251]"]
    for j in range(4):
        bb += [f"v_lshrrev_b32 v1, 16, v{20+2*j}", f"v_or_b32 v1, v1, v{20+2*j}", "v_cndmask_b32 v1, 0, v1, vcc"]
        bb += [f"v_accvgpr_write_b32 a{FA[0]+56+4*j+r}, v1" for r in range(4)]
    for j in range(4):
        bb += [f"v_mul_f32 v{20+2*j}, 0xbfb8aa3b, v{21+2*j}", f"v_mul_f32 v{21+2*j}, v{21+2*j}, v{21+2*j}",
               f"v_rcp_f32 v{21+2*j}, v{21+2*j}"]
    body(31, xd=False, wd=False, do_b=False, extra=hd, side=bb, side0=4, needs=["st"])
    TB = [224, 236]
    def odr(q):
        b = TB[q & 1]
        return [I(f"ds_read_b128 {v(b,4)}, v29 offset:{1024*q}"),
                I(f"ds_read_b128 {v(b+4,4)}, v29 offset:{2*CV_CP+1024*q}"),
                I(f"ds_read_b32 v{b+8}, v29 offset:{2*CV_CP+1024*q+16}", tag=f"od{q}")]
    def odc(q):
        b = TB[q & 1]
        r = [lambda: e.need(f"od{q}")]
        r += [I(f"v_alignbit_b32 v{b+i}, v{b+4+i}, v{b+i}, 16") for i in range(4)]
        r.append(I(f"ds_write_b128 v29, {v(b,4)} offset:{CV_CP+1024*q}"))
        r += [I(f"v_alignbit_b32 v{b+4+i}, v{b+5+i}, v{b+4+i}, 16") for i in range(4)]
        r.append(I(f"ds_write_b128 v29, {v(b+4,4)} offset:{3*CV_CP+1024*q}"))
        return r
    ha = ["s_lshl_b32 s3, s65, 4", "s_lshl_b32 s6, s64, 2", "s_add_u32 s3, s3, s6",
          f"s_mul_i32 s3, s3, {H_SB}", "s_mul_i32 s6, s66, 7", "s_add_u32 s6, s6, 1",
          "s_lshr_b32 s6, s6, 1", "s_lshl_b32 s6, s6, 10", "s_add_u32 s3, s3, s6",
          "v_add_u32 v18, s3, v2", "s_movk_i32 s6, 3072", "s_bitcmp1_b32 s66, 0",
          "s_cselect_b32 s6, 0xfffffc08, s6", "v_add_u32 v19, s6, v18"]
    ca = ["v_and_b32 v4, 3, v3", "v_sub_u32 v4, 3, v4", f"v_mul_u32_u24 v16, {CV_CP}, v4",
          "v_and_b32 v4, 12, v3", "v_lshlrev_b32 v4, 1, v4", "v_sub_u32 v16, v16, v4",
          "v_lshl_add_u32 v16, v28, 4, v16", f"s_add_u32 s3, s70, {2*2028 - 3584}", "v_add_u32 v16, s3, v16",
          "v_lshlrev_b32 v17, 5, v3", "v_lshl_add_u32 v17, v28, 4, v17", f"s_add_u32 s3, s70, {CV_H - 32}",
          "v_add_u32 v17, s3, v17"]
    seq = odr(0) + odr(1) + ha + odc(0) + odr(2) + odc(1) + odr(3) + ca[:6] + odc(2) + ca[6:] + odc(3)
    body(32, xd=False, wd=False, rd=False, side=seq, side0=0, needs=["ur2"])
    stamp(e, 3)

    e.c("SwiGLU epilogue")

    def swiglu(g, u, tmp, out, kc):
        for q in range(2):
            e(f"v_pk_mul_f32 {v(tmp+2*q,2)}, {v(g+2*q,2)}, {v(kc,2)} op_sel_hi:[1,0]")
        for q in range(4):
            e(f"v_exp_f32 v{tmp+q}, v{tmp+q}")
        for q in range(2):
            e(f"v_pk_mul_f32 {v(g+2*q,2)}, {v(g+2*q,2)}, {v(u+2*q,2)}")
        for q in range(2):
            e(f"v_pk_fma_f32 {v(tmp+2*q,2)}, {v(tmp+2*q,2)}, {v(kc,2)}, {v(kc,2)} op_sel:[0,1,1] op_sel_hi:[1,1,1]")
        for q in (2, 3, 0, 1):
            e(f"v_rcp_f32 v{tmp+q}, v{tmp+q}")
        for q in (1, 0):
            e(f"v_pk_mul_f32 {v(g+2*q,2)}, {v(g+2*q,2)}, {v(tmp+2*q,2)}")
        for q in (1, 0):
            e(f"v_cvt_pk_bf16_f32 v{out+q}, v{g+2*q}, v{g+2*q+1}")

    def cv_reads(fs):
        o = 64 * fs
        r = []
        for i in range(8):
            r.append(f"ds_read_b128 {a(o+32+4*i,4)}, v17 offset:{512*i}")
            r.append(f"ds_read_b64 {a(o+4*i,2)}, v16 offset:{(7-i)*512}")
            r.append(f"ds_read_b64 {a(o+4*i+2,2)}, v16 offset:{(7-i)*512+8}")
        r += ["v_subrev_u32 v16, 64, v16", "v_subrev_u32 v17, 64, v17"]
        return r

    e("s_nop 4")
    n = 0
    for j in range(4):
        e(f"s_mov_b32 s78, {j*H_SB}")
        for i in range(4):
            o = 8 + 4 * (n & 1)
            if i < 3:
                for k in range(2):
                    t_ = 2 * i + k
                    swiglu(acc(t_, j), acc(7 + t_, j), 4, o + 2 * k, 20 + 2 * j)
                e(f"buffer_store_dwordx4 {v(o,4)}, v18, {R_H}, s78 offen offset:{1024*i} sc1", tag="hst")
            else:
                for r in range(4):
                    e(f"v_accvgpr_read_b32 v{248+r}, a{AC6+4*j+r}")
                    e(f"v_accvgpr_read_b32 v{252+r}, a{AC6+16+4*j+r}")
                swiglu(248, 252, 4, o, 20 + 2 * j)
                e(f"buffer_store_dwordx2 {v(o,2)}, v19, {R_H}, s78 offen sc1", tag="hst")
            n += 1
        if j == opt.get("cvj", 3):
            e.need("hk")
            for x in cv_reads(0):
                e(x)
    if WPF == 33:
        flat(wdpf)
    stamp(e, 4)

    e.c("long conv")
    CA = 32

    def cv_mfmas(fs, first):
        o = 64 * fs
        prs = [(p, w) for p in range(8) for w in range(8) if p + w <= 7]
        return [f"{MF} {v(CA+4*(p+w),4)}, {a(o+4*p,4)}, {a(o+32+4*w,4)}, {'0' if (first and p == 0) else v(CA+4*(p+w),4)}"
                for p, w in prs]

    def cv_body(r, rd=True, extra=None, early=None):
        fs = r & 1
        e.wait(lg=0)
        slots = {}
        if early:
            slots[0] = list(early)
        if rd:
            for k, x in enumerate(cv_reads(1 - fs)):
                slots.setdefault(k, []).append(x)
        if extra:
            for k, g in enumerate(extra):
                slots.setdefault(k * 2 if not rd else 26 + k, []).extend(g)
        merge(e, cv_mfmas(fs, r == 0), slots)

    G_H, G_WD, G_TR = 192, 200, 204
    g2s = [["s_lshl_b32 s72, s64, 1", "s_lshl_b32 s73, s67, 3"],
           ["v_lshrrev_b32 v6, 3, v0", "v_bfe_u32 v7, v0, 1, 2"],
           ["v_xor_b32 v7, v7, v28", "v_and_b32 v4, 1, v0"],
           [f"v_lshlrev_b32 v{G_WD}, 11, v6", f"v_lshl_add_u32 v{G_WD}, v7, 5, v{G_WD}"],
           [f"v_lshl_add_u32 v{G_WD}, v4, 4, v{G_WD}", "s_lshl_b32 s87, s68, 7"],
           [f"v_add_u32 v{G_WD}, s87, v{G_WD}", f"v_add_u32 v{G_WD+1}, 15360, v{G_WD}"],
           [f"v_add_u32 v{G_WD+2}, 30720, v{G_WD}", f"v_add_u32 v{G_WD+3}, 46080, v{G_WD}"],
           ["s_lshl_b32 s71, s64, 14", f"s_add_u32 s71, s71, {WB}", "v_bfe_u32 v6, v0, 2, 2"],
           ["s_lshl_b32 s75, s64, 10", "s_lshl_b32 s76, s64, 16"],
           ["v_and_b32 v7, 3, v0", "v_lshl_add_u32 v6, v28, 2, v6"],
           ["v_bfe_u32 v4, v6, 1, 2", "v_lshlrev_b32 v6, 7, v6"],
           ["v_lshl_add_u32 v6, v7, 3, v6", "v_add_u32 v6, s71, v6"]]
    for dt in range(4):
        g2s.append([f"v_xor_b32 v7, {dt}, v4", f"v_lshl_add_u32 v{G_TR+dt}, v7, 5, v6"])
    g2s.append(["v_and_b32 v23, 31, v0", "v_lshlrev_b32 v23, 2, v23"])
    g2s.append(["s_lshr_b32 s77, s67, 1", "s_lshl_b32 s77, s77, 7", f"s_add_u32 s77, s77, {HF_REL}"])
    for jj in range(8):
        g2s.append([f"s_add_u32 s78, s72, {jj}", "s_and_b32 s78, s78, 7", "s_add_u32 s78, s78, s73"])
        g2s.append([f"s_mul_i32 s78, s78, {H_SB}", f"v_add_u32 v{G_H+jj}, s78, v2"])

    def g2dma(slot):
        r = [[f"s_add_u32 m0, s71, {slot*4096}", "s_nop 0", f"buffer_load_dwordx4 v{G_WD}, {R_WD}, s76 offen lds"]]
        for jj in range(1, 4):
            r.append([f"buffer_load_dwordx4 v{G_WD+jj}, {R_WD}, s76 offen offset:{1024*jj} lds"])
        r[-1].append("s_add_u32 s76, s76, 0x40000")
        return r

    HR, WF2 = 128, 0

    def hload(slot, jj):
        r = [f"buffer_load_dwordx4 {a(HR+slot*32+4*jj,4)}, v{G_H+jj}, {R_H}, s75 offen sc1"]
        if jj == 7:
            r.append("s_add_u32 s75, s75, 4096")
        return r

    fl_load = f"buffer_load_dword v22, v23, {R_MI}, s77 offen sc1"

    def flag_cond():
        e("v_cmp_ne_u32 vcc, 0, v22")
        e("s_cmp_eq_u64 vcc, exec")

    R_SIG = opt.get("rsig", 3)
    R_POLL = opt.get("rpoll", 6)
    ex_by_r = {0: g2s[:10], 1: g2s[10:20], 2: g2s[20:30], 3: g2s[30:], 4: g2dma(0) + g2dma(1), 5: g2dma(2) + g2dma(3)}
    for r in range(7):
        if r == R_SIG:
            e.need("hst")
            e("s_barrier")
            signal(e, "f1", f"buffer_store_dword v1, off, {R_MI}, s80 sc1")
            stamp(e, 5)
        cv_body(r, extra=ex_by_r.get(r), early=([fl_load] if r == R_POLL else None))
    e.wait(vm=0)
    poll(fl_load, flag_cond, "f1")
    stamp(e, 6)
    hl = []
    for sl in range(4):
        for jj in range(0, 8, 2):
            hl.append(hload(sl, jj) + hload(sl, jj + 1))
    m0_ = e.vm
    UZ = 224
    pre_z = ["v_lshlrev_b32 v12, 5, v3", "v_lshl_add_u32 v12, v28, 3, v12", f"s_add_u32 s78, s70, {2*2044 - 3584}",
             "v_sub_u32 v13, s78, v12"] + [f"ds_read_b64 {v(UZ+2*i,2)}, v13 offset:{(7-i)*512}" for i in range(8)]
    for k, x in enumerate(pre_z):
        hl[k].append(x)
    cv_body(7, rd=False, extra=hl)

    def trreads(slot, fs):
        return [f"ds_read_b64_tr_b16 {a(WF2+16*fs+4*dt+2*h,2)}, v{G_TR+dt} offset:{slot*4096+h*2048}"
                for dt in range(4) for h in range(2)]

    e("s_and_b32 s78, s69, 1")
    e("s_lshl_b32 s78, s78, 4")
    e("s_lshr_b32 s90, s90, s78")
    e("s_lshl_b32 s90, s90, 16")
    e("v_lshlrev_b32 v12, 5, v3")
    e("v_lshrrev_b32 v13, 1, v28")
    e("v_lshl_add_u32 v12, v13, 4, v12")
    e("v_and_b32 v13, 1, v28")
    e("v_lshl_add_u32 v12, v13, 9, v12")
    e.wait(lg=0)
    for x in trreads(0, 0):
        e(x)
    for i in range(8):
        u0, u1 = UZ + 2 * i, UZ + 2 * i + 1
        y = CA + 4 * i
        e(f"v_and_b32 v4, 0xffff0000, v{u1}")
        e(f"v_lshlrev_b32 v5, 16, v{u1}")
        e(f"v_and_b32 v6, 0xffff0000, v{u0}")
        e(f"v_lshlrev_b32 v7, 16, v{u0}")
        for q in range(4):
            e(f"v_fmac_f32 v{y+q}, s90, v{4+q}")
        e(f"v_cvt_pk_bf16_f32 v{u0}, v{y}, v{y+1}")
        e(f"v_cvt_pk_bf16_f32 v{u1}, v{y+2}, v{y+3}")
    e("s_nop 1")
    for k in range(4):
        b = UZ + 4 * k
        e(f"v_permlane16_swap_b32 v{b}, v{b+2}")
        e(f"v_permlane16_swap_b32 v{b+1}, v{b+3}")
        e(f"buffer_store_dwordx4 {v(b,4)}, v12, {R_ZT}, s84 offen offset:{1024*k} sc1")
    stamp(e, 7)
    nz = e.vm - m0_ - 32

    e.c("GEMM2")
    A2 = 64

    def acc2(dt, jj):
        return A2 + (jj * 4 + dt) * 4

    def body2(sl, vm, do_read, do_load, extra=None, pre=None, first=False, side=None):
        fs = sl & 1
        e.wait(vm=vm, lg=0)
        if pre:
            pre()
        slots = {}
        if do_read:
            for i, x in enumerate(trreads((sl + 1) % 4, 1 - fs)):
                slots.setdefault(4 + i + i // 3, []).append(x)
        if do_load:
            for i, grp in enumerate(g2dma(sl)):
                slots.setdefault(i, []).extend(grp)
            for jj in range(8):
                slots.setdefault(4 * jj + 3, []).extend(hload(sl, jj))
        if extra:
            for i, grp in enumerate(extra):
                slots.setdefault(2 * i, []).extend(grp)
        if side:
            for k, x in enumerate(side):
                slots.setdefault((k * 32) // len(side), []).append(x)
        mf = [f"{MF} {v(acc2(dt,jj),4)}, {a(WF2+16*fs+4*dt,4)}, {a(HR+sl*32+4*jj,4)}, {'0' if first else v(acc2(dt,jj),4)}"
              for jj in range(8) for dt in range(4)]
        merge(e, mf, slots)

    XR, SR, ZR = 32, 48, 224
    fa = ["v_and_b32 v6, 1, v28", "v_lshrrev_b32 v7, 1, v28", "v_lshl_or_b32 v6, v6, 1, v7",
          "s_add_u32 s85, s73, s72", "s_lshl_b32 s78, s85, 15", "s_add_u32 s78, s78, s87",
          "v_lshlrev_b32 v24, 11, v3", "v_lshl_add_u32 v24, v6, 4, v24", "v_add_u32 v24, s78, v24",
          "v_add_u32 v25, 0x8000, v24", "v_lshlrev_b32 v26, 3, v3", "s_lshl_b32 s86, s85, 7",
          "v_lshlrev_b32 v23, 2, v3", "s_lshl_b32 s77, s68, 6", f"s_add_u32 s77, s77, {ZF_REL}",
          "v_lshrrev_b32 v21, 2, v0", "v_lshlrev_b32 v21, 12, v21", "v_and_b32 v27, 3, v0",
          "v_lshl_add_u32 v21, v27, 4, v21", "s_lshl_b32 s78, s68, 18", "s_lshl_b32 s79, s85, 5",
          "s_add_u32 s78, s78, s79", "v_add_u32 v21, s78, v21",
          "v_bfe_u32 v7, v0, 2, 2", "v_lshl_add_u32 v7, v6, 3, v7", "v_lshlrev_b32 v7, 6, v7",
          "v_lshl_add_u32 v7, v27, 3, v7", "v_add_u32 v7, s71, v7"]
    for dl in range(1, 4):
        fa += [f"s_sub_u32 s78, s64, {dl}", "s_and_b32 s78, s78, 3", f"s_mul_i32 s78, s78, {XWREG}",
               f"s_add_u32 s78, s78, {(2*dl-2)*4096}", f"v_add_u32 v{12+dl}, s78, v2"]
    body2(0, 24 + nz, True, True, first=True)
    body2(1, 16 + nz + 12, True, True, side=fa[:22])
    body2(2, 8 + nz + 24, True, True, side=fa[22:])
    body2(3, 32, True, True)
    e("s_barrier")
    signal(e, "f2", f"buffer_store_dword v1, off, {R_MI}, s81 sc1")
    e("s_mov_b32 s82, 1")
    e.label("L_g2_loop")
    for sl in range(4):
        body2(sl, 32, True, True)
    e("s_add_u32 s82, s82, 1")
    e("s_cmp_lt_u32 s82, 6")
    e("s_cbranch_scc1 L_g2_loop")
    extra = [[fl_load]]
    for e2 in range(2):
        for pr in range(2):
            extra.append([f"buffer_load_dwordx4 {v(XR+4*(2*e2+pr),4)}, v{24+e2}, {R_X}, 0 offen offset:{64*pr}"])
        extra.append([f"buffer_load_dwordx2 {v(SR+2*e2,2)}, v26, {R_MI}, s86 offen offset:{ST_REL+128*e2} sc1"])
    body2(0, 32, True, False, extra)
    body2(1, 20 + 7, True, False)
    body2(2, 8 + 7, True, False)
    zd = [["s_mov_b32 m0, s71", "s_nop 0", f"buffer_load_dwordx4 v21, {R_ZT}, 0 offen sc1 lds"]]
    for i in range(1, 4):
        zd.append([f"s_mov_b32 s78, {i*(65536-1024)}", f"buffer_load_dwordx4 v21, {R_ZT}, s78 offen offset:{1024*i} sc1 lds"])
    body2(3, 6, False, False, extra=zd, pre=lambda: poll(fl_load, flag_cond, "f2"))
    stamp(e, 8)
    e.c("cross-wave reduction")
    e("s_nop 7")
    for jj in range(2, 8):
        for dt in range(4):
            e(f"ds_write_b128 v29, {v(acc2(dt,jj),4)} offset:{((jj-2)*4+dt)*1024}")
    e.wait(lg=0)
    e("s_barrier")
    stamp(e, 9)
    RB = A2 + 32
    for dl in range(1, 4):
        for q in range(8):
            e(f"ds_read_b128 {v(RB+((dl-1)*8+q)*4,4)}, v{12+dl} offset:{q*1024}")
        if dl > 1:
            e.wait(lg=8)
            for q in range(16):
                e(f"v_pk_add_f32 {v(A2+2*q,2)}, {v(A2+2*q,2)}, {v(RB+(dl-2)*32+2*q,2)}")
    e.wait(vm=0, lg=0)
    for e2 in range(2):
        for pr in range(2):
            for hh in range(2):
                e(f"ds_read_b64_tr_b16 {v(ZR+4*(2*e2+pr)+2*hh,2)}, v7 offset:{(32*pr+4*hh)*64 + 32*e2}")
    for q in range(16):
        e(f"v_pk_add_f32 {v(A2+2*q,2)}, {v(A2+2*q,2)}, {v(RB+64+2*q,2)}")
    e("s_nop 1")
    for e2 in range(2):
        for pr in range(2):
            for r in range(4):
                e(f"v_permlane16_swap_b32 v{acc2(2*pr,e2)+r}, v{acc2(2*pr+1,e2)+r}")
    e.wait(lg=0)
    for e2 in range(2):
        st = SR + 2 * e2
        for pr in range(2):
            i = 2 * e2 + pr
            A0 = acc2(2 * pr, e2)
            for q in range(4):
                unpack(e, 52, XR + 4 * i + q)
                unpack(e, 56, ZR + 4 * i + q)
                e(f"v_pk_add_f32 v[54:55], v[52:53], {v(st,2)} op_sel_hi:[1,0]")
                e(f"v_pk_add_f32 v[52:53], v[52:53], {v(A0+2*q,2)}")
                e(f"v_pk_mul_f32 v[54:55], v[54:55], {v(st,2)} op_sel:[0,1] op_sel_hi:[1,1]")
                e("v_pk_fma_f32 v[52:53], v[54:55], v[56:57], v[52:53]")
                e(f"v_cvt_pk_bf16_f32 v{RB+4*i+q}, v52, v53")
            e(f"buffer_store_dwordx4 {v(RB+4*i,4)}, v{24+e2}, {R_OUT}, 0 offen offset:{64*pr}{' sc1' if opt.get('osc', 1) else ''}")
    stamp(e, 10)
    if STAMPS or DST:
        e.wait(vm=0)
    stamp(e, 11)
    e.label("L_end")
    name = NAME + "_kernel"
    return f""".globl {name}
.p2align 8
.type {name},@function
{name}:
{e.text()}    s_endpgm
.section .rodata,"a"
.p2align 6
.amdhsa_kernel {name}
  .amdhsa_next_free_vgpr 512
  .amdhsa_next_free_sgpr 102
  .amdhsa_accum_offset 256
  .amdhsa_group_segment_fixed_size 0
  .amdhsa_kernarg_size 104
  .amdhsa_user_sgpr_count 2
  .amdhsa_user_sgpr_kernarg_segment_ptr 1
  .amdhsa_system_sgpr_workgroup_id_x 1
  .amdhsa_float_denorm_mode_32 3
.end_amdhsa_kernel
"""


def main(opt=None):
    opt = opt or {}
    ref = open("cdna_kernels/" + NAME + ".s.ref").read().split("\n")
    hdr = [l for l in ref if l.startswith(";") and "@launch" not in l]
    out = "\n".join(hdr) + "\n"
    out += f"; @launch grid=(256,1,1) block=(256,1,1) lds={LDS_SIZE}\n"
    out += '.amdgcn_target "amdgcn-amd-amdhsa--gfx950"\n.text\n'
    out += gen(opt)
    return out


if __name__ == "__main__":
    args = [x for x in sys.argv[1:] if not x.startswith("-")]
    opt = {}
    for x in sys.argv[1:]:
        if x == "-stamps":
            STAMPS = True
        elif x == "-light":
            STAMPS = LIGHT = True
        elif x.startswith("-dst"):
            DST = int(x.split("=")[1])
        elif x.startswith("-"):
            k, _, val = x[1:].partition("=")
            opt[k] = int(val) if val else 1
    path = args[0] if args else "cdna_kernels/" + NAME + ".s"
    open(path, "w").write(main(opt))
    print("wrote", path)
```

```python
import sys

NAME = "parallel_sum__ssm_conv_h3__swiglu_ffn__prompt"
S, D, F = 2048, 1024, 3584
KA_Q, KA_K, KA_V, KA_SHK, KA_SSMK, KA_SSMD, KA_BX, KA_WG, KA_WU, KA_WD, KA_OUT, KA_DBG, KA_WS = [8 * i for i in range(13)]

MISC_OFF = 0
ST_REL = 0
HF_REL = 16384
ZF_REL = 16384 + 1024
KF_REL = 16384 + 2048
CS_REL = 32768
MISC_SIZE = CS_REL + 32 * 12288
UR_OFF = 4 << 20
UR_PITCH = 4096 + 128
UR_SIZE = D * UR_PITCH
ZT_OFF = 9 << 20
ZT_SIZE = S * D * 2
H_OFF = 16 << 20
H_SIZE = S * F * 2
H_SB = 112 * 1024
STAMP_OFF = 64 << 20

LDS_SIZE = 163840
XWREG = 24576
WB = 4 * XWREG
CV_CP = 4160
CV_HZ = 4 * CV_CP
CV_H = CV_HZ + 512
WSTEP = 32 * 7168
SPIN_LIMIT = 200000

STAMPS = False


class E:
    def __init__(self):
        self.l = []
        self.vm = 0
        self.vm_done = 0
        self.lg = 0
        self.lg_done = 0
        self.tag = {}

    def __call__(self, s, tag=None):
        for ln in s.strip("\n").split("\n"):
            ln = ln.strip()
            if ln.startswith("buffer_"):
                self.vm += 1
                if tag:
                    self.tag[tag] = ("v", self.vm)
            elif ln.startswith("ds_"):
                self.lg += 1
                if tag:
                    self.tag[tag] = ("l", self.lg)
            self.l.append("    " + ln)

    def mark(self, tag, kind):
        self.tag[tag] = (kind, self.vm if kind == "v" else self.lg)

    def need(self, *tags):
        nv = max([self.tag[t][1] for t in tags if self.tag[t][0] == "v"] + [0])
        nl = max([self.tag[t][1] for t in tags if self.tag[t][0] == "l"] + [0])
        w = []
        if nv > self.vm_done:
            n = min(self.vm - nv, 63)
            w.append(f"vmcnt({n})")
            self.vm_done = self.vm - n
        if nl > self.lg_done:
            n = min(self.lg - nl, 15)
            w.append(f"lgkmcnt({n})")
            self.lg_done = self.lg - n
        if w:
            self.l.append("    s_waitcnt " + " ".join(w))

    def wait(self, vm=None, lg=None):
        w = []
        if vm is not None:
            w.append(f"vmcnt({vm})")
            self.vm_done = max(self.vm_done, self.vm - vm)
        if lg is not None:
            w.append(f"lgkmcnt({lg})")
            self.lg_done = max(self.lg_done, self.lg - lg)
        self.l.append("    s_waitcnt " + " ".join(w))

    def label(self, s):
        self.l.append(s + ":")

    def c(self, s):
        self.l.append("    ; " + s)

    def text(self):
        return "\n".join(self.l) + "\n"


def v(i, n=1):
    return f"v{i}" if n == 1 else f"v[{i}:{i+n-1}]"


def a(i, n=1):
    return f"a{i}" if n == 1 else f"a[{i}:{i+n-1}]"


DST = False
LIGHT = False
DMAP = {2: 2, 12: 3, 14: 4, 15: 5, 13: 6, 3: 7, 4: 8, 5: 9, 6: 10, 7: 11, 8: 12, 9: 13, 10: 14, 11: 15}


def stamp(e, i):
    if DST and i in DMAP:
        e("s_memrealtime s[96:97]")
        e.wait(lg=0)
        e("s_sub_u32 s96, s96, s98")
        e(f"v_writelane_b32 v31, s96, {DMAP[i]}")
        if i == 11:
            e(f"s_cmp_lg_u32 s69, {DST}")
            e("s_cbranch_scc1 L_end")
            e("v_lshlrev_b32 v30, 2, v0")
            e("s_mov_b64 exec, 0xfffc")
            e("buffer_store_dword v31, v30, s[40:43], 0 offen")
        return
    if not STAMPS or (LIGHT and i not in (3, 7, 11)):
        return
    e("s_memrealtime s[96:97]")
    e("s_memtime s[98:99]")
    e.wait(lg=0)
    e("v_mov_b32 v30, s96")
    e("v_mov_b32 v31, s98")
    e(f"buffer_store_dwordx2 v[30:31], off, s[92:95], s100 offset:{8*i}")


def unpack(e, dst, src):
    e(f"v_lshlrev_b32 v{dst}, 16, v{src}")
    e(f"v_and_b32 v{dst+1}, 0xffff0000, v{src}")


def allreduce32(e, r, t):
    e("s_nop 1")
    for m in ("quad_perm:[1,0,3,2]", "quad_perm:[2,3,0,1]", "row_half_mirror", "row_mirror"):
        e(f"v_add_f32_dpp v{r}, v{r}, v{r} {m} row_mask:0xf bank_mask:0xf")
        e("s_nop 1")
    e(f"v_mov_b32 v{t}, v{r}")
    e("s_nop 1")
    e(f"v_permlane16_swap_b32 v{r}, v{t}")
    e("s_nop 1")
    e(f"v_add_f32 v{r}, v{r}, v{t}")


def round_bf16(e, r):
    e(f"v_cvt_pk_bf16_f32 v{r}, v{r}, v{r}")
    e(f"v_lshlrev_b32 v{r}, 16, v{r}")


R_X, R_WG, R_WU, R_H, R_UR, R_SK, R_ZT, R_MI, R_DB, R_WD, R_OUT, R_K, R_V, R_SH = [f"s[{8+4*i}:{11+4*i}]" for i in range(14)]
MF = "v_mfma_f32_16x16x32_bf16"


def merge(e, mf, slots):
    def do(x):
        if callable(x):
            x()
        else:
            e(x)
    for i, m in enumerate(mf):
        e(m)
        for x in slots.get(i, []):
            do(x)
    for k in sorted(slots):
        if k >= len(mf):
            for x in slots[k]:
                do(x)


def signal(e, lab, ins):
    e("s_cmp_lg_u32 s64, 0")
    e(f"s_cbranch_scc1 L_{lab}_nosig")
    e("v_mov_b32 v1, 1")
    e("s_mov_b64 exec, 1")
    e.l.append("    " + ins)
    e("s_mov_b64 exec, -1")
    e.label(f"L_{lab}_nosig")


def gen(opt):
    e = E()
    ACC = 32

    AC6 = 180

    def acc(ai, j):
        t, m = ai % 7, ai // 7
        assert t < 6
        return ACC + ((m * 6 + t) * 4 + j) * 4

    def accr(ai, j):
        if ai % 7 == 6:
            return a(AC6 + (ai // 7) * 16 + 4 * j, 4)
        return v(acc(ai, j), 4)
    FA = [0, 72]
    CSF, CSS, CSA = 144, 160, 176

    e("s_cmp_ge_u32 s2, 256")
    e("s_cbranch_scc1 L_end")
    if STAMPS:
        e("s_memrealtime s[96:97]")
        e("s_memtime s[98:99]")
    if DST:
        e("s_memrealtime s[98:99]")
        e("v_mov_b32 v31, 0")
    for reg, off in ((8, KA_Q), (12, KA_WG), (16, KA_WU), (88, KA_WS), (28, KA_SSMK), (40, KA_DBG), (44, KA_WD),
                     (48, KA_OUT), (52, KA_K), (56, KA_V), (60, KA_SHK), (86, KA_SSMD)):
        e(f"s_load_dwordx2 s[{reg}:{reg+1}], s[0:1], {off}")
    if opt.get("cpf", 1):
        e("s_getpc_b64 s[82:83]")
        e.label("L_pc")
        e("s_lshr_b32 s78, s2, 3")
        e("s_and_b32 s78, s78, 3")
        e("s_lshl_b32 s78, s78, 14")
        e("v_lshlrev_b32 v50, 6, v0")
        e("v_add_u32 v50, s78, v50")
        e("v_min_u32 v50, L_end-L_pc, v50")
        e("v_mov_b32 v51, s83")
        e("v_add_co_u32 v50, vcc, s82, v50")
        e("s_nop 1")
        e("v_addc_co_u32 v51, vcc, 0, v51, vcc")
        e.l.append("    global_load_dword v245, v[50:51], off")
        e.vm += 1
    e("v_lshrrev_b32 v1, 6, v0")
    e("v_mov_b32 v29, v0")
    e("v_and_b32 v0, 63, v0")
    e("v_readfirstlane_b32 s64, v1")
    e("v_lshlrev_b32 v2, 4, v0")
    e("v_lshrrev_b32 v39, 5, v29")
    e("v_and_b32 v40, 31, v29")
    e("s_lshl_b32 s7, s2, 14")
    e("v_lshlrev_b32 v41, 11, v39")
    e("v_lshl_add_u32 v41, v40, 4, v41")
    e("v_add_u32 v41, s7, v41")
    for reg, size in ((8, S * D * 2), (12, D * F * 2), (16, D * F * 2)):
        e(f"s_mov_b32 s{reg+2}, 0x{size:x}")
        e(f"s_mov_b32 s{reg+3}, 0x20000")
    e("s_and_b32 s6, s2, 7")
    e("s_lshr_b32 s7, s2, 3")
    if opt.get("map1", 0) == 1:
        e("s_and_b32 s65, s7, 3")
        e("s_lshl_b32 s65, s65, 1")
        e("s_and_b32 s78, s6, 1")
        e("s_add_u32 s65, s65, s78")
        e("s_lshr_b32 s66, s7, 2")
        e("s_lshr_b32 s78, s6, 1")
        e("s_lshl_b32 s78, s78, 3")
        e("s_add_u32 s66, s66, s78")
    elif opt.get("map1", 0) == 2:
        e("s_and_b32 s65, s7, 1")
        e("s_lshl_b32 s65, s65, 2")
        e("s_and_b32 s78, s6, 3")
        e("s_add_u32 s65, s65, s78")
        e("s_lshr_b32 s66, s7, 1")
        e("s_lshr_b32 s78, s6, 2")
        e("s_lshl_b32 s78, s78, 4")
        e("s_add_u32 s66, s66, s78")
    else:
        e("s_and_b32 s65, s7, 7")
        e("s_lshr_b32 s66, s7, 3")
        e("s_lshl_b32 s78, s6, 2")
        e("s_add_u32 s66, s66, s78")
    e(f"s_mul_i32 s70, s64, {XWREG}")
    e("s_lshl_b32 s71, s64, 11")
    e(f"s_add_u32 s71, s71, {WB}")
    ROT = opt.get("rot", 8)
    NCS = 32 // ROT
    e(f"s_lshr_b32 s3, s65, {1 if ROT == 4 else 0}")
    if opt.get("rotmask") is not None:
        e(f"s_and_b32 s3, s3, {opt['rotmask']}")
    e(f"s_mul_i32 s72, s3, {NCS*WSTEP}")
    e("s_add_u32 s73, s72, 27648")
    e("v_lshrrev_b32 v22, 4, v0")
    e("v_bfe_u32 v23, v0, 1, 3")
    e("s_and_b32 s78, s64, 1")
    e("s_lshl_b32 s78, s78, 2")
    e("v_or_b32 v24, s78, v22")
    e("v_xor_b32 v23, v23, v24")
    e("s_and_b32 s78, s66, 1")
    e("v_add_u32 v24, s78, v23")
    e("v_cmp_eq_u32 vcc, 7, v24")
    e("v_and_b32 v25, 1, v0")
    e("s_lshl_b32 s78, s64, 3")
    e("v_cndmask_b32 v24, v24, 0, vcc")
    e("v_lshlrev_b32 v3, 5, v24")
    e("v_lshl_add_u32 v3, v25, 4, v3")
    e("v_add_u32 v26, s78, v22")
    e("v_mul_u32_u24 v27, 7168, v26")
    e("v_add_u32 v3, v3, v27")
    e("s_mul_i32 s78, s66, 224")
    e("v_add_u32 v3, s78, v3")
    e("v_cmp_eq_u32 vcc, 7, v23")
    e("v_mov_b32 v27, 0x80000000")
    e("v_lshlrev_b32 v28, 8, v26")
    e("v_cndmask_b32 v3, v3, v27, vcc")
    e("v_lshl_add_u32 v28, v23, 5, v28")
    e("v_lshl_add_u32 v28, v25, 4, v28")
    e("v_lshrrev_b32 v23, 3, v0")
    e("v_and_b32 v24, 7, v0")
    e("v_xor_b32 v24, v24, v22")
    e("s_lshl_b32 s78, s65, 19")
    e("s_lshl_b32 s79, s64, 17")
    e("s_add_u32 s78, s78, s79")
    e("v_lshlrev_b32 v4, 11, v23")
    e("v_add_u32 v4, s78, v4")
    e("v_xor_b32 v25, 4, v24")
    e("v_lshl_add_u32 v5, v25, 4, v4")
    e("v_lshl_add_u32 v4, v24, 4, v4")
    e("v_add_u32 v5, 15360, v5")
    e("v_add_u32 v6, 30720, v4")
    e("v_add_u32 v7, 30720, v5")
    e(f"s_mul_i32 s77, s3, {NCS*64}")
    e("s_add_u32 s76, s70, 16384")
    e(f"s_add_u32 s91, s70, {XWREG}")

    wstep = [0]

    def wdma(u, aug=False):
        g = []
        nt = " nt" if (opt.get("ntw", 0) == 2 or (opt.get("ntw", 0) == 1 and wstep[0] < NCS)) else ""
        wstep[0] += 1
        if aug:
            g.append([f"s_add_u32 m0, s71, {u*16384}", "s_nop 0", f"buffer_load_dwordx4 v28, {R_MI}, 0 offen sc1 lds"])
            g.append([f"buffer_load_dwordx4 v28, {R_MI}, 0 offen offset:1024 sc1 lds"])
            g.append([f"s_add_u32 m0, s71, {u*16384+8192}", "s_movk_i32 s78, 6144", f"buffer_load_dwordx4 v28, {R_MI}, s78 offen sc1 lds"])
            g.append([f"buffer_load_dwordx4 v28, {R_MI}, s78 offen offset:1024 sc1 lds"])
            return g
        g.append([f"s_add_u32 m0, s71, {u*16384}", "s_nop 0", f"buffer_load_dwordx4 v3, {R_WG}, s72 offen{nt} lds"])
        g.append([f"buffer_load_dwordx4 v3, {R_WG}, s73 offen offset:1024{nt} lds"])
        g.append([f"s_add_u32 m0, s71, {u*16384+8192}", "s_nop 0", f"buffer_load_dwordx4 v3, {R_WU}, s72 offen{nt} lds"])
        g.append([f"buffer_load_dwordx4 v3, {R_WU}, s73 offen offset:1024{nt} lds", f"s_add_u32 s72, s72, {WSTEP}"])
        g.append([f"s_cmp_eq_u32 s72, {32*WSTEP}", "s_cselect_b32 s72, 0, s72", "s_add_u32 s73, s72, 27648"])
        return g

    def xdma(hf):
        g = []
        if hf == 0:
            g.append(["s_mov_b32 m0, s76", "s_nop 0", f"buffer_load_dwordx4 v4, {R_X}, s77 offen lds"])
            so = "s77"
        else:
            g.append(["s_add_u32 m0, s76, 4096", "s_add_u32 s79, s77, 0x10000", f"buffer_load_dwordx4 v4, {R_X}, s79 offen lds"])
            so = "s79"
        for q in range(1, 4):
            g.append([f"buffer_load_dwordx4 v{4+q}, {R_X}, {so} offen offset:{1024*q} lds"])
        if hf == 1:
            g[-1] += ["s_add_u32 s77, s77, 128", "s_and_b32 s77, s77, 0x7ff"]
            g.append(["s_add_u32 s76, s76, 8192", "s_cmp_eq_u32 s76, s91", "s_cselect_b32 s76, s70, s76"])
        return g

    def flat(gs):
        for g in gs:
            for x in g:
                e(x)

    e.wait(lg=0)
    XS = 224
    flat(wdma(0)); flat(xdma(0)); flat(xdma(1)); e.mark("w0", "v")
    flat(wdma(1)); e.mark("w1", "v")
    for j in range(4):
        e(f"buffer_load_dwordx4 {v(XS+4*j,4)}, v41, {R_X}, 0 offen offset:{512*j}", tag="xs")
    for reg, size in ((52, S * D * 2), (56, S * D * 2)):
        e(f"s_mov_b32 s{reg+2}, 0x{size:x}")
        e(f"s_mov_b32 s{reg+3}, 0x20000")
    e("s_and_b32 s4, s2, 31")
    e("s_lshr_b32 s5, s2, 5")
    e("s_lshl_b32 s78, s4, 17")
    e("s_lshl_b32 s79, s5, 8")
    e("s_add_u32 s78, s78, s79")
    e("s_lshl_b32 s79, s64, 6")
    e("s_add_u32 s78, s78, s79")
    e("v_and_b32 v52, 3, v0")
    e("v_lshrrev_b32 v248, 2, v0")
    e("v_lshlrev_b32 v248, 13, v248")
    e("v_lshl_add_u32 v248, v52, 4, v248")
    e("v_add_u32 v248, s78, v248")
    e("v_add_u32 v249, 0xffffe000, v248")
    e("v_add_u32 v250, 0xfffff000, v248")
    e("v_add_u32 v251, 0x1000, v248")
    KR, VR, WR = [212 + 4 * i for i in range(7)], [240 + 4 * i for i in range(4)], [144 + 4 * i for i in range(4)]
    kaddr = [(249, 2048), (250, 0), (250, 2048), (248, 0), (248, 2048), (251, 0), (251, 2048)]
    ntk = " nt" if opt.get("ntkv", 1) else ""
    kvl = [[f"buffer_load_dwordx4 {a(VR[i],4)}, v{r}, {R_V}, 0 offen offset:{o}{ntk}"] for i, (r, o) in enumerate(kaddr[3:])]
    kvl += [[f"buffer_load_dwordx4 {a(KR[i],4)}, v{r}, {R_K}, 0 offen offset:{o}{ntk}"] for i, (r, o) in enumerate(kaddr)]
    kvl[-1].append(lambda: e.mark("kv", "v"))
    for reg, size in ((28, D * S * 2), (40, 256), (44, F * D * 2), (48, S * D * 2), (60, D * 8)):
        e(f"s_mov_b32 s{reg+2}, 0x{size:x}")
        e(f"s_mov_b32 s{reg+3}, 0x20000")
    wsr = [(20, H_OFF, H_SIZE), (24, UR_OFF, UR_SIZE), (32, ZT_OFF, ZT_SIZE), (36, MISC_OFF, MISC_SIZE)]
    if STAMPS:
        wsr.append((92, STAMP_OFF, 1 << 20))
    for reg, off, size in wsr:
        if reg != 92:
            off += opt.get("wsoff", 0) << 20
        e(f"s_add_u32 s{reg}, s88, 0x{off:x}")
        e(f"s_addc_u32 s{reg+1}, s89, 0")
        e(f"s_mov_b32 s{reg+2}, 0x{size:x}")
        e(f"s_mov_b32 s{reg+3}, 0x20000")
    if STAMPS:
        e("s_lshl_b32 s100, s2, 2")
        e("s_add_u32 s100, s100, s64")
        e("s_lshl_b32 s100, s100, 7")
        e("v_mov_b32 v30, s96")
        e("v_mov_b32 v31, s98")
        e("buffer_store_dwordx2 v[30:31], off, s[92:95], s100")
    e("s_lshl_b32 s69, s2, 2")
    e("s_add_u32 s69, s69, s64")
    e("s_lshr_b32 s78, s69, 1")
    e("s_lshl_b32 s78, s78, 2")
    e("s_load_dword s90, s[86:87], s78")
    if opt.get("map2", 3) == 3:
        e("s_and_b32 s67, s6, 1")
        e("s_lshl_b32 s67, s67, 3")
        e("s_and_b32 s78, s7, 7")
        e("s_add_u32 s67, s67, s78")
        e("s_lshr_b32 s68, s6, 1")
        e("s_lshl_b32 s68, s68, 2")
        e("s_lshr_b32 s78, s7, 3")
        e("s_add_u32 s68, s68, s78")
    elif opt.get("map2", 3) == 4:
        e("s_and_b32 s67, s7, 15")
        e("s_lshl_b32 s68, s6, 1")
        e("s_lshr_b32 s78, s7, 4")
        e("s_add_u32 s68, s68, s78")
    elif opt.get("map2", 3) == 1:
        e("s_lshl_b32 s67, s6, 1")
        e("s_and_b32 s78, s7, 1")
        e("s_add_u32 s67, s67, s78")
        e("s_lshr_b32 s68, s7, 1")
    else:
        e("s_lshr_b32 s67, s6, 1")
        e("s_lshl_b32 s67, s67, 2")
        e("s_and_b32 s78, s7, 3")
        e("s_add_u32 s67, s67, s78")
        e("s_and_b32 s68, s6, 1")
        e("s_lshl_b32 s68, s68, 3")
        e("s_lshr_b32 s78, s7, 2")
        if opt.get("map2") == 2:
            e("s_xor_b32 s78, s78, 5")
        e("s_add_u32 s68, s68, s78")
    e("s_mul_i32 s78, s66, 12288")
    e(f"s_add_u32 s78, s78, {CS_REL}")
    e("s_cmp_eq_u32 s64, 3")
    e("s_cselect_b32 s78, 0x80000000, s78")
    e("v_add_u32 v28, s78, v28")
    e("v_bfe_u32 v24, v0, 2, 2")
    e("v_and_b32 v25, 3, v0")
    e("v_lshl_add_u32 v26, v22, 3, v24")
    e("v_lshlrev_b32 v26, 8, v26")
    e("v_lshl_add_u32 v26, v25, 3, v26")
    e(f"v_add_u32 v26, {WB}, v26")
    e("v_and_b32 v27, 1, v22")
    e("v_lshl_or_b32 v27, v27, 2, v24")
    for t in range(7):
        e(f"v_xor_b32 v1, {t}, v27")
        e(f"v_lshl_add_u32 v{8+t}, v1, 5, v26")
    e("s_lshr_b32 s78, s64, 1")
    e("s_lshl_b32 s78, s78, 13")
    e("v_add_u32 v26, s78, v26")
    e("s_and_b32 s78, s64, 1")
    e("s_lshl_b32 s78, s78, 2")
    e("v_xor_b32 v27, s78, v27")
    for q in range(4):
        e(f"v_xor_b32 v1, {q}, v27")
        e(f"v_lshl_add_u32 v{18+q}, v1, 5, v26")
    e("v_and_b32 v24, 15, v0")
    e("v_lshrrev_b32 v25, 1, v24")
    e("v_xor_b32 v25, v25, v22")
    e("v_lshlrev_b32 v15, 7, v24")
    e("v_lshl_add_u32 v15, v25, 4, v15")
    e("v_add_u32 v15, s70, v15")
    e("v_xor_b32 v16, 64, v15")
    e("v_and_b32 v24, 3, v0")
    if ROT == 4:
        e("s_bitcmp1_b32 s65, 0")
        e("s_cselect_b32 s78, 0, 0x3f803f80")
        e("v_mov_b32 v25, s78")
    else:
        e("v_mov_b32 v25, 0x3f803f80")
    for q in range(4):
        e(f"v_cmp_eq_u32 vcc, {q}, v24")
        e("s_nop 1")
        e("v_cndmask_b32 v26, 0, v25, vcc")
        for r in range(4):
            e(f"v_accvgpr_write_b32 a{CSS+4*q+r}, v26")
    e("s_lshl_b32 s78, s65, 5")
    e("s_add_u32 s78, s78, s66")
    e("s_lshl_b32 s78, s78, 2")
    e(f"s_add_u32 s80, s78, {HF_REL}")
    e("s_lshl_b32 s78, s2, 2")
    e(f"s_add_u32 s81, s78, {ZF_REL}")
    e("v_lshlrev_b32 v48, 10, v29")
    e(f"v_add_u32 v48, s81, v48")
    e("v_mov_b32 v47, s80")
    e("v_cmp_eq_u32 vcc, 2, v29")
    e("v_mov_b32 v45, 0x80000000")
    e("v_mov_b32 v46, 0")
    e("v_cndmask_b32 v48, v48, v47, vcc")
    e("v_cmp_gt_u32 vcc, 3, v29")
    e("s_lshl_b32 s78, s2, 6")
    e("v_lshlrev_b32 v49, 3, v39")
    e("v_cndmask_b32 v48, v45, v48, vcc")
    e("v_add_u32 v49, s78, v49")
    e("v_cmp_eq_u32 vcc, 0, v40")
    e(f"buffer_store_dword v46, v48, {R_MI}, 0 offen sc1")
    e("s_nop 0")
    e("v_cndmask_b32 v244, v45, v49, vcc")
    stamp(e, 1)

    flat(xdma(0)); flat(xdma(1)); flat(wdma(2)); e.mark("w2", "v")
    e.need("w0")
    e.wait(lg=0)
    e("s_barrier")
    stamp(e, 2)

    def ared(r, tmp):
        o = []
        for m in ("quad_perm:[1,0,3,2]", "quad_perm:[2,3,0,1]", "row_half_mirror", "row_mirror"):
            o += ["s_nop 1", f"v_add_f32_dpp v{r}, v{r}, v{r} {m} row_mask:0xf bank_mask:0xf"]
        o += [f"v_mov_b32 v{tmp}, v{r}", "s_nop 1", f"v_permlane16_swap_b32 v{r}, v{tmp}", "s_nop 1", f"v_add_f32 v{r}, v{r}, v{tmp}"]
        return o
    rb = lambda r: [f"v_cvt_pk_bf16_f32 v{r}, v{r}, v{r}", f"v_lshlrev_b32 v{r}, 16, v{r}"]
    sts = [f"v_lshlrev_b32 v240, 16, v{XS}", f"v_and_b32 v241, 0xffff0000, v{XS}"]
    for i in range(1, 16):
        sts += [f"v_lshlrev_b32 v242, 16, v{XS+i}", f"v_and_b32 v243, 0xffff0000, v{XS+i}",
                "v_add_f32 v240, v240, v242", "v_add_f32 v241, v241, v243"]
    sts += ["v_add_f32 v246, v240, v241"] + ared(246, 242) + ["v_mul_f32 v246, 0xba800000, v246"]
    for i in range(16):
        sts += [f"v_lshlrev_b32 v242, 16, v{XS+i}", f"v_and_b32 v243, 0xffff0000, v{XS+i}",
                "v_add_f32 v242, v242, v246", "v_add_f32 v243, v243, v246"]
        sts += (["v_mul_f32 v240, v242, v242", "v_mul_f32 v241, v243, v243"] if i == 0 else
                ["v_fmac_f32 v240, v242, v242", "v_fmac_f32 v241, v243, v243"])
    sts += ["v_add_f32 v247, v240, v241"] + ared(247, 242) + ["v_mul_f32 v247, 0x3a800000, v247"] + rb(247)
    sts += ["v_add_f32 v247, 0x3727c5ac, v247"] + rb(247) + ["v_sqrt_f32 v247, v247"] + rb(246) + rb(247)
    sts += ["v_rcp_f32 v247, v247", "s_nop 0"]
    st_store = [f"buffer_store_dwordx2 v[246:247], v244, {R_MI}, 0 offen offset:{ST_REL} sc1"]

    def reads(step_u, fs, cs=False, do_b=True):
        fa = FA[fs]
        al = []
        for ai in range(14):
            for h in range(2):
                al.append(f"ds_read_b64_tr_b16 {a(fa+4*ai+2*h,2)}, v{8+ai%7} offset:{step_u*16384 + (ai//7)*8192 + h*1024}")
        bl = [f"ds_read_b128 {a(fa+56+4*j,4)}, v17 offset:{2048*j}" for j in range(4)] if do_b else []
        cl = []
        if cs:
            for q in range(4):
                for h in range(2):
                    cl.append(f"ds_read_b64_tr_b16 {a(CSF+4*q+2*h,2)}, v{18+q} offset:{step_u*16384 + h*1024}")
        return bl + al + cl

    def mfmas(fs, first=False):
        fa = FA[fs]
        return [f"{MF} {accr(ai,j)}, {a(fa+4*ai,4)}, {a(fa+56+4*j,4)}, {'0' if first else accr(ai,j)}"
                for ai in range(14) for j in range(4)]

    e("s_movk_i32 s75, 16384")
    e("v_add_u32 v17, s75, v15")
    for x in reads(0, 0, cs=True):
        e(x)
    flat(wdma(3)); e.mark("w3", "v")
    flat(xdma(0))

    def body(i, wd=True, xd=True, rd=True, cs_m=False, cs_r=False, extra=None, pre=None, aug_w=False, do_b=True,
             vm=None, side=None, side0=12, needs=()):
        u = i & 3
        fs = i & 1
        if vm is None:
            tags = [t_ for t_ in [f"it{i-3}"] + list(needs) if t_ in e.tag]
            vm = min(63, e.vm - max(e.tag[t_][1] for t_ in tags))
        e.wait(vm=vm, lg=0)
        e("s_barrier")
        if pre:
            pre()
        mf = mfmas(fs, first=(i == 0))
        if cs_m:
            cm = [f"{MF} {a(CSA,4)}, {a(CSF+4*q,4)}, {a(CSS+4*q,4)}, {'0' if (i == 0 and q == 0) else a(CSA,4)}" for q in range(4)]
            mf = cm + mf
        slots = {}
        groups = []
        if xd:
            groups += xdma(1 - (i & 1))
        if wd:
            groups += wdma(u, aug_w)
        groups.append([lambda: e.mark(f"it{i}", "v")])
        if extra:
            groups += extra
        isb = lambda x: isinstance(x, str) and x.startswith("buffer_")
        heavy = [any(isb(x) for x in g) for g in groups]
        nh = max(1, sum(heavy))
        sp = max(1.0, min(7.0, (len(mf) - 5.0) / nh))
        taken = set()
        pos = 2.0
        nxt = 3.0
        for g, hv in zip(groups, heavy):
            if hv:
                pos = max(pos + 1, nxt)
                nxt = pos + sp
                taken.add(int(pos))
            elif not callable(g[0]):
                pos += 1
            slots.setdefault(int(pos), []).extend(g)
        if rd:
            hk = (i + 1) & 1
            if do_b:
                if hk == 0:
                    slots[0] = ["s_add_u32 s75, s75, 8192", f"s_cmp_eq_u32 s75, {XWREG}", "s_cselect_b32 s75, 0, s75"]
                    slots[1] = ["v_add_u32 v17, s75, v15"]
                    taken.add(0)
                else:
                    slots[1] = ["v_add_u32 v17, s75, v16"]
            rl = reads((u + 1) & 3, 1 - fs, cs_r, do_b)
            if do_b:
                rl = rl[4:8] + rl[:4] + rl[8:]
            pos = 0 if not cs_m else 1
            for x in rl:
                while pos in taken and pos < 44:
                    pos += 1
                slots[pos] = [x] + slots.get(pos, [])
                pos += 1
        if side:
            room = len(mf) - side0
            for k, x in enumerate(side):
                slots.setdefault(side0 + (k * room) // len(side), []).append(x)
        merge(e, mf, slots)

    C = 224
    cs = [f"v_accvgpr_read_b32 v{C+r}, a{CSA+r}" for r in range(4)]
    cs += [f"v_cvt_pk_bf16_f32 v{C+4}, v{C}, v{C+1}", f"v_cvt_pk_bf16_f32 v{C+5}, v{C+2}, v{C+3}",
           f"v_lshlrev_b32 v{C+6}, 16, v{C+4}", f"v_and_b32 v{C+7}, 0xffff0000, v{C+4}",
           f"v_lshlrev_b32 v{C+8}, 16, v{C+5}", f"v_and_b32 v{C+9}, 0xffff0000, v{C+5}"]
    cs += [f"v_sub_f32 v{C+r}, v{C+r}, v{C+6+r}" for r in range(4)]
    cs += ["v_bfe_u32 v1, v0, 2, 2", "v_cmp_eq_u32 vcc, 1, v1",
           f"v_cvt_pk_bf16_f32 v{C+10}, v{C}, v{C+1}", f"v_cvt_pk_bf16_f32 v{C+11}, v{C+2}, v{C+3}",
           f"v_cndmask_b32 v{C+4}, v{C+4}, v{C+10}, vcc", f"v_cndmask_b32 v{C+5}, v{C+5}, v{C+11}, vcc",
           f"v_lshlrev_b32 v{C+6}, 16, v{C+10}", f"v_and_b32 v{C+7}, 0xffff0000, v{C+10}",
           f"v_lshlrev_b32 v{C+8}, 16, v{C+11}", f"v_and_b32 v{C+9}, 0xffff0000, v{C+11}"]
    cs += [f"v_sub_f32 v{C+r}, v{C+r}, v{C+6+r}" for r in range(4)]
    cs += ["v_cmp_eq_u32 vcc, 2, v1",
           f"v_cvt_pk_bf16_f32 v{C+10}, v{C}, v{C+1}", f"v_cvt_pk_bf16_f32 v{C+11}, v{C+2}, v{C+3}",
           f"v_cndmask_b32 v{C+4}, v{C+4}, v{C+10}, vcc", f"v_cndmask_b32 v{C+5}, v{C+5}, v{C+11}, vcc"]
    csa = ["s_mul_i32 s3, s66, 12288", "s_lshr_b32 s6, s64, 1", "s_mul_i32 s6, s6, 6144", "s_add_u32 s3, s3, s6",
           *(["s_lshr_b32 s6, s65, 1", "s_lshl_b32 s6, s6, 8", "s_add_u32 s3, s3, s6", "s_and_b32 s6, s65, 1",
              "s_lshl_b32 s6, s6, 10", "s_add_u32 s3, s3, s6"] if ROT == 4 else ["s_lshl_b32 s6, s65, 8", "s_add_u32 s3, s3, s6"]),
           "s_and_b32 s6, s64, 1", "s_lshl_b32 s6, s6, 7",
           "s_add_u32 s3, s3, s6", f"s_add_u32 s3, s3, {CS_REL}",
           "v_bfe_u32 v1, v0, 2, 2", f"v_lshlrev_b32 v{C+12}, 11, v1", f"v_and_b32 v{C+13}, 3, v0",
           f"v_lshl_add_u32 v{C+12}, v{C+13}, 5, v{C+12}", f"v_lshrrev_b32 v{C+13}, 4, v0",
           f"v_lshl_add_u32 v{C+12}, v{C+13}, 3, v{C+12}", "v_cmp_eq_u32 vcc, 3, v1", f"v_mov_b32 v{C+13}, 0x80000000",
           f"v_add_u32 v{C+12}, s3, v{C+12}", f"v_cndmask_b32 v{C+12}, v{C+12}, v{C+13}, vcc"]
    cs_store = [f"buffer_store_dwordx2 {v(C+4,2)}, v{C+12}, {R_MI}, 0 offen sc1"]
    kva = ["v_and_b32 v26, 3, v0", "v_lshlrev_b32 v22, 3, v26", "v_lshlrev_b32 v26, 6, v26",
           "s_lshl_b32 s74, s5, 10", "s_lshl_b32 s3, s64, 8", "s_add_u32 s74, s74, s3",
           "s_lshr_b32 s3, s74, 3", "v_add_u32 v22, s3, v22", f"v_mul_u32_u24 v22, {UR_PITCH}, v22",
           "v_lshrrev_b32 v23, 2, v0", "v_lshlrev_b32 v23, 3, v23", "v_sub_u32 v22, v22, v23",
           "s_lshl_b32 s6, s4, 7", "s_sub_u32 s6, 4088, s6", "v_add_u32 v22, s6, v22",
           "s_lshl_b32 s3, s5, 7", "v_add_u32 v23, s3, v29", f"v_mul_u32_u24 v23, {UR_PITCH}, v23",
           "v_add_u32 v23, 0x1000, v23", "s_lshl_b32 s6, s4, 8", "v_add_u32 v24, s6, v29", "s_movk_i32 s6, 128",
           "v_cmp_gt_u32 vcc, s6, v24", "v_mov_b32 v25, 0x80000000", "s_nop 0", "v_cndmask_b32 v23, v25, v23, vcc"]
    wl = [[f"buffer_load_dwordx4 {a(WR[i],4)}, v26, {R_SH}, s74 offen offset:{16*i}"] for i in range(4)]
    assert NCS == 4
    q4 = -(-len(sts) // 4)
    sides = {0: kva, 1: sts[:q4], 2: sts[q4:2*q4], 3: sts[2*q4:3*q4], 4: sts[3*q4:], 5: csa, 6: cs}
    extras = {4: wl, 5: [st_store], 7: [cs_store]}
    KVI = opt.get("kvi", 8)
    KVB = opt.get("kvb", 12)
    extras[KVI] = extras.get(KVI, []) + kvl
    for i in range(KVB):
        tg = {0: "w1", 1: "w2", 2: "w3"}.get(i)
        vmi = min(63, e.vm - e.tag[tg][1]) if tg else None
        body(i, cs_m=(i < NCS), cs_r=(i < NCS - 1), vm=vmi, side=sides.get(i), side0=2, extra=extras.get(i))
        if i == 3:
            stamp(e, 12)
    stamp(e, 14)
    e.need("kv")
    e.c("kv tile: short conv * v, packed along (reversed) time")
    WF, KF, VF, TMP = 224, [232 + 2 * i for i in range(7)], 246, 1
    OUT = [248, 250, 252, 254, 24, 26, 18, 20]
    for p in range(4):
        for h in range(2):
            for d in range(2):
                e(f"v_accvgpr_read_b32 v{TMP}, a{WR[p]+2*h+d}")
                e(f"v_lshlrev_b32 v{WF+4*d+h}, 16, v{TMP}")
                e(f"v_and_b32 v{WF+4*d+2+h}, 0xffff0000, v{TMP}")
        for i in range(7):
            e(f"v_accvgpr_read_b32 v{TMP}, a{KR[i]+p}")
            unpack(e, KF[i], TMP)
        for i in range(4):
            e(f"v_accvgpr_read_b32 v{TMP}, a{VR[i]+p}")
            e(f"v_pk_mul_f32 {v(KF[i],2)}, {v(KF[i],2)}, {v(WF+6,2)}")
            unpack(e, VF, TMP)
            for j in (2, 1, 0):
                e(f"v_pk_fma_f32 {v(KF[i],2)}, {v(KF[i+3-j],2)}, {v(WF+2*j,2)}, {v(KF[i],2)}")
            e(f"v_pk_mul_f32 {v(KF[i],2)}, {v(KF[i],2)}, {v(VF,2)}")
        for h in range(2):
            ch = 2 * p + h
            o = OUT[ch]
            e(f"v_cvt_pk_bf16_f32 v{o}, v{KF[3]+h}, v{KF[2]+h}")
            e(f"v_cvt_pk_bf16_f32 v{o+1}, v{KF[1]+h}, v{KF[0]+h}")
            e(f"s_mov_b32 s3, {ch*UR_PITCH}")
            e(f"buffer_store_dwordx2 {v(o,2)}, v22, {R_UR}, s3 offen sc1")
    for i in range(4):
        e(f"v_mov_b32 v{WF+i}, 0")
    e(f"buffer_store_dwordx4 {v(WF,4)}, v23, {R_UR}, 0 offen sc1")
    stamp(e, 15)
    for i in range(KVB, 12):
        body(i)
    e("s_mov_b32 s82, 0")
    e.label("L_g1_loop")
    for i in range(12, 16):
        body(i, vm=16)
    e("s_cmp_lg_u32 s82, 0")
    e("s_cbranch_scc1 L_f0_nosig")
    signal(e, "f0", f"buffer_atomic_add v1, off, {R_DB}, 0 sc1")
    e("s_add_u32 s82, s82, 1")
    e("s_cmp_lt_u32 s82, 3")
    e("s_cbranch_scc1 L_g1_loop")
    for k in range(3):
        e.tag[f"it{21+k}"] = e.tag[f"it{13+k}"]
    e.vm_done = 0
    stamp(e, 13)

    def poll(loadins, cond, lab):
        e("s_mov_b32 s82, 0")
        e.label(f"L_{lab}_chk")
        cond()
        e(f"s_cbranch_scc1 L_{lab}_ok")
        e("s_sleep 1")
        e.l.append("    " + loadins)
        e.l.append("    s_waitcnt vmcnt(0)")
        e("s_add_u32 s82, s82, 1")
        e(f"s_cmp_lt_u32 s82, {SPIN_LIMIT}")
        e(f"s_cbranch_scc1 L_{lab}_chk")
        e.label(f"L_{lab}_ok")

    f0_load = f"buffer_load_dword v18, off, {R_DB}, 0 sc1"

    def f0_cond():
        e("v_readfirstlane_b32 s78, v18")
        e("s_nop 1")
        e("s_cmp_ge_u32 s78, 256")

    def I(s_, tag=None):
        return lambda: e(s_, tag=tag)

    def urdma(c):
        g = [[f"s_add_u32 m0, s70, {c*CV_CP}", f"s_add_u32 s79, s83, {2*c}", f"buffer_load_dwordx4 v2, {R_UR}, s79 offen sc1 lds"]]
        g += [[f"buffer_load_dwordx4 v2, {R_UR}, s79 offen offset:{1024*q} sc1 lds"] for q in range(1, 4)]
        g[-1].append(lambda: e.mark(f"ur{c}", "v"))
        return g

    body(24)
    body(25, extra=[[f0_load, lambda: e.mark("f0", "v")]])
    body(26, side=["v_and_b32 v19, 15, v0", "v_lshlrev_b32 v19, 3, v19",
                   "s_lshl_b32 s85, s65, 11", "s_lshl_b32 s3, s64, 9", "s_add_u32 s85, s85, s3",
                   f"s_mul_i32 s83, s69, {UR_PITCH}", "s_lshl_b32 s84, s69, 12"])
    stl = [[f"buffer_load_dwordx2 {v(20+2*j,2)}, v19, {R_MI}, s85 offen offset:{ST_REL+128*j} sc1"] for j in range(4)]
    stl[-1].append(lambda: e.mark("st", "v"))
    body(27, xd=False)
    body(28, xd=False, aug_w=True, pre=lambda: poll(f0_load, f0_cond, "f0"), extra=stl, needs=["f0"])
    body(29, xd=False, wd=False, extra=urdma(0) + urdma(2))
    body(30, xd=False, wd=False,
         side=["v_and_b32 v3, 15, v0", "v_lshrrev_b32 v28, 4, v0",
               "v_lshrrev_b32 v4, 2, v3", f"v_mul_u32_u24 v4, {CV_CP}, v4", "v_and_b32 v6, 3, v0",
               "v_lshl_add_u32 v4, v6, 4, v4", "v_add_u32 v4, 4096, v4", f"v_add_u32 v5, {CV_HZ}, v2",
               "v_cmp_gt_u32 vcc, 32, v0", "v_add_u32 v29, s70, v2", "v_mov_b32 v248, 0", "v_mov_b32 v249, 0",
               "v_cndmask_b32 v5, v4, v5, vcc", "v_add_u32 v5, s70, v5", "v_mov_b32 v250, 0", "v_mov_b32 v251, 0"])
    hd = [[f"s_add_u32 m0, s70, {CV_H}", "s_nop 0", f"buffer_load_dwordx4 v2, {R_SK}, s84 offen lds"]]
    hd += [[f"buffer_load_dwordx4 v2, {R_SK}, s84 offen offset:{1024*q} lds"] for q in range(1, 4)]
    hd[-1].append(lambda: e.mark("hk", "v"))
    hd = [[x.replace(" lds", " nt lds") if isinstance(x, str) else x for x in g] for g in hd]
    wdpf = [["s_mul_i32 s74, s69, 7168"]]
    wdpf += [[f"buffer_load_dwordx4 a[252:255], v2, {R_WD}, s74 offen offset:{1024*(q&3)}"] + (["s_add_u32 s74, s74, 4096"] if q == 3 else []) for q in range(7)]
    WPF = opt.get("wpf", 33)
    if WPF == 31:
        hd += wdpf
    bb = ["v_cmp_gt_u32 vcc, 48, v0", "ds_write_b128 v5, v[248:251]"]
    for j in range(4):
        bb += [f"v_lshrrev_b32 v1, 16, v{20+2*j}", f"v_or_b32 v1, v1, v{20+2*j}", "v_cndmask_b32 v1, 0, v1, vcc"]
        bb += [f"v_accvgpr_write_b32 a{FA[0]+56+4*j+r}, v1" for r in range(4)]
    for j in range(4):
        bb += [f"v_mul_f32 v{20+2*j}, 0xbfb8aa3b, v{21+2*j}", f"v_mul_f32 v{21+2*j}, v{21+2*j}, v{21+2*j}",
               f"v_rcp_f32 v{21+2*j}, v{21+2*j}"]
    body(31, xd=False, wd=False, do_b=False, extra=hd, side=bb, side0=4, needs=["st"])
    TB = [224, 236]
    def odr(q):
        b = TB[q & 1]
        return [I(f"ds_read_b128 {v(b,4)}, v29 offset:{1024*q}"),
                I(f"ds_read_b128 {v(b+4,4)}, v29 offset:{2*CV_CP+1024*q}"),
                I(f"ds_read_b32 v{b+8}, v29 offset:{2*CV_CP+1024*q+16}", tag=f"od{q}")]
    def odc(q):
        b = TB[q & 1]
        r = [lambda: e.need(f"od{q}")]
        r += [I(f"v_alignbit_b32 v{b+i}, v{b+4+i}, v{b+i}, 16") for i in range(4)]
        r.append(I(f"ds_write_b128 v29, {v(b,4)} offset:{CV_CP+1024*q}"))
        r += [I(f"v_alignbit_b32 v{b+4+i}, v{b+5+i}, v{b+4+i}, 16") for i in range(4)]
        r.append(I(f"ds_write_b128 v29, {v(b+4,4)} offset:{3*CV_CP+1024*q}"))
        return r
    ha = ["s_lshl_b32 s3, s65, 4", "s_lshl_b32 s6, s64, 2", "s_add_u32 s3, s3, s6",
          f"s_mul_i32 s3, s3, {H_SB}", "s_mul_i32 s6, s66, 7", "s_add_u32 s6, s6, 1",
          "s_lshr_b32 s6, s6, 1", "s_lshl_b32 s6, s6, 10", "s_add_u32 s3, s3, s6",
          "v_add_u32 v18, s3, v2", "s_movk_i32 s6, 3072", "s_bitcmp1_b32 s66, 0",
          "s_cselect_b32 s6, 0xfffffc08, s6", "v_add_u32 v19, s6, v18"]
    ca = ["v_and_b32 v4, 3, v3", "v_sub_u32 v4, 3, v4", f"v_mul_u32_u24 v16, {CV_CP}, v4",
          "v_and_b32 v4, 12, v3", "v_lshlrev_b32 v4, 1, v4", "v_sub_u32 v16, v16, v4",
          "v_lshl_add_u32 v16, v28, 4, v16", f"s_add_u32 s3, s70, {2*2028 - 3584}", "v_add_u32 v16, s3, v16",
          "v_lshlrev_b32 v17, 5, v3", "v_lshl_add_u32 v17, v28, 4, v17", f"s_add_u32 s3, s70, {CV_H - 32}",
          "v_add_u32 v17, s3, v17"]
    seq = odr(0) + odr(1) + ha + odc(0) + odr(2) + odc(1) + odr(3) + ca[:6] + odc(2) + ca[6:] + odc(3)
    body(32, xd=False, wd=False, rd=False, side=seq, side0=0, needs=["ur2"])
    stamp(e, 3)

    e.c("SwiGLU epilogue")

    def swiglu(g, u, tmp, out, kc):
        for q in range(2):
            e(f"v_pk_mul_f32 {v(tmp+2*q,2)}, {v(g+2*q,2)}, {v(kc,2)} op_sel_hi:[1,0]")
        for q in range(4):
            e(f"v_exp_f32 v{tmp+q}, v{tmp+q}")
        for q in range(2):
            e(f"v_pk_mul_f32 {v(g+2*q,2)}, {v(g+2*q,2)}, {v(u+2*q,2)}")
        for q in range(2):
            e(f"v_pk_fma_f32 {v(tmp+2*q,2)}, {v(tmp+2*q,2)}, {v(kc,2)}, {v(kc,2)} op_sel:[0,1,1] op_sel_hi:[1,1,1]")
        for q in (2, 3, 0, 1):
            e(f"v_rcp_f32 v{tmp+q}, v{tmp+q}")
        for q in (1, 0):
            e(f"v_pk_mul_f32 {v(g+2*q,2)}, {v(g+2*q,2)}, {v(tmp+2*q,2)}")
        for q in (1, 0):
            e(f"v_cvt_pk_bf16_f32 v{out+q}, v{g+2*q}, v{g+2*q+1}")

    def cv_reads(fs):
        o = 64 * fs
        r = []
        for i in range(8):
            r.append(f"ds_read_b128 {a(o+32+4*i,4)}, v17 offset:{512*i}")
            r.append(f"ds_read_b64 {a(o+4*i,2)}, v16 offset:{(7-i)*512}")
            r.append(f"ds_read_b64 {a(o+4*i+2,2)}, v16 offset:{(7-i)*512+8}")
        r += ["v_subrev_u32 v16, 64, v16", "v_subrev_u32 v17, 64, v17"]
        return r

    e("s_nop 4")
    n = 0
    for j in range(4):
        e(f"s_mov_b32 s78, {j*H_SB}")
        for i in range(4):
            o = 8 + 4 * (n & 1)
            if i < 3:
                for k in range(2):
                    t_ = 2 * i + k
                    swiglu(acc(t_, j), acc(7 + t_, j), 4, o + 2 * k, 20 + 2 * j)
                e(f"buffer_store_dwordx4 {v(o,4)}, v18, {R_H}, s78 offen offset:{1024*i} sc1", tag="hst")
            else:
                for r in range(4):
                    e(f"v_accvgpr_read_b32 v{248+r}, a{AC6+4*j+r}")
                    e(f"v_accvgpr_read_b32 v{252+r}, a{AC6+16+4*j+r}")
                swiglu(248, 252, 4, o, 20 + 2 * j)
                e(f"buffer_store_dwordx2 {v(o,2)}, v19, {R_H}, s78 offen sc1", tag="hst")
            n += 1
        if j == opt.get("cvj", 3):
            e.need("hk")
            for x in cv_reads(0):
                e(x)
    if WPF == 33:
        flat(wdpf)
    stamp(e, 4)

    e.c("long conv")
    CA = 32

    def cv_mfmas(fs, first):
        o = 64 * fs
        prs = [(p, w) for p in range(8) for w in range(8) if p + w <= 7]
        return [f"{MF} {v(CA+4*(p+w),4)}, {a(o+4*p,4)}, {a(o+32+4*w,4)}, {'0' if (first and p == 0) else v(CA+4*(p+w),4)}"
                for p, w in prs]

    def cv_body(r, rd=True, extra=None, early=None):
        fs = r & 1
        e.wait(lg=0)
        slots = {}
        if early:
            slots[0] = list(early)
        if rd:
            for k, x in enumerate(cv_reads(1 - fs)):
                slots.setdefault(k, []).append(x)
        if extra:
            for k, g in enumerate(extra):
                slots.setdefault(k * 2 if not rd else 26 + k, []).extend(g)
        merge(e, cv_mfmas(fs, r == 0), slots)

    G_H, G_WD, G_TR = 192, 200, 204
    g2s = [["s_lshl_b32 s72, s64, 1", "s_lshl_b32 s73, s67, 3"],
           ["v_lshrrev_b32 v6, 3, v0", "v_bfe_u32 v7, v0, 1, 2"],
           ["v_xor_b32 v7, v7, v28", "v_and_b32 v4, 1, v0"],
           [f"v_lshlrev_b32 v{G_WD}, 11, v6", f"v_lshl_add_u32 v{G_WD}, v7, 5, v{G_WD}"],
           [f"v_lshl_add_u32 v{G_WD}, v4, 4, v{G_WD}", "s_lshl_b32 s87, s68, 7"],
           [f"v_add_u32 v{G_WD}, s87, v{G_WD}", f"v_add_u32 v{G_WD+1}, 15360, v{G_WD}"],
           [f"v_add_u32 v{G_WD+2}, 30720, v{G_WD}", f"v_add_u32 v{G_WD+3}, 46080, v{G_WD}"],
           ["s_lshl_b32 s71, s64, 14", f"s_add_u32 s71, s71, {WB}", "v_bfe_u32 v6, v0, 2, 2"],
           ["s_lshl_b32 s75, s64, 10", "s_lshl_b32 s76, s64, 16"],
           ["v_and_b32 v7, 3, v0", "v_lshl_add_u32 v6, v28, 2, v6"],
           ["v_bfe_u32 v4, v6, 1, 2", "v_lshlrev_b32 v6, 7, v6"],
           ["v_lshl_add_u32 v6, v7, 3, v6", "v_add_u32 v6, s71, v6"]]
    for dt in range(4):
        g2s.append([f"v_xor_b32 v7, {dt}, v4", f"v_lshl_add_u32 v{G_TR+dt}, v7, 5, v6"])
    g2s.append(["v_and_b32 v23, 31, v0", "v_lshlrev_b32 v23, 2, v23"])
    g2s.append(["s_lshr_b32 s77, s67, 1", "s_lshl_b32 s77, s77, 7", f"s_add_u32 s77, s77, {HF_REL}"])
    for jj in range(8):
        g2s.append([f"s_add_u32 s78, s72, {jj}", "s_and_b32 s78, s78, 7", "s_add_u32 s78, s78, s73"])
        g2s.append([f"s_mul_i32 s78, s78, {H_SB}", f"v_add_u32 v{G_H+jj}, s78, v2"])

    def g2dma(slot):
        r = [[f"s_add_u32 m0, s71, {slot*4096}", "s_nop 0", f"buffer_load_dwordx4 v{G_WD}, {R_WD}, s76 offen lds"]]
        for jj in range(1, 4):
            r.append([f"buffer_load_dwordx4 v{G_WD+jj}, {R_WD}, s76 offen offset:{1024*jj} lds"])
        r[-1].append("s_add_u32 s76, s76, 0x40000")
        return r

    HR, WF2 = 128, 0

    def hload(slot, jj):
        r = [f"buffer_load_dwordx4 {a(HR+slot*32+4*jj,4)}, v{G_H+jj}, {R_H}, s75 offen{'' if opt.get('hplain') else ' sc1'}"]
        if jj == 7:
            r.append("s_add_u32 s75, s75, 4096")
        return r

    fl_load = f"buffer_load_dword v22, v23, {R_MI}, s77 offen sc1"

    def flag_cond():
        e("v_cmp_ne_u32 vcc, 0, v22")
        e("s_cmp_eq_u64 vcc, exec")

    R_SIG = opt.get("rsig", 3)
    R_POLL = opt.get("rpoll", 6)
    ex_by_r = {0: g2s[:10], 1: g2s[10:20], 2: g2s[20:30], 3: g2s[30:], 4: g2dma(0) + g2dma(1), 5: g2dma(2) + g2dma(3)}
    M1 = opt.get("m1", 1)
    UZ = 224
    pre_z = ["v_lshlrev_b32 v12, 5, v3", "v_lshl_add_u32 v12, v28, 3, v12", f"s_add_u32 s78, s70, {2*2044 - 3584}",
             "v_sub_u32 v13, s78, v12"] + [f"ds_read_b64 {v(UZ+2*i,2)}, v13 offset:{(7-i)*512}" for i in range(8)]
    hl = []
    for sl in range(4):
        for jj in range(0, 8, 2):
            hl.append(hload(sl, jj) + hload(sl, jj + 1))
    for r in range(7):
        if r == R_SIG:
            e.need("hst")
            e("s_barrier")
            signal(e, "f1", f"buffer_store_dword v1, off, {R_MI}, s80 sc1")
            stamp(e, 5)
        cv_body(r, extra=ex_by_r.get(r), early=([fl_load] if (r == R_POLL and not M1) else None))
    if not M1:
        e.wait(vm=0)
        poll(fl_load, flag_cond, "f1")
        stamp(e, 6)
        m0_ = e.vm
        for k, x in enumerate(pre_z):
            hl[k].append(x)
        cv_body(7, rd=False, extra=hl)
    else:
        cv_body(7, rd=False, extra=[[x] for x in pre_z], early=[I(fl_load, tag="f1")])

    def trreads(slot, fs):
        return [f"ds_read_b64_tr_b16 {a(WF2+16*fs+4*dt+2*h,2)}, v{G_TR+dt} offset:{slot*4096+h*2048}"
                for dt in range(4) for h in range(2)]

    e("s_and_b32 s78, s69, 1")
    e("s_lshl_b32 s78, s78, 4")
    e("s_lshr_b32 s90, s90, s78")
    e("s_lshl_b32 s90, s90, 16")
    e("v_lshlrev_b32 v12, 5, v3")
    e("v_lshrrev_b32 v13, 1, v28")
    e("v_lshl_add_u32 v12, v13, 4, v12")
    e("v_and_b32 v13, 1, v28")
    e("v_lshl_add_u32 v12, v13, 9, v12")
    e.wait(lg=0)
    if not M1:
        for x in trreads(0, 0):
            e(x)
    for i in range(8):
        u0, u1 = UZ + 2 * i, UZ + 2 * i + 1
        y = CA + 4 * i
        e(f"v_and_b32 v4, 0xffff0000, v{u1}")
        e(f"v_lshlrev_b32 v5, 16, v{u1}")
        e(f"v_and_b32 v6, 0xffff0000, v{u0}")
        e(f"v_lshlrev_b32 v7, 16, v{u0}")
        for q in range(4):
            e(f"v_fmac_f32 v{y+q}, s90, v{4+q}")
        e(f"v_cvt_pk_bf16_f32 v{u0}, v{y}, v{y+1}")
        e(f"v_cvt_pk_bf16_f32 v{u1}, v{y+2}, v{y+3}")
    if M1:
        e.need("f1")
        poll(fl_load, flag_cond, "f1")
        stamp(e, 6)
        m0_ = e.vm
        flat(hl)
        for x in trreads(0, 0):
            e(x)
    else:
        e("s_nop 1")
    for k in range(4):
        b = UZ + 4 * k
        e(f"v_permlane16_swap_b32 v{b}, v{b+2}")
        e(f"v_permlane16_swap_b32 v{b+1}, v{b+3}")
        e(f"buffer_store_dwordx4 {v(b,4)}, v12, {R_ZT}, s84 offen offset:{1024*k} sc1")
    stamp(e, 7)
    nz = e.vm - m0_ - 32

    e.c("GEMM2")
    A2 = 64

    def acc2(dt, jj):
        return A2 + (jj * 4 + dt) * 4

    def body2(sl, vm, do_read, do_load, extra=None, pre=None, first=False, side=None):
        fs = sl & 1
        e.wait(vm=vm, lg=0)
        if pre:
            pre()
        slots = {}
        if do_read:
            for i, x in enumerate(trreads((sl + 1) % 4, 1 - fs)):
                slots.setdefault(4 + i + i // 3, []).append(x)
        if do_load:
            for i, grp in enumerate(g2dma(sl)):
                slots.setdefault(i, []).extend(grp)
            for jj in range(8):
                slots.setdefault(4 * jj + 3, []).extend(hload(sl, jj))
        if extra:
            for i, grp in enumerate(extra):
                slots.setdefault(2 * i, []).extend(grp)
        if side:
            for k, x in enumerate(side):
                slots.setdefault((k * 32) // len(side), []).append(x)
        mf = [f"{MF} {v(acc2(dt,jj),4)}, {a(WF2+16*fs+4*dt,4)}, {a(HR+sl*32+4*jj,4)}, {'0' if first else v(acc2(dt,jj),4)}"
              for jj in range(8) for dt in range(4)]
        merge(e, mf, slots)

    XR, SR, ZR = 32, 48, 224
    fa = ["v_and_b32 v6, 1, v28", "v_lshrrev_b32 v7, 1, v28", "v_lshl_or_b32 v6, v6, 1, v7",
          "s_add_u32 s85, s73, s72", "s_lshl_b32 s78, s85, 15", "s_add_u32 s78, s78, s87",
          "v_lshlrev_b32 v24, 11, v3", "v_lshl_add_u32 v24, v6, 4, v24", "v_add_u32 v24, s78, v24",
          "v_add_u32 v25, 0x8000, v24", "v_lshlrev_b32 v26, 3, v3", "s_lshl_b32 s86, s85, 7",
          "v_lshlrev_b32 v23, 2, v3", "s_lshl_b32 s77, s68, 6", f"s_add_u32 s77, s77, {ZF_REL}",
          "v_lshrrev_b32 v21, 2, v0", "v_lshlrev_b32 v21, 12, v21", "v_and_b32 v27, 3, v0",
          "v_lshl_add_u32 v21, v27, 4, v21", "s_lshl_b32 s78, s68, 18", "s_lshl_b32 s79, s85, 5",
          "s_add_u32 s78, s78, s79", "v_add_u32 v21, s78, v21",
          "v_bfe_u32 v7, v0, 2, 2", "v_lshl_add_u32 v7, v6, 3, v7", "v_lshlrev_b32 v7, 6, v7",
          "v_lshl_add_u32 v7, v27, 3, v7", "v_add_u32 v7, s71, v7"]
    for dl in range(1, 4):
        fa += [f"s_sub_u32 s78, s64, {dl}", "s_and_b32 s78, s78, 3", f"s_mul_i32 s78, s78, {XWREG}",
               f"s_add_u32 s78, s78, {(2*dl-2)*4096}", f"v_add_u32 v{12+dl}, s78, v2"]
    body2(0, 24 + nz, True, True, first=True)
    body2(1, 16 + nz + 12, True, True, side=fa[:22])
    body2(2, 8 + nz + 24, True, True, side=fa[22:])
    body2(3, 32, True, True)
    e("s_barrier")
    signal(e, "f2", f"buffer_store_dword v1, off, {R_MI}, s81 sc1")
    e("s_mov_b32 s82, 1")
    e.label("L_g2_loop")
    for sl in range(4):
        body2(sl, 32, True, True)
    e("s_add_u32 s82, s82, 1")
    e("s_cmp_lt_u32 s82, 6")
    e("s_cbranch_scc1 L_g2_loop")
    extra = [[fl_load]]
    for e2 in range(2):
        for pr in range(2):
            extra.append([f"buffer_load_dwordx4 {v(XR+4*(2*e2+pr),4)}, v{24+e2}, {R_X}, 0 offen offset:{64*pr}"])
        extra.append([f"buffer_load_dwordx2 {v(SR+2*e2,2)}, v26, {R_MI}, s86 offen offset:{ST_REL+128*e2} sc1"])
    body2(0, 32, True, False, extra)
    body2(1, 20 + 7, True, False)
    body2(2, 8 + 7, True, False)
    zd = [["s_mov_b32 m0, s71", "s_nop 0", f"buffer_load_dwordx4 v21, {R_ZT}, 0 offen sc1 lds"]]
    for i in range(1, 4):
        zd.append([f"s_mov_b32 s78, {i*(65536-1024)}", f"buffer_load_dwordx4 v21, {R_ZT}, s78 offen offset:{1024*i} sc1 lds"])
    body2(3, 6, False, False, extra=zd, pre=lambda: poll(fl_load, flag_cond, "f2"))
    stamp(e, 8)
    e.c("cross-wave reduction")
    e("s_nop 7")
    for jj in range(2, 8):
        for dt in range(4):
            e(f"ds_write_b128 v29, {v(acc2(dt,jj),4)} offset:{((jj-2)*4+dt)*1024}")
    e.wait(lg=0)
    e("s_barrier")
    stamp(e, 9)
    RB = A2 + 32
    for dl in range(1, 4):
        for q in range(8):
            e(f"ds_read_b128 {v(RB+((dl-1)*8+q)*4,4)}, v{12+dl} offset:{q*1024}")
        if dl > 1:
            e.wait(lg=8)
            for q in range(16):
                e(f"v_pk_add_f32 {v(A2+2*q,2)}, {v(A2+2*q,2)}, {v(RB+(dl-2)*32+2*q,2)}")
    e.wait(vm=0, lg=0)
    for e2 in range(2):
        for pr in range(2):
            for hh in range(2):
                e(f"ds_read_b64_tr_b16 {v(ZR+4*(2*e2+pr)+2*hh,2)}, v7 offset:{(32*pr+4*hh)*64 + 32*e2}")
    for q in range(16):
        e(f"v_pk_add_f32 {v(A2+2*q,2)}, {v(A2+2*q,2)}, {v(RB+64+2*q,2)}")
    e("s_nop 1")
    for e2 in range(2):
        for pr in range(2):
            for r in range(4):
                e(f"v_permlane16_swap_b32 v{acc2(2*pr,e2)+r}, v{acc2(2*pr+1,e2)+r}")
    e.wait(lg=0)
    for e2 in range(2):
        st = SR + 2 * e2
        for pr in range(2):
            i = 2 * e2 + pr
            A0 = acc2(2 * pr, e2)
            for q in range(4):
                unpack(e, 52, XR + 4 * i + q)
                unpack(e, 56, ZR + 4 * i + q)
                e(f"v_pk_add_f32 v[54:55], v[52:53], {v(st,2)} op_sel_hi:[1,0]")
                e(f"v_pk_add_f32 v[52:53], v[52:53], {v(A0+2*q,2)}")
                e(f"v_pk_mul_f32 v[54:55], v[54:55], {v(st,2)} op_sel:[0,1] op_sel_hi:[1,1]")
                e("v_pk_fma_f32 v[52:53], v[54:55], v[56:57], v[52:53]")
                e(f"v_cvt_pk_bf16_f32 v{RB+4*i+q}, v52, v53")
            e(f"buffer_store_dwordx4 {v(RB+4*i,4)}, v{24+e2}, {R_OUT}, 0 offen offset:{64*pr}{' sc1' if opt.get('osc', 1) else ''}")
    stamp(e, 10)
    if STAMPS or DST:
        e.wait(vm=0)
    stamp(e, 11)
    e.label("L_end")
    name = NAME + "_kernel"
    return f""".globl {name}
.p2align 8
.type {name},@function
{name}:
{e.text()}    s_endpgm
.section .rodata,"a"
.p2align 6
.amdhsa_kernel {name}
  .amdhsa_next_free_vgpr 512
  .amdhsa_next_free_sgpr 102
  .amdhsa_accum_offset 256
  .amdhsa_group_segment_fixed_size 0
  .amdhsa_kernarg_size 104
  .amdhsa_user_sgpr_count 2
  .amdhsa_user_sgpr_kernarg_segment_ptr 1
  .amdhsa_system_sgpr_workgroup_id_x 1
  .amdhsa_float_denorm_mode_32 3
.end_amdhsa_kernel
"""


def main(opt=None):
    opt = opt or {}
    ref = open("cdna_kernels/" + NAME + ".s.ref").read().split("\n")
    hdr = [l for l in ref if l.startswith(";") and "@launch" not in l]
    out = "\n".join(hdr) + "\n"
    out += f"; @launch grid=(256,1,1) block=(256,1,1) lds={LDS_SIZE}\n"
    out += '.amdgcn_target "amdgcn-amd-amdhsa--gfx950"\n.text\n'
    out += gen(opt)
    return out


if __name__ == "__main__":
    args = [x for x in sys.argv[1:] if not x.startswith("-")]
    opt = {}
    for x in sys.argv[1:]:
        if x == "-stamps":
            STAMPS = True
        elif x == "-light":
            STAMPS = LIGHT = True
        elif x.startswith("-dst"):
            DST = int(x.split("=")[1])
        elif x.startswith("-"):
            k, _, val = x[1:].partition("=")
            opt[k] = int(val) if val else 1
    path = args[0] if args else "cdna_kernels/" + NAME + ".s"
    open(path, "w").write(main(opt))
    print("wrote", path)
```

```python
import sys

NAME = "parallel_sum__ssm_conv_h3__swiglu_ffn__prompt"
S, D, F = 2048, 1024, 3584
KA_Q, KA_K, KA_V, KA_SHK, KA_SSMK, KA_SSMD, KA_BX, KA_WG, KA_WU, KA_WD, KA_OUT, KA_DBG, KA_WS = [8 * i for i in range(13)]

MISC_OFF = 0
ST_REL = 0
HF_REL = 16384
ZF_REL = 16384 + 1024
KF_REL = 16384 + 2048
CS_REL = 32768
PF_REL = CS_REL + 32 * 12288
MISC_SIZE = PF_REL + 1024 * 128
UR_OFF = 4 << 20
UR_PITCH = 4096 + 128
UR_SIZE = D * UR_PITCH
ZT_OFF = 9 << 20
ZT_SIZE = S * D * 2
H_OFF = 16 << 20
H_SIZE = S * F * 2
H_SB = 112 * 1024
PX_OFF = 32 << 20
PX_SIZE = 8 << 20
STAMP_OFF = 64 << 20

LDS_SIZE = 163840
XWREG = 24576
WB = 4 * XWREG
CV_CP = 4160
CV_HZ = 4 * CV_CP
CV_H = CV_HZ + 512
WSTEP = 32 * 7168
SPIN_LIMIT = 200000

STAMPS = False


class E:
    def __init__(self):
        self.l = []
        self.vm = 0
        self.vm_done = 0
        self.lg = 0
        self.lg_done = 0
        self.tag = {}

    def __call__(self, s, tag=None):
        for ln in s.strip("\n").split("\n"):
            ln = ln.strip()
            if ln.startswith("buffer_"):
                self.vm += 1
                if tag:
                    self.tag[tag] = ("v", self.vm)
            elif ln.startswith("ds_"):
                self.lg += 1
                if tag:
                    self.tag[tag] = ("l", self.lg)
            self.l.append("    " + ln)

    def mark(self, tag, kind):
        self.tag[tag] = (kind, self.vm if kind == "v" else self.lg)

    def need(self, *tags):
        nv = max([self.tag[t][1] for t in tags if self.tag[t][0] == "v"] + [0])
        nl = max([self.tag[t][1] for t in tags if self.tag[t][0] == "l"] + [0])
        w = []
        if nv > self.vm_done:
            n = min(self.vm - nv, 63)
            w.append(f"vmcnt({n})")
            self.vm_done = self.vm - n
        if nl > self.lg_done:
            n = min(self.lg - nl, 15)
            w.append(f"lgkmcnt({n})")
            self.lg_done = self.lg - n
        if w:
            self.l.append("    s_waitcnt " + " ".join(w))

    def wait(self, vm=None, lg=None):
        w = []
        if vm is not None:
            w.append(f"vmcnt({vm})")
            self.vm_done = max(self.vm_done, self.vm - vm)
        if lg is not None:
            w.append(f"lgkmcnt({lg})")
            self.lg_done = max(self.lg_done, self.lg - lg)
        self.l.append("    s_waitcnt " + " ".join(w))

    def label(self, s):
        self.l.append(s + ":")

    def c(self, s):
        self.l.append("    ; " + s)

    def text(self):
        return "\n".join(self.l) + "\n"


def v(i, n=1):
    return f"v{i}" if n == 1 else f"v[{i}:{i+n-1}]"


def a(i, n=1):
    return f"a{i}" if n == 1 else f"a[{i}:{i+n-1}]"


DST = False
LIGHT = False
DMAP = {2: 2, 12: 3, 14: 4, 15: 5, 13: 6, 3: 7, 4: 8, 5: 9, 6: 10, 7: 11, 8: 12, 9: 13, 10: 14, 11: 15}


def stamp(e, i):
    if DST and i in DMAP:
        e("s_memrealtime s[96:97]")
        e.wait(lg=0)
        e("s_sub_u32 s96, s96, s98")
        e(f"v_writelane_b32 v31, s96, {DMAP[i]}")
        if i == 11:
            e(f"s_cmp_lg_u32 s69, {DST}")
            e("s_cbranch_scc1 L_end")
            e("v_lshlrev_b32 v30, 2, v0")
            e("s_mov_b64 exec, 0xfffc")
            e("buffer_store_dword v31, v30, s[40:43], 0 offen")
        return
    if not STAMPS or (LIGHT and i not in (3, 7, 11)):
        return
    e("s_memrealtime s[96:97]")
    e("s_memtime s[98:99]")
    e.wait(lg=0)
    e("v_mov_b32 v30, s96")
    e("v_mov_b32 v31, s98")
    e(f"buffer_store_dwordx2 v[30:31], off, s[92:95], s100 offset:{8*i}")


def unpack(e, dst, src):
    e(f"v_lshlrev_b32 v{dst}, 16, v{src}")
    e(f"v_and_b32 v{dst+1}, 0xffff0000, v{src}")


def allreduce32(e, r, t):
    e("s_nop 1")
    for m in ("quad_perm:[1,0,3,2]", "quad_perm:[2,3,0,1]", "row_half_mirror", "row_mirror"):
        e(f"v_add_f32_dpp v{r}, v{r}, v{r} {m} row_mask:0xf bank_mask:0xf")
        e("s_nop 1")
    e(f"v_mov_b32 v{t}, v{r}")
    e("s_nop 1")
    e(f"v_permlane16_swap_b32 v{r}, v{t}")
    e("s_nop 1")
    e(f"v_add_f32 v{r}, v{r}, v{t}")


def round_bf16(e, r):
    e(f"v_cvt_pk_bf16_f32 v{r}, v{r}, v{r}")
    e(f"v_lshlrev_b32 v{r}, 16, v{r}")


R_X, R_WG, R_WU, R_H, R_UR, R_SK, R_ZT, R_MI, R_DB, R_WD, R_OUT, R_K, R_V, R_SH = [f"s[{8+4*i}:{11+4*i}]" for i in range(14)]
MF = "v_mfma_f32_16x16x32_bf16"


def merge(e, mf, slots):
    def do(x):
        if callable(x):
            x()
        else:
            e(x)
    for i, m in enumerate(mf):
        e(m)
        for x in slots.get(i, []):
            do(x)
    for k in sorted(slots):
        if k >= len(mf):
            for x in slots[k]:
                do(x)


def signal(e, lab, ins):
    e("s_cmp_lg_u32 s64, 0")
    e(f"s_cbranch_scc1 L_{lab}_nosig")
    e("v_mov_b32 v1, 1")
    e("s_mov_b64 exec, 1")
    e.l.append("    " + ins)
    e("s_mov_b64 exec, -1")
    e.label(f"L_{lab}_nosig")


def gen(opt):
    e = E()
    ACC = 32

    AC6 = 180

    def acc(ai, j):
        t, m = ai % 7, ai // 7
        assert t < 6
        return ACC + ((m * 6 + t) * 4 + j) * 4

    def accr(ai, j):
        if ai % 7 == 6:
            return a(AC6 + (ai // 7) * 16 + 4 * j, 4)
        return v(acc(ai, j), 4)
    FA = [0, 72]
    CSF, CSS, CSA = 144, 160, 176

    e("s_cmp_ge_u32 s2, 256")
    e("s_cbranch_scc1 L_end")
    if STAMPS:
        e("s_memrealtime s[96:97]")
        e("s_memtime s[98:99]")
    if DST:
        e("s_memrealtime s[98:99]")
        e("v_mov_b32 v31, 0")
    for reg, off in ((8, KA_Q), (12, KA_WG), (16, KA_WU), (88, KA_WS), (28, KA_SSMK), (40, KA_DBG), (44, KA_WD),
                     (48, KA_OUT), (52, KA_K), (56, KA_V), (60, KA_SHK), (86, KA_SSMD)):
        e(f"s_load_dwordx2 s[{reg}:{reg+1}], s[0:1], {off}")
    if opt.get("cpf", 1):
        e("s_getpc_b64 s[82:83]")
        e.label("L_pc")
        e("s_lshr_b32 s78, s2, 3")
        e("s_and_b32 s78, s78, 3")
        e("s_lshl_b32 s78, s78, 14")
        e("v_lshlrev_b32 v50, 6, v0")
        e("v_add_u32 v50, s78, v50")
        e("v_min_u32 v50, L_end-L_pc, v50")
        e("v_mov_b32 v51, s83")
        e("v_add_co_u32 v50, vcc, s82, v50")
        e("s_nop 1")
        e("v_addc_co_u32 v51, vcc, 0, v51, vcc")
        e.l.append("    global_load_dword v245, v[50:51], off")
        e.vm += 1
    e("v_lshrrev_b32 v1, 6, v0")
    e("v_mov_b32 v29, v0")
    e("v_and_b32 v0, 63, v0")
    e("v_readfirstlane_b32 s64, v1")
    e("v_lshlrev_b32 v2, 4, v0")
    e("v_lshrrev_b32 v39, 5, v29")
    e("v_and_b32 v40, 31, v29")
    e("s_lshl_b32 s7, s2, 14")
    e("v_lshlrev_b32 v41, 11, v39")
    e("v_lshl_add_u32 v41, v40, 4, v41")
    e("v_add_u32 v41, s7, v41")
    for reg, size in ((8, S * D * 2), (12, D * F * 2), (16, D * F * 2)):
        e(f"s_mov_b32 s{reg+2}, 0x{size:x}")
        e(f"s_mov_b32 s{reg+3}, 0x20000")
    e("s_and_b32 s6, s2, 7")
    e("s_lshr_b32 s7, s2, 3")
    if opt.get("map1", 0) == 3:
        e("s_mov_b32 s65, s6")
        e("s_mov_b32 s66, s7")
    elif opt.get("map1", 0) == 1:
        e("s_and_b32 s65, s7, 3")
        e("s_lshl_b32 s65, s65, 1")
        e("s_and_b32 s78, s6, 1")
        e("s_add_u32 s65, s65, s78")
        e("s_lshr_b32 s66, s7, 2")
        e("s_lshr_b32 s78, s6, 1")
        e("s_lshl_b32 s78, s78, 3")
        e("s_add_u32 s66, s66, s78")
    elif opt.get("map1", 0) == 2:
        e("s_and_b32 s65, s7, 1")
        e("s_lshl_b32 s65, s65, 2")
        e("s_and_b32 s78, s6, 3")
        e("s_add_u32 s65, s65, s78")
        e("s_lshr_b32 s66, s7, 1")
        e("s_lshr_b32 s78, s6, 2")
        e("s_lshl_b32 s78, s78, 4")
        e("s_add_u32 s66, s66, s78")
    else:
        e("s_and_b32 s65, s7, 7")
        e("s_lshr_b32 s66, s7, 3")
        e("s_lshl_b32 s78, s6, 2")
        e("s_add_u32 s66, s66, s78")
    e(f"s_mul_i32 s70, s64, {XWREG}")
    e("s_lshl_b32 s71, s64, 11")
    e(f"s_add_u32 s71, s71, {WB}")
    ROT = opt.get("rot", 8)
    NCS = 32 // ROT
    e(f"s_lshr_b32 s3, s65, {1 if ROT == 4 else 0}")
    if opt.get("rotmask") is not None:
        e(f"s_and_b32 s3, s3, {opt['rotmask']}")
    e(f"s_mul_i32 s72, s3, {NCS*WSTEP}")
    e("s_add_u32 s73, s72, 27648")
    e("v_lshrrev_b32 v22, 4, v0")
    e("v_bfe_u32 v23, v0, 1, 3")
    e("s_and_b32 s78, s64, 1")
    e("s_lshl_b32 s78, s78, 2")
    e("v_or_b32 v24, s78, v22")
    e("v_xor_b32 v23, v23, v24")
    e("s_and_b32 s78, s66, 1")
    e("v_add_u32 v24, s78, v23")
    e("v_cmp_eq_u32 vcc, 7, v24")
    e("v_and_b32 v25, 1, v0")
    e("s_lshl_b32 s78, s64, 3")
    e("v_cndmask_b32 v24, v24, 0, vcc")
    e("v_lshlrev_b32 v3, 5, v24")
    e("v_lshl_add_u32 v3, v25, 4, v3")
    e("v_add_u32 v26, s78, v22")
    e("v_mul_u32_u24 v27, 7168, v26")
    e("v_add_u32 v3, v3, v27")
    e("s_mul_i32 s78, s66, 224")
    e("v_add_u32 v3, s78, v3")
    e("v_cmp_eq_u32 vcc, 7, v23")
    e("v_mov_b32 v27, 0x80000000")
    e("v_lshlrev_b32 v28, 8, v26")
    e("v_cndmask_b32 v3, v3, v27, vcc")
    e("v_lshl_add_u32 v28, v23, 5, v28")
    e("v_lshl_add_u32 v28, v25, 4, v28")
    e("v_lshrrev_b32 v23, 3, v0")
    e("v_and_b32 v24, 7, v0")
    e("v_xor_b32 v24, v24, v22")
    e("s_lshl_b32 s78, s65, 19")
    e("s_lshl_b32 s79, s64, 17")
    e("s_add_u32 s78, s78, s79")
    e("v_lshlrev_b32 v4, 11, v23")
    e("v_add_u32 v4, s78, v4")
    e("v_xor_b32 v25, 4, v24")
    e("v_lshl_add_u32 v5, v25, 4, v4")
    e("v_lshl_add_u32 v4, v24, 4, v4")
    e("v_add_u32 v5, 15360, v5")
    e("v_add_u32 v6, 30720, v4")
    e("v_add_u32 v7, 30720, v5")
    e(f"s_mul_i32 s77, s3, {NCS*64}")
    e("s_add_u32 s76, s70, 16384")
    e(f"s_add_u32 s91, s70, {XWREG}")

    wstep = [0]

    def wdma(u, aug=False):
        g = []
        nt = " nt" if (opt.get("ntw", 0) == 2 or (opt.get("ntw", 0) == 1 and wstep[0] < NCS)) else ""
        wstep[0] += 1
        if aug:
            g.append([f"s_add_u32 m0, s71, {u*16384}", "s_nop 0", f"buffer_load_dwordx4 v28, {R_MI}, 0 offen sc1 lds"])
            g.append([f"buffer_load_dwordx4 v28, {R_MI}, 0 offen offset:1024 sc1 lds"])
            g.append([f"s_add_u32 m0, s71, {u*16384+8192}", "s_movk_i32 s78, 6144", f"buffer_load_dwordx4 v28, {R_MI}, s78 offen sc1 lds"])
            g.append([f"buffer_load_dwordx4 v28, {R_MI}, s78 offen offset:1024 sc1 lds"])
            return g
        g.append([f"s_add_u32 m0, s71, {u*16384}", "s_nop 0", f"buffer_load_dwordx4 v3, {R_WG}, s72 offen{nt} lds"])
        g.append([f"buffer_load_dwordx4 v3, {R_WG}, s73 offen offset:1024{nt} lds"])
        g.append([f"s_add_u32 m0, s71, {u*16384+8192}", "s_nop 0", f"buffer_load_dwordx4 v3, {R_WU}, s72 offen{nt} lds"])
        g.append([f"buffer_load_dwordx4 v3, {R_WU}, s73 offen offset:1024{nt} lds", f"s_add_u32 s72, s72, {WSTEP}"])
        g.append([f"s_cmp_eq_u32 s72, {32*WSTEP}", "s_cselect_b32 s72, 0, s72", "s_add_u32 s73, s72, 27648"])
        return g

    def xdma(hf):
        g = []
        if hf == 0:
            g.append(["s_mov_b32 m0, s76", "s_nop 0", f"buffer_load_dwordx4 v4, {R_X}, s77 offen lds"])
            so = "s77"
        else:
            g.append(["s_add_u32 m0, s76, 4096", "s_add_u32 s79, s77, 0x10000", f"buffer_load_dwordx4 v4, {R_X}, s79 offen lds"])
            so = "s79"
        for q in range(1, 4):
            g.append([f"buffer_load_dwordx4 v{4+q}, {R_X}, {so} offen offset:{1024*q} lds"])
        if hf == 1:
            g[-1] += ["s_add_u32 s77, s77, 128", "s_and_b32 s77, s77, 0x7ff"]
            g.append(["s_add_u32 s76, s76, 8192", "s_cmp_eq_u32 s76, s91", "s_cselect_b32 s76, s70, s76"])
        return g

    def flat(gs):
        for g in gs:
            for x in g:
                e(x)

    e.wait(lg=0)
    XS = 224
    flat(wdma(0)); flat(xdma(0)); flat(xdma(1)); e.mark("w0", "v")
    flat(wdma(1)); e.mark("w1", "v")
    for j in range(4):
        e(f"buffer_load_dwordx4 {v(XS+4*j,4)}, v41, {R_X}, 0 offen offset:{512*j}", tag="xs")
    for reg, size in ((52, S * D * 2), (56, S * D * 2)):
        e(f"s_mov_b32 s{reg+2}, 0x{size:x}")
        e(f"s_mov_b32 s{reg+3}, 0x20000")
    e("s_and_b32 s4, s2, 31")
    e("s_lshr_b32 s5, s2, 5")
    e("s_lshl_b32 s78, s4, 17")
    e("s_lshl_b32 s79, s5, 8")
    e("s_add_u32 s78, s78, s79")
    KVM = opt.get("kvm", 1)
    if KVM:
        e("s_and_b32 s79, s64, 1")
        e("s_lshl_b32 s79, s79, 7")
        e("s_add_u32 s78, s78, s79")
        e("s_lshr_b32 s79, s64, 1")
        e("s_lshl_b32 s79, s79, 16")
        e("s_add_u32 s78, s78, s79")
        e("v_and_b32 v52, 7, v0")
        e("v_lshrrev_b32 v248, 3, v0")
    else:
        e("s_lshl_b32 s79, s64, 6")
        e("s_add_u32 s78, s78, s79")
        e("v_and_b32 v52, 3, v0")
        e("v_lshrrev_b32 v248, 2, v0")
    e("v_lshlrev_b32 v248, 13, v248")
    e("v_lshl_add_u32 v248, v52, 4, v248")
    e("v_add_u32 v248, s78, v248")
    e("v_add_u32 v249, 0xffffe000, v248")
    e("v_add_u32 v250, 0xfffff000, v248")
    e("v_add_u32 v251, 0x1000, v248")
    KR, VR, WR = [212 + 4 * i for i in range(7)], [240 + 4 * i for i in range(4)], [144 + 4 * i for i in range(4)]
    kaddr = [(249, 2048), (250, 0), (250, 2048), (248, 0), (248, 2048), (251, 0), (251, 2048)]
    ntk = " nt" if opt.get("ntkv", 1) else ""
    kvl = [[f"buffer_load_dwordx4 {a(VR[i],4)}, v{r}, {R_V}, 0 offen offset:{o}{ntk}"] for i, (r, o) in enumerate(kaddr[3:])]
    kvl += [[f"buffer_load_dwordx4 {a(KR[i],4)}, v{r}, {R_K}, 0 offen offset:{o}{ntk}"] for i, (r, o) in enumerate(kaddr)]
    kvl[-1].append(lambda: e.mark("kv", "v"))
    for reg, size in ((28, D * S * 2), (40, 256), (44, F * D * 2), (48, S * D * 2), (60, D * 8)):
        e(f"s_mov_b32 s{reg+2}, 0x{size:x}")
        e(f"s_mov_b32 s{reg+3}, 0x20000")
    wsr = [(20, H_OFF, H_SIZE), (24, UR_OFF, UR_SIZE), (32, ZT_OFF, ZT_SIZE), (36, MISC_OFF, MISC_SIZE)]
    if STAMPS:
        wsr.append((92, STAMP_OFF, 1 << 20))
    for reg, off, size in wsr:
        if reg != 92:
            off += opt.get("wsoff", 0) << 20
        e(f"s_add_u32 s{reg}, s88, 0x{off:x}")
        e(f"s_addc_u32 s{reg+1}, s89, 0")
        e(f"s_mov_b32 s{reg+2}, 0x{size:x}")
        e(f"s_mov_b32 s{reg+3}, 0x20000")
    if STAMPS:
        e("s_lshl_b32 s100, s2, 2")
        e("s_add_u32 s100, s100, s64")
        e("s_lshl_b32 s100, s100, 7")
        e("v_mov_b32 v30, s96")
        e("v_mov_b32 v31, s98")
        e("buffer_store_dwordx2 v[30:31], off, s[92:95], s100")
    e("s_lshl_b32 s69, s2, 2")
    e("s_add_u32 s69, s69, s64")
    e("s_lshr_b32 s78, s69, 1")
    e("s_lshl_b32 s78, s78, 2")
    e("s_load_dword s90, s[86:87], s78")
    e("s_bfe_u32 s67, s6, 0x10001")
    e("s_lshl_b32 s67, s67, 3")
    e("s_and_b32 s78, s7, 7")
    e("s_add_u32 s67, s67, s78")
    e("s_lshr_b32 s68, s6, 2")
    e("s_lshl_b32 s68, s68, 2")
    e("s_lshr_b32 s78, s7, 3")
    e("s_add_u32 s68, s68, s78")
    e("s_mul_i32 s78, s66, 12288")
    e(f"s_add_u32 s78, s78, {CS_REL}")
    e("s_cmp_eq_u32 s64, 3")
    e("s_cselect_b32 s78, 0x80000000, s78")
    e("v_add_u32 v28, s78, v28")
    e("v_bfe_u32 v24, v0, 2, 2")
    e("v_and_b32 v25, 3, v0")
    e("v_lshl_add_u32 v26, v22, 3, v24")
    e("v_lshlrev_b32 v26, 8, v26")
    e("v_lshl_add_u32 v26, v25, 3, v26")
    e(f"v_add_u32 v26, {WB}, v26")
    e("v_and_b32 v27, 1, v22")
    e("v_lshl_or_b32 v27, v27, 2, v24")
    for t in range(7):
        e(f"v_xor_b32 v1, {t}, v27")
        e(f"v_lshl_add_u32 v{8+t}, v1, 5, v26")
    e("s_lshr_b32 s78, s64, 1")
    e("s_lshl_b32 s78, s78, 13")
    e("v_add_u32 v26, s78, v26")
    e("s_and_b32 s78, s64, 1")
    e("s_lshl_b32 s78, s78, 2")
    e("v_xor_b32 v27, s78, v27")
    for q in range(4):
        e(f"v_xor_b32 v1, {q}, v27")
        e(f"v_lshl_add_u32 v{18+q}, v1, 5, v26")
    e("v_and_b32 v24, 15, v0")
    e("v_lshrrev_b32 v25, 1, v24")
    e("v_xor_b32 v25, v25, v22")
    e("v_lshlrev_b32 v15, 7, v24")
    e("v_lshl_add_u32 v15, v25, 4, v15")
    e("v_add_u32 v15, s70, v15")
    e("v_xor_b32 v16, 64, v15")
    e("v_and_b32 v24, 3, v0")
    if ROT == 4:
        e("s_bitcmp1_b32 s65, 0")
        e("s_cselect_b32 s78, 0, 0x3f803f80")
        e("v_mov_b32 v25, s78")
    else:
        e("v_mov_b32 v25, 0x3f803f80")
    for q in range(4):
        e(f"v_cmp_eq_u32 vcc, {q}, v24")
        e("s_nop 1")
        e("v_cndmask_b32 v26, 0, v25, vcc")
        for r in range(4):
            e(f"v_accvgpr_write_b32 a{CSS+4*q+r}, v26")
    e("s_lshl_b32 s78, s65, 5")
    e("s_add_u32 s78, s78, s66")
    e("s_lshl_b32 s78, s78, 2")
    e(f"s_add_u32 s80, s78, {HF_REL}")
    e("s_lshl_b32 s78, s2, 2")
    e(f"s_add_u32 s81, s78, {ZF_REL}")
    e("s_lshl_b32 s78, s2, 9")
    e(f"s_add_u32 s78, s78, {PF_REL}")
    e("v_lshlrev_b32 v48, 7, v29")
    e("v_add_u32 v48, s78, v48")
    e("v_mov_b32 v47, s80")
    e("v_cmp_eq_u32 vcc, 5, v29")
    e("v_mov_b32 v45, 0x80000000")
    e("v_mov_b32 v46, s81")
    e("v_cndmask_b32 v48, v48, v47, vcc")
    e("v_cmp_eq_u32 vcc, 4, v29")
    e("s_nop 1")
    e("v_cndmask_b32 v48, v48, v46, vcc")
    e("v_mov_b32 v46, 0")
    e("v_cmp_gt_u32 vcc, 6, v29")
    e("s_lshl_b32 s78, s2, 6")
    e("v_lshlrev_b32 v49, 3, v39")
    e("v_cndmask_b32 v48, v45, v48, vcc")
    e("v_add_u32 v49, s78, v49")
    e("v_cmp_eq_u32 vcc, 0, v40")
    e(f"buffer_store_dword v46, v48, {R_MI}, 0 offen sc1")
    e("s_nop 0")
    e("v_cndmask_b32 v244, v45, v49, vcc")
    stamp(e, 1)

    flat(xdma(0)); flat(xdma(1)); flat(wdma(2)); e.mark("w2", "v")
    e.need("w0")
    e.wait(lg=0)
    e("s_barrier")
    stamp(e, 2)

    def ared(r, tmp):
        o = []
        for m in ("quad_perm:[1,0,3,2]", "quad_perm:[2,3,0,1]", "row_half_mirror", "row_mirror"):
            o += ["s_nop 1", f"v_add_f32_dpp v{r}, v{r}, v{r} {m} row_mask:0xf bank_mask:0xf"]
        o += [f"v_mov_b32 v{tmp}, v{r}", "s_nop 1", f"v_permlane16_swap_b32 v{r}, v{tmp}", "s_nop 1", f"v_add_f32 v{r}, v{r}, v{tmp}"]
        return o
    rb = lambda r: [f"v_cvt_pk_bf16_f32 v{r}, v{r}, v{r}", f"v_lshlrev_b32 v{r}, 16, v{r}"]
    sts = [f"v_lshlrev_b32 v240, 16, v{XS}", f"v_and_b32 v241, 0xffff0000, v{XS}"]
    for i in range(1, 16):
        sts += [f"v_lshlrev_b32 v242, 16, v{XS+i}", f"v_and_b32 v243, 0xffff0000, v{XS+i}",
                "v_add_f32 v240, v240, v242", "v_add_f32 v241, v241, v243"]
    sts += ["v_add_f32 v246, v240, v241"] + ared(246, 242) + ["v_mul_f32 v246, 0xba800000, v246"]
    for i in range(16):
        sts += [f"v_lshlrev_b32 v242, 16, v{XS+i}", f"v_and_b32 v243, 0xffff0000, v{XS+i}",
                "v_add_f32 v242, v242, v246", "v_add_f32 v243, v243, v246"]
        sts += (["v_mul_f32 v240, v242, v242", "v_mul_f32 v241, v243, v243"] if i == 0 else
                ["v_fmac_f32 v240, v242, v242", "v_fmac_f32 v241, v243, v243"])
    sts += ["v_add_f32 v247, v240, v241"] + ared(247, 242) + ["v_mul_f32 v247, 0x3a800000, v247"] + rb(247)
    sts += ["v_add_f32 v247, 0x3727c5ac, v247"] + rb(247) + ["v_sqrt_f32 v247, v247"] + rb(246) + rb(247)
    sts += ["v_rcp_f32 v247, v247", "s_nop 0"]
    st_store = [f"buffer_store_dwordx2 v[246:247], v244, {R_MI}, 0 offen offset:{ST_REL} sc1"]

    def reads(step_u, fs, cs=False, do_b=True):
        fa = FA[fs]
        al = []
        for ai in range(14):
            for h in range(2):
                al.append(f"ds_read_b64_tr_b16 {a(fa+4*ai+2*h,2)}, v{8+ai%7} offset:{step_u*16384 + (ai//7)*8192 + h*1024}")
        bl = [f"ds_read_b128 {a(fa+56+4*j,4)}, v17 offset:{2048*j}" for j in range(4)] if do_b else []
        cl = []
        if cs:
            for q in range(4):
                for h in range(2):
                    cl.append(f"ds_read_b64_tr_b16 {a(CSF+4*q+2*h,2)}, v{18+q} offset:{step_u*16384 + h*1024}")
        return bl + al + cl

    def mfmas(fs, first=False):
        fa = FA[fs]
        return [f"{MF} {accr(ai,j)}, {a(fa+4*ai,4)}, {a(fa+56+4*j,4)}, {'0' if first else accr(ai,j)}"
                for ai in range(14) for j in range(4)]

    e("s_movk_i32 s75, 16384")
    e("v_add_u32 v17, s75, v15")
    for x in reads(0, 0, cs=True):
        e(x)
    flat(wdma(3)); e.mark("w3", "v")
    flat(xdma(0))

    def body(i, wd=True, xd=True, rd=True, cs_m=False, cs_r=False, extra=None, pre=None, aug_w=False, do_b=True,
             vm=None, side=None, side0=12, needs=()):
        u = i & 3
        fs = i & 1
        if vm is None:
            tags = [t_ for t_ in [f"it{i-3}"] + list(needs) if t_ in e.tag]
            vm = min(63, e.vm - max(e.tag[t_][1] for t_ in tags))
        e.wait(vm=vm, lg=0)
        e("s_barrier")
        if pre:
            pre()
        mf = mfmas(fs, first=(i == 0))
        if cs_m:
            cm = [f"{MF} {a(CSA,4)}, {a(CSF+4*q,4)}, {a(CSS+4*q,4)}, {'0' if (i == 0 and q == 0) else a(CSA,4)}" for q in range(4)]
            mf = cm + mf
        slots = {}
        groups = []
        if xd:
            groups += xdma(1 - (i & 1))
        if wd:
            groups += wdma(u, aug_w)
        groups.append([lambda: e.mark(f"it{i}", "v")])
        if extra:
            groups += extra
        isb = lambda x: isinstance(x, str) and x.startswith("buffer_")
        heavy = [any(isb(x) for x in g) for g in groups]
        nh = max(1, sum(heavy))
        sp = max(1.0, min(7.0, (len(mf) - 5.0) / nh))
        taken = set()
        pos = 2.0
        nxt = 3.0
        for g, hv in zip(groups, heavy):
            if hv:
                pos = max(pos + 1, nxt)
                nxt = pos + sp
                taken.add(int(pos))
            elif not callable(g[0]):
                pos += 1
            slots.setdefault(int(pos), []).extend(g)
        if rd:
            hk = (i + 1) & 1
            if do_b:
                if hk == 0:
                    slots[0] = ["s_add_u32 s75, s75, 8192", f"s_cmp_eq_u32 s75, {XWREG}", "s_cselect_b32 s75, 0, s75"]
                    slots[1] = ["v_add_u32 v17, s75, v15"]
                    taken.add(0)
                else:
                    slots[1] = ["v_add_u32 v17, s75, v16"]
            rl = reads((u + 1) & 3, 1 - fs, cs_r, do_b)
            if do_b:
                rl = rl[4:8] + rl[:4] + rl[8:]
            pos = 0 if not cs_m else 1
            for x in rl:
                while pos in taken and pos < 44:
                    pos += 1
                slots[pos] = [x] + slots.get(pos, [])
                pos += 1
        if side:
            room = len(mf) - side0
            for k, x in enumerate(side):
                slots.setdefault(side0 + (k * room) // len(side), []).append(x)
        merge(e, mf, slots)

    C = 224
    cs = [f"v_accvgpr_read_b32 v{C+r}, a{CSA+r}" for r in range(4)]
    cs += [f"v_cvt_pk_bf16_f32 v{C+4}, v{C}, v{C+1}", f"v_cvt_pk_bf16_f32 v{C+5}, v{C+2}, v{C+3}",
           f"v_lshlrev_b32 v{C+6}, 16, v{C+4}", f"v_and_b32 v{C+7}, 0xffff0000, v{C+4}",
           f"v_lshlrev_b32 v{C+8}, 16, v{C+5}", f"v_and_b32 v{C+9}, 0xffff0000, v{C+5}"]
    cs += [f"v_sub_f32 v{C+r}, v{C+r}, v{C+6+r}" for r in range(4)]
    cs += ["v_bfe_u32 v1, v0, 2, 2", "v_cmp_eq_u32 vcc, 1, v1",
           f"v_cvt_pk_bf16_f32 v{C+10}, v{C}, v{C+1}", f"v_cvt_pk_bf16_f32 v{C+11}, v{C+2}, v{C+3}",
           f"v_cndmask_b32 v{C+4}, v{C+4}, v{C+10}, vcc", f"v_cndmask_b32 v{C+5}, v{C+5}, v{C+11}, vcc",
           f"v_lshlrev_b32 v{C+6}, 16, v{C+10}", f"v_and_b32 v{C+7}, 0xffff0000, v{C+10}",
           f"v_lshlrev_b32 v{C+8}, 16, v{C+11}", f"v_and_b32 v{C+9}, 0xffff0000, v{C+11}"]
    cs += [f"v_sub_f32 v{C+r}, v{C+r}, v{C+6+r}" for r in range(4)]
    cs += ["v_cmp_eq_u32 vcc, 2, v1",
           f"v_cvt_pk_bf16_f32 v{C+10}, v{C}, v{C+1}", f"v_cvt_pk_bf16_f32 v{C+11}, v{C+2}, v{C+3}",
           f"v_cndmask_b32 v{C+4}, v{C+4}, v{C+10}, vcc", f"v_cndmask_b32 v{C+5}, v{C+5}, v{C+11}, vcc"]
    csa = ["s_mul_i32 s3, s66, 12288", "s_lshr_b32 s6, s64, 1", "s_mul_i32 s6, s6, 6144", "s_add_u32 s3, s3, s6",
           *(["s_lshr_b32 s6, s65, 1", "s_lshl_b32 s6, s6, 8", "s_add_u32 s3, s3, s6", "s_and_b32 s6, s65, 1",
              "s_lshl_b32 s6, s6, 10", "s_add_u32 s3, s3, s6"] if ROT == 4 else ["s_lshl_b32 s6, s65, 8", "s_add_u32 s3, s3, s6"]),
           "s_and_b32 s6, s64, 1", "s_lshl_b32 s6, s6, 7",
           "s_add_u32 s3, s3, s6", f"s_add_u32 s3, s3, {CS_REL}",
           "v_bfe_u32 v1, v0, 2, 2", f"v_lshlrev_b32 v{C+12}, 11, v1", f"v_and_b32 v{C+13}, 3, v0",
           f"v_lshl_add_u32 v{C+12}, v{C+13}, 5, v{C+12}", f"v_lshrrev_b32 v{C+13}, 4, v0",
           f"v_lshl_add_u32 v{C+12}, v{C+13}, 3, v{C+12}", "v_cmp_eq_u32 vcc, 3, v1", f"v_mov_b32 v{C+13}, 0x80000000",
           f"v_add_u32 v{C+12}, s3, v{C+12}", f"v_cndmask_b32 v{C+12}, v{C+12}, v{C+13}, vcc"]
    cs_store = [f"buffer_store_dwordx2 {v(C+4,2)}, v{C+12}, {R_MI}, 0 offen sc1"]
    kva = ["v_and_b32 v26, 3, v0", "v_lshlrev_b32 v22, 3, v26", "v_lshlrev_b32 v26, 6, v26",
           "s_lshl_b32 s74, s5, 10", "s_lshl_b32 s3, s64, 8", "s_add_u32 s74, s74, s3",
           "s_lshr_b32 s3, s74, 3", "v_add_u32 v22, s3, v22", f"v_mul_u32_u24 v22, {UR_PITCH}, v22",
           "v_lshrrev_b32 v23, 2, v0", "v_lshlrev_b32 v23, 3, v23", "v_sub_u32 v22, v22, v23",
           "s_lshl_b32 s6, s4, 7", "s_sub_u32 s6, 4088, s6", "v_add_u32 v22, s6, v22",
           "s_lshl_b32 s3, s5, 7", "v_add_u32 v23, s3, v29", f"v_mul_u32_u24 v23, {UR_PITCH}, v23",
           "v_add_u32 v23, 0x1000, v23", "s_lshl_b32 s6, s4, 8", "v_add_u32 v24, s6, v29", "s_movk_i32 s6, 128",
           "v_cmp_gt_u32 vcc, s6, v24", "v_mov_b32 v25, 0x80000000", "s_nop 0", "v_cndmask_b32 v23, v25, v23, vcc"]
    if KVM:
        kva[:15] = ["v_and_b32 v26, 7, v0", "v_lshlrev_b32 v22, 3, v26", "v_lshlrev_b32 v26, 6, v26",
                    "s_lshl_b32 s74, s5, 10", "s_and_b32 s3, s64, 1", "s_lshl_b32 s3, s3, 9", "s_add_u32 s74, s74, s3",
                    "s_lshr_b32 s3, s74, 3", "v_add_u32 v22, s3, v22", f"v_mul_u32_u24 v22, {UR_PITCH}, v22",
                    "v_and_b32 v23, 0x38, v0", "v_sub_u32 v22, v22, v23",
                    "s_lshl_b32 s6, s4, 7", "s_sub_u32 s6, 4088, s6", "s_lshr_b32 s3, s64, 1", "s_lshl_b32 s3, s3, 6",
                    "s_sub_u32 s6, s6, s3", "v_add_u32 v22, s6, v22"]
    wl = [[f"buffer_load_dwordx4 {a(WR[i],4)}, v26, {R_SH}, s74 offen offset:{16*i}"] for i in range(4)]
    assert NCS == 4
    q4 = -(-len(sts) // 4)
    sides = {0: kva, 1: sts[:q4], 2: sts[q4:2*q4], 3: sts[2*q4:3*q4], 4: sts[3*q4:], 5: csa, 6: cs}
    extras = {4: wl, 5: [st_store], 7: [cs_store]}
    KVI = opt.get("kvi", 8)
    KVB = opt.get("kvb", 12)
    extras[KVI] = extras.get(KVI, []) + kvl
    for i in range(KVB):
        tg = {0: "w1", 1: "w2", 2: "w3"}.get(i)
        vmi = min(63, e.vm - e.tag[tg][1]) if tg else None
        body(i, cs_m=(i < NCS), cs_r=(i < NCS - 1), vm=vmi, side=sides.get(i), side0=2, extra=extras.get(i))
        if i == 3:
            stamp(e, 12)
    stamp(e, 14)
    e.need("kv")
    e.c("kv tile: short conv * v, packed along (reversed) time")
    WF, KF, VF, TMP = 224, [232 + 2 * i for i in range(7)], 246, 1
    OUT = [248, 250, 252, 254, 24, 26, 18, 20]
    for p in range(4):
        for h in range(2):
            for d in range(2):
                e(f"v_accvgpr_read_b32 v{TMP}, a{WR[p]+2*h+d}")
                e(f"v_lshlrev_b32 v{WF+4*d+h}, 16, v{TMP}")
                e(f"v_and_b32 v{WF+4*d+2+h}, 0xffff0000, v{TMP}")
        for i in range(7):
            e(f"v_accvgpr_read_b32 v{TMP}, a{KR[i]+p}")
            unpack(e, KF[i], TMP)
        for i in range(4):
            e(f"v_accvgpr_read_b32 v{TMP}, a{VR[i]+p}")
            e(f"v_pk_mul_f32 {v(KF[i],2)}, {v(KF[i],2)}, {v(WF+6,2)}")
            unpack(e, VF, TMP)
            for j in (2, 1, 0):
                e(f"v_pk_fma_f32 {v(KF[i],2)}, {v(KF[i+3-j],2)}, {v(WF+2*j,2)}, {v(KF[i],2)}")
            e(f"v_pk_mul_f32 {v(KF[i],2)}, {v(KF[i],2)}, {v(VF,2)}")
        for h in range(2):
            ch = 2 * p + h
            o = OUT[ch]
            e(f"v_cvt_pk_bf16_f32 v{o}, v{KF[3]+h}, v{KF[2]+h}")
            e(f"v_cvt_pk_bf16_f32 v{o+1}, v{KF[1]+h}, v{KF[0]+h}")
            e(f"s_mov_b32 s3, {ch*UR_PITCH}")
            e(f"buffer_store_dwordx2 {v(o,2)}, v22, {R_UR}, s3 offen sc1")
    for i in range(4):
        e(f"v_mov_b32 v{WF+i}, 0")
    e(f"buffer_store_dwordx4 {v(WF,4)}, v23, {R_UR}, 0 offen sc1")
    stamp(e, 15)
    for i in range(KVB, 12):
        body(i)
    e("s_mov_b32 s82, 0")
    e.label("L_g1_loop")
    for i in range(12, 16):
        body(i, vm=16)
    e("s_cmp_lg_u32 s82, 0")
    e("s_cbranch_scc1 L_f0_nosig")
    signal(e, "f0", f"buffer_atomic_add v1, off, {R_DB}, 0 sc1")
    e("s_add_u32 s82, s82, 1")
    e("s_cmp_lt_u32 s82, 3")
    e("s_cbranch_scc1 L_g1_loop")
    for k in range(3):
        e.tag[f"it{21+k}"] = e.tag[f"it{13+k}"]
    e.vm_done = 0
    stamp(e, 13)

    def poll(loadins, cond, lab):
        e("s_mov_b32 s82, 0")
        e.label(f"L_{lab}_chk")
        cond()
        e(f"s_cbranch_scc1 L_{lab}_ok")
        e("s_sleep 1")
        e.l.append("    " + loadins)
        e.l.append("    s_waitcnt vmcnt(0)")
        e("s_add_u32 s82, s82, 1")
        e(f"s_cmp_lt_u32 s82, {SPIN_LIMIT}")
        e(f"s_cbranch_scc1 L_{lab}_chk")
        e.label(f"L_{lab}_ok")

    f0_load = f"buffer_load_dword v18, off, {R_DB}, 0 sc1"

    def f0_cond():
        e("v_readfirstlane_b32 s78, v18")
        e("s_nop 1")
        e("s_cmp_ge_u32 s78, 256")

    def I(s_, tag=None):
        return lambda: e(s_, tag=tag)

    def urdma(c):
        g = [[f"s_add_u32 m0, s70, {c*CV_CP}", f"s_add_u32 s79, s83, {2*c}", f"buffer_load_dwordx4 v2, {R_UR}, s79 offen sc1 lds"]]
        g += [[f"buffer_load_dwordx4 v2, {R_UR}, s79 offen offset:{1024*q} sc1 lds"] for q in range(1, 4)]
        g[-1].append(lambda: e.mark(f"ur{c}", "v"))
        return g

    body(24)
    body(25, extra=[[f0_load, lambda: e.mark("f0", "v")]])
    body(26, side=["v_and_b32 v19, 15, v0", "v_lshlrev_b32 v19, 3, v19",
                   "s_lshl_b32 s85, s65, 11", "s_lshl_b32 s3, s64, 9", "s_add_u32 s85, s85, s3",
                   f"s_mul_i32 s83, s69, {UR_PITCH}", "s_lshl_b32 s84, s69, 12"])
    stl = [[f"buffer_load_dwordx2 {v(20+2*j,2)}, v19, {R_MI}, s85 offen offset:{ST_REL+128*j} sc1"] for j in range(4)]
    stl[-1].append(lambda: e.mark("st", "v"))
    body(27, xd=False)
    body(28, xd=False, aug_w=True, pre=lambda: poll(f0_load, f0_cond, "f0"), extra=stl, needs=["f0"])
    body(29, xd=False, wd=False, extra=urdma(0) + urdma(2))
    body(30, xd=False, wd=False,
         side=["v_and_b32 v3, 15, v0", "v_lshrrev_b32 v28, 4, v0",
               "v_lshrrev_b32 v4, 2, v3", f"v_mul_u32_u24 v4, {CV_CP}, v4", "v_and_b32 v6, 3, v0",
               "v_lshl_add_u32 v4, v6, 4, v4", "v_add_u32 v4, 4096, v4", f"v_add_u32 v5, {CV_HZ}, v2",
               "v_cmp_gt_u32 vcc, 32, v0", "v_add_u32 v29, s70, v2", "v_mov_b32 v248, 0", "v_mov_b32 v249, 0",
               "v_cndmask_b32 v5, v4, v5, vcc", "v_add_u32 v5, s70, v5", "v_mov_b32 v250, 0", "v_mov_b32 v251, 0"])
    hd = [[f"s_add_u32 m0, s70, {CV_H}", "s_nop 0", f"buffer_load_dwordx4 v2, {R_SK}, s84 offen lds"]]
    hd += [[f"buffer_load_dwordx4 v2, {R_SK}, s84 offen offset:{1024*q} lds"] for q in range(1, 4)]
    hd[-1].append(lambda: e.mark("hk", "v"))
    hd = [[x.replace(" lds", " nt lds") if isinstance(x, str) else x for x in g] for g in hd]
    wdpf = [["s_mul_i32 s74, s69, 7168"]]
    wdpf += [[f"buffer_load_dwordx4 a[252:255], v2, {R_WD}, s74 offen offset:{1024*(q&3)}"] + (["s_add_u32 s74, s74, 4096"] if q == 3 else []) for q in range(7)]
    WPF = opt.get("wpf", 33)
    if WPF == 31:
        hd += wdpf
    bb = ["v_cmp_gt_u32 vcc, 48, v0", "ds_write_b128 v5, v[248:251]"]
    for j in range(4):
        bb += [f"v_lshrrev_b32 v1, 16, v{20+2*j}", f"v_or_b32 v1, v1, v{20+2*j}", "v_cndmask_b32 v1, 0, v1, vcc"]
        bb += [f"v_accvgpr_write_b32 a{FA[0]+56+4*j+r}, v1" for r in range(4)]
    for j in range(4):
        bb += [f"v_mul_f32 v{20+2*j}, 0xbfb8aa3b, v{21+2*j}", f"v_mul_f32 v{21+2*j}, v{21+2*j}, v{21+2*j}",
               f"v_rcp_f32 v{21+2*j}, v{21+2*j}"]
    body(31, xd=False, wd=False, do_b=False, extra=hd, side=bb, side0=4, needs=["st"])
    TB = [224, 236]
    def odr(q):
        b = TB[q & 1]
        return [I(f"ds_read_b128 {v(b,4)}, v29 offset:{1024*q}"),
                I(f"ds_read_b128 {v(b+4,4)}, v29 offset:{2*CV_CP+1024*q}"),
                I(f"ds_read_b32 v{b+8}, v29 offset:{2*CV_CP+1024*q+16}", tag=f"od{q}")]
    def odc(q):
        b = TB[q & 1]
        r = [lambda: e.need(f"od{q}")]
        r += [I(f"v_alignbit_b32 v{b+i}, v{b+4+i}, v{b+i}, 16") for i in range(4)]
        r.append(I(f"ds_write_b128 v29, {v(b,4)} offset:{CV_CP+1024*q}"))
        r += [I(f"v_alignbit_b32 v{b+4+i}, v{b+5+i}, v{b+4+i}, 16") for i in range(4)]
        r.append(I(f"ds_write_b128 v29, {v(b+4,4)} offset:{3*CV_CP+1024*q}"))
        return r
    ha = ["s_lshl_b32 s3, s65, 4", "s_lshl_b32 s6, s64, 2", "s_add_u32 s3, s3, s6",
          f"s_mul_i32 s3, s3, {H_SB}", "s_mul_i32 s6, s66, 7", "s_add_u32 s6, s6, 1",
          "s_lshr_b32 s6, s6, 1", "s_lshl_b32 s6, s6, 10", "s_add_u32 s3, s3, s6",
          "v_add_u32 v18, s3, v2", "s_movk_i32 s6, 3072", "s_bitcmp1_b32 s66, 0",
          "s_cselect_b32 s6, 0xfffffc08, s6", "v_add_u32 v19, s6, v18"]
    ca = ["v_and_b32 v4, 3, v3", "v_sub_u32 v4, 3, v4", f"v_mul_u32_u24 v16, {CV_CP}, v4",
          "v_and_b32 v4, 12, v3", "v_lshlrev_b32 v4, 1, v4", "v_sub_u32 v16, v16, v4",
          "v_lshl_add_u32 v16, v28, 4, v16", f"s_add_u32 s3, s70, {2*2028 - 3584}", "v_add_u32 v16, s3, v16",
          "v_lshlrev_b32 v17, 5, v3", "v_lshl_add_u32 v17, v28, 4, v17", f"s_add_u32 s3, s70, {CV_H - 32}",
          "v_add_u32 v17, s3, v17"]
    seq = odr(0) + odr(1) + ha + odc(0) + odr(2) + odc(1) + odr(3) + ca[:6] + odc(2) + ca[6:] + odc(3)
    body(32, xd=False, wd=False, rd=False, side=seq, side0=0, needs=["ur2"])
    stamp(e, 3)

    e.c("SwiGLU epilogue")
    HSC = " sc1" if opt.get("hsc", 1) else ""

    def swiglu(g, u, tmp, out, kc):
        for q in range(2):
            e(f"v_pk_mul_f32 {v(tmp+2*q,2)}, {v(g+2*q,2)}, {v(kc,2)} op_sel_hi:[1,0]")
        for q in range(4):
            e(f"v_exp_f32 v{tmp+q}, v{tmp+q}")
        for q in range(2):
            e(f"v_pk_mul_f32 {v(g+2*q,2)}, {v(g+2*q,2)}, {v(u+2*q,2)}")
        for q in range(2):
            e(f"v_pk_fma_f32 {v(tmp+2*q,2)}, {v(tmp+2*q,2)}, {v(kc,2)}, {v(kc,2)} op_sel:[0,1,1] op_sel_hi:[1,1,1]")
        for q in (2, 3, 0, 1):
            e(f"v_rcp_f32 v{tmp+q}, v{tmp+q}")
        for q in (1, 0):
            e(f"v_pk_mul_f32 {v(g+2*q,2)}, {v(g+2*q,2)}, {v(tmp+2*q,2)}")
        for q in (1, 0):
            e(f"v_cvt_pk_bf16_f32 v{out+q}, v{g+2*q}, v{g+2*q+1}")

    def cv_reads(fs):
        o = 64 * fs
        r = []
        for i in range(8):
            r.append(f"ds_read_b128 {a(o+32+4*i,4)}, v17 offset:{512*i}")
            r.append(f"ds_read_b64 {a(o+4*i,2)}, v16 offset:{(7-i)*512}")
            r.append(f"ds_read_b64 {a(o+4*i+2,2)}, v16 offset:{(7-i)*512+8}")
        r += ["v_subrev_u32 v16, 64, v16", "v_subrev_u32 v17, 64, v17"]
        return r

    e("s_nop 4")
    n = 0
    for j in range(4):
        e(f"s_mov_b32 s78, {j*H_SB}")
        for i in range(4):
            o = 8 + 4 * (n & 1)
            if i < 3:
                for k in range(2):
                    t_ = 2 * i + k
                    swiglu(acc(t_, j), acc(7 + t_, j), 4, o + 2 * k, 20 + 2 * j)
                e(f"buffer_store_dwordx4 {v(o,4)}, v18, {R_H}, s78 offen offset:{1024*i}{HSC}", tag="hst")
            else:
                for r in range(4):
                    e(f"v_accvgpr_read_b32 v{248+r}, a{AC6+4*j+r}")
                    e(f"v_accvgpr_read_b32 v{252+r}, a{AC6+16+4*j+r}")
                swiglu(248, 252, 4, o, 20 + 2 * j)
                e(f"buffer_store_dwordx2 {v(o,2)}, v19, {R_H}, s78 offen{HSC}", tag="hst")
            n += 1
        if j == opt.get("cvj", 3):
            e.need("hk")
            for x in cv_reads(0):
                e(x)
    if WPF == 33:
        flat(wdpf)
    stamp(e, 4)

    e.c("long conv")
    CA = 32

    def cv_mfmas(fs, first):
        o = 64 * fs
        prs = [(p, w) for p in range(8) for w in range(8) if p + w <= 7]
        return [f"{MF} {v(CA+4*(p+w),4)}, {a(o+4*p,4)}, {a(o+32+4*w,4)}, {'0' if (first and p == 0) else v(CA+4*(p+w),4)}"
                for p, w in prs]

    def cv_body(r, rd=True, extra=None, early=None):
        fs = r & 1
        e.wait(lg=0)
        slots = {}
        if early:
            slots[0] = list(early)
        if rd:
            for k, x in enumerate(cv_reads(1 - fs)):
                slots.setdefault(k, []).append(x)
        if extra:
            for k, g in enumerate(extra):
                slots.setdefault(k * 2 if not rd else 26 + k, []).extend(g)
        merge(e, cv_mfmas(fs, r == 0), slots)

    G_H, G_WD, G_A, G_B = 192, 194, 196, 200
    ZL = 65536
    g2s = [["s_lshr_b32 s72, s64, 1", "s_and_b32 s73, s64, 1", "s_and_b32 s4, s2, 1"],
           ["v_bfe_u32 v6, v0, 1, 3", "v_xor_b32 v6, v6, v28"],
           ["s_lshl_b32 s78, s64, 3", "v_add_u32 v7, s78, v28", "v_and_b32 v4, 1, v0"],
           [f"v_lshlrev_b32 v{G_WD}, 11, v7", f"v_lshl_add_u32 v{G_WD}, v4, 4, v{G_WD}"],
           ["s_lshl_b32 s78, s68, 8", f"v_add_u32 v{G_WD}, s78, v{G_WD}", "v_xor_b32 v7, 4, v6"],
           [f"v_lshl_add_u32 v{G_WD+1}, v7, 5, v{G_WD}", f"v_lshl_add_u32 v{G_WD}, v6, 5, v{G_WD}"],
           [f"v_add_u32 v{G_WD+1}, 7168, v{G_WD+1}", "s_lshl_b32 s74, s64, 11", f"s_add_u32 s71, s74, {WB}"],
           [f"s_mul_i32 s75, s4, {56*1024}", "s_lshl_b32 s76, s75, 6"],
           ["s_lshl_b32 s78, s67, 3", "s_lshl_b32 s79, s64, 1", "s_add_u32 s78, s78, s79"],
           [f"s_mul_i32 s78, s78, {H_SB}", f"v_add_u32 v{G_H}, s78, v2", f"v_add_u32 v{G_H+1}, {H_SB-1024}, v{G_H}"],
           ["v_bfe_u32 v6, v0, 2, 2", "v_and_b32 v7, 3, v0"],
           ["v_lshl_add_u32 v4, v28, 2, v6", "v_and_b32 v5, 7, v4"],
           ["v_lshlrev_b32 v4, 8, v4", "v_lshl_add_u32 v4, v7, 3, v4"],
           [f"v_add_u32 v4, {WB}, v4", "s_lshl_b32 s78, s73, 2", "v_xor_b32 v5, s78, v5"]]
    for dt in range(4):
        g2s.append([f"v_xor_b32 v7, {dt}, v5", f"v_lshl_add_u32 v{G_A+dt}, v7, 5, v4"])
    g2s += [["s_lshl_b32 s78, s72, 12", "s_lshl_b32 s79, s4, 11", "s_add_u32 s78, s78, s79"],
            [f"v_add_u32 v{G_B}, s78, v2", f"v_xor_b32 v{G_B+1}, 0x800, v{G_B}"],
            ["v_lshlrev_b32 v23, 2, v3", "s_lshr_b32 s77, s67, 1", "s_lshl_b32 s77, s77, 7"],
            ["s_lshl_b32 s78, s4, 6", "s_add_u32 s77, s77, s78", f"s_add_u32 s77, s77, {HF_REL}"],
            [f"s_add_u32 s56, s88, 0x{PX_OFF:x}", "s_addc_u32 s57, s89, 0", f"s_mov_b32 s58, 0x{PX_SIZE:x}"]]
    R_PX = R_V

    def wd2(slot):
        return [[f"s_add_u32 m0, s71, {slot*8192}", "s_nop 0", f"buffer_load_dwordx4 v{G_WD}, {R_WD}, s76 offen lds"],
                [f"buffer_load_dwordx4 v{G_WD+1}, {R_WD}, s76 offen offset:1024 lds", "s_add_u32 s76, s76, 0x10000"]]

    def h2(slot):
        return [[f"s_add_u32 m0, s74, {slot*8192}", "s_nop 0", f"buffer_load_dwordx4 v{G_H}, {R_H}, s75 offen sc1 lds"],
                [f"buffer_load_dwordx4 v{G_H+1}, {R_H}, s75 offen offset:1024 sc1 lds", "s_add_u32 s75, s75, 1024"]]

    fl_load = f"buffer_load_dword v22, v23, {R_MI}, s77 offen sc1"

    def flag_cond():
        e("v_cmp_ne_u32 vcc, 0, v22")
        e("s_cmp_eq_u64 vcc, exec")

    R_SIG = opt.get("rsig", 3)
    wdp = sum([wd2(s_) for s_ in range(8)], [])
    ex_by_r = {0: g2s[:10], 1: g2s[10:20], 2: g2s[20:], 4: wdp[:8], 5: wdp[8:]}
    UZ = 224
    pre_z = ["v_lshlrev_b32 v12, 5, v3", "v_lshl_add_u32 v12, v28, 3, v12", f"s_add_u32 s78, s70, {2*2044 - 3584}",
             "v_sub_u32 v13, s78, v12"] + [f"ds_read_b64 {v(UZ+2*i,2)}, v13 offset:{(7-i)*512}" for i in range(8)]
    for r in range(7):
        if r == R_SIG:
            e.need("hst")
            e("s_barrier")
            signal(e, "f1", f"buffer_store_dword v1, off, {R_MI}, s80 sc1")
            stamp(e, 5)
        cv_body(r, extra=ex_by_r.get(r), early=([I(fl_load, tag="f1")] if r == 6 else None))
    cv_body(7, rd=False, extra=[[x] for x in pre_z])
    e.wait(lg=0)
    e.need("f1")
    poll(fl_load, flag_cond, "f1")
    e("s_barrier")
    stamp(e, 6)
    for s_ in range(8):
        flat(h2(s_))
        e.mark(f"h{s_}", "v")
    e("s_and_b32 s78, s69, 1")
    e("s_lshl_b32 s78, s78, 4")
    e("s_lshr_b32 s90, s90, s78")
    e("s_lshl_b32 s90, s90, 16")
    e("v_lshlrev_b32 v12, 5, v3")
    e("v_lshrrev_b32 v13, 1, v28")
    e("v_lshl_add_u32 v12, v13, 4, v12")
    e("v_and_b32 v13, 1, v28")
    e("v_lshl_add_u32 v12, v13, 9, v12")
    for i in range(8):
        u0, u1 = UZ + 2 * i, UZ + 2 * i + 1
        y = CA + 4 * i
        e(f"v_and_b32 v4, 0xffff0000, v{u1}")
        e(f"v_lshlrev_b32 v5, 16, v{u1}")
        e(f"v_and_b32 v6, 0xffff0000, v{u0}")
        e(f"v_lshlrev_b32 v7, 16, v{u0}")
        for q in range(4):
            e(f"v_fmac_f32 v{y+q}, s90, v{4+q}")
        e(f"v_cvt_pk_bf16_f32 v{u0}, v{y}, v{y+1}")
        e(f"v_cvt_pk_bf16_f32 v{u1}, v{y+2}, v{y+3}")
    e("s_nop 1")
    for k in range(4):
        b = UZ + 4 * k
        e(f"v_permlane16_swap_b32 v{b}, v{b+2}")
        e(f"v_permlane16_swap_b32 v{b+1}, v{b+3}")
        e(f"buffer_store_dwordx4 {v(b,4)}, v12, {R_ZT}, s84 offen offset:{1024*k} sc1", tag="zst")
    stamp(e, 7)

    e.c("GEMM2")
    A2 = 64

    def acc2(dt, jj):
        return A2 + (jj * 4 + dt) * 4

    def rd2(step):
        sl = step & 7
        o = 32 * (step & 3)
        al = [f"ds_read_b64_tr_b16 {a(o+4*dt+2*h,2)}, v{G_A+dt} offset:{sl*8192+h*4096}" for dt in range(4) for h in range(2)]
        bl = [f"ds_read_b128 {a(o+16+4*jj,4)}, v{G_B+(jj>>1)} offset:{sl*8192+(jj&1)*1024}" for jj in range(4)]
        return bl[:1] + al[:4] + bl[1:2] + al[4:] + bl[2:]

    def mf2(step, jjs=(0, 1, 2, 3)):
        o = 32 * (step & 3)
        return [f"{MF} {v(acc2(dt,jj),4)}, {a(o+4*dt,4)}, {a(o+16+4*jj,4)}, {'0' if step == 0 else v(acc2(dt,jj),4)}"
                for jj in jjs for dt in range(4)]

    def it2(I_, vm=None, loads=True, extra=None, side=None, pre=None, needs=(), jjs=(0, 1, 2, 3)):
        if vm is None:
            vm = min(63, e.vm - max(e.tag[t_][1] for t_ in needs))
        e.wait(vm=vm, lg=0)
        e("s_barrier")
        if pre:
            pre()
        mf = mf2(2 * I_, jjs) + mf2(2 * I_ + 1, jjs)
        slots = {}
        g = []
        if loads:
            for hf in range(2):
                sl = (2 * I_ + hf) & 7
                g += h2(sl) + wd2(sl)
        taken = set()
        for k, grp in enumerate(g):
            slots[1 + 4 * k] = list(grp)
            taken.add(1 + 4 * k)
        slots.setdefault(len(mf) - 2, []).append(lambda: e.mark(f"g{I_}", "v"))
        for k, grp in enumerate(extra or []):
            slots.setdefault(len(mf) - 1 if loads else 2 + 3 * k, []).extend(grp)
        rl = rd2(2 * I_ + 2) + rd2(2 * I_ + 3)
        pos = 0
        lim = len(mf) - 6
        free = [k for k in range(lim) if k not in taken]
        for k, x in enumerate(rl):
            q = free[(k * len(free)) // len(rl)]
            slots.setdefault(q, []).append(x)
        if side:
            for k, x in enumerate(side):
                slots.setdefault((k * len(mf)) // len(side), []).append(x)
        merge(e, mf, slots)

    XR, SR, ZR, PR = 32, 48, 224, 128
    fa = ["v_and_b32 v6, 1, v28", "v_lshrrev_b32 v7, 1, v28", "v_lshl_or_b32 v6, v6, 1, v7",
          "s_lshl_b32 s85, s67, 3", "s_lshl_b32 s78, s72, 2", "s_add_u32 s85, s85, s78", "s_lshl_b32 s78, s4, 1",
          "s_add_u32 s85, s85, s78",
          "s_lshl_b32 s87, s68, 1", "s_add_u32 s87, s87, s73",
          "s_lshl_b32 s78, s85, 15", "s_lshl_b32 s79, s87, 7", "s_add_u32 s78, s78, s79",
          "v_lshlrev_b32 v24, 11, v3", "v_lshl_add_u32 v24, v6, 4, v24", "v_add_u32 v24, s78, v24",
          "v_add_u32 v25, 0x8000, v24", "v_lshlrev_b32 v26, 3, v3", "s_lshl_b32 s86, s85, 7",
          "s_lshl_b32 s77, s87, 6", f"s_add_u32 s77, s77, {ZF_REL}",
          "v_lshrrev_b32 v21, 2, v0", "v_lshlrev_b32 v21, 12, v21", "v_and_b32 v27, 3, v0",
          "v_lshl_add_u32 v21, v27, 4, v21", "s_lshl_b32 s78, s87, 18", "s_lshl_b32 s79, s85, 5",
          "s_add_u32 s78, s78, s79", "v_add_u32 v21, s78, v21",
          "s_lshl_b32 s5, s64, 12", f"s_add_u32 s5, s5, {ZL}",
          "v_bfe_u32 v7, v0, 2, 2", "v_lshl_add_u32 v7, v6, 3, v7", "v_lshlrev_b32 v7, 6, v7",
          "v_lshl_add_u32 v7, v27, 3, v7", "v_add_u32 v7, s5, v7",
          "s_lshl_b32 s83, s69, 13", "s_xor_b32 s84, s83, 0x8000", "v_add_u32 v13, 0x1000, v2",
          "s_lshl_b32 s78, s69, 7", f"s_add_u32 s80, s78, {PF_REL}", "s_xor_b32 s78, s78, 0x200", f"s_add_u32 s91, s78, {PF_REL}"]
    e.need("h1")
    e("s_barrier")
    for x in rd2(0) + rd2(1):
        e(x)
    it2(0, needs=["h3"])
    it2(1, needs=["h5"], side=fa[:22])
    it2(2, needs=["h7"])
    it2(3, needs=["g0", "zst"], side=fa[22:],
        pre=lambda: signal(e, "f2", f"buffer_store_dword v1, off, {R_MI}, s81 sc1"))
    e("s_mov_b32 s82, 1")
    e.label("L_g2_loop")
    for I_ in range(4, 8):
        it2(I_, vm=16)
    e("s_add_u32 s82, s82, 1")
    e("s_cmp_lt_u32 s82, 6")
    e("s_cbranch_scc1 L_g2_loop")
    for k in range(3):
        e.tag[f"g{21+k}"] = e.tag[f"g{5+k}"]
    e.vm_done = 0
    ex = [[I(fl_load, tag="zf")]]
    for e2 in range(2):
        for pr in range(2):
            ex.append([f"buffer_load_dwordx4 {v(XR+4*(2*e2+pr),4)}, v{24+e2}, {R_X}, 0 offen offset:{64*pr}"])
        ex.append([f"buffer_load_dwordx2 {v(SR+2*e2,2)}, v26, {R_MI}, s86 offen offset:{ST_REL+128*e2} sc1"])
    it2(24, loads=False, extra=ex, needs=["g21"])
    it2(25, loads=False, needs=["g22"])
    zd = [["s_mov_b32 m0, s5", "s_nop 0", f"buffer_load_dwordx4 v21, {R_ZT}, 0 offen sc1 lds"]]
    for i in range(1, 4):
        zd.append([f"s_mov_b32 s78, {i*(65536-1024)}", f"buffer_load_dwordx4 v21, {R_ZT}, s78 offen offset:{1024*i} sc1 lds"])
    it2(26, loads=False, needs=["g23", "zf"], jjs=(2, 3), extra=zd, pre=lambda: poll(fl_load, flag_cond, "f2"))
    for x in mf2(52, (0,)):
        e(x)
    e.wait(lg=0)
    for x in mf2(54, (2, 3)) + mf2(55, (2, 3)):
        e(x)
    stamp(e, 8)
    own = mf2(52, (1,)) + mf2(53, (0, 1)) + mf2(54, (0, 1)) + mf2(55, (0, 1))
    slots = {0: ["s_nop 3"]}
    for q in range(8):
        slots[4 + q] = [f"buffer_store_dwordx4 {v(acc2(0,2)+4*q,4)}, v{2 if q < 4 else 13}, {R_PX}, s83 offen offset:{1024*(q&3)} sc1"]
    merge(e, own, slots)
    e.wait(vm=0)
    e("v_mov_b32 v1, 1")
    e("s_mov_b64 exec, 1")
    e(f"buffer_store_dword v1, off, {R_MI}, s80 sc1")
    e("s_mov_b64 exec, -1")
    pf_load = f"buffer_load_dword v22, off, {R_MI}, s91 sc1"
    e(pf_load)
    for e2 in range(2):
        for pr in range(2):
            for hh in range(2):
                e(f"ds_read_b64_tr_b16 {v(ZR+4*(2*e2+pr)+2*hh,2)}, v7 offset:{(32*pr+4*hh)*64 + 32*e2}")
    e.wait(lg=0)
    PB = 160
    for e2 in range(2):
        st = SR + 2 * e2
        for pr in range(2):
            i = 2 * e2 + pr
            for q in range(4):
                d_ = PB + 8 * i + 2 * q
                unpack(e, d_, XR + 4 * i + q)
                unpack(e, 56, ZR + 4 * i + q)
                e(f"v_pk_add_f32 v[54:55], {v(d_,2)}, {v(st,2)} op_sel_hi:[1,0]")
                e(f"v_pk_mul_f32 v[54:55], v[54:55], {v(st,2)} op_sel:[0,1] op_sel_hi:[1,1]")
                e(f"v_pk_fma_f32 {v(d_,2)}, v[54:55], v[56:57], {v(d_,2)}")
    e.wait(vm=0)
    poll(pf_load, flag_cond, "px")
    stamp(e, 9)
    for q in range(8):
        e(f"buffer_load_dwordx4 {v(PR+4*q,4)}, v{2 if q < 4 else 13}, {R_PX}, s84 offen offset:{1024*(q&3)} sc1", tag=f"p{q}")
    for e2 in range(2):
        for pr in range(2):
            i = 2 * e2 + pr
            A0 = acc2(2 * pr, e2)
            e.need(f"p{2*i+1}")
            for q in range(4):
                e(f"v_pk_add_f32 {v(A0+2*q,2)}, {v(A0+2*q,2)}, {v(PR+8*i+2*q,2)}")
            e("s_nop 1")
            for r in range(4):
                e(f"v_permlane16_swap_b32 v{A0+r}, v{A0+4+r}")
            for q in range(4):
                e(f"v_pk_add_f32 {v(A0+2*q,2)}, {v(A0+2*q,2)}, {v(PB+8*i+2*q,2)}")
            for q in range(4):
                e(f"v_cvt_pk_bf16_f32 v{96+4*i+q}, v{A0+2*q}, v{A0+2*q+1}")
            e(f"buffer_store_dwordx4 {v(96+4*i,4)}, v{24+e2}, {R_OUT}, 0 offen offset:{64*pr} sc1")
    stamp(e, 10)
    if STAMPS or DST:
        e.wait(vm=0)
    stamp(e, 11)
    e.label("L_end")
    name = NAME + "_kernel"
    return f""".globl {name}
.p2align 8
.type {name},@function
{name}:
{e.text()}    s_endpgm
.section .rodata,"a"
.p2align 6
.amdhsa_kernel {name}
  .amdhsa_next_free_vgpr 512
  .amdhsa_next_free_sgpr 102
  .amdhsa_accum_offset 256
  .amdhsa_group_segment_fixed_size 0
  .amdhsa_kernarg_size 104
  .amdhsa_user_sgpr_count 2
  .amdhsa_user_sgpr_kernarg_segment_ptr 1
  .amdhsa_system_sgpr_workgroup_id_x 1
  .amdhsa_float_denorm_mode_32 3
.end_amdhsa_kernel
"""


def main(opt=None):
    opt = opt or {}
    ref = open("cdna_kernels/" + NAME + ".s.ref").read().split("\n")
    hdr = [l for l in ref if l.startswith(";") and "@launch" not in l]
    out = "\n".join(hdr) + "\n"
    out += f"; @launch grid=(256,1,1) block=(256,1,1) lds={LDS_SIZE}\n"
    out += '.amdgcn_target "amdgcn-amd-amdhsa--gfx950"\n.text\n'
    out += gen(opt)
    return out


if __name__ == "__main__":
    args = [x for x in sys.argv[1:] if not x.startswith("-")]
    opt = {}
    for x in sys.argv[1:]:
        if x == "-stamps":
            STAMPS = True
        elif x == "-light":
            STAMPS = LIGHT = True
        elif x.startswith("-dst"):
            DST = int(x.split("=")[1])
        elif x.startswith("-"):
            k, _, val = x[1:].partition("=")
            opt[k] = int(val) if val else 1
    path = args[0] if args else "cdna_kernels/" + NAME + ".s"
    open(path, "w").write(main(opt))
    print("wrote", path)
```

```python
import sys

NAME = "parallel_sum__ssm_conv_h3__swiglu_ffn__prompt"
S, D, F = 2048, 1024, 3584
KA_Q, KA_K, KA_V, KA_SHK, KA_SSMK, KA_SSMD, KA_BX, KA_WG, KA_WU, KA_WD, KA_OUT, KA_DBG, KA_WS = [8 * i for i in range(13)]

MISC_OFF = 0
ST_REL = 0
HF_REL = 16384
ZF_REL = 16384 + 1024
KF_REL = 16384 + 2048
CS_REL = 32768
PF_REL = CS_REL + 32 * 12288
MISC_SIZE = PF_REL + 1024 * 128
UR_OFF = 4 << 20
UR_PITCH = 4096 + 128
UR_SIZE = D * UR_PITCH
ZT_OFF = 9 << 20
ZT_SIZE = S * D * 2
H_OFF = 16 << 20
H_SIZE = S * F * 2
H_SB = 112 * 1024
PX_OFF = 32 << 20
PX_SIZE = 8 << 20
STAMP_OFF = 64 << 20

LDS_SIZE = 163840
XWREG = 24576
WB = 4 * XWREG
CV_CP = 4160
CV_HZ = 4 * CV_CP
CV_H = CV_HZ + 512
WSTEP = 32 * 7168
SPIN_LIMIT = 200000

STAMPS = False


class E:
    def __init__(self):
        self.l = []
        self.vm = 0
        self.vm_done = 0
        self.lg = 0
        self.lg_done = 0
        self.tag = {}

    def __call__(self, s, tag=None):
        for ln in s.strip("\n").split("\n"):
            ln = ln.strip()
            if ln.startswith("buffer_"):
                self.vm += 1
                if tag:
                    self.tag[tag] = ("v", self.vm)
            elif ln.startswith("ds_"):
                self.lg += 1
                if tag:
                    self.tag[tag] = ("l", self.lg)
            self.l.append("    " + ln)

    def mark(self, tag, kind):
        self.tag[tag] = (kind, self.vm if kind == "v" else self.lg)

    def need(self, *tags):
        nv = max([self.tag[t][1] for t in tags if self.tag[t][0] == "v"] + [0])
        nl = max([self.tag[t][1] for t in tags if self.tag[t][0] == "l"] + [0])
        w = []
        if nv > self.vm_done:
            n = min(self.vm - nv, 63)
            w.append(f"vmcnt({n})")
            self.vm_done = self.vm - n
        if nl > self.lg_done:
            n = min(self.lg - nl, 15)
            w.append(f"lgkmcnt({n})")
            self.lg_done = self.lg - n
        if w:
            self.l.append("    s_waitcnt " + " ".join(w))

    def wait(self, vm=None, lg=None):
        w = []
        if vm is not None:
            w.append(f"vmcnt({vm})")
            self.vm_done = max(self.vm_done, self.vm - vm)
        if lg is not None:
            w.append(f"lgkmcnt({lg})")
            self.lg_done = max(self.lg_done, self.lg - lg)
        self.l.append("    s_waitcnt " + " ".join(w))

    def label(self, s):
        self.l.append(s + ":")

    def c(self, s):
        self.l.append("    ; " + s)

    def text(self):
        return "\n".join(self.l) + "\n"


def v(i, n=1):
    return f"v{i}" if n == 1 else f"v[{i}:{i+n-1}]"


def a(i, n=1):
    return f"a{i}" if n == 1 else f"a[{i}:{i+n-1}]"


DST = False
LIGHT = False
DMAP = {2: 2, 12: 3, 14: 4, 15: 5, 13: 6, 3: 7, 4: 8, 5: 9, 6: 10, 7: 11, 8: 12, 9: 13, 10: 14, 11: 15}


def stamp(e, i):
    if DST and i in DMAP:
        e("s_memrealtime s[96:97]")
        e.wait(lg=0)
        e("s_sub_u32 s96, s96, s98")
        e(f"v_writelane_b32 v31, s96, {DMAP[i]}")
        if i == 11:
            e(f"s_cmp_lg_u32 s69, {DST}")
            e("s_cbranch_scc1 L_end")
            e("v_lshlrev_b32 v30, 2, v0")
            e("s_mov_b64 exec, 0xfffc")
            e("buffer_store_dword v31, v30, s[40:43], 0 offen")
        return
    if not STAMPS or (LIGHT and i not in (3, 7, 11)):
        return
    e("s_memrealtime s[96:97]")
    e("s_memtime s[98:99]")
    e.wait(lg=0)
    e("v_mov_b32 v30, s96")
    e("v_mov_b32 v31, s98")
    e(f"buffer_store_dwordx2 v[30:31], off, s[92:95], s100 offset:{8*i}")


def unpack(e, dst, src):
    e(f"v_lshlrev_b32 v{dst}, 16, v{src}")
    e(f"v_and_b32 v{dst+1}, 0xffff0000, v{src}")


def allreduce32(e, r, t):
    e("s_nop 1")
    for m in ("quad_perm:[1,0,3,2]", "quad_perm:[2,3,0,1]", "row_half_mirror", "row_mirror"):
        e(f"v_add_f32_dpp v{r}, v{r}, v{r} {m} row_mask:0xf bank_mask:0xf")
        e("s_nop 1")
    e(f"v_mov_b32 v{t}, v{r}")
    e("s_nop 1")
    e(f"v_permlane16_swap_b32 v{r}, v{t}")
    e("s_nop 1")
    e(f"v_add_f32 v{r}, v{r}, v{t}")


def round_bf16(e, r):
    e(f"v_cvt_pk_bf16_f32 v{r}, v{r}, v{r}")
    e(f"v_lshlrev_b32 v{r}, 16, v{r}")


R_X, R_WG, R_WU, R_H, R_UR, R_SK, R_ZT, R_MI, R_DB, R_WD, R_OUT, R_K, R_V, R_SH = [f"s[{8+4*i}:{11+4*i}]" for i in range(14)]
MF = "v_mfma_f32_16x16x32_bf16"


def merge(e, mf, slots):
    def do(x):
        if callable(x):
            x()
        else:
            e(x)
    for i, m in enumerate(mf):
        e(m)
        for x in slots.get(i, []):
            do(x)
    for k in sorted(slots):
        if k >= len(mf):
            for x in slots[k]:
                do(x)


def signal(e, lab, ins):
    e("s_cmp_lg_u32 s64, 0")
    e(f"s_cbranch_scc1 L_{lab}_nosig")
    e("v_mov_b32 v1, 1")
    e("s_mov_b64 exec, 1")
    e.l.append("    " + ins)
    e("s_mov_b64 exec, -1")
    e.label(f"L_{lab}_nosig")


def gen(opt):
    e = E()
    ACC = 32

    AC6 = 180

    def acc(ai, j):
        t, m = ai % 7, ai // 7
        assert t < 6
        return ACC + ((m * 6 + t) * 4 + j) * 4

    def accr(ai, j):
        if ai % 7 == 6:
            return a(AC6 + (ai // 7) * 16 + 4 * j, 4)
        return v(acc(ai, j), 4)
    FA = [0, 72]
    CSF, CSS, CSA = 144, 160, 176

    e("s_cmp_ge_u32 s2, 256")
    e("s_cbranch_scc1 L_end")
    if STAMPS:
        e("s_memrealtime s[96:97]")
        e("s_memtime s[98:99]")
    if DST:
        e("s_memrealtime s[98:99]")
        e("v_mov_b32 v31, 0")
    for reg, off in ((8, KA_Q), (12, KA_WG), (16, KA_WU), (88, KA_WS), (28, KA_SSMK), (40, KA_DBG), (44, KA_WD),
                     (48, KA_OUT), (52, KA_K), (56, KA_V), (60, KA_SHK), (86, KA_SSMD)):
        e(f"s_load_dwordx2 s[{reg}:{reg+1}], s[0:1], {off}")
    if opt.get("cpf", 1):
        e("s_getpc_b64 s[82:83]")
        e.label("L_pc")
        e("s_lshr_b32 s78, s2, 3")
        e("s_and_b32 s78, s78, 3")
        e("s_lshl_b32 s78, s78, 14")
        e("v_lshlrev_b32 v50, 6, v0")
        e("v_add_u32 v50, s78, v50")
        e("v_min_u32 v50, L_end-L_pc, v50")
        e("v_mov_b32 v51, s83")
        e("v_add_co_u32 v50, vcc, s82, v50")
        e("s_nop 1")
        e("v_addc_co_u32 v51, vcc, 0, v51, vcc")
        e.l.append("    global_load_dword a255, v[50:51], off")
        e.vm += 1
    e("v_lshrrev_b32 v1, 6, v0")
    e("v_mov_b32 v29, v0")
    e("v_and_b32 v0, 63, v0")
    e("v_readfirstlane_b32 s64, v1")
    e("v_lshlrev_b32 v2, 4, v0")
    e("v_lshrrev_b32 v39, 5, v29")
    e("v_and_b32 v40, 31, v29")
    e("s_lshl_b32 s7, s2, 14")
    e("v_lshlrev_b32 v41, 11, v39")
    e("v_lshl_add_u32 v41, v40, 4, v41")
    e("v_add_u32 v41, s7, v41")
    for reg, size in ((8, S * D * 2), (12, D * F * 2), (16, D * F * 2)):
        e(f"s_mov_b32 s{reg+2}, 0x{size:x}")
        e(f"s_mov_b32 s{reg+3}, 0x20000")
    e("s_and_b32 s6, s2, 7")
    e("s_lshr_b32 s7, s2, 3")
    if opt.get("map1", 0) == 3:
        e("s_mov_b32 s65, s6")
        e("s_mov_b32 s66, s7")
    elif opt.get("map1", 0) == 1:
        e("s_and_b32 s65, s7, 3")
        e("s_lshl_b32 s65, s65, 1")
        e("s_and_b32 s78, s6, 1")
        e("s_add_u32 s65, s65, s78")
        e("s_lshr_b32 s66, s7, 2")
        e("s_lshr_b32 s78, s6, 1")
        e("s_lshl_b32 s78, s78, 3")
        e("s_add_u32 s66, s66, s78")
    elif opt.get("map1", 0) == 2:
        e("s_and_b32 s65, s7, 1")
        e("s_lshl_b32 s65, s65, 2")
        e("s_and_b32 s78, s6, 3")
        e("s_add_u32 s65, s65, s78")
        e("s_lshr_b32 s66, s7, 1")
        e("s_lshr_b32 s78, s6, 2")
        e("s_lshl_b32 s78, s78, 4")
        e("s_add_u32 s66, s66, s78")
    else:
        e("s_and_b32 s65, s7, 7")
        e("s_lshr_b32 s66, s7, 3")
        e("s_lshl_b32 s78, s6, 2")
        e("s_add_u32 s66, s66, s78")
    e(f"s_mul_i32 s70, s64, {XWREG}")
    e("s_lshl_b32 s71, s64, 11")
    e(f"s_add_u32 s71, s71, {WB}")
    ROT = opt.get("rot", 8)
    NCS = 32 // ROT
    e(f"s_lshr_b32 s3, s65, {1 if ROT == 4 else 0}")
    if opt.get("rotmask") is not None:
        e(f"s_and_b32 s3, s3, {opt['rotmask']}")
    e(f"s_mul_i32 s72, s3, {NCS*WSTEP}")
    e("s_add_u32 s73, s72, 27648")
    e("v_lshrrev_b32 v22, 4, v0")
    e("v_bfe_u32 v23, v0, 1, 3")
    e("s_and_b32 s78, s64, 1")
    e("s_lshl_b32 s78, s78, 2")
    e("v_or_b32 v24, s78, v22")
    e("v_xor_b32 v23, v23, v24")
    e("v_and_b32 v25, 1, v0")
    e("s_lshl_b32 s78, s64, 3")
    e("v_lshlrev_b32 v3, 5, v23")
    e("v_lshl_add_u32 v3, v25, 4, v3")
    e("v_add_u32 v26, s78, v22")
    e("v_mul_u32_u24 v27, 7168, v26")
    e("v_add_u32 v3, v3, v27")
    e("s_mul_i32 s78, s66, 224")
    e("v_add_u32 v3, s78, v3")
    e("v_cmp_eq_u32 vcc, 7, v23")
    e("v_mov_b32 v27, 0x80000000")
    e("v_lshlrev_b32 v28, 8, v26")
    e("v_cndmask_b32 v3, v3, v27, vcc")
    e("v_lshl_add_u32 v28, v23, 5, v28")
    e("v_lshl_add_u32 v28, v25, 4, v28")
    e("v_lshrrev_b32 v23, 3, v0")
    e("v_and_b32 v24, 7, v0")
    e("v_xor_b32 v24, v24, v22")
    e("s_lshl_b32 s78, s65, 19")
    e("s_lshl_b32 s79, s64, 17")
    e("s_add_u32 s78, s78, s79")
    e("v_lshlrev_b32 v4, 11, v23")
    e("v_add_u32 v4, s78, v4")
    e("v_xor_b32 v25, 4, v24")
    e("v_lshl_add_u32 v5, v25, 4, v4")
    e("v_lshl_add_u32 v4, v24, 4, v4")
    e("v_add_u32 v5, 15360, v5")
    e("v_add_u32 v6, 30720, v4")
    e("v_add_u32 v7, 30720, v5")
    e(f"s_mul_i32 s77, s3, {NCS*64}")
    e("s_add_u32 s76, s70, 16384")
    e(f"s_add_u32 s91, s70, {XWREG}")

    wstep = [0]

    def wdma(u, aug=False):
        g = []
        nt = " nt" if (opt.get("ntw", 0) == 2 or (opt.get("ntw", 0) == 1 and wstep[0] < NCS)) else ""
        wstep[0] += 1
        if aug:
            g.append([f"s_add_u32 m0, s71, {u*16384}", "s_nop 0", f"buffer_load_dwordx4 v28, {R_MI}, 0 offen sc1 lds"])
            g.append([f"buffer_load_dwordx4 v28, {R_MI}, 0 offen offset:1024 sc1 lds"])
            g.append([f"s_add_u32 m0, s71, {u*16384+8192}", "s_movk_i32 s78, 6144", f"buffer_load_dwordx4 v28, {R_MI}, s78 offen sc1 lds"])
            g.append([f"buffer_load_dwordx4 v28, {R_MI}, s78 offen offset:1024 sc1 lds"])
            return g
        g.append([f"s_add_u32 m0, s71, {u*16384}", "s_nop 0", f"buffer_load_dwordx4 v3, {R_WG}, s72 offen{nt} lds"])
        g.append([f"buffer_load_dwordx4 v3, {R_WG}, s73 offen offset:1024{nt} lds"])
        g.append([f"s_add_u32 m0, s71, {u*16384+8192}", "s_nop 0", f"buffer_load_dwordx4 v3, {R_WU}, s72 offen{nt} lds"])
        g.append([f"buffer_load_dwordx4 v3, {R_WU}, s73 offen offset:1024{nt} lds", f"s_add_u32 s72, s72, {WSTEP}"])
        g.append([f"s_cmp_eq_u32 s72, {32*WSTEP}", "s_cselect_b32 s72, 0, s72", "s_add_u32 s73, s72, 27648"])
        return g

    def xdma(hf):
        g = []
        if hf == 0:
            g.append(["s_mov_b32 m0, s76", "s_nop 0", f"buffer_load_dwordx4 v4, {R_X}, s77 offen lds"])
            so = "s77"
        else:
            g.append(["s_add_u32 m0, s76, 4096", "s_add_u32 s79, s77, 0x10000", f"buffer_load_dwordx4 v4, {R_X}, s79 offen lds"])
            so = "s79"
        for q in range(1, 4):
            g.append([f"buffer_load_dwordx4 v{4+q}, {R_X}, {so} offen offset:{1024*q} lds"])
        if hf == 1:
            g[-1] += ["s_add_u32 s77, s77, 128", "s_and_b32 s77, s77, 0x7ff"]
            g.append(["s_add_u32 s76, s76, 8192", "s_cmp_eq_u32 s76, s91", "s_cselect_b32 s76, s70, s76"])
        return g

    def flat(gs):
        for g in gs:
            for x in g:
                e(x)

    e.wait(lg=0)
    XS = 224
    flat(wdma(0)); flat(xdma(0)); flat(xdma(1)); e.mark("w0", "v")
    flat(wdma(1)); e.mark("w1", "v")
    XSI = opt.get("xsi", 5)
    xsl = [[f"buffer_load_dwordx4 {v(XS+4*j,4)}, v{41 if XSI < 0 else 245}, {R_X}, 0 offen offset:{512*j}"] for j in range(4)]
    xsl[-1].append(lambda: e.mark("xs", "v"))
    if XSI < 0:
        for g_ in xsl:
            e(g_[0])
    for reg, size in ((52, S * D * 2), (56, S * D * 2)):
        e(f"s_mov_b32 s{reg+2}, 0x{size:x}")
        e(f"s_mov_b32 s{reg+3}, 0x20000")
    e("s_and_b32 s4, s2, 31")
    e("s_lshr_b32 s5, s2, 5")
    e("s_lshl_b32 s78, s4, 17")
    e("s_lshl_b32 s79, s5, 8")
    e("s_add_u32 s78, s78, s79")
    KVM = opt.get("kvm", 1)
    if KVM:
        e("s_and_b32 s79, s64, 1")
        e("s_lshl_b32 s79, s79, 7")
        e("s_add_u32 s78, s78, s79")
        e("s_lshr_b32 s79, s64, 1")
        e("s_lshl_b32 s79, s79, 16")
        e("s_add_u32 s78, s78, s79")
        e("v_and_b32 v52, 7, v0")
        e("v_lshrrev_b32 v248, 3, v0")
    else:
        e("s_lshl_b32 s79, s64, 6")
        e("s_add_u32 s78, s78, s79")
        e("v_and_b32 v52, 3, v0")
        e("v_lshrrev_b32 v248, 2, v0")
    e("v_lshlrev_b32 v248, 13, v248")
    e("v_lshl_add_u32 v248, v52, 4, v248")
    e("v_add_u32 v248, s78, v248")
    e("v_add_u32 v249, 0xffffe000, v248")
    e("v_add_u32 v250, 0xfffff000, v248")
    e("v_add_u32 v251, 0x1000, v248")
    KR, VR, WR = [212 + 4 * i for i in range(7)], [240 + 4 * i for i in range(4)], [144 + 4 * i for i in range(4)]
    kaddr = [(249, 2048), (250, 0), (250, 2048), (248, 0), (248, 2048), (251, 0), (251, 2048)]
    ntk = " nt" if opt.get("ntkv", 1) else ""
    kvl = [[f"buffer_load_dwordx4 {a(VR[i],4)}, v{r}, {R_V}, 0 offen offset:{o}{ntk}"] for i, (r, o) in enumerate(kaddr[3:])]
    kvl += [[f"buffer_load_dwordx4 {a(KR[i],4)}, v{r}, {R_K}, 0 offen offset:{o}{ntk}"] for i, (r, o) in enumerate(kaddr)]
    kvl[-1].append(lambda: e.mark("kv", "v"))
    for reg, size in ((28, D * S * 2), (40, 256), (44, F * D * 2), (48, S * D * 2), (60, D * 8)):
        e(f"s_mov_b32 s{reg+2}, 0x{size:x}")
        e(f"s_mov_b32 s{reg+3}, 0x20000")
    wsr = [(20, H_OFF, H_SIZE), (24, UR_OFF, UR_SIZE), (32, ZT_OFF, ZT_SIZE), (36, MISC_OFF, MISC_SIZE)]
    if STAMPS:
        wsr.append((92, STAMP_OFF, 1 << 20))
    for reg, off, size in wsr:
        if reg != 92:
            off += opt.get("wsoff", 0) << 20
        e(f"s_add_u32 s{reg}, s88, 0x{off:x}")
        e(f"s_addc_u32 s{reg+1}, s89, 0")
        e(f"s_mov_b32 s{reg+2}, 0x{size:x}")
        e(f"s_mov_b32 s{reg+3}, 0x20000")
    if STAMPS:
        e("s_lshl_b32 s100, s2, 2")
        e("s_add_u32 s100, s100, s64")
        e("s_lshl_b32 s100, s100, 7")
        e("v_mov_b32 v30, s96")
        e("v_mov_b32 v31, s98")
        e("buffer_store_dwordx2 v[30:31], off, s[92:95], s100")
    e("s_lshl_b32 s69, s2, 2")
    e("s_add_u32 s69, s69, s64")
    e("s_lshr_b32 s78, s69, 1")
    e("s_lshl_b32 s78, s78, 2")
    e("s_load_dword s90, s[86:87], s78")
    e("s_bfe_u32 s67, s6, 0x10001")
    e("s_lshl_b32 s67, s67, 3")
    e("s_and_b32 s78, s7, 7")
    e("s_add_u32 s67, s67, s78")
    e("s_lshr_b32 s68, s6, 2")
    e("s_lshl_b32 s68, s68, 2")
    e("s_lshr_b32 s78, s7, 3")
    e("s_add_u32 s68, s68, s78")
    e("s_mul_i32 s78, s66, 12288")
    e(f"s_add_u32 s78, s78, {CS_REL}")
    e("s_cmp_eq_u32 s64, 3")
    e("s_cselect_b32 s78, 0x80000000, s78")
    e("v_add_u32 v28, s78, v28")
    e("v_bfe_u32 v24, v0, 2, 2")
    e("v_and_b32 v25, 3, v0")
    e("v_lshl_add_u32 v26, v22, 3, v24")
    e("v_lshlrev_b32 v26, 8, v26")
    e("v_lshl_add_u32 v26, v25, 3, v26")
    e(f"v_add_u32 v26, {WB}, v26")
    e("v_and_b32 v27, 1, v22")
    e("v_lshl_or_b32 v27, v27, 2, v24")
    for t in range(7):
        e(f"v_xor_b32 v1, {t}, v27")
        e(f"v_lshl_add_u32 v{8+t}, v1, 5, v26")
    e("s_lshr_b32 s78, s64, 1")
    e("s_lshl_b32 s78, s78, 13")
    e("v_add_u32 v26, s78, v26")
    e("s_and_b32 s78, s64, 1")
    e("s_lshl_b32 s78, s78, 2")
    e("v_xor_b32 v27, s78, v27")
    for q in range(4):
        e(f"v_xor_b32 v1, {q}, v27")
        e(f"v_lshl_add_u32 v{18+q}, v1, 5, v26")
    e("v_and_b32 v24, 15, v0")
    e("v_lshrrev_b32 v25, 1, v24")
    e("v_xor_b32 v25, v25, v22")
    e("v_lshlrev_b32 v15, 7, v24")
    e("v_lshl_add_u32 v15, v25, 4, v15")
    e("v_add_u32 v15, s70, v15")
    e("v_xor_b32 v16, 64, v15")
    e("v_and_b32 v24, 3, v0")
    if ROT == 4:
        e("s_bitcmp1_b32 s65, 0")
        e("s_cselect_b32 s78, 0, 0x3f803f80")
        e("v_mov_b32 v25, s78")
    else:
        e("v_mov_b32 v25, 0x3f803f80")
    for q in range(4):
        e(f"v_cmp_eq_u32 vcc, {q}, v24")
        e("s_nop 1")
        e("v_cndmask_b32 v26, 0, v25, vcc")
        for r in range(4):
            e(f"v_accvgpr_write_b32 a{CSS+4*q+r}, v26")
    e("s_lshl_b32 s78, s65, 5")
    e("s_add_u32 s78, s78, s66")
    e("s_lshl_b32 s78, s78, 2")
    e(f"s_add_u32 s80, s78, {HF_REL}")
    e("s_lshl_b32 s78, s2, 2")
    e(f"s_add_u32 s81, s78, {ZF_REL}")
    e("s_lshl_b32 s78, s2, 9")
    e(f"s_add_u32 s78, s78, {PF_REL}")
    e("v_lshlrev_b32 v48, 7, v29")
    e("v_add_u32 v48, s78, v48")
    e("v_mov_b32 v47, s80")
    e("v_cmp_eq_u32 vcc, 5, v29")
    e("v_mov_b32 v45, 0x80000000")
    e("v_mov_b32 v46, s81")
    e("v_cndmask_b32 v48, v48, v47, vcc")
    e("v_cmp_eq_u32 vcc, 4, v29")
    e("s_nop 1")
    e("v_cndmask_b32 v48, v48, v46, vcc")
    e("v_mov_b32 v46, 0")
    e("v_cmp_gt_u32 vcc, 6, v29")
    e("s_lshl_b32 s78, s2, 6")
    e("v_lshlrev_b32 v49, 3, v39")
    e("v_cndmask_b32 v48, v45, v48, vcc")
    e("v_add_u32 v49, s78, v49")
    e("v_cmp_eq_u32 vcc, 0, v40")
    e(f"buffer_store_dword v46, v48, {R_MI}, 0 offen sc1")
    e("s_nop 0")
    e("v_cndmask_b32 v244, v45, v49, vcc")
    e("v_mov_b32 v245, v41")
    stamp(e, 1)

    flat(xdma(0)); flat(xdma(1)); flat(wdma(2)); e.mark("w2", "v")
    e.need("w0")
    e.wait(lg=0)
    e("s_barrier")
    stamp(e, 2)

    def ared(r, tmp):
        o = []
        for m in ("quad_perm:[1,0,3,2]", "quad_perm:[2,3,0,1]", "row_half_mirror", "row_mirror"):
            o += ["s_nop 1", f"v_add_f32_dpp v{r}, v{r}, v{r} {m} row_mask:0xf bank_mask:0xf"]
        o += [f"v_mov_b32 v{tmp}, v{r}", "s_nop 1", f"v_permlane16_swap_b32 v{r}, v{tmp}", "s_nop 1", f"v_add_f32 v{r}, v{r}, v{tmp}"]
        return o
    rb = lambda r: [f"v_cvt_pk_bf16_f32 v{r}, v{r}, v{r}", f"v_lshlrev_b32 v{r}, 16, v{r}"]
    sts = [f"v_lshlrev_b32 v240, 16, v{XS}", f"v_and_b32 v241, 0xffff0000, v{XS}"]
    for i in range(1, 16):
        sts += [f"v_lshlrev_b32 v242, 16, v{XS+i}", f"v_and_b32 v243, 0xffff0000, v{XS+i}",
                "v_add_f32 v240, v240, v242", "v_add_f32 v241, v241, v243"]
    sts += ["v_add_f32 v246, v240, v241"] + ared(246, 242) + ["v_mul_f32 v246, 0xba800000, v246"]
    for i in range(16):
        sts += [f"v_lshlrev_b32 v242, 16, v{XS+i}", f"v_and_b32 v243, 0xffff0000, v{XS+i}",
                "v_add_f32 v242, v242, v246", "v_add_f32 v243, v243, v246"]
        sts += (["v_mul_f32 v240, v242, v242", "v_mul_f32 v241, v243, v243"] if i == 0 else
                ["v_fmac_f32 v240, v242, v242", "v_fmac_f32 v241, v243, v243"])
    sts += ["v_add_f32 v247, v240, v241"] + ared(247, 242) + ["v_mul_f32 v247, 0x3a800000, v247"] + rb(247)
    sts += ["v_add_f32 v247, 0x3727c5ac, v247"] + rb(247) + ["v_sqrt_f32 v247, v247"] + rb(246) + rb(247)
    sts += ["v_rcp_f32 v247, v247", "s_nop 0"]
    st_store = [f"buffer_store_dwordx2 v[246:247], v244, {R_MI}, 0 offen offset:{ST_REL} sc1"]

    def reads(step_u, fs, cs=False, do_b=True):
        fa = FA[fs]
        al = []
        for ai in range(14):
            for h in range(2):
                al.append(f"ds_read_b64_tr_b16 {a(fa+4*ai+2*h,2)}, v{8+ai%7} offset:{step_u*16384 + (ai//7)*8192 + h*1024}")
        bl = [f"ds_read_b128 {a(fa+56+4*j,4)}, v17 offset:{2048*j}" for j in range(4)] if do_b else []
        cl = []
        if cs:
            for q in range(4):
                for h in range(2):
                    cl.append(f"ds_read_b64_tr_b16 {a(CSF+4*q+2*h,2)}, v{18+q} offset:{step_u*16384 + h*1024}")
        return bl + al + cl

    def mfmas(fs, first=False):
        fa = FA[fs]
        return [f"{MF} {accr(ai,j)}, {a(fa+4*ai,4)}, {a(fa+56+4*j,4)}, {'0' if first else accr(ai,j)}"
                for ai in range(14) for j in range(4)]

    e("s_movk_i32 s75, 16384")
    e("v_add_u32 v17, s75, v15")
    for x in reads(0, 0, cs=True):
        e(x)
    flat(wdma(3)); e.mark("w3", "v")
    flat(xdma(0))

    def body(i, wd=True, xd=True, rd=True, cs_m=False, cs_r=False, extra=None, pre=None, aug_w=False, do_b=True,
             vm=None, side=None, side0=12, needs=(), relax=0, post=None):
        u = i & 3
        fs = i & 1
        if vm is None:
            tags = [t_ for t_ in [f"it{i-3}"] + list(needs) if t_ in e.tag]
            vm = min(63, e.vm - max(e.tag[t_][1] for t_ in tags))
        if relax:
            e("s_sub_u32 s101, s101, 1")
            e(f"s_cbranch_scc0 L_rx{i}")
            e("s_mov_b32 s101, 0")
            e.l.append(f"    s_waitcnt vmcnt({vm})")
            e.label(f"L_rx{i}")
            e.l.append(f"    s_waitcnt vmcnt({min(63, vm + relax)}) lgkmcnt(0)")
            e.lg_done = e.lg
        else:
            e.wait(vm=vm, lg=0)
        e("s_barrier")
        if pre:
            pre()
        mf = mfmas(fs, first=(i == 0))
        if cs_m:
            cm = [f"{MF} {a(CSA,4)}, {a(CSF+4*q,4)}, {a(CSS+4*q,4)}, {'0' if (i == 0 and q == 0) else a(CSA,4)}" for q in range(4)]
            mf = cm + mf
        slots = {}
        groups = []
        if xd:
            groups += xdma(1 - (i & 1))
        if wd:
            groups += wdma(u, aug_w)
        groups.append([lambda: e.mark(f"it{i}", "v")])
        if extra:
            groups += extra
        isb = lambda x: isinstance(x, str) and x.startswith("buffer_")
        heavy = [any(isb(x) for x in g) for g in groups]
        nh = max(1, sum(heavy))
        sp = max(1.0, min(7.0, (len(mf) - 5.0) / nh))
        taken = set()
        pos = 2.0
        nxt = 3.0
        for g, hv in zip(groups, heavy):
            if hv:
                pos = max(pos + 1, nxt)
                nxt = pos + sp
                taken.add(int(pos))
            elif not callable(g[0]):
                pos += 1
            slots.setdefault(int(pos), []).extend(g)
        if rd:
            hk = (i + 1) & 1
            if do_b:
                if hk == 0:
                    slots[0] = ["s_add_u32 s75, s75, 8192", f"s_cmp_eq_u32 s75, {XWREG}", "s_cselect_b32 s75, 0, s75"]
                    slots[1] = ["v_add_u32 v17, s75, v15"]
                    taken.add(0)
                else:
                    slots[1] = ["v_add_u32 v17, s75, v16"]
            rl = reads((u + 1) & 3, 1 - fs, cs_r, do_b)
            if do_b:
                rl = rl[4:8] + rl[:4] + rl[8:]
            pos = 0 if not cs_m else 1
            for x in rl:
                while pos in taken and pos < 44:
                    pos += 1
                slots[pos] = [x] + slots.get(pos, [])
                pos += 1
        if side:
            room = len(mf) - side0
            for k, x in enumerate(side):
                slots.setdefault(side0 + (k * room) // len(side), []).append(x)
        merge(e, mf, slots)
        if post:
            post()

    C = 224
    cs = [f"v_accvgpr_read_b32 v{C+r}, a{CSA+r}" for r in range(4)]
    cs += [f"v_cvt_pk_bf16_f32 v{C+4}, v{C}, v{C+1}", f"v_cvt_pk_bf16_f32 v{C+5}, v{C+2}, v{C+3}",
           f"v_lshlrev_b32 v{C+6}, 16, v{C+4}", f"v_and_b32 v{C+7}, 0xffff0000, v{C+4}",
           f"v_lshlrev_b32 v{C+8}, 16, v{C+5}", f"v_and_b32 v{C+9}, 0xffff0000, v{C+5}"]
    cs += [f"v_sub_f32 v{C+r}, v{C+r}, v{C+6+r}" for r in range(4)]
    cs += ["v_bfe_u32 v1, v0, 2, 2", "v_cmp_eq_u32 vcc, 1, v1",
           f"v_cvt_pk_bf16_f32 v{C+10}, v{C}, v{C+1}", f"v_cvt_pk_bf16_f32 v{C+11}, v{C+2}, v{C+3}",
           f"v_cndmask_b32 v{C+4}, v{C+4}, v{C+10}, vcc", f"v_cndmask_b32 v{C+5}, v{C+5}, v{C+11}, vcc",
           f"v_lshlrev_b32 v{C+6}, 16, v{C+10}", f"v_and_b32 v{C+7}, 0xffff0000, v{C+10}",
           f"v_lshlrev_b32 v{C+8}, 16, v{C+11}", f"v_and_b32 v{C+9}, 0xffff0000, v{C+11}"]
    cs += [f"v_sub_f32 v{C+r}, v{C+r}, v{C+6+r}" for r in range(4)]
    cs += ["v_cmp_eq_u32 vcc, 2, v1",
           f"v_cvt_pk_bf16_f32 v{C+10}, v{C}, v{C+1}", f"v_cvt_pk_bf16_f32 v{C+11}, v{C+2}, v{C+3}",
           f"v_cndmask_b32 v{C+4}, v{C+4}, v{C+10}, vcc", f"v_cndmask_b32 v{C+5}, v{C+5}, v{C+11}, vcc"]
    csa = ["s_mul_i32 s3, s66, 12288", "s_lshr_b32 s6, s64, 1", "s_mul_i32 s6, s6, 6144", "s_add_u32 s3, s3, s6",
           *(["s_lshr_b32 s6, s65, 1", "s_lshl_b32 s6, s6, 8", "s_add_u32 s3, s3, s6", "s_and_b32 s6, s65, 1",
              "s_lshl_b32 s6, s6, 10", "s_add_u32 s3, s3, s6"] if ROT == 4 else ["s_lshl_b32 s6, s65, 8", "s_add_u32 s3, s3, s6"]),
           "s_and_b32 s6, s64, 1", "s_lshl_b32 s6, s6, 7",
           "s_add_u32 s3, s3, s6", f"s_add_u32 s3, s3, {CS_REL}",
           "v_bfe_u32 v1, v0, 2, 2", f"v_lshlrev_b32 v{C+12}, 11, v1", f"v_and_b32 v{C+13}, 3, v0",
           f"v_lshl_add_u32 v{C+12}, v{C+13}, 5, v{C+12}", f"v_lshrrev_b32 v{C+13}, 4, v0",
           f"v_lshl_add_u32 v{C+12}, v{C+13}, 3, v{C+12}", "v_cmp_eq_u32 vcc, 3, v1", f"v_mov_b32 v{C+13}, 0x80000000",
           f"v_add_u32 v{C+12}, s3, v{C+12}", f"v_cndmask_b32 v{C+12}, v{C+12}, v{C+13}, vcc"]
    cs_store = [f"buffer_store_dwordx2 {v(C+4,2)}, v{C+12}, {R_MI}, 0 offen sc1"]
    kva = ["v_and_b32 v26, 3, v0", "v_lshlrev_b32 v22, 3, v26", "v_lshlrev_b32 v26, 6, v26",
           "s_lshl_b32 s74, s5, 10", "s_lshl_b32 s3, s64, 8", "s_add_u32 s74, s74, s3",
           "s_lshr_b32 s3, s74, 3", "v_add_u32 v22, s3, v22", f"v_mul_u32_u24 v22, {UR_PITCH}, v22",
           "v_lshrrev_b32 v23, 2, v0", "v_lshlrev_b32 v23, 3, v23", "v_sub_u32 v22, v22, v23",
           "s_lshl_b32 s6, s4, 7", "s_sub_u32 s6, 4088, s6", "v_add_u32 v22, s6, v22",
           "s_lshl_b32 s3, s5, 7", "v_add_u32 v23, s3, v29", f"v_mul_u32_u24 v23, {UR_PITCH}, v23",
           "v_add_u32 v23, 0x1000, v23", "s_lshl_b32 s6, s4, 8", "v_add_u32 v24, s6, v29", "s_movk_i32 s6, 128",
           "v_cmp_gt_u32 vcc, s6, v24", "v_mov_b32 v25, 0x80000000", "s_nop 0", "v_cndmask_b32 v23, v25, v23, vcc"]
    if KVM:
        kva[:15] = ["v_and_b32 v26, 7, v0", "v_lshlrev_b32 v22, 3, v26", "v_lshlrev_b32 v26, 6, v26",
                    "s_lshl_b32 s74, s5, 10", "s_and_b32 s3, s64, 1", "s_lshl_b32 s3, s3, 9", "s_add_u32 s74, s74, s3",
                    "s_lshr_b32 s3, s74, 3", "v_add_u32 v22, s3, v22", f"v_mul_u32_u24 v22, {UR_PITCH}, v22",
                    "v_and_b32 v23, 0x38, v0", "v_sub_u32 v22, v22, v23",
                    "s_lshl_b32 s6, s4, 7", "s_sub_u32 s6, 4088, s6", "s_lshr_b32 s3, s64, 1", "s_lshl_b32 s3, s3, 6",
                    "s_sub_u32 s6, s6, s3", "v_add_u32 v22, s6, v22"]
    wl = [[f"buffer_load_dwordx4 {a(WR[i],4)}, v26, {R_SH}, s74 offen offset:{16*i}"] for i in range(4)]
    assert NCS == 4
    q4 = -(-len(sts) // 4)
    sides = {0: kva, 1: sts[:q4], 2: sts[q4:2*q4], 3: sts[2*q4:3*q4], 4: sts[3*q4:], 5: csa, 6: cs}
    extras = {4: wl, 5: [st_store], 7: [cs_store]}
    needs = {}
    if XSI >= 0:
        assert 4 <= XSI <= 5
        s0 = XSI + 3
        q3 = -(-len(sts) // 3) if s0 == 8 else q4
        sides = {0: kva, 2: csa, 3: ["s_nop 0"] * 6 + cs}
        for k_ in range(4):
            if sts[k_*q3:(k_+1)*q3]:
                sides[s0 + k_] = sts[k_*q3:(k_+1)*q3]
        extras = {4: [cs_store] + wl, 11: [st_store]}
        extras[XSI] = extras.get(XSI, []) + xsl
        needs[s0] = ["xs"]
    KVI = opt.get("kvi", 8)
    KVB = opt.get("kvb", 12)
    extras[KVI] = extras.get(KVI, []) + kvl
    for i in range(KVB):
        tg = {0: "w1", 1: "w2", 2: "w3"}.get(i)
        vmi = min(63, e.vm - e.tag[tg][1]) if tg else None
        body(i, cs_m=(i < NCS), cs_r=(i < NCS - 1), vm=vmi, side=sides.get(i), side0=2, extra=extras.get(i), needs=needs.get(i, ()))
        if i == 3:
            stamp(e, 12)
    stamp(e, 14)
    WF, KF, VF, TMP = 224, [232 + 2 * i for i in range(7)], 246, 1
    OUT = [248, 250, 252, 254, 24, 26, 18, 20]
    kvc = []
    for p in range(4):
        c_ = []
        for h in range(2):
            for d in range(2):
                c_ += [f"v_accvgpr_read_b32 v{TMP}, a{WR[p]+2*h+d}", f"v_lshlrev_b32 v{WF+4*d+h}, 16, v{TMP}",
                       f"v_and_b32 v{WF+4*d+2+h}, 0xffff0000, v{TMP}"]
        for i in range(7):
            c_ += [f"v_accvgpr_read_b32 v{KF[i]+1}, a{KR[i]+p}", f"v_lshlrev_b32 v{KF[i]}, 16, v{KF[i]+1}",
                   f"v_and_b32 v{KF[i]+1}, 0xffff0000, v{KF[i]+1}"]
        for i in range(4):
            c_ += [f"v_accvgpr_read_b32 v{VF+1}, a{VR[i]+p}"]
            c_ += [f"v_mul_f32 v{KF[i]+h}, v{KF[i]+h}, v{WF+6+h}" for h in range(2)]
            c_ += [f"v_lshlrev_b32 v{VF}, 16, v{VF+1}", f"v_and_b32 v{VF+1}, 0xffff0000, v{VF+1}"]
            for j in (2, 1, 0):
                c_ += [f"v_fmac_f32 v{KF[i]+h}, v{KF[i+3-j]+h}, v{WF+2*j+h}" for h in range(2)]
            c_ += [f"v_mul_f32 v{KF[i]+h}, v{KF[i]+h}, v{VF+h}" for h in range(2)]
        for h in range(2):
            o = OUT[2 * p + h]
            c_ += [f"v_cvt_pk_bf16_f32 v{o}, v{KF[3]+h}, v{KF[2]+h}", f"v_cvt_pk_bf16_f32 v{o+1}, v{KF[1]+h}, v{KF[0]+h}"]
        kvc.append(c_)
    kst = lambda ch: [f"s_mov_b32 s3, {ch*UR_PITCH}", f"buffer_store_dwordx2 {v(OUT[ch],2)}, v22, {R_UR}, s3 offen sc1"]
    for i in range(12, 16):
        p = i - 12
        ex_ = [kst(2 * p - 2), kst(2 * p - 1)] if p else None
        body(i, side=kvc[p], side0=0, extra=ex_, needs=(["kv"] if p == 0 else ()))
    for ch in (6, 7):
        flat([kst(ch)])
    for i in range(4):
        e(f"v_mov_b32 v{WF+i}, 0")
    e(f"buffer_store_dwordx4 {v(WF,4)}, v23, {R_UR}, 0 offen sc1")
    stamp(e, 15)
    BG = 0
    e("s_mov_b32 s82, 0")
    e("s_and_b32 s74, s2, 1")
    e("s_lshl_b32 s74, s74, 7")
    def cpf(tagc, va, dst):
        def gl():
            e.l.append(f"    global_load_dword {dst}, v[{va}:{va+1}], off")
            e.vm += 1
        def pc():
            e("s_getpc_b64 s[6:7]")
            e.label(f"L_pc{tagc}")
        return [pc, "s_lshr_b32 s3, s2, 3", "s_and_b32 s3, s3, 1", "s_lshl_b32 s3, s3, 2", "s_add_u32 s3, s3, s64",
                "s_lshl_b32 s3, s3, 12", f"v_lshlrev_b32 v{va}, 6, v0", f"v_add_u32 v{va}, s3, v{va}",
                f"v_min_u32 v{va}, L_end-L_pc{tagc}, v{va}", f"v_mov_b32 v{va+1}, s7", f"v_add_co_u32 v{va}, vcc, s6, v{va}",
                "s_nop 1", f"v_addc_co_u32 v{va+1}, vcc, 0, v{va+1}, vcc", gl]
    if opt.get("cpf2", 1):
        for x in cpf("b", 228, "a255"):
            x() if callable(x) else e(x)
    STG = opt.get("stg", 0)
    NB = 11 if STG == 2 else 7
    if STG:
        e("s_mov_b32 s101, 0")
        e("s_lshr_b32 s5, s2, 3")
        e("s_and_b32 s5, s5, 7")
        e("s_mul_i32 s6, s69, 7168")
        e("s_add_u32 s7, s6, 4096")
        e("s_lshl_b32 s84, s69, 12")

    def burst(i):
        def f():
            e("s_sub_u32 s5, s5, 1")
            e(f"s_cbranch_scc0 L_nb{i}")
            for q in range(7):
                e.l.append(f"    buffer_load_dwordx4 a[252:255], v2, {R_WD}, {'s6' if q < 4 else 's7'} offen offset:{1024*(q&3)}")
            if STG == 2:
                for q in range(4):
                    e.l.append(f"    buffer_load_dwordx4 a[252:255], v2, {R_SK}, s84 offen offset:{1024*q}")
            e("s_mov_b32 s101, 3")
            e.label(f"L_nb{i}")
        return f
    def f0sig():
        e("s_cmp_lg_u32 s82, 0")
        e("s_cbranch_scc1 L_f0_nosig")
        signal(e, "f0", f"buffer_atomic_add v1, off, {R_DB}, s74 sc1")
    e.label("L_g1_loop")
    for i in range(16, 20):
        body(i, vm=16, relax=(NB if STG else 0), post=(burst(i) if STG else None), pre=(f0sig if i == opt.get("f0s", 18) else None))
    e("s_add_u32 s82, s82, 1")
    e("s_cmp_lt_u32 s82, 2")
    e("s_cbranch_scc1 L_g1_loop")
    for k in range(3):
        e.tag[f"it{21+k}"] = e.tag[f"it{17+k}"]
    e.vm_done = 0
    stamp(e, 13)

    def poll(loadins, cond, lab):
        e("s_mov_b32 s82, 0")
        e.label(f"L_{lab}_chk")
        cond()
        e(f"s_cbranch_scc1 L_{lab}_ok")
        e("s_sleep 1")
        e.l.append("    " + loadins)
        e.l.append("    s_waitcnt vmcnt(0)")
        e("s_add_u32 s82, s82, 1")
        e(f"s_cmp_lt_u32 s82, {SPIN_LIMIT}")
        e(f"s_cbranch_scc1 L_{lab}_chk")
        e.label(f"L_{lab}_ok")

    f0_load = f"buffer_load_dword v18, v27, {R_DB}, 0 offen sc1"

    def f0_cond():
        e("v_cmp_le_u32 vcc, 0x80, v18")
        e("s_cmp_eq_u64 vcc, exec")

    def I(s_, tag=None):
        return lambda: e(s_, tag=tag)

    def urdma(c):
        g = [[f"s_add_u32 m0, s70, {c*CV_CP}", f"s_add_u32 s79, s83, {2*c}", f"buffer_load_dwordx4 v2, {R_UR}, s79 offen sc1 lds"]]
        g += [[f"buffer_load_dwordx4 v2, {R_UR}, s79 offen offset:{1024*q} sc1 lds"] for q in range(1, 4)]
        g[-1].append(lambda: e.mark(f"ur{c}", "v"))
        return g

    wdpf0 = [["s_mul_i32 s74, s69, 7168"]] + [[f"buffer_load_dwordx4 a[252:255], v2, {R_WD}, s74 offen offset:{1024*(q&3)}"] + (["s_add_u32 s74, s74, 4096"] if q == 3 else []) for q in range(7)]
    if opt.get("spf"):
        wdpf0 = [[f"buffer_load_dwordx4 a[252:255], v2, {R_SK}, s84 offen offset:{1024*q}"] for q in range(4)] + wdpf0
    RX = NB if STG else 0
    body(24, side=["v_and_b32 v27, 1, v0", "v_lshlrev_b32 v27, 7, v27"], relax=RX)
    F0L = [[f0_load, lambda: e.mark("f0", "v")]]
    body(25, extra=(F0L if opt.get("f0l", 26) == 25 else None), relax=RX)
    body(26, relax=RX, extra=(F0L if opt.get("f0l", 26) == 26 else None), side=["v_and_b32 v19, 15, v0", "v_lshlrev_b32 v19, 3, v19",
                   "s_lshl_b32 s85, s65, 11", "s_lshl_b32 s3, s64, 9", "s_add_u32 s85, s85, s3",
                   f"s_mul_i32 s83, s69, {UR_PITCH}", "s_lshl_b32 s84, s69, 12"])
    stl = [[f"buffer_load_dwordx2 {v(20+2*j,2)}, v19, {R_MI}, s85 offen offset:{ST_REL+128*j} sc1"] for j in range(4)]
    stl[-1].append(lambda: e.mark("st", "v"))
    body(27, xd=False, extra=(wdpf0 if opt.get("wpf", 0 if STG else 27) == 27 else None))
    body(28, xd=False, aug_w=True, pre=lambda: poll(f0_load, f0_cond, "f0"), extra=stl, needs=["f0"])
    body(29, xd=False, wd=False, extra=urdma(0) + urdma(2) + (wdpf0 if opt.get("wpf") == 29 else []))
    body(30, xd=False, wd=False,
         side=["v_and_b32 v3, 15, v0", "v_lshrrev_b32 v28, 4, v0",
               "v_lshrrev_b32 v4, 2, v3", f"v_mul_u32_u24 v4, {CV_CP}, v4", "v_and_b32 v6, 3, v0",
               "v_lshl_add_u32 v4, v6, 4, v4", "v_add_u32 v4, 4096, v4", f"v_add_u32 v5, {CV_HZ}, v2",
               "v_cmp_gt_u32 vcc, 32, v0", "v_add_u32 v29, s70, v2", "v_mov_b32 v248, 0", "v_mov_b32 v249, 0",
               "v_cndmask_b32 v5, v4, v5, vcc", "v_add_u32 v5, s70, v5", "v_mov_b32 v250, 0", "v_mov_b32 v251, 0"])
    hd = [[f"s_add_u32 m0, s70, {CV_H}", "s_nop 0", f"buffer_load_dwordx4 v2, {R_SK}, s84 offen lds"]]
    hd += [[f"buffer_load_dwordx4 v2, {R_SK}, s84 offen offset:{1024*q} lds"] for q in range(1, 4)]
    hd[-1].append(lambda: e.mark("hk", "v"))
    if STG != 2:
        hd = [[x.replace(" lds", " nt lds") if isinstance(x, str) else x for x in g] for g in hd]
    wdpf = [["s_mul_i32 s74, s69, 7168"]]
    wdpf += [[f"buffer_load_dwordx4 a[252:255], v2, {R_WD}, s74 offen offset:{1024*(q&3)}"] + (["s_add_u32 s74, s74, 4096"] if q == 3 else []) for q in range(7)]
    WPF = opt.get("wpf", 27)
    if WPF == 31:
        hd += wdpf
    bb = ["v_cmp_gt_u32 vcc, 48, v0", "ds_write_b128 v5, v[248:251]"]
    for j in range(4):
        bb += [f"v_lshrrev_b32 v1, 16, v{20+2*j}", f"v_or_b32 v1, v1, v{20+2*j}", "v_cndmask_b32 v1, 0, v1, vcc"]
        bb += [f"v_accvgpr_write_b32 a{FA[0]+56+4*j+r}, v1" for r in range(4)]
    for j in range(4):
        bb += [f"v_mul_f32 v{20+2*j}, 0xbfb8aa3b, v{21+2*j}", f"v_mul_f32 v{21+2*j}, v{21+2*j}, v{21+2*j}",
               f"v_rcp_f32 v{21+2*j}, v{21+2*j}"]
    body(31, xd=False, wd=False, do_b=False, extra=hd, side=bb, side0=4, needs=["st"])
    TB = [224, 236]
    def odr(q):
        b = TB[q & 1]
        return [I(f"ds_read_b128 {v(b,4)}, v29 offset:{1024*q}"),
                I(f"ds_read_b128 {v(b+4,4)}, v29 offset:{2*CV_CP+1024*q}"),
                I(f"ds_read_b32 v{b+8}, v29 offset:{2*CV_CP+1024*q+16}", tag=f"od{q}")]
    def odc(q):
        b = TB[q & 1]
        r = [lambda: e.need(f"od{q}")]
        r += [I(f"v_alignbit_b32 v{b+i}, v{b+4+i}, v{b+i}, 16") for i in range(4)]
        r.append(I(f"ds_write_b128 v29, {v(b,4)} offset:{CV_CP+1024*q}"))
        r += [I(f"v_alignbit_b32 v{b+4+i}, v{b+5+i}, v{b+4+i}, 16") for i in range(4)]
        r.append(I(f"ds_write_b128 v29, {v(b+4,4)} offset:{3*CV_CP+1024*q}"))
        return r
    ha = ["s_lshl_b32 s3, s65, 4", "s_lshl_b32 s6, s64, 2", "s_add_u32 s3, s3, s6",
          f"s_mul_i32 s3, s3, {H_SB}", "s_mul_i32 s6, s66, 3584", "s_add_u32 s3, s3, s6",
          "v_lshrrev_b32 v18, 1, v28", "v_lshlrev_b32 v18, 8, v18", "v_lshl_add_u32 v18, v3, 4, v18",
          "v_add_u32 v18, s3, v18", "v_and_b32 v1, 1, v28", f"v_mul_u32_u24 v19, {H_SB}, v1",
          "v_add_u32 v19, v19, v18", "v_lshl_add_u32 v18, v1, 9, v18"]
    ca = ["v_and_b32 v4, 3, v3", "v_sub_u32 v4, 3, v4", f"v_mul_u32_u24 v16, {CV_CP}, v4",
          "v_and_b32 v4, 12, v3", "v_lshlrev_b32 v4, 1, v4", "v_sub_u32 v16, v16, v4",
          "v_lshl_add_u32 v16, v28, 4, v16", f"s_add_u32 s3, s70, {2*2028 - 3584}", "v_add_u32 v16, s3, v16",
          "v_lshlrev_b32 v17, 5, v3", "v_lshl_add_u32 v17, v28, 4, v17", f"s_add_u32 s3, s70, {CV_H - 32}",
          "v_add_u32 v17, s3, v17"]
    seq = odr(0) + odr(1) + ha + odc(0) + odr(2) + odc(1) + odr(3) + ca[:6] + odc(2) + ca[6:] + odc(3)
    body(32, xd=False, wd=False, rd=False, side=seq, side0=0, needs=["ur2"])
    stamp(e, 3)

    e.c("SwiGLU epilogue")
    HSC = " sc1" if opt.get("hsc", 1) else ""

    pend = []

    def flush_st():
        while pend:
            o_, st_ = pend.pop(0)
            e(f"v_permlane16_swap_b32 v{o_}, v{o_+2}")
            e(f"v_permlane16_swap_b32 v{o_+1}, v{o_+3}")
            e(st_, tag="hst")
            if o_ == 244:
                e(f"s_mov_b32 s78, {2*H_SB}")

    def swiglu(g, u, tmp, out, kc):
        for q in range(2):
            e(f"v_pk_mul_f32 {v(tmp+2*q,2)}, {v(g+2*q,2)}, {v(kc,2)} op_sel_hi:[1,0]")
        flush_st()
        for q in range(4):
            e(f"v_exp_f32 v{tmp+q}, v{tmp+q}")
        for q in range(2):
            e(f"v_pk_mul_f32 {v(g+2*q,2)}, {v(g+2*q,2)}, {v(u+2*q,2)}")
        for q in range(2):
            e(f"v_pk_fma_f32 {v(tmp+2*q,2)}, {v(tmp+2*q,2)}, {v(kc,2)}, {v(kc,2)} op_sel:[0,1,1] op_sel_hi:[1,1,1]")
        for q in (2, 3, 0, 1):
            e(f"v_rcp_f32 v{tmp+q}, v{tmp+q}")
        for q in (1, 0):
            e(f"v_pk_mul_f32 {v(g+2*q,2)}, {v(g+2*q,2)}, {v(tmp+2*q,2)}")
        for q in (1, 0):
            e(f"v_cvt_pk_bf16_f32 v{out+q}, v{g+2*q}, v{g+2*q+1}")

    def cv_reads(fs):
        o = 64 * fs
        r = []
        for i in range(8):
            r.append(f"ds_read_b128 {a(o+32+4*i,4)}, v17 offset:{512*i}")
            r.append(f"ds_read_b64 {a(o+4*i,2)}, v16 offset:{(7-i)*512}")
            r.append(f"ds_read_b64 {a(o+4*i+2,2)}, v16 offset:{(7-i)*512+8}")
        r += ["v_subrev_u32 v16, 64, v16", "v_subrev_u32 v17, 64, v17"]
        return r

    e("s_nop 4")
    n = 0
    for j in range(4):
        if j in (0, 1, 3):
            e(f"s_mov_b32 s{78+(j&1)}, {j*H_SB}")
        for i in range(4):
            o = 8 + 4 * (n & 1)
            if i < 3:
                for k in range(2):
                    t_ = 2 * i + k
                    swiglu(acc(t_, j), acc(7 + t_, j), 4, o + 2 * k, 20 + 2 * j)
                pend.append((o, f"buffer_store_dwordx4 {v(o,4)}, v18, {R_H}, s{78+(j&1)} offen offset:{1024*i}{HSC}"))
                n += 1
            else:
                for r in range(4):
                    e(f"v_accvgpr_read_b32 v{248+r}, a{AC6+4*j+r}")
                    e(f"v_accvgpr_read_b32 v{252+r}, a{AC6+16+4*j+r}")
                flush_st()
                swiglu(248, 252, 4, 244 + 2 * (j & 1), 20 + 2 * j)
                if j & 1:
                    pend.append((244, f"buffer_store_dwordx4 v[244:247], v19, {R_H}, s78 offen offset:3072{HSC}"))
        if j == 3:
            e("s_nop 1")
            flush_st()
        if j == opt.get("cvj", 3):
            e.need("hk")
            for x in cv_reads(0):
                e(x)
    if WPF == 33:
        flat(wdpf)
    stamp(e, 4)

    e.c("long conv")
    CA = 32

    def cv_mfmas(fs, first):
        o = 64 * fs
        prs = [(p, w) for p in range(8) for w in range(8) if p + w <= 7]
        return [f"{MF} {v(CA+4*(p+w),4)}, {a(o+4*p,4)}, {a(o+32+4*w,4)}, {'0' if (first and p == 0) else v(CA+4*(p+w),4)}"
                for p, w in prs]

    def cv_body(r, rd=True, extra=None, early=None):
        fs = r & 1
        e.wait(lg=0)
        slots = {}
        if early:
            slots[0] = list(early)
        if rd:
            for k, x in enumerate(cv_reads(1 - fs)):
                slots.setdefault(k, []).append(x)
        if extra:
            for k, g in enumerate(extra):
                slots.setdefault(k * 2 if not rd else 26 + k, []).extend(g)
        merge(e, cv_mfmas(fs, r == 0), slots)

    G_H, G_WD, G_A, G_B = 192, 194, 196, 200
    G2ROT = opt.get("g2rot", 0)
    ZL = 65536
    g2s = [["s_lshr_b32 s72, s64, 1", "s_and_b32 s73, s64, 1", "s_and_b32 s4, s2, 1"],
           ["v_bfe_u32 v6, v0, 1, 3", "v_xor_b32 v6, v6, v28"],
           ["s_lshl_b32 s78, s64, 3", "v_add_u32 v7, s78, v28", "v_and_b32 v4, 1, v0"],
           [f"v_lshlrev_b32 v{G_WD}, 11, v7", f"v_lshl_add_u32 v{G_WD}, v4, 4, v{G_WD}"],
           ["s_lshl_b32 s78, s68, 8", f"v_add_u32 v{G_WD}, s78, v{G_WD}", "v_xor_b32 v7, 4, v6"],
           [f"v_lshl_add_u32 v{G_WD+1}, v7, 5, v{G_WD}", f"v_lshl_add_u32 v{G_WD}, v6, 5, v{G_WD}"],
           [f"v_add_u32 v{G_WD+1}, 7168, v{G_WD+1}", "s_lshl_b32 s74, s64, 11", f"s_add_u32 s71, s74, {WB}"],
           ([f"s_mul_i32 s7, s4, {56*1024}", "s_and_b32 s75, s67, 7", f"s_mul_i32 s75, s75, {7*1024}", "s_add_u32 s75, s75, s7",
             "s_lshl_b32 s76, s75, 6", f"s_add_u32 s6, s7, {56*1024}", "s_lshl_b32 s65, s7, 6", "s_lshl_b32 s66, s6, 6"] if G2ROT else
            [f"s_mul_i32 s75, s4, {56*1024}", "s_lshl_b32 s76, s75, 6"]),
           ["s_lshl_b32 s78, s67, 3", "s_lshl_b32 s79, s64, 1", "s_add_u32 s78, s78, s79"],
           [f"s_mul_i32 s78, s78, {H_SB}", f"v_add_u32 v{G_H}, s78, v2", f"v_add_u32 v{G_H+1}, {H_SB-1024}, v{G_H}"],
           ["v_bfe_u32 v6, v0, 2, 2", "v_and_b32 v7, 3, v0"],
           ["v_lshl_add_u32 v4, v28, 2, v6", "v_and_b32 v5, 7, v4"],
           ["v_lshlrev_b32 v4, 8, v4", "v_lshl_add_u32 v4, v7, 3, v4"],
           [f"v_add_u32 v4, {WB}, v4", "s_lshl_b32 s78, s73, 2", "v_xor_b32 v5, s78, v5"]]
    for dt in range(4):
        g2s.append([f"v_xor_b32 v7, {dt}, v5", f"v_lshl_add_u32 v{G_A+dt}, v7, 5, v4"])
    g2s += [["s_lshl_b32 s78, s72, 12", "s_lshl_b32 s79, s4, 11", "s_add_u32 s78, s78, s79"],
            ["v_lshrrev_b32 v4, 1, v28", "v_lshlrev_b32 v4, 8, v4"],
            ["v_lshl_add_u32 v4, v3, 4, v4", "v_and_b32 v5, 1, v28"],
            ["v_lshl_add_u32 v4, v5, 3, v4", f"v_add_u32 v{G_B}, s78, v4"],
            [f"v_xor_b32 v{G_B+1}, 0x800, v{G_B}"],
            ["v_lshlrev_b32 v23, 2, v3", "s_lshr_b32 s77, s67, 1", "s_lshl_b32 s77, s77, 7"],
            ["s_lshl_b32 s78, s4, 6", "s_add_u32 s77, s77, s78", f"s_add_u32 s77, s77, {HF_REL}"],
            [f"s_add_u32 s56, s88, 0x{PX_OFF:x}", "s_addc_u32 s57, s89, 0", f"s_mov_b32 s58, 0x{PX_SIZE:x}"]]
    R_PX = R_V

    def wd2(slot):
        return [[f"s_add_u32 m0, s71, {slot*8192}", "s_nop 0", f"buffer_load_dwordx4 v{G_WD}, {R_WD}, s76 offen lds"],
                [f"buffer_load_dwordx4 v{G_WD+1}, {R_WD}, s76 offen offset:1024 lds", "s_add_u32 s76, s76, 0x10000"] +
                (["s_cmp_eq_u32 s76, s66", "s_cselect_b32 s76, s65, s76"] if G2ROT else [])]

    def h2(slot):
        return [[f"s_add_u32 m0, s74, {slot*8192}", "s_nop 0", f"buffer_load_dwordx4 v{G_H}, {R_H}, s75 offen sc1 lds"],
                [f"buffer_load_dwordx4 v{G_H+1}, {R_H}, s75 offen offset:1024 sc1 lds", "s_add_u32 s75, s75, 1024"] +
                (["s_cmp_eq_u32 s75, s6", "s_cselect_b32 s75, s7, s75"] if G2ROT else [])]

    fl_load = f"buffer_load_dword v22, v23, {R_MI}, s77 offen sc1"

    def flag_cond():
        e("v_cmp_ne_u32 vcc, 0, v22")
        e("s_cmp_eq_u64 vcc, exec")

    R_SIG = opt.get("rsig", 3)
    wdp = sum([wd2(s_) for s_ in range(8)], [])
    ex_by_r = {0: g2s[:10], 1: g2s[10:20], 2: g2s[20:], 4: wdp[:8], 5: wdp[8:]}
    if opt.get("cpf3", 1):
        c3_ = cpf("c", 204, "a255")
        ex_by_r[3] = [c3_[k:k+2] for k in range(0, len(c3_), 2)]
    if opt.get("wdearly"):
        ex_by_r = {0: g2s[:10], 1: wdp[:8], 2: wdp[8:], 3: g2s[10:20], 4: g2s[20:]}
    UZ = 224
    pre_z = ["v_lshlrev_b32 v12, 5, v3", "v_lshl_add_u32 v12, v28, 3, v12", f"s_add_u32 s78, s70, {2*2044 - 3584}",
             "v_sub_u32 v13, s78, v12"] + [f"ds_read_b64 {v(UZ+2*i,2)}, v13 offset:{(7-i)*512}" for i in range(8)]
    for r in range(7):
        if r == R_SIG:
            e.need("hst")
            e("s_barrier")
            signal(e, "f1", f"buffer_store_dword v1, off, {R_MI}, s80 sc1")
            stamp(e, 5)
        cv_body(r, extra=ex_by_r.get(r), early=([I(fl_load, tag="f1")] if r == 6 else None))
    cv_body(7, rd=False, extra=[[x] for x in pre_z])
    e.wait(lg=0)
    e.need("f1")
    poll(fl_load, flag_cond, "f1")
    e("s_barrier")
    stamp(e, 6)
    for s_ in range(8):
        flat(h2(s_))
        e.mark(f"h{s_}", "v")
    e("s_and_b32 s78, s69, 1")
    e("s_lshl_b32 s78, s78, 4")
    e("s_lshr_b32 s90, s90, s78")
    e("s_lshl_b32 s90, s90, 16")
    e("v_lshlrev_b32 v12, 5, v3")
    e("v_lshrrev_b32 v13, 1, v28")
    e("v_lshl_add_u32 v12, v13, 4, v12")
    e("v_and_b32 v13, 1, v28")
    e("v_lshl_add_u32 v12, v13, 9, v12")
    for i in range(8):
        u0, u1 = UZ + 2 * i, UZ + 2 * i + 1
        y = CA + 4 * i
        e(f"v_and_b32 v4, 0xffff0000, v{u1}")
        e(f"v_lshlrev_b32 v5, 16, v{u1}")
        e(f"v_and_b32 v6, 0xffff0000, v{u0}")
        e(f"v_lshlrev_b32 v7, 16, v{u0}")
        for q in range(4):
            e(f"v_fmac_f32 v{y+q}, s90, v{4+q}")
        e(f"v_cvt_pk_bf16_f32 v{u0}, v{y}, v{y+1}")
        e(f"v_cvt_pk_bf16_f32 v{u1}, v{y+2}, v{y+3}")
    e("s_nop 1")
    for k in range(4):
        b = UZ + 4 * k
        e(f"v_permlane16_swap_b32 v{b}, v{b+2}")
        e(f"v_permlane16_swap_b32 v{b+1}, v{b+3}")
        e(f"buffer_store_dwordx4 {v(b,4)}, v12, {R_ZT}, s84 offen offset:{1024*k} sc1", tag="zst")
    stamp(e, 7)

    e.c("GEMM2")
    A2 = 64

    def acc2(dt, jj):
        return A2 + (jj * 4 + dt) * 4

    def rd2(step):
        sl = step & 7
        o = 32 * (step & 3)
        al = [f"ds_read_b64_tr_b16 {a(o+4*dt+2*h,2)}, v{G_A+dt} offset:{sl*8192+h*4096}" for dt in range(4) for h in range(2)]
        bl = [f"ds_read_b64 {a(o+16+4*jj+2*h,2)}, v{G_B+(jj>>1)} offset:{sl*8192+(jj&1)*1024+h*512}" for jj in range(4) for h in range(2)]
        return bl[:2] + al + bl[2:]

    def mf2(step, jjs=(0, 1, 2, 3)):
        o = 32 * (step & 3)
        return [f"{MF} {v(acc2(dt,jj),4)}, {a(o+4*dt,4)}, {a(o+16+4*jj,4)}, {'0' if step == 0 else v(acc2(dt,jj),4)}"
                for jj in jjs for dt in range(4)]

    def it2(I_, vm=None, loads=True, extra=None, side=None, pre=None, needs=(), jjs=(0, 1, 2, 3)):
        if vm is None:
            vm = min(63, e.vm - max(e.tag[t_][1] for t_ in needs))
        e.wait(vm=vm, lg=0)
        e("s_barrier")
        if pre:
            pre()
        mf = mf2(2 * I_, jjs) + mf2(2 * I_ + 1, jjs)
        slots = {}
        g = []
        if loads:
            for hf in range(2):
                sl = (2 * I_ + hf) & 7
                g += h2(sl) + wd2(sl)
        taken = set()
        for k, grp in enumerate(g):
            slots[1 + 4 * k] = list(grp)
            taken.add(1 + 4 * k)
        slots.setdefault(len(mf) - 2, []).append(lambda: e.mark(f"g{I_}", "v"))
        for k, grp in enumerate(extra or []):
            slots.setdefault(len(mf) - 1 if loads else 2 + 3 * k, []).extend(grp)
        rl = rd2(2 * I_ + 2) + rd2(2 * I_ + 3)
        pos = 0
        lim = len(mf) - 6
        free = [k for k in range(lim) if k not in taken]
        for k, x in enumerate(rl):
            q = free[(k * len(free)) // len(rl)]
            slots.setdefault(q, []).append(x)
        if side:
            for k, x in enumerate(side):
                slots.setdefault((k * len(mf)) // len(side), []).append(x)
        merge(e, mf, slots)

    XR, SR, ZR, PR = 32, 48, 224, 128
    fa = ["v_and_b32 v6, 1, v28", "v_lshrrev_b32 v7, 1, v28", "v_lshl_or_b32 v6, v6, 1, v7",
          "s_lshl_b32 s85, s67, 3", "s_lshl_b32 s78, s72, 2", "s_add_u32 s85, s85, s78", "s_lshl_b32 s78, s4, 1",
          "s_add_u32 s85, s85, s78",
          "s_lshl_b32 s87, s68, 1", "s_add_u32 s87, s87, s73",
          "s_lshl_b32 s78, s85, 15", "s_lshl_b32 s79, s87, 7", "s_add_u32 s78, s78, s79",
          "v_lshlrev_b32 v24, 11, v3", "v_lshl_add_u32 v24, v6, 4, v24", "v_add_u32 v24, s78, v24",
          "v_add_u32 v25, 0x8000, v24", "v_lshlrev_b32 v26, 3, v3", "s_lshl_b32 s86, s85, 7",
          "s_lshl_b32 s77, s87, 6", f"s_add_u32 s77, s77, {ZF_REL}",
          "v_lshrrev_b32 v21, 2, v0", "v_lshlrev_b32 v21, 12, v21", "v_and_b32 v27, 3, v0",
          "v_lshl_add_u32 v21, v27, 4, v21", "s_lshl_b32 s78, s87, 18", "s_lshl_b32 s79, s85, 5",
          "s_add_u32 s78, s78, s79", "v_add_u32 v21, s78, v21",
          "s_lshl_b32 s5, s64, 12", f"s_add_u32 s5, s5, {ZL}",
          "v_bfe_u32 v7, v0, 2, 2", "v_lshl_add_u32 v7, v6, 3, v7", "v_lshlrev_b32 v7, 6, v7",
          "v_lshl_add_u32 v7, v27, 3, v7", "v_add_u32 v7, s5, v7",
          "s_lshl_b32 s83, s69, 13", "s_xor_b32 s84, s83, 0x8000", "v_add_u32 v13, 0x1000, v2",
          "s_lshl_b32 s78, s69, 7", f"s_add_u32 s80, s78, {PF_REL}", "s_xor_b32 s78, s78, 0x200", f"s_add_u32 s91, s78, {PF_REL}"]
    e.need("h1")
    e("s_barrier")
    for x in rd2(0) + rd2(1):
        e(x)
    it2(0, needs=["h3"])
    it2(1, needs=["h5"], side=fa[:22])
    it2(2, needs=["h7"])
    it2(3, needs=["g0", "zst"], side=fa[22:],
        pre=lambda: signal(e, "f2", f"buffer_store_dword v1, off, {R_MI}, s81 sc1"))
    e("s_mov_b32 s82, 1")
    e.label("L_g2_loop")
    for I_ in range(4, 8):
        it2(I_, vm=16)
    e("s_add_u32 s82, s82, 1")
    e("s_cmp_lt_u32 s82, 6")
    e("s_cbranch_scc1 L_g2_loop")
    for k in range(3):
        e.tag[f"g{21+k}"] = e.tag[f"g{5+k}"]
    e.vm_done = 0
    ex = [[I(fl_load, tag="zf")]]
    for e2 in range(2):
        for pr in range(2):
            ex.append([f"buffer_load_dwordx4 {v(XR+4*(2*e2+pr),4)}, v{24+e2}, {R_X}, 0 offen offset:{64*pr}"])
        ex.append([f"buffer_load_dwordx2 {v(SR+2*e2,2)}, v26, {R_MI}, s86 offen offset:{ST_REL+128*e2} sc1"])
    it2(24, loads=False, extra=ex, needs=["g21"])
    it2(25, loads=False, needs=["g22"])
    zd = [["s_mov_b32 m0, s5", "s_nop 0", f"buffer_load_dwordx4 v21, {R_ZT}, 0 offen sc1 lds"]]
    for i in range(1, 4):
        zd.append([f"s_mov_b32 s78, {i*(65536-1024)}", f"buffer_load_dwordx4 v21, {R_ZT}, s78 offen offset:{1024*i} sc1 lds"])
    it2(26, loads=False, needs=["g23", "zf"], jjs=(2, 3), extra=zd, pre=lambda: poll(fl_load, flag_cond, "f2"))
    for x in mf2(52, (0,)):
        e(x)
    e.wait(lg=0)
    for x in mf2(54, (2, 3)) + mf2(55, (2, 3)):
        e(x)
    stamp(e, 8)
    own = mf2(52, (1,)) + mf2(53, (0, 1)) + mf2(54, (0, 1)) + mf2(55, (0, 1))
    slots = {0: ["s_nop 3"]}
    for q in range(8):
        slots[4 + q] = [f"buffer_store_dwordx4 {v(acc2(0,2)+4*q,4)}, v{2 if q < 4 else 13}, {R_PX}, s83 offen offset:{1024*(q&3)} sc1"]
    merge(e, own, slots)
    e.wait(vm=0)
    e("v_mov_b32 v1, 1")
    e("s_mov_b64 exec, 1")
    e(f"buffer_store_dword v1, off, {R_MI}, s80 sc1")
    e("s_mov_b64 exec, -1")
    pf_load = f"buffer_load_dword v22, off, {R_MI}, s91 sc1"
    e(pf_load)
    for e2 in range(2):
        for pr in range(2):
            for hh in range(2):
                e(f"ds_read_b64_tr_b16 {v(ZR+4*(2*e2+pr)+2*hh,2)}, v7 offset:{(32*pr+4*hh)*64 + 32*e2}")
    e.wait(lg=0)
    PB = 160
    for e2 in range(2):
        st = SR + 2 * e2
        for pr in range(2):
            i = 2 * e2 + pr
            for q in range(4):
                d_ = PB + 8 * i + 2 * q
                unpack(e, d_, XR + 4 * i + q)
                unpack(e, 56, ZR + 4 * i + q)
                e(f"v_pk_add_f32 v[54:55], {v(d_,2)}, {v(st,2)} op_sel_hi:[1,0]")
                e(f"v_pk_mul_f32 v[54:55], v[54:55], {v(st,2)} op_sel:[0,1] op_sel_hi:[1,1]")
                e(f"v_pk_fma_f32 {v(d_,2)}, v[54:55], v[56:57], {v(d_,2)}")
    e.wait(vm=0)
    poll(pf_load, flag_cond, "px")
    stamp(e, 9)
    for q in range(8):
        e(f"buffer_load_dwordx4 {v(PR+4*q,4)}, v{2 if q < 4 else 13}, {R_PX}, s84 offen offset:{1024*(q&3)} sc1", tag=f"p{q}")
    for e2 in range(2):
        for pr in range(2):
            i = 2 * e2 + pr
            A0 = acc2(2 * pr, e2)
            e.need(f"p{2*i+1}")
            for q in range(4):
                e(f"v_pk_add_f32 {v(A0+2*q,2)}, {v(A0+2*q,2)}, {v(PR+8*i+2*q,2)}")
            e("s_nop 1")
            for r in range(4):
                e(f"v_permlane16_swap_b32 v{A0+r}, v{A0+4+r}")
            for q in range(4):
                e(f"v_pk_add_f32 {v(A0+2*q,2)}, {v(A0+2*q,2)}, {v(PB+8*i+2*q,2)}")
            for q in range(4):
                e(f"v_cvt_pk_bf16_f32 v{96+4*i+q}, v{A0+2*q}, v{A0+2*q+1}")
            e(f"buffer_store_dwordx4 {v(96+4*i,4)}, v{24+e2}, {R_OUT}, 0 offen offset:{64*pr} sc1")
    stamp(e, 10)
    if STAMPS or DST:
        e.wait(vm=0)
    stamp(e, 11)
    e.label("L_end")
    name = NAME + "_kernel"
    return f""".globl {name}
.p2align 8
.type {name},@function
{name}:
{e.text()}    s_endpgm
.section .rodata,"a"
.p2align 6
.amdhsa_kernel {name}
  .amdhsa_next_free_vgpr 512
  .amdhsa_next_free_sgpr 102
  .amdhsa_accum_offset 256
  .amdhsa_group_segment_fixed_size 0
  .amdhsa_kernarg_size 104
  .amdhsa_user_sgpr_count 2
  .amdhsa_user_sgpr_kernarg_segment_ptr 1
  .amdhsa_system_sgpr_workgroup_id_x 1
  .amdhsa_float_denorm_mode_32 3
.end_amdhsa_kernel
"""


def main(opt=None):
    opt = opt or {}
    ref = open("cdna_kernels/" + NAME + ".s.ref").read().split("\n")
    hdr = [l for l in ref if l.startswith(";") and "@launch" not in l]
    out = "\n".join(hdr) + "\n"
    out += f"; @launch grid=(256,1,1) block=(256,1,1) lds={LDS_SIZE}\n"
    out += '.amdgcn_target "amdgcn-amd-amdhsa--gfx950"\n.text\n'
    out += gen(opt)
    return out


if __name__ == "__main__":
    args = [x for x in sys.argv[1:] if not x.startswith("-")]
    opt = {}
    for x in sys.argv[1:]:
        if x == "-stamps":
            STAMPS = True
        elif x == "-light":
            STAMPS = LIGHT = True
        elif x.startswith("-dst"):
            DST = int(x.split("=")[1])
        elif x.startswith("-"):
            k, _, val = x[1:].partition("=")
            opt[k] = int(val) if val else 1
    path = args[0] if args else "cdna_kernels/" + NAME + ".s"
    open(path, "w").write(main(opt))
    print("wrote", path)
```

```python
import sys

NAME = "parallel_sum__ssm_conv_h3__swiglu_ffn__prompt"
S, D, F = 2048, 1024, 3584
KA_Q, KA_K, KA_V, KA_SHK, KA_SSMK, KA_SSMD, KA_BX, KA_WG, KA_WU, KA_WD, KA_OUT, KA_DBG, KA_WS = [8 * i for i in range(13)]

MISC_OFF = 0
ST_REL = 0
HF_REL = 16384
ZF_REL = 16384 + 1024
KF_REL = 16384 + 2048
CS_REL = 32768
PF_REL = CS_REL + 32 * 12288
MISC_SIZE = PF_REL + 1024 * 128
UR_OFF = 4 << 20
UR_PITCH = 4096 + 128
UR_SIZE = D * UR_PITCH
ZT_OFF = 9 << 20
ZT_SIZE = S * D * 2
H_OFF = 16 << 20
H_SIZE = S * F * 2
H_SB = 112 * 1024
PX_OFF = 32 << 20
PX_SIZE = 8 << 20
STAMP_OFF = 64 << 20

LDS_SIZE = 163840
XWREG = 24576
WB = 4 * XWREG
CV_CP = 4160
CV_HZ = 4 * CV_CP
CV_H = CV_HZ + 512
WSTEP = 32 * 7168
SPIN_LIMIT = 200000

STAMPS = False


class E:
    def __init__(self):
        self.l = []
        self.vm = 0
        self.vm_done = 0
        self.lg = 0
        self.lg_done = 0
        self.tag = {}

    def __call__(self, s, tag=None):
        for ln in s.strip("\n").split("\n"):
            ln = ln.strip()
            if ln.startswith("buffer_"):
                if ln.endswith(" lds") and self.l and " m0," in self.l[-1]:
                    self.l.append("    s_nop 0")
                self.vm += 1
                if tag:
                    self.tag[tag] = ("v", self.vm)
            elif ln.startswith("ds_"):
                self.lg += 1
                if tag:
                    self.tag[tag] = ("l", self.lg)
            self.l.append("    " + ln)

    def mark(self, tag, kind):
        self.tag[tag] = (kind, self.vm if kind == "v" else self.lg)

    def need(self, *tags):
        nv = max([self.tag[t][1] for t in tags if self.tag[t][0] == "v"] + [0])
        nl = max([self.tag[t][1] for t in tags if self.tag[t][0] == "l"] + [0])
        w = []
        if nv > self.vm_done:
            n = min(self.vm - nv, 63)
            w.append(f"vmcnt({n})")
            self.vm_done = self.vm - n
        if nl > self.lg_done:
            n = min(self.lg - nl, 15)
            w.append(f"lgkmcnt({n})")
            self.lg_done = self.lg - n
        if w:
            self.l.append("    s_waitcnt " + " ".join(w))

    def wait(self, vm=None, lg=None):
        w = []
        if vm is not None:
            w.append(f"vmcnt({vm})")
            self.vm_done = max(self.vm_done, self.vm - vm)
        if lg is not None:
            w.append(f"lgkmcnt({lg})")
            self.lg_done = max(self.lg_done, self.lg - lg)
        self.l.append("    s_waitcnt " + " ".join(w))

    def label(self, s):
        self.l.append(s + ":")

    def c(self, s):
        self.l.append("    ; " + s)

    def text(self):
        return "\n".join(self.l) + "\n"


def v(i, n=1):
    return f"v{i}" if n == 1 else f"v[{i}:{i+n-1}]"


def a(i, n=1):
    return f"a{i}" if n == 1 else f"a[{i}:{i+n-1}]"


DST = False
LIGHT = False
DMAP = {2: 2, 12: 3, 14: 4, 15: 5, 13: 6, 3: 7, 4: 8, 5: 9, 6: 10, 7: 11, 8: 12, 9: 13, 10: 14, 11: 15}


def stamp(e, i):
    if DST and i in DMAP:
        e("s_memrealtime s[96:97]")
        e.wait(lg=0)
        e("s_sub_u32 s96, s96, s98")
        e(f"v_writelane_b32 v31, s96, {DMAP[i]}")
        if i == 11:
            e(f"s_cmp_lg_u32 s69, {DST}")
            e("s_cbranch_scc1 L_end")
            e("v_lshlrev_b32 v30, 2, v0")
            e("s_mov_b64 exec, 0xfffc")
            e("buffer_store_dword v31, v30, s[40:43], 0 offen")
        return
    if not STAMPS or (LIGHT and i not in (3, 7, 11)):
        return
    e("s_memrealtime s[96:97]")
    e("s_memtime s[98:99]")
    e.wait(lg=0)
    e("v_mov_b32 v30, s96")
    e("v_mov_b32 v31, s98")
    e(f"buffer_store_dwordx2 v[30:31], off, s[92:95], s100 offset:{8*i}")


def unpack(e, dst, src):
    e(f"v_lshlrev_b32 v{dst}, 16, v{src}")
    e(f"v_and_b32 v{dst+1}, 0xffff0000, v{src}")


def allreduce32(e, r, t):
    e("s_nop 1")
    for m in ("quad_perm:[1,0,3,2]", "quad_perm:[2,3,0,1]", "row_half_mirror", "row_mirror"):
        e(f"v_add_f32_dpp v{r}, v{r}, v{r} {m} row_mask:0xf bank_mask:0xf")
        e("s_nop 1")
    e(f"v_mov_b32 v{t}, v{r}")
    e("s_nop 1")
    e(f"v_permlane16_swap_b32 v{r}, v{t}")
    e("s_nop 1")
    e(f"v_add_f32 v{r}, v{r}, v{t}")


def round_bf16(e, r):
    e(f"v_cvt_pk_bf16_f32 v{r}, v{r}, v{r}")
    e(f"v_lshlrev_b32 v{r}, 16, v{r}")


R_X, R_WG, R_WU, R_H, R_UR, R_SK, R_ZT, R_MI, R_DB, R_WD, R_OUT, R_K, R_V, R_SH = [f"s[{8+4*i}:{11+4*i}]" for i in range(14)]
MF = "v_mfma_f32_16x16x32_bf16"


def merge(e, mf, slots):
    def do(x):
        if callable(x):
            x()
        else:
            e(x)
    for i, m in enumerate(mf):
        e(m)
        for x in slots.get(i, []):
            do(x)
    for k in sorted(slots):
        if k >= len(mf):
            for x in slots[k]:
                do(x)


def _ins(x):
    return x if isinstance(x, str) else getattr(x, "ins", None)


def _cost(x):
    s_ = _ins(x)
    if s_ is None:
        return 0
    if s_.startswith("ds_"):
        return 8
    if s_.startswith("s_nop"):
        return 4 * (int(s_.split()[1]) + 1)
    if s_.split()[0] in ("v_exp_f32", "v_rcp_f32", "v_sqrt_f32"):
        return 8
    return 4


def _isv(x):
    s_ = _ins(x)
    return s_ is not None and s_.startswith("v_")


def _ismem(x):
    s_ = _ins(x)
    return s_ is not None and (s_.startswith("buffer_") or s_.startswith("global_"))


def units(seq, dropnop=False):
    out = []
    for x in seq:
        s_ = _ins(x)
        if dropnop and s_ == "s_nop 0":
            continue
        if out and (s_ is None or s_.split()[0] in ("s_cselect_b32", "s_cselect_b64", "s_addc_u32")):
            out[-1].append(x)
        else:
            out.append([x])
    return out


def pack(n, mem=(), reads=(), sides=(), head=(), first=1, rlim=None, tail=8, minsp=4):
    load = [0] * (n + 1)
    vload = [0] * (n + 1)
    nv = [[] for _ in range(n + 1)]
    vv = [[] for _ in range(n + 1)]
    load[n - 1] += tail

    def put(g, u, front=False):
        g = min(g, n)
        c = sum(_cost(x) for x in u)
        load[g] += c
        if any(_isv(x) for x in u):
            vload[g] += c
        if front:
            nv[g] = list(u) + nv[g]
        else:
            vv[g].extend(u)
    pos = -1
    for u in units(head):
        pos += 1
        put(pos, u)
    hpos = pos
    mu = units(mem, dropnop=True)
    nm = sum(1 for u in mu if any(_ismem(x) for x in u))
    sp = max(1.0, min(7.0, (n - (0 if n <= 32 else first + 1.0)) / max(1, nm)))
    pos = hpos
    k = 0
    lastm = -99
    for idx, u in enumerate(mu):
        if any(_ismem(x) for x in u):
            pos = max(pos + 1, int(first + k * sp), lastm + min(minsp, int(sp)))
            lastm = pos
            k += 1
        else:
            nxt = next((j for j in range(idx, len(mu)) if any(_ismem(x) for x in mu[j])), None)
            want = int(first + k * sp) - (nxt - idx) if nxt is not None else pos + 1
            pos = max(pos + 1, want)
        put(pos, u)
    rlim = n if rlim is None else rlim
    pos = 0
    nr = len(reads)
    for k, (x, after_head) in enumerate(reads):
        if after_head:
            pos = max(pos, hpos + 1)
        remaining = nr - k
        while pos < rlim and load[pos] + 8 > 12 and sum(1 for g in range(pos + 1, rlim) if load[g] + 8 <= 12) >= remaining:
            pos += 1
        g = min(pos, rlim - 1)
        load[g] += 8
        nv[g].append(x)
        if load[g] + 8 > 12 and sum(1 for q in range(g + 1, rlim)) >= remaining - 1:
            pos = g + 1
    for side, s0 in sides:
        su = units(side)
        prev = s0
        for k, u in enumerate(su):
            c = sum(_cost(x) for x in u)
            isv = any(_isv(x) for x in u)
            tgt = max(prev, s0 + (k * (n - s0)) // len(su) - 2)
            hi = min(n - 1, s0 + (k * (n - s0)) // len(su) + 3)
            cand = [g for g in range(tgt, hi + 1) if load[g] + c <= 12 and (not isv or vload[g] + c <= 8)]
            g = cand[0] if cand else min(range(tgt, hi + 1), key=lambda q: (max(load[q] + c - 12, (vload[q] + c - 8) if isv else -99) - max(load[q] - 12, vload[q] - 8, 0), q))
            put(g, u)
            prev = g
    return {g: nv[g] + vv[g] for g in range(n + 1) if nv[g] or vv[g]}


def signal(e, lab, ins):
    e("s_cmp_lg_u32 s64, 0")
    e(f"s_cbranch_scc1 L_{lab}_nosig")
    e("v_mov_b32 v1, 1")
    e("s_mov_b64 exec, 1")
    e.l.append("    " + ins)
    e("s_mov_b64 exec, -1")
    e.label(f"L_{lab}_nosig")


def gen(opt):
    e = E()
    ACC = 32

    AC6 = 180

    def acc(ai, j):
        t, m = ai % 7, ai // 7
        assert t < 6
        return ACC + ((m * 6 + t) * 4 + j) * 4

    def accr(ai, j):
        if ai % 7 == 6:
            return a(AC6 + (ai // 7) * 16 + 4 * j, 4)
        return v(acc(ai, j), 4)
    FA = [0, 72]
    CSF, CSS, CSA = 144, 160, 176

    e("s_cmp_ge_u32 s2, 256")
    e("s_cbranch_scc1 L_end")
    if STAMPS:
        e("s_memrealtime s[96:97]")
        e("s_memtime s[98:99]")
    if DST:
        e("s_memrealtime s[98:99]")
        e("v_mov_b32 v31, 0")
    for reg, off in ((8, KA_Q), (12, KA_WG), (16, KA_WU), (88, KA_WS), (28, KA_SSMK), (40, KA_DBG), (44, KA_WD),
                     (48, KA_OUT), (52, KA_K), (56, KA_V), (60, KA_SHK), (86, KA_SSMD)):
        e(f"s_load_dwordx2 s[{reg}:{reg+1}], s[0:1], {off}")
    if opt.get("cpf", 1):
        e("s_getpc_b64 s[82:83]")
        e.label("L_pc")
        e("s_lshr_b32 s78, s2, 3")
        e("s_and_b32 s78, s78, 3")
        e("s_lshl_b32 s78, s78, 14")
        e("v_lshlrev_b32 v50, 6, v0")
        e("v_add_u32 v50, s78, v50")
        e("v_min_u32 v50, L_end-L_pc, v50")
        e("v_mov_b32 v51, s83")
        e("v_add_co_u32 v50, vcc, s82, v50")
        e("s_nop 1")
        e("v_addc_co_u32 v51, vcc, 0, v51, vcc")
        e.l.append("    global_load_dword a255, v[50:51], off")
        e.vm += 1
    e("v_lshrrev_b32 v1, 6, v0")
    e("v_mov_b32 v29, v0")
    e("v_and_b32 v0, 63, v0")
    e("v_readfirstlane_b32 s64, v1")
    e("v_lshlrev_b32 v2, 4, v0")
    e("v_lshrrev_b32 v39, 5, v29")
    e("v_and_b32 v40, 31, v29")
    e("s_lshl_b32 s7, s2, 14")
    e("v_lshlrev_b32 v41, 11, v39")
    e("v_lshl_add_u32 v41, v40, 4, v41")
    e("v_add_u32 v41, s7, v41")
    for reg, size in ((8, S * D * 2), (12, D * F * 2), (16, D * F * 2)):
        e(f"s_mov_b32 s{reg+2}, 0x{size:x}")
        e(f"s_mov_b32 s{reg+3}, 0x20000")
    e("s_and_b32 s6, s2, 7")
    e("s_lshr_b32 s7, s2, 3")
    if opt.get("map1", 0) == 3:
        e("s_mov_b32 s65, s6")
        e("s_mov_b32 s66, s7")
    elif opt.get("map1", 0) == 1:
        e("s_and_b32 s65, s7, 3")
        e("s_lshl_b32 s65, s65, 1")
        e("s_and_b32 s78, s6, 1")
        e("s_add_u32 s65, s65, s78")
        e("s_lshr_b32 s66, s7, 2")
        e("s_lshr_b32 s78, s6, 1")
        e("s_lshl_b32 s78, s78, 3")
        e("s_add_u32 s66, s66, s78")
    elif opt.get("map1", 0) == 2:
        e("s_and_b32 s65, s7, 1")
        e("s_lshl_b32 s65, s65, 2")
        e("s_and_b32 s78, s6, 3")
        e("s_add_u32 s65, s65, s78")
        e("s_lshr_b32 s66, s7, 1")
        e("s_lshr_b32 s78, s6, 2")
        e("s_lshl_b32 s78, s78, 4")
        e("s_add_u32 s66, s66, s78")
    else:
        e("s_and_b32 s65, s7, 7")
        e("s_lshr_b32 s66, s7, 3")
        e("s_lshl_b32 s78, s6, 2")
        e("s_add_u32 s66, s66, s78")
    e(f"s_mul_i32 s70, s64, {XWREG}")
    e("s_lshl_b32 s71, s64, 11")
    e(f"s_add_u32 s71, s71, {WB}")
    NCS = 8
    e("s_lshr_b32 s3, s65, 1")
    e(f"s_mul_i32 s72, s3, {NCS*WSTEP}")
    e("s_add_u32 s73, s72, 27648")
    e("v_lshrrev_b32 v22, 4, v0")
    e("v_bfe_u32 v23, v0, 1, 3")
    e("s_and_b32 s78, s64, 1")
    e("s_lshl_b32 s78, s78, 2")
    e("v_or_b32 v24, s78, v22")
    e("v_xor_b32 v23, v23, v24")
    e("v_and_b32 v25, 1, v0")
    e("s_lshl_b32 s78, s64, 3")
    e("v_lshlrev_b32 v3, 5, v23")
    e("v_lshl_add_u32 v3, v25, 4, v3")
    e("v_add_u32 v26, s78, v22")
    e("v_mul_u32_u24 v27, 7168, v26")
    e("v_add_u32 v3, v3, v27")
    e("s_mul_i32 s78, s66, 224")
    e("v_add_u32 v3, s78, v3")
    e("v_cmp_eq_u32 vcc, 7, v23")
    e("v_mov_b32 v27, 0x80000000")
    e("v_lshlrev_b32 v28, 8, v26")
    e("v_cndmask_b32 v3, v3, v27, vcc")
    e("v_lshl_add_u32 v28, v23, 5, v28")
    e("v_lshl_add_u32 v28, v25, 4, v28")
    e("v_lshrrev_b32 v23, 3, v0")
    e("v_and_b32 v24, 7, v0")
    e("v_xor_b32 v24, v24, v22")
    e("s_lshl_b32 s78, s65, 19")
    e("s_lshl_b32 s79, s64, 17")
    e("s_add_u32 s78, s78, s79")
    e("v_lshlrev_b32 v4, 11, v23")
    e("v_add_u32 v4, s78, v4")
    e("v_xor_b32 v25, 4, v24")
    e("v_lshl_add_u32 v5, v25, 4, v4")
    e("v_lshl_add_u32 v4, v24, 4, v4")
    e("v_add_u32 v5, 15360, v5")
    e("v_add_u32 v6, 30720, v4")
    e("v_add_u32 v7, 30720, v5")
    e(f"s_mul_i32 s77, s3, {NCS*64}")
    e("s_add_u32 s76, s70, 16384")
    e(f"s_add_u32 s91, s70, {XWREG}")

    wstep = [0]

    def wdma(u, aug=False):
        g = []
        nt = " nt" if (opt.get("ntw", 0) == 2 or (opt.get("ntw", 0) == 1 and wstep[0] < NCS)) else ""
        wstep[0] += 1
        if aug:
            g.append([f"s_add_u32 m0, s71, {u*16384}", "s_nop 0", f"buffer_load_dwordx4 v28, {R_MI}, 0 offen sc1 lds"])
            g.append([f"buffer_load_dwordx4 v28, {R_MI}, 0 offen offset:1024 sc1 lds"])
            g.append([f"s_add_u32 m0, s71, {u*16384+8192}", "s_movk_i32 s78, 6144", f"buffer_load_dwordx4 v28, {R_MI}, s78 offen sc1 lds"])
            g.append([f"buffer_load_dwordx4 v28, {R_MI}, s78 offen offset:1024 sc1 lds"])
            return g
        g.append([f"s_add_u32 m0, s71, {u*16384}", "s_nop 0", f"buffer_load_dwordx4 v3, {R_WG}, s72 offen{nt} lds"])
        g.append([f"buffer_load_dwordx4 v3, {R_WG}, s73 offen offset:1024{nt} lds"])
        g.append([f"s_add_u32 m0, s71, {u*16384+8192}", "s_nop 0", f"buffer_load_dwordx4 v3, {R_WU}, s72 offen{nt} lds"])
        g.append([f"buffer_load_dwordx4 v3, {R_WU}, s73 offen offset:1024{nt} lds", f"s_add_u32 s72, s72, {WSTEP}"])
        g.append([f"s_cmp_eq_u32 s72, {32*WSTEP}", "s_cselect_b32 s72, 0, s72", "s_add_u32 s73, s72, 27648"])
        return g

    def xdma(hf):
        g = []
        if hf == 0:
            g.append(["s_mov_b32 m0, s76", "s_nop 0", f"buffer_load_dwordx4 v4, {R_X}, s77 offen lds"])
            so = "s77"
        else:
            g.append(["s_add_u32 m0, s76, 4096", "s_add_u32 s79, s77, 0x10000", f"buffer_load_dwordx4 v4, {R_X}, s79 offen lds"])
            so = "s79"
        for q in range(1, 4):
            g.append([f"buffer_load_dwordx4 v{4+q}, {R_X}, {so} offen offset:{1024*q} lds"])
        if hf == 1:
            g[-1] += ["s_add_u32 s77, s77, 128", "s_and_b32 s77, s77, 0x7ff"]
            g.append(["s_add_u32 s76, s76, 8192", "s_cmp_eq_u32 s76, s91", "s_cselect_b32 s76, s70, s76"])
        return g

    def flat(gs):
        for g in gs:
            for x in g:
                e(x)

    e.wait(lg=0)
    XS = 224
    flat(wdma(0)); flat(xdma(0)); flat(xdma(1)); e.mark("w0", "v")
    flat(wdma(1)); e.mark("w1", "v")
    XSI = opt.get("xsi", 5)
    xsl = [[f"buffer_load_dwordx4 {v(XS+4*j,4)}, v{41 if XSI < 0 else 245}, {R_X}, 0 offen offset:{512*j}"] for j in range(4)]
    xsl[-1].append(lambda: e.mark("xs", "v"))
    if XSI < 0:
        for g_ in xsl:
            e(g_[0])
    for reg, size in ((52, S * D * 2), (56, S * D * 2)):
        e(f"s_mov_b32 s{reg+2}, 0x{size:x}")
        e(f"s_mov_b32 s{reg+3}, 0x20000")
    e("s_and_b32 s4, s2, 31")
    e("s_lshr_b32 s5, s2, 5")
    e("s_lshl_b32 s78, s4, 17")
    e("s_lshl_b32 s79, s5, 8")
    e("s_add_u32 s78, s78, s79")
    KVM = opt.get("kvm", 1)
    if KVM:
        e("s_and_b32 s79, s64, 1")
        e("s_lshl_b32 s79, s79, 7")
        e("s_add_u32 s78, s78, s79")
        e("s_lshr_b32 s79, s64, 1")
        e("s_lshl_b32 s79, s79, 16")
        e("s_add_u32 s78, s78, s79")
        e("v_and_b32 v52, 7, v0")
        e("v_lshrrev_b32 v248, 3, v0")
    else:
        e("s_lshl_b32 s79, s64, 6")
        e("s_add_u32 s78, s78, s79")
        e("v_and_b32 v52, 3, v0")
        e("v_lshrrev_b32 v248, 2, v0")
    e("v_lshlrev_b32 v248, 13, v248")
    e("v_lshl_add_u32 v248, v52, 4, v248")
    e("v_add_u32 v248, s78, v248")
    e("v_add_u32 v249, 0xffffe000, v248")
    e("v_add_u32 v250, 0xfffff000, v248")
    e("v_add_u32 v251, 0x1000, v248")
    KR, VR, WR = [212 + 4 * i for i in range(7)], [240 + 4 * i for i in range(4)], [152, 156, 168, 172]
    kaddr = [(249, 2048), (250, 0), (250, 2048), (248, 0), (248, 2048), (251, 0), (251, 2048)]
    ntk = " nt" if opt.get("ntkv", 1) else ""
    kvl = [[f"buffer_load_dwordx4 {a(VR[i],4)}, v{r}, {R_V}, 0 offen offset:{o}{ntk}"] for i, (r, o) in enumerate(kaddr[3:])]
    kvl += [[f"buffer_load_dwordx4 {a(KR[i],4)}, v{r}, {R_K}, 0 offen offset:{o}{ntk}"] for i, (r, o) in enumerate(kaddr)]
    kvl[-1].append(lambda: e.mark("kv", "v"))
    for reg, size in ((28, D * S * 2), (40, 256), (44, F * D * 2), (48, S * D * 2), (60, D * 8)):
        e(f"s_mov_b32 s{reg+2}, 0x{size:x}")
        e(f"s_mov_b32 s{reg+3}, 0x20000")
    wsr = [(20, H_OFF, H_SIZE), (24, UR_OFF, UR_SIZE), (32, ZT_OFF, ZT_SIZE), (36, MISC_OFF, MISC_SIZE)]
    if STAMPS:
        wsr.append((92, STAMP_OFF, 1 << 20))
    for reg, off, size in wsr:
        if reg != 92:
            off += opt.get("wsoff", 0) << 20
        e(f"s_add_u32 s{reg}, s88, 0x{off:x}")
        e(f"s_addc_u32 s{reg+1}, s89, 0")
        e(f"s_mov_b32 s{reg+2}, 0x{size:x}")
        e(f"s_mov_b32 s{reg+3}, 0x20000")
    if STAMPS:
        e("s_lshl_b32 s100, s2, 2")
        e("s_add_u32 s100, s100, s64")
        e("s_lshl_b32 s100, s100, 7")
        e("v_mov_b32 v30, s96")
        e("v_mov_b32 v31, s98")
        e("buffer_store_dwordx2 v[30:31], off, s[92:95], s100")
    e("s_lshl_b32 s69, s2, 2")
    e("s_add_u32 s69, s69, s64")
    e("s_lshr_b32 s78, s69, 1")
    e("s_lshl_b32 s78, s78, 2")
    e("s_load_dword s90, s[86:87], s78")
    e("s_bfe_u32 s67, s6, 0x10001")
    e("s_lshl_b32 s67, s67, 3")
    e("s_and_b32 s78, s7, 7")
    e("s_add_u32 s67, s67, s78")
    e("s_lshr_b32 s68, s6, 2")
    e("s_lshl_b32 s68, s68, 2")
    e("s_lshr_b32 s78, s7, 3")
    e("s_add_u32 s68, s68, s78")
    e("s_mul_i32 s78, s66, 12288")
    e(f"s_add_u32 s78, s78, {CS_REL}")
    e("s_cmp_eq_u32 s64, 3")
    e("s_cselect_b32 s78, 0x80000000, s78")
    e("v_add_u32 v28, s78, v28")
    e("v_bfe_u32 v24, v0, 2, 2")
    e("v_and_b32 v25, 3, v0")
    e("v_lshl_add_u32 v26, v22, 3, v24")
    e("v_lshlrev_b32 v26, 8, v26")
    e("v_lshl_add_u32 v26, v25, 3, v26")
    e(f"v_add_u32 v26, {WB}, v26")
    e("v_and_b32 v27, 1, v22")
    e("v_lshl_or_b32 v27, v27, 2, v24")
    for t in range(7):
        e(f"v_xor_b32 v1, {t}, v27")
        e(f"v_lshl_add_u32 v{8+t}, v1, 5, v26")
    e("s_lshr_b32 s78, s64, 1")
    e("s_lshl_b32 s78, s78, 13")
    e("v_add_u32 v26, s78, v26")
    e("s_and_b32 s78, s64, 1")
    e("s_lshl_b32 s78, s78, 1")
    e("s_and_b32 s79, s65, 1")
    e("s_add_u32 s78, s78, s79")
    e("s_lshl_b32 s87, s78, 1")
    e("v_xor_b32 v27, s87, v27")
    for q in range(2):
        e(f"v_xor_b32 v1, {q}, v27")
        e(f"v_lshl_add_u32 v{18+q}, v1, 5, v26")
    e("v_and_b32 v24, 15, v0")
    e("v_lshrrev_b32 v25, 1, v24")
    e("v_xor_b32 v25, v25, v22")
    e("v_lshlrev_b32 v15, 7, v24")
    e("v_lshl_add_u32 v15, v25, 4, v15")
    e("v_add_u32 v15, s70, v15")
    e("v_xor_b32 v16, 64, v15")
    e("v_and_b32 v24, 3, v0")
    e("v_mov_b32 v25, 0x3f803f80")
    for q in range(2):
        e(f"v_cmp_eq_u32 vcc, {q}, v24")
        e("s_nop 1")
        e("v_cndmask_b32 v26, 0, v25, vcc")
        for r in range(4):
            e(f"v_accvgpr_write_b32 a{CSS+4*q+r}, v26")
    e("s_lshl_b32 s78, s65, 5")
    e("s_add_u32 s78, s78, s66")
    e("s_lshl_b32 s78, s78, 2")
    e(f"s_add_u32 s80, s78, {HF_REL}")
    e("s_lshl_b32 s78, s2, 2")
    e(f"s_add_u32 s81, s78, {ZF_REL}")
    e("s_lshl_b32 s78, s2, 9")
    e(f"s_add_u32 s78, s78, {PF_REL}")
    e("v_lshlrev_b32 v48, 7, v29")
    e("v_add_u32 v48, s78, v48")
    e("v_mov_b32 v47, s80")
    e("v_cmp_eq_u32 vcc, 5, v29")
    e("v_mov_b32 v45, 0x80000000")
    e("v_mov_b32 v46, s81")
    e("v_cndmask_b32 v48, v48, v47, vcc")
    e("v_cmp_eq_u32 vcc, 4, v29")
    e("s_nop 1")
    e("v_cndmask_b32 v48, v48, v46, vcc")
    e("v_mov_b32 v46, 0")
    e("v_cmp_gt_u32 vcc, 6, v29")
    e("s_lshl_b32 s78, s2, 6")
    e("v_lshlrev_b32 v49, 3, v39")
    e("v_cndmask_b32 v48, v45, v48, vcc")
    e("v_add_u32 v49, s78, v49")
    e("v_cmp_eq_u32 vcc, 0, v40")
    e(f"buffer_store_dword v46, v48, {R_MI}, 0 offen sc1")
    e("s_nop 0")
    e("v_cndmask_b32 v244, v45, v49, vcc")
    e("v_mov_b32 v245, v41")

    flat(xdma(0)); flat(xdma(1)); flat(wdma(2)); e.mark("w2", "v")
    e.need("w0")
    e.wait(lg=0)
    e("s_barrier")
    stamp(e, 2)

    def ared(r, tmp):
        o = []
        for m in ("quad_perm:[1,0,3,2]", "quad_perm:[2,3,0,1]", "row_half_mirror", "row_mirror"):
            o += ["s_nop 1", f"v_add_f32_dpp v{r}, v{r}, v{r} {m} row_mask:0xf bank_mask:0xf"]
        o += [f"v_mov_b32 v{tmp}, v{r}", "s_nop 1", f"v_permlane16_swap_b32 v{r}, v{tmp}", "s_nop 1", f"v_add_f32 v{r}, v{r}, v{tmp}"]
        return o
    rb = lambda r: [f"v_cvt_pk_bf16_f32 v{r}, v{r}, v{r}", f"v_lshlrev_b32 v{r}, 16, v{r}"]
    sts = [f"v_lshlrev_b32 v240, 16, v{XS}", f"v_and_b32 v241, 0xffff0000, v{XS}"]
    for i in range(1, 16):
        sts += [f"v_lshlrev_b32 v242, 16, v{XS+i}", f"v_and_b32 v243, 0xffff0000, v{XS+i}",
                "v_add_f32 v240, v240, v242", "v_add_f32 v241, v241, v243"]
    sts += ["v_add_f32 v246, v240, v241"] + ared(246, 242) + ["v_mul_f32 v246, 0xba800000, v246"]
    for i in range(16):
        sts += [f"v_lshlrev_b32 v242, 16, v{XS+i}", f"v_and_b32 v243, 0xffff0000, v{XS+i}",
                "v_add_f32 v242, v242, v246", "v_add_f32 v243, v243, v246"]
        sts += (["v_mul_f32 v240, v242, v242", "v_mul_f32 v241, v243, v243"] if i == 0 else
                ["v_fmac_f32 v240, v242, v242", "v_fmac_f32 v241, v243, v243"])
    sts += ["v_add_f32 v247, v240, v241"] + ared(247, 242) + ["v_mul_f32 v247, 0x3a800000, v247"] + rb(247)
    sts += ["v_add_f32 v247, 0x3727c5ac, v247"] + rb(247) + ["v_sqrt_f32 v247, v247"] + rb(246) + rb(247)
    sts += ["v_rcp_f32 v247, v247", "s_nop 0"]
    st_store = [f"buffer_store_dwordx2 v[246:247], v244, {R_MI}, 0 offen offset:{ST_REL} sc1"]

    def reads(step_u, fs, cs=False, do_b=True):
        fa = FA[fs]
        al = []
        for ai in range(14):
            for h in range(2):
                al.append(f"ds_read_b64_tr_b16 {a(fa+4*ai+2*h,2)}, v{8+ai%7} offset:{step_u*16384 + (ai//7)*8192 + h*1024}")
        bl = [f"ds_read_b128 {a(fa+56+4*j,4)}, v17 offset:{2048*j}" for j in range(4)] if do_b else []
        cl = []
        if cs:
            for q in range(2):
                for h in range(2):
                    cl.append(f"ds_read_b64_tr_b16 {a(CSF+4*q+2*h,2)}, v{18+q} offset:{step_u*16384 + h*1024}")
        return bl + al + cl

    def mfmas(fs, first=False):
        fa = FA[fs]
        return [f"{MF} {accr(ai,j)}, {a(fa+4*ai,4)}, {a(fa+56+4*j,4)}, {'0' if first else accr(ai,j)}"
                for ai in range(14) for j in range(4)]

    e("s_movk_i32 s75, 16384")
    e("v_add_u32 v17, s75, v15")
    for x in reads(0, 0, cs=True):
        e(x)
    flat(wdma(3)); e.mark("w3", "v")
    flat(xdma(0))

    def body(i, wd=True, xd=True, rd=True, cs_m=False, cs_r=False, extra=None, pre=None, aug_w=False, do_b=True,
             vm=None, side=None, side0=12, needs=(), relax=0, post=None):
        u = i & 3
        fs = i & 1
        if vm is None:
            tags = [t_ for t_ in [f"it{i-3}"] + list(needs) if t_ in e.tag]
            vm = min(63, e.vm - max(e.tag[t_][1] for t_ in tags))
        if relax:
            e("s_sub_u32 s101, s101, 1")
            e(f"s_cbranch_scc0 L_rx{i}")
            e("s_mov_b32 s101, 0")
            e.l.append(f"    s_waitcnt vmcnt({vm})")
            e.label(f"L_rx{i}")
            e.l.append(f"    s_waitcnt vmcnt({min(63, vm + relax)}) lgkmcnt(0)")
            e.lg_done = e.lg
        else:
            e.wait(vm=vm, lg=0)
        e("s_barrier")
        if pre:
            pre()
        mf = mfmas(fs, first=(i == 0))
        if cs_m:
            cm = [f"{MF} {a(CSA,4)}, {a(CSF+4*q,4)}, {a(CSS+4*q,4)}, {'0' if (i == 0 and q == 0) else a(CSA,4)}" for q in range(2)]
            mf = cm + mf
        groups = []
        if xd:
            groups += xdma(1 - (i & 1))
        if wd:
            groups += wdma(u, aug_w)
        mk = lambda: e.mark(f"it{i}", "v")
        if not groups:
            mk()
        else:
            groups.append([mk])
        if extra:
            groups += extra
        head, rl = [], []
        if rd:
            hk = (i + 1) & 1
            if do_b:
                head = (["s_add_u32 s75, s75, 8192", f"s_cmp_eq_u32 s75, {XWREG}", "s_cselect_b32 s75, 0, s75", "v_add_u32 v17, s75, v15"]
                        if hk == 0 else ["v_add_u32 v17, s75, v16"])
            r_ = reads((u + 1) & 3, 1 - fs, cs_r, do_b)
            rl = [(x, False) for x in r_[4:8]] + [(x, True) for x in r_[:4]] + [(x, False) for x in r_[8:]] if do_b else [(x, False) for x in r_]
        slots = pack(len(mf), mem=[x for g in groups for x in g], reads=rl, sides=([(side, side0)] if side else []),
                     head=head, first=4, rlim=len(mf) - 8)
        merge(e, mf, slots)
        if post:
            post()

    Cm = [240, 241, 242, 243, 252, 253, 246, 247, 20, 21, 24, 25, 254, 255]
    cs = [f"v_accvgpr_read_b32 C{r}, a{CSA+r}" for r in range(4)]
    cs += ["v_cvt_pk_bf16_f32 C4, C0, C1", "v_cvt_pk_bf16_f32 C5, C2, C3",
           "v_lshlrev_b32 C6, 16, C4", "v_and_b32 C7, 0xffff0000, C4", "v_lshlrev_b32 C8, 16, C5", "v_and_b32 C9, 0xffff0000, C5"]
    cs += [f"v_sub_f32 C{r}, C{r}, C{6+r}" for r in range(4)]
    cs += ["v_bfe_u32 v1, v0, 2, 2", "v_cmp_eq_u32 vcc, 1, v1",
           "v_cvt_pk_bf16_f32 C10, C0, C1", "v_cvt_pk_bf16_f32 C11, C2, C3",
           "v_cndmask_b32 C4, C4, C10, vcc", "v_cndmask_b32 C5, C5, C11, vcc",
           "v_lshlrev_b32 C6, 16, C10", "v_and_b32 C7, 0xffff0000, C10", "v_lshlrev_b32 C8, 16, C11", "v_and_b32 C9, 0xffff0000, C11"]
    cs += [f"v_sub_f32 C{r}, C{r}, C{6+r}" for r in range(4)]
    cs += ["v_cmp_eq_u32 vcc, 2, v1", "v_cvt_pk_bf16_f32 C10, C0, C1", "v_cvt_pk_bf16_f32 C11, C2, C3",
           "v_cndmask_b32 C4, C4, C10, vcc", "v_cndmask_b32 C5, C5, C11, vcc"]
    csa = ["s_mul_i32 s3, s66, 12288", "s_lshr_b32 s6, s64, 1", "s_mul_i32 s6, s6, 6144", "s_add_u32 s3, s3, s6",
           "s_lshr_b32 s6, s65, 1", "s_lshl_b32 s6, s6, 8", "s_add_u32 s3, s3, s6", "s_lshl_b32 s6, s87, 5",
           "s_add_u32 s3, s3, s6", f"s_add_u32 s3, s3, {CS_REL}",
           "v_bfe_u32 v1, v0, 1, 3", "v_lshlrev_b32 C12, 10, v1", "v_and_b32 C13, 1, v0",
           "v_lshl_add_u32 C12, C13, 5, C12", "v_lshrrev_b32 C13, 4, v0",
           "v_lshl_add_u32 C12, C13, 3, C12", "v_cmp_le_u32 vcc, 6, v1", "v_mov_b32 C13, 0x80000000",
           "v_add_u32 C12, s3, C12", "v_cndmask_b32 C12, C12, C13, vcc"]
    import re as _re
    sub = lambda l_: [_re.sub(r"C(\d+)", lambda m_: f"v{Cm[int(m_.group(1))]}", x) for x in l_]
    cs, csa = sub(cs), sub(csa)
    cs_store = [f"buffer_store_dwordx2 v[252:253], v254, {R_MI}, 0 offen sc1"]
    kva = ["v_and_b32 v26, 3, v0", "v_lshlrev_b32 v22, 3, v26", "v_lshlrev_b32 v26, 6, v26",
           "s_lshl_b32 s74, s5, 10", "s_lshl_b32 s3, s64, 8", "s_add_u32 s74, s74, s3",
           "s_lshr_b32 s3, s74, 3", "v_add_u32 v22, s3, v22", f"v_mul_u32_u24 v22, {UR_PITCH}, v22",
           "v_lshrrev_b32 v23, 2, v0", "v_lshlrev_b32 v23, 3, v23", "v_sub_u32 v22, v22, v23",
           "s_lshl_b32 s6, s4, 7", "s_sub_u32 s6, 4088, s6", "v_add_u32 v22, s6, v22",
           "s_lshl_b32 s3, s5, 7", "v_add_u32 v23, s3, v29", f"v_mul_u32_u24 v23, {UR_PITCH}, v23",
           "v_add_u32 v23, 0x1000, v23", "s_lshl_b32 s6, s4, 8", "v_add_u32 v24, s6, v29", "s_movk_i32 s6, 128",
           "v_cmp_gt_u32 vcc, s6, v24", "v_mov_b32 v25, 0x80000000", "s_nop 0", "v_cndmask_b32 v23, v25, v23, vcc"]
    if KVM:
        kva[:15] = ["v_and_b32 v26, 7, v0", "v_lshlrev_b32 v22, 3, v26", "v_lshlrev_b32 v26, 6, v26",
                    "s_lshl_b32 s74, s5, 10", "s_and_b32 s3, s64, 1", "s_lshl_b32 s3, s3, 9", "s_add_u32 s74, s74, s3",
                    "s_lshr_b32 s3, s74, 3", "v_add_u32 v22, s3, v22", f"v_mul_u32_u24 v22, {UR_PITCH}, v22",
                    "v_and_b32 v23, 0x38, v0", "v_sub_u32 v22, v22, v23",
                    "s_lshl_b32 s6, s4, 7", "s_sub_u32 s6, 4088, s6", "s_lshr_b32 s3, s64, 1", "s_lshl_b32 s3, s3, 6",
                    "s_sub_u32 s6, s6, s3", "v_add_u32 v22, s6, v22"]
    wl = [[f"buffer_load_dwordx4 {a(WR[i],4)}, v26, {R_SH}, s74 offen offset:{16*i}"] for i in range(4)]
    q3 = -(-len(sts) // 3)
    sides = {0: kva, 6: csa, 7: ["s_nop 0"] * 5 + cs, 8: sts[:q3], 9: sts[q3:2*q3], 10: sts[2*q3:]}
    extras = {4: wl, 5: xsl, 8: [cs_store], 11: [st_store]}
    needs = {8: ["xs"]}
    KVI = opt.get("kvi", 9)
    KVB = opt.get("kvb", 12)
    extras[KVI] = extras.get(KVI, []) + kvl
    for i in range(KVB):
        tg = {0: "w1", 1: "w2", 2: "w3"}.get(i)
        vmi = min(63, e.vm - e.tag[tg][1]) if tg else None
        body(i, cs_m=(i < NCS), cs_r=(i < NCS - 1), vm=vmi, side=sides.get(i), side0=2, extra=extras.get(i), needs=needs.get(i, ()))
        if i == 3:
            stamp(e, 12)
    stamp(e, 14)
    WF, KF, VF, TMP = 224, [232 + 2 * i for i in range(7)], 246, 1
    OUT = [248, 250, 252, 254, 24, 26, 18, 20]
    kvc = []
    for p in range(4):
        c_ = []
        for h in range(2):
            for d in range(2):
                c_ += [f"v_accvgpr_read_b32 v{TMP}, a{WR[p]+2*h+d}", f"v_lshlrev_b32 v{WF+4*d+h}, 16, v{TMP}",
                       f"v_and_b32 v{WF+4*d+2+h}, 0xffff0000, v{TMP}"]
        for i in range(7):
            c_ += [f"v_accvgpr_read_b32 v{KF[i]+1}, a{KR[i]+p}", f"v_lshlrev_b32 v{KF[i]}, 16, v{KF[i]+1}",
                   f"v_and_b32 v{KF[i]+1}, 0xffff0000, v{KF[i]+1}"]
        for i in range(4):
            c_ += [f"v_accvgpr_read_b32 v{VF+1}, a{VR[i]+p}"]
            c_ += [f"v_mul_f32 v{KF[i]+h}, v{KF[i]+h}, v{WF+6+h}" for h in range(2)]
            c_ += [f"v_lshlrev_b32 v{VF}, 16, v{VF+1}", f"v_and_b32 v{VF+1}, 0xffff0000, v{VF+1}"]
            for j in (2, 1, 0):
                c_ += [f"v_fmac_f32 v{KF[i]+h}, v{KF[i+3-j]+h}, v{WF+2*j+h}" for h in range(2)]
            c_ += [f"v_mul_f32 v{KF[i]+h}, v{KF[i]+h}, v{VF+h}" for h in range(2)]
        for h in range(2):
            o = OUT[2 * p + h]
            c_ += [f"v_cvt_pk_bf16_f32 v{o}, v{KF[3]+h}, v{KF[2]+h}", f"v_cvt_pk_bf16_f32 v{o+1}, v{KF[1]+h}, v{KF[0]+h}"]
        kvc.append(c_)
    kst = lambda ch: [f"s_mov_b32 s3, {ch*UR_PITCH}", f"buffer_store_dwordx2 {v(OUT[ch],2)}, v22, {R_UR}, s3 offen sc1"]
    for i in range(12, 16):
        p = i - 12
        ex_ = [kst(2 * p - 2), kst(2 * p - 1)] if p else None
        body(i, side=kvc[p], side0=0, extra=ex_, needs=(["kv"] if p == 0 else ()))
    for ch in (6, 7):
        flat([kst(ch)])
    for i in range(4):
        e(f"v_mov_b32 v{WF+i}, 0")
    e(f"buffer_store_dwordx4 {v(WF,4)}, v23, {R_UR}, 0 offen sc1")
    stamp(e, 15)
    BG = 0
    e("s_mov_b32 s82, 0")
    e("s_and_b32 s74, s2, 1")
    e("s_lshl_b32 s74, s74, 7")
    def cpf(tagc, va, dst):
        def gl():
            e.l.append(f"    global_load_dword {dst}, v[{va}:{va+1}], off")
            e.vm += 1
        gl.ins = "global_load_dword"
        def pc():
            e("s_getpc_b64 s[6:7]")
            e.label(f"L_pc{tagc}")
        pc.ins = "s_getpc_b64"
        return [pc, "s_lshr_b32 s3, s2, 3", "s_and_b32 s3, s3, 1", "s_lshl_b32 s3, s3, 2", "s_add_u32 s3, s3, s64",
                "s_lshl_b32 s3, s3, 12", f"v_lshlrev_b32 v{va}, 6, v0", f"v_add_u32 v{va}, s3, v{va}",
                f"v_min_u32 v{va}, L_end-L_pc{tagc}, v{va}", f"v_mov_b32 v{va+1}, s7", f"v_add_co_u32 v{va}, vcc, s6, v{va}",
                "s_nop 1", f"v_addc_co_u32 v{va+1}, vcc, 0, v{va+1}, vcc", gl]
    if opt.get("cpf2", 1):
        for x in cpf("b", 228, "a255"):
            x() if callable(x) else e(x)
    STG = opt.get("stg", 0)
    NB = 11 if STG == 2 else 7
    if STG:
        e("s_mov_b32 s101, 0")
        e("s_lshr_b32 s5, s2, 3")
        e("s_and_b32 s5, s5, 7")
        e("s_mul_i32 s6, s69, 7168")
        e("s_add_u32 s7, s6, 4096")
        e("s_lshl_b32 s84, s69, 12")

    def burst(i):
        def f():
            e("s_sub_u32 s5, s5, 1")
            e(f"s_cbranch_scc0 L_nb{i}")
            for q in range(7):
                e.l.append(f"    buffer_load_dwordx4 a[252:255], v2, {R_WD}, {'s6' if q < 4 else 's7'} offen offset:{1024*(q&3)}")
            if STG == 2:
                for q in range(4):
                    e.l.append(f"    buffer_load_dwordx4 a[252:255], v2, {R_SK}, s84 offen offset:{1024*q}")
            e("s_mov_b32 s101, 3")
            e.label(f"L_nb{i}")
        return f
    def f0sig():
        e("s_cmp_lg_u32 s82, 0")
        e("s_cbranch_scc1 L_f0_nosig")
        signal(e, "f0", f"buffer_atomic_add v1, off, {R_DB}, s74 sc1")
    e.label("L_g1_loop")
    for i in range(16, 20):
        body(i, vm=16, relax=(NB if STG else 0), post=(burst(i) if STG else None), pre=(f0sig if i == opt.get("f0s", 18) else None))
    e("s_add_u32 s82, s82, 1")
    e("s_cmp_lt_u32 s82, 2")
    e("s_cbranch_scc1 L_g1_loop")
    for k in range(3):
        e.tag[f"it{21+k}"] = e.tag[f"it{17+k}"]
    e.vm_done = 0
    stamp(e, 13)

    def poll(loadins, cond, lab):
        e("s_mov_b32 s82, 0")
        e.label(f"L_{lab}_chk")
        cond()
        e(f"s_cbranch_scc1 L_{lab}_ok")
        e("s_sleep 1")
        e.l.append("    " + loadins)
        e.l.append("    s_waitcnt vmcnt(0)")
        e("s_add_u32 s82, s82, 1")
        e(f"s_cmp_lt_u32 s82, {SPIN_LIMIT}")
        e(f"s_cbranch_scc1 L_{lab}_chk")
        e.label(f"L_{lab}_ok")

    f0_load = f"buffer_load_dword v18, v27, {R_DB}, 0 offen sc1"

    def f0_cond():
        e("v_cmp_le_u32 vcc, 0x80, v18")
        e("s_cmp_eq_u64 vcc, exec")

    def I(s_, tag=None):
        f = lambda: e(s_, tag=tag)
        f.ins = s_
        return f

    def urdma(c):
        g = [[f"s_add_u32 m0, s70, {c*CV_CP}", f"s_add_u32 s79, s83, {2*c}", f"buffer_load_dwordx4 v2, {R_UR}, s79 offen sc1 lds"]]
        g += [[f"buffer_load_dwordx4 v2, {R_UR}, s79 offen offset:{1024*q} sc1 lds"] for q in range(1, 4)]
        g[-1].append(lambda: e.mark(f"ur{c}", "v"))
        return g

    wdpf0 = [["s_mul_i32 s74, s69, 7168"]] + [[f"buffer_load_dwordx4 a[252:255], v2, {R_WD}, s74 offen offset:{1024*(q&3)}"] + (["s_add_u32 s74, s74, 4096"] if q == 3 else []) for q in range(7)]
    if opt.get("spf"):
        wdpf0 = [[f"buffer_load_dwordx4 a[252:255], v2, {R_SK}, s84 offen offset:{1024*q}"] for q in range(4)] + wdpf0
    RX = NB if STG else 0
    body(24, side=["v_and_b32 v27, 1, v0", "v_lshlrev_b32 v27, 7, v27"], relax=RX)
    F0L = [[f0_load, lambda: e.mark("f0", "v")]]
    body(25, extra=(F0L if opt.get("f0l", 26) == 25 else None), relax=RX)
    body(26, relax=RX, extra=(F0L if opt.get("f0l", 26) == 26 else None), side=["v_and_b32 v19, 15, v0", "v_lshlrev_b32 v19, 3, v19",
                   "s_lshl_b32 s85, s65, 11", "s_lshl_b32 s3, s64, 9", "s_add_u32 s85, s85, s3",
                   f"s_mul_i32 s83, s69, {UR_PITCH}", "s_lshl_b32 s84, s69, 12"])
    stl = [[f"buffer_load_dwordx2 {v(20+2*j,2)}, v19, {R_MI}, s85 offen offset:{ST_REL+128*j} sc1"] for j in range(4)]
    stl[-1].append(lambda: e.mark("st", "v"))
    body(27, xd=False, extra=(wdpf0 if opt.get("wpf", 0 if STG else 27) == 27 else None))
    body(28, xd=False, aug_w=True, pre=lambda: poll(f0_load, f0_cond, "f0"), extra=stl, needs=["f0"])
    body(29, xd=False, wd=False, extra=urdma(0) + urdma(2) + (wdpf0 if opt.get("wpf") == 29 else []))
    body(30, xd=False, wd=False,
         side=["v_and_b32 v3, 15, v0", "v_lshrrev_b32 v28, 4, v0",
               "v_lshrrev_b32 v4, 2, v3", f"v_mul_u32_u24 v4, {CV_CP}, v4", "v_and_b32 v6, 3, v0",
               "v_lshl_add_u32 v4, v6, 4, v4", "v_add_u32 v4, 4096, v4", f"v_add_u32 v5, {CV_HZ}, v2",
               "v_cmp_gt_u32 vcc, 32, v0", "v_add_u32 v29, s70, v2", "v_mov_b32 v248, 0", "v_mov_b32 v249, 0",
               "v_cndmask_b32 v5, v4, v5, vcc", "v_add_u32 v5, s70, v5", "v_mov_b32 v250, 0", "v_mov_b32 v251, 0"])
    hd = [[f"s_add_u32 m0, s70, {CV_H}", "s_nop 0", f"buffer_load_dwordx4 v2, {R_SK}, s84 offen lds"]]
    hd += [[f"buffer_load_dwordx4 v2, {R_SK}, s84 offen offset:{1024*q} lds"] for q in range(1, 4)]
    hd[-1].append(lambda: e.mark("hk", "v"))
    if STG != 2:
        hd = [[x.replace(" lds", " nt lds") if isinstance(x, str) else x for x in g] for g in hd]
    wdpf = [["s_mul_i32 s74, s69, 7168"]]
    wdpf += [[f"buffer_load_dwordx4 a[252:255], v2, {R_WD}, s74 offen offset:{1024*(q&3)}"] + (["s_add_u32 s74, s74, 4096"] if q == 3 else []) for q in range(7)]
    WPF = opt.get("wpf", 27)
    if WPF == 31:
        hd += wdpf
    bb = ["v_cmp_gt_u32 vcc, 48, v0", "ds_write_b128 v5, v[248:251]"]
    for j in range(4):
        bb += [f"v_lshrrev_b32 v1, 16, v{20+2*j}", f"v_or_b32 v1, v1, v{20+2*j}", "v_cndmask_b32 v1, 0, v1, vcc"]
        bb += [f"v_accvgpr_write_b32 a{FA[0]+56+4*j+r}, v1" for r in range(4)]
    for j in range(4):
        bb += [f"v_mul_f32 v{20+2*j}, 0xbfb8aa3b, v{21+2*j}", f"v_mul_f32 v{21+2*j}, v{21+2*j}, v{21+2*j}",
               f"v_rcp_f32 v{21+2*j}, v{21+2*j}"]
    body(31, xd=False, wd=False, do_b=False, extra=hd, side=bb, side0=4, needs=["st"])
    TB = [224, 236]
    def odr(q):
        b = TB[q & 1]
        return [I(f"ds_read_b128 {v(b,4)}, v29 offset:{1024*q}"),
                I(f"ds_read_b128 {v(b+4,4)}, v29 offset:{2*CV_CP+1024*q}"),
                I(f"ds_read_b32 v{b+8}, v29 offset:{2*CV_CP+1024*q+16}", tag=f"od{q}")]
    def odc(q):
        b = TB[q & 1]
        r = [lambda: e.need(f"od{q}")]
        r += [I(f"v_alignbit_b32 v{b+i}, v{b+4+i}, v{b+i}, 16") for i in range(4)]
        r.append(I(f"ds_write_b128 v29, {v(b,4)} offset:{CV_CP+1024*q}"))
        r += [I(f"v_alignbit_b32 v{b+4+i}, v{b+5+i}, v{b+4+i}, 16") for i in range(4)]
        r.append(I(f"ds_write_b128 v29, {v(b+4,4)} offset:{3*CV_CP+1024*q}"))
        return r
    ha = ["s_lshl_b32 s3, s65, 4", "s_lshl_b32 s6, s64, 2", "s_add_u32 s3, s3, s6",
          f"s_mul_i32 s3, s3, {H_SB}", "s_mul_i32 s6, s66, 3584", "s_add_u32 s3, s3, s6",
          "v_lshrrev_b32 v18, 1, v28", "v_lshlrev_b32 v18, 8, v18", "v_lshl_add_u32 v18, v3, 4, v18",
          "v_add_u32 v18, s3, v18", "v_and_b32 v1, 1, v28", f"v_mul_u32_u24 v19, {H_SB}, v1",
          "v_add_u32 v19, v19, v18", "v_lshl_add_u32 v18, v1, 9, v18"]
    ca = ["v_and_b32 v4, 3, v3", "v_sub_u32 v4, 3, v4", f"v_mul_u32_u24 v16, {CV_CP}, v4",
          "v_and_b32 v4, 12, v3", "v_lshlrev_b32 v4, 1, v4", "v_sub_u32 v16, v16, v4",
          "v_lshl_add_u32 v16, v28, 4, v16", f"s_add_u32 s3, s70, {2*2028 - 3584}", "v_add_u32 v16, s3, v16",
          "v_lshlrev_b32 v17, 5, v3", "v_lshl_add_u32 v17, v28, 4, v17", f"s_add_u32 s3, s70, {CV_H - 32}",
          "v_add_u32 v17, s3, v17"]
    seq = odr(0) + odr(1) + ha + odc(0) + odr(2) + odc(1) + odr(3) + ca[:6] + odc(2) + ca[6:] + odc(3)
    body(32, xd=False, wd=False, rd=False, side=seq, side0=0, needs=["ur2"])
    stamp(e, 3)

    e.c("SwiGLU epilogue")
    HSC = " sc1" if opt.get("hsc", 1) else ""

    pend = []

    def flush_st():
        while pend:
            o_, st_ = pend.pop(0)
            e(f"v_permlane16_swap_b32 v{o_}, v{o_+2}")
            e(f"v_permlane16_swap_b32 v{o_+1}, v{o_+3}")
            e(st_, tag="hst")
            if o_ == 244:
                e(f"s_mov_b32 s78, {2*H_SB}")

    def swiglu(g, u, tmp, out, kc):
        for q in range(2):
            e(f"v_pk_mul_f32 {v(tmp+2*q,2)}, {v(g+2*q,2)}, {v(kc,2)} op_sel_hi:[1,0]")
        flush_st()
        for q in range(4):
            e(f"v_exp_f32 v{tmp+q}, v{tmp+q}")
        for q in range(2):
            e(f"v_pk_mul_f32 {v(g+2*q,2)}, {v(g+2*q,2)}, {v(u+2*q,2)}")
        for q in range(2):
            e(f"v_pk_fma_f32 {v(tmp+2*q,2)}, {v(tmp+2*q,2)}, {v(kc,2)}, {v(kc,2)} op_sel:[0,1,1] op_sel_hi:[1,1,1]")
        for q in (2, 3, 0, 1):
            e(f"v_rcp_f32 v{tmp+q}, v{tmp+q}")
        for q in (1, 0):
            e(f"v_pk_mul_f32 {v(g+2*q,2)}, {v(g+2*q,2)}, {v(tmp+2*q,2)}")
        for q in (1, 0):
            e(f"v_cvt_pk_bf16_f32 v{out+q}, v{g+2*q}, v{g+2*q+1}")

    def cv_reads(fs):
        o = 64 * fs
        r = []
        for i in range(8):
            r.append(f"ds_read_b128 {a(o+32+4*i,4)}, v17 offset:{512*i}")
            r.append(f"ds_read_b64 {a(o+4*i,2)}, v16 offset:{(7-i)*512}")
            r.append(f"ds_read_b64 {a(o+4*i+2,2)}, v16 offset:{(7-i)*512+8}")
        r += ["v_subrev_u32 v16, 64, v16", "v_subrev_u32 v17, 64, v17"]
        return r

    e("s_nop 4")
    n = 0
    for j in range(4):
        if j in (0, 1, 3):
            e(f"s_mov_b32 s{78+(j&1)}, {j*H_SB}")
        for i in range(4):
            o = 8 + 4 * (n & 1)
            if i < 3:
                for k in range(2):
                    t_ = 2 * i + k
                    swiglu(acc(t_, j), acc(7 + t_, j), 4, o + 2 * k, 20 + 2 * j)
                pend.append((o, f"buffer_store_dwordx4 {v(o,4)}, v18, {R_H}, s{78+(j&1)} offen offset:{1024*i}{HSC}"))
                n += 1
            else:
                for r in range(4):
                    e(f"v_accvgpr_read_b32 v{248+r}, a{AC6+4*j+r}")
                    e(f"v_accvgpr_read_b32 v{252+r}, a{AC6+16+4*j+r}")
                flush_st()
                swiglu(248, 252, 4, 244 + 2 * (j & 1), 20 + 2 * j)
                if j & 1:
                    pend.append((244, f"buffer_store_dwordx4 v[244:247], v19, {R_H}, s78 offen offset:3072{HSC}"))
        if j == 3:
            e("s_nop 1")
            flush_st()
        if j == opt.get("cvj", 3):
            e.need("hk")
            for x in cv_reads(0):
                e(x)
    if WPF == 33:
        flat(wdpf)
    stamp(e, 4)

    e.c("long conv")
    CA = 32

    def cv_mfmas(fs, first):
        o = 64 * fs
        prs = [(p, w) for p in range(8) for w in range(8) if p + w <= 7]
        return [f"{MF} {v(CA+4*(p+w),4)}, {a(o+4*p,4)}, {a(o+32+4*w,4)}, {'0' if (first and p == 0) else v(CA+4*(p+w),4)}"
                for p, w in prs]

    def cv_body(r, rd=True, extra=None, early=None):
        fs = r & 1
        e.wait(lg=0)
        ex_ = list(early or []) + [x for g in (extra or []) for x in g]
        mem_ = ex_ if any(_ins(x) and " lds" in _ins(x) for x in ex_) else []
        sd = [] if mem_ or not ex_ else [(ex_, 0)]
        rl = []
        if rd:
            cr = cv_reads(1 - fs)
            rl = [(x, False) for x in cr[:-2]]
            sd.append((cr[-2:], 32))
        merge(e, cv_mfmas(fs, r == 0), pack(36, mem=mem_, reads=rl, sides=sd, first=2, rlim=30, tail=4))

    G_H, G_WD, G_A, G_B = 192, 194, 196, 200
    G2ROT = opt.get("g2rot", 0)
    W2B = 81920
    G_D = 210
    ZL = 65536
    g2s = [["s_lshr_b32 s72, s64, 1", "s_and_b32 s73, s64, 1", "s_and_b32 s4, s2, 1"],
           ["v_bfe_u32 v6, v0, 1, 3", "v_xor_b32 v6, v6, v28"],
           ["s_lshl_b32 s78, s64, 3", "v_add_u32 v7, s78, v28", "v_and_b32 v4, 1, v0"],
           [f"v_lshlrev_b32 v{G_WD}, 11, v7", f"v_lshl_add_u32 v{G_WD}, v4, 4, v{G_WD}"],
           ["s_lshl_b32 s78, s68, 8", f"v_add_u32 v{G_WD}, s78, v{G_WD}", "v_xor_b32 v7, 4, v6"],
           [f"v_lshl_add_u32 v{G_WD+1}, v7, 5, v{G_WD}", f"v_lshl_add_u32 v{G_WD}, v6, 5, v{G_WD}"],
           [f"v_add_u32 v{G_WD+1}, 7168, v{G_WD+1}", "s_lshl_b32 s74, s64, 11", f"s_add_u32 s71, s74, {W2B}"],
           [f"s_mul_i32 s75, s4, {56*1024}", "s_lshl_b32 s76, s75, 6"],
           ["s_lshl_b32 s78, s67, 3", "s_lshl_b32 s79, s64, 1", "s_add_u32 s78, s78, s79"],
           [f"s_mul_i32 s78, s78, {H_SB}", f"v_add_u32 v{G_H}, s78, v2", f"v_add_u32 v{G_H+1}, {H_SB-1024}, v{G_H}"],
           ["v_bfe_u32 v6, v0, 2, 2", "v_and_b32 v7, 3, v0"],
           ["v_lshl_add_u32 v4, v28, 2, v6", "v_and_b32 v5, 7, v4"],
           ["v_lshlrev_b32 v4, 8, v4", "v_lshl_add_u32 v4, v7, 3, v4"],
           [f"v_add_u32 v4, {W2B}, v4", "s_lshl_b32 s78, s73, 2", "v_xor_b32 v5, s78, v5"]]
    for dt in range(4):
        g2s.append([f"v_xor_b32 v7, {dt}, v5", f"v_lshl_add_u32 v{G_A+dt}, v7, 5, v4"])
    g2s += [["s_lshl_b32 s78, s72, 12", "s_lshl_b32 s79, s4, 11", "s_add_u32 s78, s78, s79"],
            ["v_lshrrev_b32 v4, 1, v28", "v_lshlrev_b32 v4, 8, v4"],
            ["v_lshl_add_u32 v4, v3, 4, v4", "v_and_b32 v5, 1, v28"],
            ["v_lshl_add_u32 v4, v5, 3, v4", f"v_add_u32 v{G_B}, s78, v4"],
            [f"v_xor_b32 v{G_B+1}, 0x800, v{G_B}"],
            ["v_lshlrev_b32 v23, 2, v3", "s_lshr_b32 s77, s67, 1", "s_lshl_b32 s77, s77, 7"],
            ["s_lshl_b32 s78, s4, 6", "s_add_u32 s77, s77, s78", f"s_add_u32 s77, s77, {HF_REL}"],
            [f"s_add_u32 s56, s88, 0x{PX_OFF:x}", "s_addc_u32 s57, s89, 0", f"s_mov_b32 s58, 0x{PX_SIZE:x}"]]
    R_PX = R_V

    def m0set(base, off):
        if isinstance(off, int):
            return [f"s_add_u32 m0, {base}, {off}", "s_nop 0"]
        return [f"s_add_u32 s3, {base}, s66", f"s_add_u32 m0, s3, {off[1]}", "s_nop 0"] if off[1] else [f"s_add_u32 m0, {base}, s66", "s_nop 0"]

    def wd2(off):
        return [m0set("s71", off) + [f"buffer_load_dwordx4 v{G_WD}, {R_WD}, s76 offen lds"],
                [f"buffer_load_dwordx4 v{G_WD+1}, {R_WD}, s76 offen offset:1024 lds", "s_add_u32 s76, s76, 0x10000"]]

    def h2(off):
        return [m0set("s74", off) + [f"buffer_load_dwordx4 v{G_H}, {R_H}, s75 offen sc1 lds"],
                [f"buffer_load_dwordx4 v{G_H+1}, {R_H}, s75 offen offset:1024 sc1 lds", "s_add_u32 s75, s75, 1024"]]

    sloc = lambda st_: ((st_ + 2) % 10) * 8192

    fl_load = f"buffer_load_dword v22, v23, {R_MI}, s77 offen sc1"

    def flag_cond():
        e("v_cmp_ne_u32 vcc, 0, v22")
        e("s_cmp_eq_u64 vcc, exec")

    R_SIG = opt.get("rsig", 3)
    wdp = sum([wd2(sloc(s_)) for s_ in range(8)], [])
    ex_by_r = {0: g2s[:10], 1: g2s[10:20], 2: g2s[20:], 4: wdp[:8], 5: wdp[8:]}
    if opt.get("cpf3", 1):
        c3_ = cpf("c", 204, "a255")
        ex_by_r[3] = [c3_[k:k+2] for k in range(0, len(c3_), 2)]
    if opt.get("wdearly"):
        ex_by_r = {0: g2s[:10], 1: wdp[:8], 2: wdp[8:], 3: g2s[10:20], 4: g2s[20:]}
    UZ = 224
    pre_z = ["v_lshlrev_b32 v12, 5, v3", "v_lshl_add_u32 v12, v28, 3, v12", f"s_add_u32 s78, s70, {2*2044 - 3584}",
             "v_sub_u32 v13, s78, v12"] + [f"ds_read_b64 {v(UZ+2*i,2)}, v13 offset:{(7-i)*512}" for i in range(8)]
    for r in range(7):
        if r == R_SIG:
            e.need("hst")
            e("s_barrier")
            signal(e, "f1", f"buffer_store_dword v1, off, {R_MI}, s80 sc1")
        cv_body(r, extra=ex_by_r.get(r), early=([I(fl_load, tag="f1")] if r == 6 else None))
    cv_body(7, rd=False, extra=[[x] for x in pre_z])
    e.wait(lg=0)
    e.need("f1")
    poll(fl_load, flag_cond, "f1")
    e("s_barrier")
    stamp(e, 6)
    for s_ in range(8):
        flat(h2(sloc(s_)))
        e.mark(f"h{s_}", "v")
    e("s_and_b32 s78, s69, 1")
    e("s_lshl_b32 s78, s78, 4")
    e("s_lshr_b32 s90, s90, s78")
    e("s_lshl_b32 s90, s90, 16")
    e("v_lshlrev_b32 v12, 5, v3")
    e("v_lshrrev_b32 v13, 1, v28")
    e("v_lshl_add_u32 v12, v13, 4, v12")
    e("v_and_b32 v13, 1, v28")
    e("v_lshl_add_u32 v12, v13, 9, v12")
    for i in range(8):
        u0, u1 = UZ + 2 * i, UZ + 2 * i + 1
        y = CA + 4 * i
        e(f"v_and_b32 v4, 0xffff0000, v{u1}")
        e(f"v_lshlrev_b32 v5, 16, v{u1}")
        e(f"v_and_b32 v6, 0xffff0000, v{u0}")
        e(f"v_lshlrev_b32 v7, 16, v{u0}")
        for q in range(4):
            e(f"v_fmac_f32 v{y+q}, s90, v{4+q}")
        e(f"v_cvt_pk_bf16_f32 v{u0}, v{y}, v{y+1}")
        e(f"v_cvt_pk_bf16_f32 v{u1}, v{y+2}, v{y+3}")
    e("s_nop 1")
    for k in range(4):
        b = UZ + 4 * k
        e(f"v_permlane16_swap_b32 v{b}, v{b+2}")
        e(f"v_permlane16_swap_b32 v{b+1}, v{b+3}")
        e(f"buffer_store_dwordx4 {v(b,4)}, v12, {R_ZT}, s84 offen offset:{1024*k} sc1", tag="zst")
    stamp(e, 7)

    e.c("GEMM2")
    A2 = 64

    def acc2(dt, jj):
        return A2 + (jj * 4 + dt) * 4

    NS = 56

    def rd2(step):
        so = (step & 1) * 8192
        o = 32 * (step & 3)
        d = G_D + 6 * ((step >> 1) & 1)
        al = [f"ds_read_b64_tr_b16 {a(o+4*dt+2*h,2)}, v{d+dt} offset:{so+h*4096}" for dt in range(4) for h in range(2)]
        bl = [f"ds_read_b64 {a(o+16+4*jj+2*h,2)}, v{d+4+(jj>>1)} offset:{so+(jj&1)*1024+h*512}" for jj in range(4) for h in range(2)]
        return bl[:2] + al + bl[2:]

    def adv(r_):
        return [f"s_add_u32 {r_}, {r_}, 16384", f"s_cmp_eq_u32 {r_}, {W2B}", f"s_cselect_b32 {r_}, 0, {r_}"]

    def radr(pair):
        d = G_D + 6 * (pair & 1)
        return [f"v_add_u32 v{d+4}, s7, v{G_B}"] + [f"v_add_u32 v{d+dt}, s7, v{G_A+dt}" for dt in range(4)] + [f"v_add_u32 v{d+5}, s7, v{G_B+1}"]

    def mf2(step, jjs=(0, 1, 2, 3)):
        o = 32 * (step & 3)
        return [f"{MF} {v(acc2(dt,jj),4)}, {a(o+4*dt,4)}, {a(o+16+4*jj,4)}, {'0' if step == 0 else v(acc2(dt,jj),4)}"
                for jj in jjs for dt in range(4)]

    def it2(I_, vm=None, extra=None, side=None, pre=None, needs=(), mf=None):
        if vm is None:
            vm = min(63, e.vm - max(e.tag[t_][1] for t_ in needs))
        e.wait(vm=vm, lg=(15 if mf is None else 0))
        e("s_barrier")
        if pre:
            pre()
        custom = mf is not None
        mf = mf or mf2(2 * I_) + mf2(2 * I_ + 1)
        n = len(mf)
        g = []
        if 2 * I_ + 8 < NS:
            for hf in range(2):
                g += h2(("d", hf * 8192)) + wd2(("d", hf * 8192))
            g.append([lambda: e.mark(f"g{I_}", "v")])
            g.append(adv("s66"))
        g += (extra or [])
        rl = [(x, False) for x in rd2(2 * I_ + 2) + rd2(2 * I_ + 3)]
        sd = ([(adv("s7") + radr(I_ + 2), 0)] if 2 * I_ + 4 < NS else []) + ([(side, 0)] if side else [])
        slots = pack(n, mem=[x for g_ in g for x in g_], reads=rl, sides=sd, first=1, rlim=n, tail=4)
        lg0 = e.lg
        if not custom:
            slots.setdefault(n // 2 - 1, []).append(lambda: e.wait(lg=min(15, e.lg - lg0)))
        merge(e, mf, slots)

    XR, SR, ZR, PR = 32, 48, 224, 128
    fa = ["v_and_b32 v6, 1, v28", "v_lshrrev_b32 v7, 1, v28", "v_lshl_or_b32 v6, v6, 1, v7",
          "s_lshl_b32 s85, s67, 3", "s_lshl_b32 s78, s72, 2", "s_add_u32 s85, s85, s78", "s_lshl_b32 s78, s4, 1",
          "s_add_u32 s85, s85, s78",
          "s_lshl_b32 s87, s68, 1", "s_add_u32 s87, s87, s73",
          "s_lshl_b32 s78, s85, 15", "s_lshl_b32 s79, s87, 7", "s_add_u32 s78, s78, s79",
          "v_lshlrev_b32 v24, 11, v3", "v_lshl_add_u32 v24, v6, 4, v24", "v_add_u32 v24, s78, v24",
          "v_add_u32 v25, 0x8000, v24", "v_lshlrev_b32 v26, 3, v3", "s_lshl_b32 s86, s85, 7",
          "s_lshl_b32 s77, s87, 6", f"s_add_u32 s77, s77, {ZF_REL}",
          "v_lshrrev_b32 v21, 2, v0", "v_lshlrev_b32 v21, 12, v21", "v_and_b32 v27, 3, v0",
          "v_lshl_add_u32 v21, v27, 4, v21", "s_lshl_b32 s78, s87, 18", "s_lshl_b32 s79, s85, 5",
          "s_add_u32 s78, s78, s79", "v_add_u32 v21, s78, v21",
          "s_lshl_b32 s5, s64, 12", f"s_add_u32 s5, s5, {ZL}",
          "v_bfe_u32 v7, v0, 2, 2", "v_lshl_add_u32 v7, v6, 3, v7", "v_lshlrev_b32 v7, 6, v7",
          "v_lshl_add_u32 v7, v27, 3, v7", "v_add_u32 v7, s5, v7",
          "s_lshl_b32 s83, s69, 13", "s_xor_b32 s84, s83, 0x8000", "v_add_u32 v13, 0x1000, v2",
          "s_lshl_b32 s78, s69, 7", f"s_add_u32 s80, s78, {PF_REL}", "s_xor_b32 s78, s78, 0x200", f"s_add_u32 s91, s78, {PF_REL}"]
    e("s_movk_i32 s7, 16384")
    e("s_mov_b32 s66, 0")
    for x in radr(0) + adv("s7") + radr(1) + fa:
        e(x)
    e.need("h1")
    e("s_barrier")
    for x in rd2(0) + rd2(1):
        e(x)
    it2(0, needs=["h3"])
    it2(1, needs=["h5"])
    it2(2, needs=["h7"])
    it2(3, needs=["g0", "zst"], pre=lambda: signal(e, "f2", f"buffer_store_dword v1, off, {R_MI}, s81 sc1"))
    stamp(e, 1)
    e("s_mov_b32 s82, 0")
    e.label("L_g2_loop")
    for I_ in (4, 5):
        it2(I_, vm=16)
    e("s_add_u32 s82, s82, 1")
    e("s_cmp_lt_u32 s82, 10")
    e("s_cbranch_scc1 L_g2_loop")
    for k in range(3):
        e.tag[f"g{21+k}"] = ("v", e.vm - 8 * (2 - k))
    e.vm_done = 0
    stamp(e, 5)
    ex = [[fl_load, lambda: e.mark("zf", "v")]]
    for e2 in range(2):
        for pr in range(2):
            ex.append([f"buffer_load_dwordx4 {v(XR+4*(2*e2+pr),4)}, v{24+e2}, {R_X}, 0 offen offset:{64*pr}"])
        ex.append([f"buffer_load_dwordx2 {v(SR+2*e2,2)}, v26, {R_MI}, s86 offen offset:{ST_REL+128*e2} sc1"])
    zd = [["s_mov_b32 m0, s5", f"buffer_load_dwordx4 v21, {R_ZT}, 0 offen sc1 lds"]]
    for i in range(1, 4):
        zd.append([f"s_mov_b32 s78, {i*(65536-1024)}", f"buffer_load_dwordx4 v21, {R_ZT}, s78 offen offset:{1024*i} sc1 lds"])
    it2(24, needs=["g21"], extra=ex)
    it2(25, needs=["g22"])
    it2(26, needs=["g23", "zf"], pre=lambda: poll(fl_load, flag_cond, "f2"), extra=zd,
        mf=mf2(52, (2, 3)) + mf2(53, (2, 3)) + mf2(52, (0, 1)))
    e.wait(lg=0)
    for x in mf2(54, (2, 3)) + mf2(55, (2, 3)):
        e(x)
    stamp(e, 8)
    BFX = opt.get("bfx", 1)
    own = mf2(53, (0, 1)) + mf2(54, (0, 1)) + mf2(55, (0, 1))
    O0 = acc2(0, 2)
    slots = {0: ["s_nop 3"]}
    if BFX:
        for q in range(16):
            slots.setdefault(2 + q // 2, []).append(f"v_cvt_pk_bf16_f32 v{PR+q}, v{O0+2*q}, v{O0+2*q+1}")
        for q in range(4):
            slots.setdefault(4 + 2 * q, []).append(f"buffer_store_dwordx4 {v(PR+4*q,4)}, v2, {R_PX}, s83 offen offset:{1024*q} sc1")
    else:
        for q in range(8):
            slots[4 + q] = [f"buffer_store_dwordx4 {v(O0+4*q,4)}, v{2 if q < 4 else 13}, {R_PX}, s83 offen offset:{1024*(q&3)} sc1"]
    merge(e, own, slots)
    e.wait(vm=0)
    e("v_mov_b32 v1, 1")
    e("s_mov_b64 exec, 1")
    e(f"buffer_store_dword v1, off, {R_MI}, s80 sc1")
    e("s_mov_b64 exec, -1")
    pf_load = f"buffer_load_dword v22, off, {R_MI}, s91 sc1"
    for e2 in range(2):
        for pr in range(2):
            for hh in range(2):
                e(f"ds_read_b64_tr_b16 {v(ZR+4*(2*e2+pr)+2*hh,2)}, v7 offset:{(32*pr+4*hh)*64 + 32*e2}")
    e.wait(lg=0)
    PB = 160
    for e2 in range(2):
        st = SR + 2 * e2
        for pr in range(2):
            i = 2 * e2 + pr
            if i == opt.get("pfi", 1):
                e(pf_load)
            for q in range(4):
                d_ = PB + 8 * i + 2 * q
                unpack(e, d_, XR + 4 * i + q)
                unpack(e, 56, ZR + 4 * i + q)
                e(f"v_pk_add_f32 v[54:55], {v(d_,2)}, {v(st,2)} op_sel_hi:[1,0]")
                e(f"v_pk_mul_f32 v[54:55], v[54:55], {v(st,2)} op_sel:[0,1] op_sel_hi:[1,1]")
                e(f"v_pk_fma_f32 {v(d_,2)}, v[54:55], v[56:57], {v(d_,2)}")
    e.wait(vm=0)
    poll(pf_load, flag_cond, "px")
    stamp(e, 9)
    for q in range(4 if BFX else 8):
        e(f"buffer_load_dwordx4 {v(PR+4*q,4)}, v{2 if q < 4 else 13}, {R_PX}, s84 offen offset:{1024*(q&3)} sc1", tag=f"p{q}")
    for e2 in range(2):
        for pr in range(2):
            i = 2 * e2 + pr
            A0 = acc2(2 * pr, e2)
            if BFX:
                e.need(f"p{i}")
                for q in range(4):
                    unpack(e, 52 + 2 * q, PR + 4 * i + q)
                for q in range(4):
                    e(f"v_pk_add_f32 {v(A0+2*q,2)}, {v(A0+2*q,2)}, {v(52+2*q,2)}")
            else:
                e.need(f"p{2*i+1}")
                for q in range(4):
                    e(f"v_pk_add_f32 {v(A0+2*q,2)}, {v(A0+2*q,2)}, {v(PR+8*i+2*q,2)}")
            e("s_nop 1")
            for r in range(4):
                e(f"v_permlane16_swap_b32 v{A0+r}, v{A0+4+r}")
            for q in range(4):
                e(f"v_pk_add_f32 {v(A0+2*q,2)}, {v(A0+2*q,2)}, {v(PB+8*i+2*q,2)}")
            for q in range(4):
                e(f"v_cvt_pk_bf16_f32 v{96+4*i+q}, v{A0+2*q}, v{A0+2*q+1}")
            e(f"buffer_store_dwordx4 {v(96+4*i,4)}, v{24+e2}, {R_OUT}, 0 offen offset:{64*pr} sc1")
    stamp(e, 10)
    if STAMPS or DST:
        e.wait(vm=0)
    stamp(e, 11)
    e.label("L_end")
    name = NAME + "_kernel"
    return f""".globl {name}
.p2align 8
.type {name},@function
{name}:
{e.text()}    s_endpgm
.section .rodata,"a"
.p2align 6
.amdhsa_kernel {name}
  .amdhsa_next_free_vgpr 512
  .amdhsa_next_free_sgpr 102
  .amdhsa_accum_offset 256
  .amdhsa_group_segment_fixed_size 0
  .amdhsa_kernarg_size 104
  .amdhsa_user_sgpr_count 2
  .amdhsa_user_sgpr_kernarg_segment_ptr 1
  .amdhsa_system_sgpr_workgroup_id_x 1
  .amdhsa_float_denorm_mode_32 3
.end_amdhsa_kernel
"""


def main(opt=None):
    opt = opt or {}
    ref = open("cdna_kernels/" + NAME + ".s.ref").read().split("\n")
    hdr = [l for l in ref if l.startswith(";") and "@launch" not in l]
    out = "\n".join(hdr) + "\n"
    out += f"; @launch grid=(256,1,1) block=(256,1,1) lds={LDS_SIZE}\n"
    out += '.amdgcn_target "amdgcn-amd-amdhsa--gfx950"\n.text\n'
    out += gen(opt)
    return out


if __name__ == "__main__":
    args = [x for x in sys.argv[1:] if not x.startswith("-")]
    opt = {}
    for x in sys.argv[1:]:
        if x == "-stamps":
            STAMPS = True
        elif x == "-light":
            STAMPS = LIGHT = True
        elif x.startswith("-dst"):
            DST = int(x.split("=")[1])
        elif x.startswith("-"):
            k, _, val = x[1:].partition("=")
            opt[k] = int(val) if val else 1
    path = args[0] if args else "cdna_kernels/" + NAME + ".s"
    open(path, "w").write(main(opt))
    print("wrote", path)
```

```python
import sys

NAME = "parallel_sum__ssm_conv_h3__swiglu_ffn__prompt"
S, D, F = 2048, 1024, 3584
KA_Q, KA_K, KA_V, KA_SHK, KA_SSMK, KA_SSMD, KA_BX, KA_WG, KA_WU, KA_WD, KA_OUT, KA_DBG, KA_WS = [8 * i for i in range(13)]

MISC_OFF = 0
ST_REL = 0
HF_REL = 16384
ZF_REL = 16384 + 1024
KF_REL = 16384 + 2048
CS_REL = 32768
PF_REL = CS_REL + 32 * 12288
MISC_SIZE = PF_REL + 1024 * 128
UR_OFF = 4 << 20
UR_PITCH = 4096 + 128
UR_SIZE = D * UR_PITCH
ZT_OFF = 9 << 20
ZT_SIZE = S * D * 2
H_OFF = 16 << 20
H_SIZE = S * F * 2
H_SB = 112 * 1024
PX_OFF = 32 << 20
PX_SIZE = 8 << 20
STAMP_OFF = 64 << 20

LDS_SIZE = 163840
XWREG = 24576
WB = 4 * XWREG
CV_CP = 4160
CV_HZ = 4 * CV_CP
CV_H = CV_HZ + 512
WSTEP = 32 * 7168
SPIN_LIMIT = 200000

STAMPS = False


class E:
    def __init__(self):
        self.l = []
        self.vm = 0
        self.vm_done = 0
        self.lg = 0
        self.lg_done = 0
        self.tag = {}

    def __call__(self, s, tag=None):
        for ln in s.strip("\n").split("\n"):
            ln = ln.strip()
            if ln.startswith("buffer_"):
                if ln.endswith(" lds") and self.l and " m0," in self.l[-1]:
                    self.l.append("    s_nop 0")
                self.vm += 1
                if tag:
                    self.tag[tag] = ("v", self.vm)
            elif ln.startswith("ds_"):
                self.lg += 1
                if tag:
                    self.tag[tag] = ("l", self.lg)
            self.l.append("    " + ln)

    def mark(self, tag, kind):
        self.tag[tag] = (kind, self.vm if kind == "v" else self.lg)

    def need(self, *tags):
        nv = max([self.tag[t][1] for t in tags if self.tag[t][0] == "v"] + [0])
        nl = max([self.tag[t][1] for t in tags if self.tag[t][0] == "l"] + [0])
        w = []
        if nv > self.vm_done:
            n = min(self.vm - nv, 63)
            w.append(f"vmcnt({n})")
            self.vm_done = self.vm - n
        if nl > self.lg_done:
            n = min(self.lg - nl, 15)
            w.append(f"lgkmcnt({n})")
            self.lg_done = self.lg - n
        if w:
            self.l.append("    s_waitcnt " + " ".join(w))

    def wait(self, vm=None, lg=None):
        w = []
        if vm is not None:
            w.append(f"vmcnt({vm})")
            self.vm_done = max(self.vm_done, self.vm - vm)
        if lg is not None:
            w.append(f"lgkmcnt({lg})")
            self.lg_done = max(self.lg_done, self.lg - lg)
        self.l.append("    s_waitcnt " + " ".join(w))

    def label(self, s):
        self.l.append(s + ":")

    def c(self, s):
        self.l.append("    ; " + s)

    def text(self):
        return "\n".join(self.l) + "\n"


def v(i, n=1):
    return f"v{i}" if n == 1 else f"v[{i}:{i+n-1}]"


def a(i, n=1):
    return f"a{i}" if n == 1 else f"a[{i}:{i+n-1}]"


DST = False
LIGHT = False
DMAP = {2: 2, 12: 3, 14: 4, 15: 5, 13: 6, 3: 7, 4: 8, 5: 9, 6: 10, 7: 11, 8: 12, 9: 13, 10: 14, 11: 15}


def stamp(e, i):
    if DST and i in DMAP:
        e("s_memrealtime s[96:97]")
        e.wait(lg=0)
        e("s_sub_u32 s96, s96, s98")
        e(f"v_writelane_b32 v31, s96, {DMAP[i]}")
        if i == 11:
            e(f"s_cmp_lg_u32 s69, {DST}")
            e("s_cbranch_scc1 L_end")
            e("v_lshlrev_b32 v30, 2, v0")
            e("s_mov_b64 exec, 0xfffc")
            e("buffer_store_dword v31, v30, s[40:43], 0 offen")
        return
    if not STAMPS or (LIGHT and i not in (3, 7, 11)):
        return
    e("s_memrealtime s[96:97]")
    e("s_memtime s[98:99]")
    e.wait(lg=0)
    e("v_mov_b32 v30, s96")
    e("v_mov_b32 v31, s98")
    e(f"buffer_store_dwordx2 v[30:31], off, s[92:95], s100 offset:{8*i}")


def unpack(e, dst, src):
    e(f"v_lshlrev_b32 v{dst}, 16, v{src}")
    e(f"v_and_b32 v{dst+1}, 0xffff0000, v{src}")


def allreduce32(e, r, t):
    e("s_nop 1")
    for m in ("quad_perm:[1,0,3,2]", "quad_perm:[2,3,0,1]", "row_half_mirror", "row_mirror"):
        e(f"v_add_f32_dpp v{r}, v{r}, v{r} {m} row_mask:0xf bank_mask:0xf")
        e("s_nop 1")
    e(f"v_mov_b32 v{t}, v{r}")
    e("s_nop 1")
    e(f"v_permlane16_swap_b32 v{r}, v{t}")
    e("s_nop 1")
    e(f"v_add_f32 v{r}, v{r}, v{t}")


def round_bf16(e, r):
    e(f"v_cvt_pk_bf16_f32 v{r}, v{r}, v{r}")
    e(f"v_lshlrev_b32 v{r}, 16, v{r}")


R_X, R_WG, R_WU, R_H, R_UR, R_SK, R_ZT, R_MI, R_DB, R_WD, R_OUT, R_K, R_V, R_SH = [f"s[{8+4*i}:{11+4*i}]" for i in range(14)]
MF = "v_mfma_f32_16x16x32_bf16"


def merge(e, mf, slots):
    def do(x):
        if callable(x):
            x()
        else:
            e(x)
    for i, m in enumerate(mf):
        e(m)
        for x in slots.get(i, []):
            do(x)
    for k in sorted(slots):
        if k >= len(mf):
            for x in slots[k]:
                do(x)


def _ins(x):
    return x if isinstance(x, str) else getattr(x, "ins", None)


def _cost(x):
    s_ = _ins(x)
    if s_ is None:
        return 0
    if s_.startswith("ds_"):
        return 8
    if s_.startswith("s_nop"):
        return 4 * (int(s_.split()[1]) + 1)
    if s_.split()[0] in ("v_exp_f32", "v_rcp_f32", "v_sqrt_f32"):
        return 8
    return 4


def _isv(x):
    s_ = _ins(x)
    return s_ is not None and s_.startswith("v_")


def _ismem(x):
    s_ = _ins(x)
    return s_ is not None and (s_.startswith("buffer_") or s_.startswith("global_"))


def units(seq, dropnop=False):
    out = []
    for x in seq:
        s_ = _ins(x)
        if dropnop and s_ == "s_nop 0":
            continue
        if out and (s_ is None or s_.split()[0] in ("s_cselect_b32", "s_cselect_b64", "s_addc_u32")):
            out[-1].append(x)
        else:
            out.append([x])
    return out


def pack(n, mem=(), reads=(), sides=(), head=(), first=1, rlim=None, tail=8, minsp=4):
    load = [0] * (n + 1)
    vload = [0] * (n + 1)
    nv = [[] for _ in range(n + 1)]
    vv = [[] for _ in range(n + 1)]
    load[n - 1] += tail

    def put(g, u, front=False):
        g = min(g, n)
        c = sum(_cost(x) for x in u)
        load[g] += c
        if any(_isv(x) for x in u):
            vload[g] += c
        if front:
            nv[g] = list(u) + nv[g]
        else:
            vv[g].extend(u)
    pos = -1
    for u in units(head):
        pos += 1
        put(pos, u)
    hpos = pos
    mu = units(mem, dropnop=True)
    nm = sum(1 for u in mu if any(_ismem(x) for x in u))
    sp = max(1.0, min(7.0, (n - (0 if n <= 32 else first + 1.0)) / max(1, nm)))
    pos = hpos
    k = 0
    lastm = -99
    for idx, u in enumerate(mu):
        if any(_ismem(x) for x in u):
            pos = max(pos + 1, int(first + k * sp), lastm + min(minsp, int(sp)))
            lastm = pos
            k += 1
        else:
            nxt = next((j for j in range(idx, len(mu)) if any(_ismem(x) for x in mu[j])), None)
            want = int(first + k * sp) - (nxt - idx) if nxt is not None else pos + 1
            pos = max(pos + 1, want)
        put(pos, u)
    rlim = n if rlim is None else rlim
    pos = 0
    nr = len(reads)
    for k, (x, after_head) in enumerate(reads):
        if after_head:
            pos = max(pos, hpos + 1)
        remaining = nr - k
        while pos < rlim and load[pos] + 8 > 12 and sum(1 for g in range(pos + 1, rlim) if load[g] + 8 <= 12) >= remaining:
            pos += 1
        g = min(pos, rlim - 1)
        load[g] += 8
        nv[g].append(x)
        if load[g] + 8 > 12 and sum(1 for q in range(g + 1, rlim)) >= remaining - 1:
            pos = g + 1
    for side, s0 in sides:
        su = units(side)
        prev = s0
        for k, u in enumerate(su):
            c = sum(_cost(x) for x in u)
            isv = any(_isv(x) for x in u)
            tgt = max(prev, s0 + (k * (n - s0)) // len(su) - 2)
            hi = min(n - 1, s0 + (k * (n - s0)) // len(su) + 3)
            cand = [g for g in range(tgt, hi + 1) if load[g] + c <= 12 and (not isv or vload[g] + c <= 8)]
            g = cand[0] if cand else min(range(tgt, hi + 1), key=lambda q: (max(load[q] + c - 12, (vload[q] + c - 8) if isv else -99) - max(load[q] - 12, vload[q] - 8, 0), q))
            put(g, u)
            prev = g
    return {g: nv[g] + vv[g] for g in range(n + 1) if nv[g] or vv[g]}


def signal(e, lab, ins):
    e("s_cmp_lg_u32 s64, 0")
    e(f"s_cbranch_scc1 L_{lab}_nosig")
    e("v_mov_b32 v1, 1")
    e("s_mov_b64 exec, 1")
    e.l.append("    " + ins)
    e("s_mov_b64 exec, -1")
    e.label(f"L_{lab}_nosig")


def gen(opt):
    e = E()
    ACC = 32

    AC6 = 180

    def acc(ai, j):
        t, m = ai % 7, ai // 7
        assert t < 6
        return ACC + ((m * 6 + t) * 4 + j) * 4

    def accr(ai, j):
        if ai % 7 == 6:
            return a(AC6 + (ai // 7) * 16 + 4 * j, 4)
        return v(acc(ai, j), 4)
    FA = [0, 72]
    CSF, CSS, CSA = 144, 160, 176

    e("s_cmp_ge_u32 s2, 256")
    e("s_cbranch_scc1 L_end")
    if STAMPS:
        e("s_memrealtime s[96:97]")
        e("s_memtime s[98:99]")
    if DST:
        e("s_memrealtime s[98:99]")
        e("v_mov_b32 v31, 0")
    for reg, off in ((8, KA_Q), (12, KA_WG), (16, KA_WU), (88, KA_WS), (28, KA_SSMK), (40, KA_DBG), (44, KA_WD),
                     (48, KA_OUT), (52, KA_K), (56, KA_V), (60, KA_SHK), (86, KA_SSMD)):
        e(f"s_load_dwordx2 s[{reg}:{reg+1}], s[0:1], {off}")
    if opt.get("cpf", 1):
        e("s_getpc_b64 s[82:83]")
        e.label("L_pc")
        e("s_lshr_b32 s78, s2, 3")
        e("s_and_b32 s78, s78, 3")
        e("s_lshl_b32 s78, s78, 14")
        e("v_lshlrev_b32 v50, 6, v0")
        e("v_add_u32 v50, s78, v50")
        e("v_min_u32 v50, L_end-L_pc, v50")
        e("v_mov_b32 v51, s83")
        e("v_add_co_u32 v50, vcc, s82, v50")
        e("s_nop 1")
        e("v_addc_co_u32 v51, vcc, 0, v51, vcc")
        e.l.append("    global_load_dword a255, v[50:51], off")
        e.vm += 1
    e("v_lshrrev_b32 v1, 6, v0")
    e("v_mov_b32 v29, v0")
    e("v_and_b32 v0, 63, v0")
    e("v_readfirstlane_b32 s64, v1")
    e("v_lshlrev_b32 v2, 4, v0")
    e("v_lshrrev_b32 v39, 5, v29")
    e("v_and_b32 v40, 31, v29")
    e("s_lshl_b32 s7, s2, 14")
    e("v_lshlrev_b32 v41, 11, v39")
    e("v_lshl_add_u32 v41, v40, 4, v41")
    e("v_add_u32 v41, s7, v41")
    for reg, size in ((8, S * D * 2), (12, D * F * 2), (16, D * F * 2)):
        e(f"s_mov_b32 s{reg+2}, 0x{size:x}")
        e(f"s_mov_b32 s{reg+3}, 0x20000")
    e("s_and_b32 s6, s2, 7")
    e("s_lshr_b32 s7, s2, 3")
    if opt.get("map1", 0) == 3:
        e("s_mov_b32 s65, s6")
        e("s_mov_b32 s66, s7")
    elif opt.get("map1", 0) == 1:
        e("s_and_b32 s65, s7, 3")
        e("s_lshl_b32 s65, s65, 1")
        e("s_and_b32 s78, s6, 1")
        e("s_add_u32 s65, s65, s78")
        e("s_lshr_b32 s66, s7, 2")
        e("s_lshr_b32 s78, s6, 1")
        e("s_lshl_b32 s78, s78, 3")
        e("s_add_u32 s66, s66, s78")
    elif opt.get("map1", 0) == 2:
        e("s_and_b32 s65, s7, 1")
        e("s_lshl_b32 s65, s65, 2")
        e("s_and_b32 s78, s6, 3")
        e("s_add_u32 s65, s65, s78")
        e("s_lshr_b32 s66, s7, 1")
        e("s_lshr_b32 s78, s6, 2")
        e("s_lshl_b32 s78, s78, 4")
        e("s_add_u32 s66, s66, s78")
    else:
        e("s_and_b32 s65, s7, 7")
        e("s_lshr_b32 s66, s7, 3")
        e("s_lshl_b32 s78, s6, 2")
        e("s_add_u32 s66, s66, s78")
    e(f"s_mul_i32 s70, s64, {XWREG}")
    e("s_lshl_b32 s71, s64, 11")
    e(f"s_add_u32 s71, s71, {WB}")
    NCS = 8
    e("s_lshr_b32 s3, s65, 1")
    e(f"s_mul_i32 s72, s3, {NCS*WSTEP}")
    e("s_add_u32 s73, s72, 27648")
    e("v_lshrrev_b32 v22, 4, v0")
    e("v_bfe_u32 v23, v0, 1, 3")
    e("s_and_b32 s78, s64, 1")
    e("s_lshl_b32 s78, s78, 2")
    e("v_or_b32 v24, s78, v22")
    e("v_xor_b32 v23, v23, v24")
    e("v_and_b32 v25, 1, v0")
    e("s_lshl_b32 s78, s64, 3")
    e("v_lshlrev_b32 v3, 5, v23")
    e("v_lshl_add_u32 v3, v25, 4, v3")
    e("v_add_u32 v26, s78, v22")
    e("v_mul_u32_u24 v27, 7168, v26")
    e("v_add_u32 v3, v3, v27")
    e("s_mul_i32 s78, s66, 224")
    e("v_add_u32 v3, s78, v3")
    e("v_cmp_eq_u32 vcc, 7, v23")
    e("v_mov_b32 v27, 0x80000000")
    e("v_lshlrev_b32 v28, 8, v26")
    e("v_cndmask_b32 v3, v3, v27, vcc")
    e("v_lshl_add_u32 v28, v23, 5, v28")
    e("v_lshl_add_u32 v28, v25, 4, v28")
    e("v_lshrrev_b32 v23, 3, v0")
    e("v_and_b32 v24, 7, v0")
    e("v_xor_b32 v24, v24, v22")
    e("s_lshl_b32 s78, s65, 19")
    e("s_lshl_b32 s79, s64, 17")
    e("s_add_u32 s78, s78, s79")
    e("v_lshlrev_b32 v4, 11, v23")
    e("v_add_u32 v4, s78, v4")
    e("v_xor_b32 v25, 4, v24")
    e("v_lshl_add_u32 v5, v25, 4, v4")
    e("v_lshl_add_u32 v4, v24, 4, v4")
    e("v_add_u32 v5, 15360, v5")
    e("v_add_u32 v6, 30720, v4")
    e("v_add_u32 v7, 30720, v5")
    e(f"s_mul_i32 s77, s3, {NCS*64}")
    e("s_add_u32 s76, s70, 16384")
    e(f"s_add_u32 s91, s70, {XWREG}")

    wstep = [0]

    def wdma(u, aug=False):
        g = []
        nt = " nt" if (opt.get("ntw", 0) == 2 or (opt.get("ntw", 0) == 1 and wstep[0] < NCS)) else ""
        wstep[0] += 1
        if aug:
            g.append([f"s_add_u32 m0, s71, {u*16384}", "s_nop 0", f"buffer_load_dwordx4 v28, {R_MI}, 0 offen sc1 lds"])
            g.append([f"buffer_load_dwordx4 v28, {R_MI}, 0 offen offset:1024 sc1 lds"])
            g.append([f"s_add_u32 m0, s71, {u*16384+8192}", "s_movk_i32 s78, 6144", f"buffer_load_dwordx4 v28, {R_MI}, s78 offen sc1 lds"])
            g.append([f"buffer_load_dwordx4 v28, {R_MI}, s78 offen offset:1024 sc1 lds"])
            return g
        g.append([f"s_add_u32 m0, s71, {u*16384}", "s_nop 0", f"buffer_load_dwordx4 v3, {R_WG}, s72 offen{nt} lds"])
        g.append([f"buffer_load_dwordx4 v3, {R_WG}, s73 offen offset:1024{nt} lds"])
        g.append([f"s_add_u32 m0, s71, {u*16384+8192}", "s_nop 0", f"buffer_load_dwordx4 v3, {R_WU}, s72 offen{nt} lds"])
        g.append([f"buffer_load_dwordx4 v3, {R_WU}, s73 offen offset:1024{nt} lds", f"s_add_u32 s72, s72, {WSTEP}"])
        g.append([f"s_cmp_eq_u32 s72, {32*WSTEP}", "s_cselect_b32 s72, 0, s72", "s_add_u32 s73, s72, 27648"])
        return g

    def xdma(hf):
        g = []
        if hf == 0:
            g.append(["s_mov_b32 m0, s76", "s_nop 0", f"buffer_load_dwordx4 v4, {R_X}, s77 offen lds"])
            so = "s77"
        else:
            g.append(["s_add_u32 m0, s76, 4096", "s_add_u32 s79, s77, 0x10000", f"buffer_load_dwordx4 v4, {R_X}, s79 offen lds"])
            so = "s79"
        for q in range(1, 4):
            g.append([f"buffer_load_dwordx4 v{4+q}, {R_X}, {so} offen offset:{1024*q} lds"])
        if hf == 1:
            g[-1] += ["s_add_u32 s77, s77, 128", "s_and_b32 s77, s77, 0x7ff"]
            g.append(["s_add_u32 s76, s76, 8192", "s_cmp_eq_u32 s76, s91", "s_cselect_b32 s76, s70, s76"])
        return g

    def flat(gs):
        for g in gs:
            for x in g:
                e(x)

    e.wait(lg=0)
    XS = 224
    flat(wdma(0)); flat(xdma(0)); flat(xdma(1)); e.mark("w0", "v")
    flat(wdma(1)); e.mark("w1", "v")
    XSI = opt.get("xsi", 5)
    xsl = [[f"buffer_load_dwordx4 {v(XS+4*j,4)}, v{41 if XSI < 0 else 245}, {R_X}, 0 offen offset:{512*j}"] for j in range(4)]
    xsl[-1].append(lambda: e.mark("xs", "v"))
    if XSI < 0:
        for g_ in xsl:
            e(g_[0])
    for reg, size in ((52, S * D * 2), (56, S * D * 2)):
        e(f"s_mov_b32 s{reg+2}, 0x{size:x}")
        e(f"s_mov_b32 s{reg+3}, 0x20000")
    e("s_and_b32 s4, s2, 31")
    e("s_lshr_b32 s5, s2, 5")
    e("s_lshl_b32 s78, s4, 17")
    e("s_lshl_b32 s79, s5, 8")
    e("s_add_u32 s78, s78, s79")
    KVM = opt.get("kvm", 1)
    if KVM:
        e("s_and_b32 s79, s64, 1")
        e("s_lshl_b32 s79, s79, 7")
        e("s_add_u32 s78, s78, s79")
        e("s_lshr_b32 s79, s64, 1")
        e("s_lshl_b32 s79, s79, 16")
        e("s_add_u32 s78, s78, s79")
        e("v_and_b32 v52, 7, v0")
        e("v_lshrrev_b32 v248, 3, v0")
    else:
        e("s_lshl_b32 s79, s64, 6")
        e("s_add_u32 s78, s78, s79")
        e("v_and_b32 v52, 3, v0")
        e("v_lshrrev_b32 v248, 2, v0")
    e("v_lshlrev_b32 v248, 13, v248")
    e("v_lshl_add_u32 v248, v52, 4, v248")
    e("v_add_u32 v248, s78, v248")
    e("v_add_u32 v249, 0xffffe000, v248")
    e("v_add_u32 v250, 0xfffff000, v248")
    e("v_add_u32 v251, 0x1000, v248")
    KR, VR, WR = [212 + 4 * i for i in range(7)], [240 + 4 * i for i in range(4)], [152, 156, 168, 172]
    kaddr = [(249, 2048), (250, 0), (250, 2048), (248, 0), (248, 2048), (251, 0), (251, 2048)]
    ntk = " nt" if opt.get("ntkv", 1) else ""
    kvl = [[f"buffer_load_dwordx4 {a(VR[i],4)}, v{r}, {R_V}, 0 offen offset:{o}{ntk}"] for i, (r, o) in enumerate(kaddr[3:])]
    kvl += [[f"buffer_load_dwordx4 {a(KR[i],4)}, v{r}, {R_K}, 0 offen offset:{o}{ntk}"] for i, (r, o) in enumerate(kaddr)]
    kvl[-1].append(lambda: e.mark("kv", "v"))
    for reg, size in ((28, D * S * 2), (40, 256), (44, F * D * 2), (48, S * D * 2), (60, D * 8)):
        e(f"s_mov_b32 s{reg+2}, 0x{size:x}")
        e(f"s_mov_b32 s{reg+3}, 0x20000")
    wsr = [(20, H_OFF, H_SIZE), (24, UR_OFF, UR_SIZE), (32, ZT_OFF, ZT_SIZE), (36, MISC_OFF, MISC_SIZE)]
    if STAMPS:
        wsr.append((92, STAMP_OFF, 1 << 20))
    for reg, off, size in wsr:
        if reg != 92:
            off += opt.get("wsoff", 0) << 20
        e(f"s_add_u32 s{reg}, s88, 0x{off:x}")
        e(f"s_addc_u32 s{reg+1}, s89, 0")
        e(f"s_mov_b32 s{reg+2}, 0x{size:x}")
        e(f"s_mov_b32 s{reg+3}, 0x20000")
    if STAMPS:
        e("s_lshl_b32 s100, s2, 2")
        e("s_add_u32 s100, s100, s64")
        e("s_lshl_b32 s100, s100, 7")
        e("v_mov_b32 v30, s96")
        e("v_mov_b32 v31, s98")
        e("buffer_store_dwordx2 v[30:31], off, s[92:95], s100")
    e("s_lshl_b32 s69, s2, 2")
    e("s_add_u32 s69, s69, s64")
    e("s_lshr_b32 s78, s69, 1")
    e("s_lshl_b32 s78, s78, 2")
    e("s_load_dword s90, s[86:87], s78")
    e("s_bfe_u32 s67, s6, 0x10001")
    e("s_lshl_b32 s67, s67, 3")
    e("s_and_b32 s78, s7, 7")
    e("s_add_u32 s67, s67, s78")
    e("s_lshr_b32 s68, s6, 2")
    e("s_lshl_b32 s68, s68, 2")
    e("s_lshr_b32 s78, s7, 3")
    e("s_add_u32 s68, s68, s78")
    e("s_mul_i32 s78, s66, 12288")
    e(f"s_add_u32 s78, s78, {CS_REL}")
    e("s_cmp_eq_u32 s64, 3")
    e("s_cselect_b32 s78, 0x80000000, s78")
    e("v_add_u32 v28, s78, v28")
    e("v_bfe_u32 v24, v0, 2, 2")
    e("v_and_b32 v25, 3, v0")
    e("v_lshl_add_u32 v26, v22, 3, v24")
    e("v_lshlrev_b32 v26, 8, v26")
    e("v_lshl_add_u32 v26, v25, 3, v26")
    e(f"v_add_u32 v26, {WB}, v26")
    e("v_and_b32 v27, 1, v22")
    e("v_lshl_or_b32 v27, v27, 2, v24")
    for t in range(7):
        e(f"v_xor_b32 v1, {t}, v27")
        e(f"v_lshl_add_u32 v{8+t}, v1, 5, v26")
    e("s_lshr_b32 s78, s64, 1")
    e("s_lshl_b32 s78, s78, 13")
    e("v_add_u32 v26, s78, v26")
    e("s_and_b32 s78, s64, 1")
    e("s_lshl_b32 s78, s78, 1")
    e("s_and_b32 s79, s65, 1")
    e("s_add_u32 s78, s78, s79")
    e("s_lshl_b32 s87, s78, 1")
    e("v_xor_b32 v27, s87, v27")
    for q in range(2):
        e(f"v_xor_b32 v1, {q}, v27")
        e(f"v_lshl_add_u32 v{18+q}, v1, 5, v26")
    e("v_and_b32 v24, 15, v0")
    e("v_lshrrev_b32 v25, 1, v24")
    e("v_xor_b32 v25, v25, v22")
    e("v_lshlrev_b32 v15, 7, v24")
    e("v_lshl_add_u32 v15, v25, 4, v15")
    e("v_add_u32 v15, s70, v15")
    e("v_xor_b32 v16, 64, v15")
    e("v_and_b32 v24, 3, v0")
    e("v_mov_b32 v25, 0x3f803f80")
    for q in range(2):
        e(f"v_cmp_eq_u32 vcc, {q}, v24")
        e("s_nop 1")
        e("v_cndmask_b32 v26, 0, v25, vcc")
        for r in range(4):
            e(f"v_accvgpr_write_b32 a{CSS+4*q+r}, v26")
    e("s_lshl_b32 s78, s65, 5")
    e("s_add_u32 s78, s78, s66")
    e("s_lshl_b32 s78, s78, 2")
    e(f"s_add_u32 s80, s78, {HF_REL}")
    e("s_lshl_b32 s78, s2, 2")
    e(f"s_add_u32 s81, s78, {ZF_REL}")
    e("s_lshl_b32 s78, s2, 9")
    e(f"s_add_u32 s78, s78, {PF_REL}")
    e("v_lshlrev_b32 v48, 7, v29")
    e("v_add_u32 v48, s78, v48")
    e("v_mov_b32 v47, s80")
    e("v_cmp_eq_u32 vcc, 5, v29")
    e("v_mov_b32 v45, 0x80000000")
    e("v_mov_b32 v46, s81")
    e("v_cndmask_b32 v48, v48, v47, vcc")
    e("v_cmp_eq_u32 vcc, 4, v29")
    e("s_nop 1")
    e("v_cndmask_b32 v48, v48, v46, vcc")
    e("v_mov_b32 v46, 0")
    e("v_cmp_gt_u32 vcc, 6, v29")
    e("s_lshl_b32 s78, s2, 6")
    e("v_lshlrev_b32 v49, 3, v39")
    e("v_cndmask_b32 v48, v45, v48, vcc")
    e("v_add_u32 v49, s78, v49")
    e("v_cmp_eq_u32 vcc, 0, v40")
    e(f"buffer_store_dword v46, v48, {R_MI}, 0 offen sc1")
    e("s_nop 0")
    e("v_cndmask_b32 v244, v45, v49, vcc")
    e("v_mov_b32 v245, v41")

    flat(xdma(0)); flat(xdma(1)); flat(wdma(2)); e.mark("w2", "v")
    e.need("w0")
    e.wait(lg=0)
    e("s_barrier")
    stamp(e, 2)

    def ared(r, tmp):
        o = []
        for m in ("quad_perm:[1,0,3,2]", "quad_perm:[2,3,0,1]", "row_half_mirror", "row_mirror"):
            o += ["s_nop 1", f"v_add_f32_dpp v{r}, v{r}, v{r} {m} row_mask:0xf bank_mask:0xf"]
        o += [f"v_mov_b32 v{tmp}, v{r}", "s_nop 1", f"v_permlane16_swap_b32 v{r}, v{tmp}", "s_nop 1", f"v_add_f32 v{r}, v{r}, v{tmp}"]
        return o
    rb = lambda r: [f"v_cvt_pk_bf16_f32 v{r}, v{r}, v{r}", f"v_lshlrev_b32 v{r}, 16, v{r}"]
    sts = [f"v_lshlrev_b32 v240, 16, v{XS}", f"v_and_b32 v241, 0xffff0000, v{XS}"]
    for i in range(1, 16):
        sts += [f"v_lshlrev_b32 v242, 16, v{XS+i}", f"v_and_b32 v243, 0xffff0000, v{XS+i}",
                "v_add_f32 v240, v240, v242", "v_add_f32 v241, v241, v243"]
    sts += ["v_add_f32 v246, v240, v241"] + ared(246, 242) + ["v_mul_f32 v246, 0xba800000, v246"]
    for i in range(16):
        sts += [f"v_lshlrev_b32 v242, 16, v{XS+i}", f"v_and_b32 v243, 0xffff0000, v{XS+i}",
                "v_add_f32 v242, v242, v246", "v_add_f32 v243, v243, v246"]
        sts += (["v_mul_f32 v240, v242, v242", "v_mul_f32 v241, v243, v243"] if i == 0 else
                ["v_fmac_f32 v240, v242, v242", "v_fmac_f32 v241, v243, v243"])
    sts += ["v_add_f32 v247, v240, v241"] + ared(247, 242) + ["v_mul_f32 v247, 0x3a800000, v247"] + rb(247)
    sts += ["v_add_f32 v247, 0x3727c5ac, v247"] + rb(247) + ["v_sqrt_f32 v247, v247"] + rb(246) + rb(247)
    sts += ["v_rcp_f32 v247, v247", "s_nop 0"]
    st_store = [f"buffer_store_dwordx2 v[246:247], v244, {R_MI}, 0 offen offset:{ST_REL} sc1"]

    def reads(step_u, fs, cs=False, do_b=True):
        fa = FA[fs]
        al = []
        for ai in range(14):
            for h in range(2):
                al.append(f"ds_read_b64_tr_b16 {a(fa+4*ai+2*h,2)}, v{8+ai%7} offset:{step_u*16384 + (ai//7)*8192 + h*1024}")
        bl = [f"ds_read_b128 {a(fa+56+4*j,4)}, v17 offset:{2048*j}" for j in range(4)] if do_b else []
        cl = []
        if cs:
            for q in range(2):
                for h in range(2):
                    cl.append(f"ds_read_b64_tr_b16 {a(CSF+4*q+2*h,2)}, v{18+q} offset:{step_u*16384 + h*1024}")
        return bl + al + cl

    def mfmas(fs, first=False):
        fa = FA[fs]
        mo = opt.get("morder", 2)
        if mo == 0:
            od = [(ai, j) for ai in range(14) for j in range(4)]
        elif mo == 1:
            od = [(ai, j) for j in range(4) for ai in range(14)]
        elif mo == 2:
            od = [(ai, j if ai % 2 == 0 else 3 - j) for ai in range(14) for j in range(4)]
        elif mo == 3:
            od = [(ai if j % 2 == 0 else 13 - ai, j) for j in range(4) for ai in range(14)]
        else:
            od = [((k * 5) % 14, k % 4) for k in range(28)] + [((k * 5 + 1) % 14, (k + 2) % 4) for k in range(28)]
            od = [(ai, (j + ai) % 4) for j in range(4) for ai in range(14)]
        if opt.get("swapab"):
            return [f"{MF} {accr(ai,j)}, {a(fa+56+4*j,4)}, {a(fa+4*ai,4)}, {'0' if first else accr(ai,j)}" for ai, j in od]
        return [f"{MF} {accr(ai,j)}, {a(fa+4*ai,4)}, {a(fa+56+4*j,4)}, {'0' if first else accr(ai,j)}" for ai, j in od]

    e("s_movk_i32 s75, 16384")
    e("v_add_u32 v17, s75, v15")
    for x in reads(0, 0, cs=True):
        e(x)
    flat(wdma(3)); e.mark("w3", "v")
    flat(xdma(0))

    def body(i, wd=True, xd=True, rd=True, cs_m=False, cs_r=False, extra=None, pre=None, aug_w=False, do_b=True,
             vm=None, side=None, side0=12, needs=(), relax=0, post=None):
        u = i & 3
        fs = i & 1
        if vm is None:
            tags = [t_ for t_ in [f"it{i-3}"] + list(needs) if t_ in e.tag]
            vm = min(63, e.vm - max(e.tag[t_][1] for t_ in tags))
        if relax:
            e("s_sub_u32 s101, s101, 1")
            e(f"s_cbranch_scc0 L_rx{i}")
            e("s_mov_b32 s101, 0")
            e.l.append(f"    s_waitcnt vmcnt({vm})")
            e.label(f"L_rx{i}")
            e.l.append(f"    s_waitcnt vmcnt({min(63, vm + relax)}) lgkmcnt(0)")
            e.lg_done = e.lg
        else:
            e.wait(vm=vm, lg=0)
        if not (opt.get("x_nobar") and i > 0 and i & opt["x_nobar"]):
            e("s_barrier")
        if pre:
            pre()
        mf = mfmas(fs, first=(i == 0))
        if cs_m:
            cm = [f"{MF} {a(CSA,4)}, {a(CSF+4*q,4)}, {a(CSS+4*q,4)}, {'0' if (i == 0 and q == 0) else a(CSA,4)}" for q in range(2)]
            mf = cm + mf
        groups = []
        if xd:
            groups += xdma(1 - (i & 1))
        if wd:
            groups += wdma(u, aug_w)
        mk = lambda: e.mark(f"it{i}", "v")
        if not groups:
            mk()
        else:
            groups.append([mk])
        if extra:
            groups += extra
        head, rl = [], []
        if rd:
            hk = (i + 1) & 1
            if do_b:
                head = (["s_add_u32 s75, s75, 8192", f"s_cmp_eq_u32 s75, {XWREG}", "s_cselect_b32 s75, 0, s75", "v_add_u32 v17, s75, v15"]
                        if hk == 0 else ["v_add_u32 v17, s75, v16"])
            r_ = reads((u + 1) & 3, 1 - fs, cs_r, do_b)
            rl = [(x, False) for x in r_[4:8]] + [(x, True) for x in r_[:4]] + [(x, False) for x in r_[8:]] if do_b else [(x, False) for x in r_]
        slots = pack(len(mf), mem=[x for g in groups for x in g], reads=rl, sides=([(side, side0)] if side else []),
                     head=head, first=4, rlim=len(mf) - 8)
        merge(e, mf, slots)
        if post:
            post()

    Cm = [240, 241, 242, 243, 252, 253, 246, 247, 20, 21, 24, 25, 254, 255]
    cs = [f"v_accvgpr_read_b32 C{r}, a{CSA+r}" for r in range(4)]
    cs += ["v_cvt_pk_bf16_f32 C4, C0, C1", "v_cvt_pk_bf16_f32 C5, C2, C3",
           "v_lshlrev_b32 C6, 16, C4", "v_and_b32 C7, 0xffff0000, C4", "v_lshlrev_b32 C8, 16, C5", "v_and_b32 C9, 0xffff0000, C5"]
    cs += [f"v_sub_f32 C{r}, C{r}, C{6+r}" for r in range(4)]
    cs += ["v_bfe_u32 v1, v0, 2, 2", "v_cmp_eq_u32 vcc, 1, v1",
           "v_cvt_pk_bf16_f32 C10, C0, C1", "v_cvt_pk_bf16_f32 C11, C2, C3",
           "v_cndmask_b32 C4, C4, C10, vcc", "v_cndmask_b32 C5, C5, C11, vcc",
           "v_lshlrev_b32 C6, 16, C10", "v_and_b32 C7, 0xffff0000, C10", "v_lshlrev_b32 C8, 16, C11", "v_and_b32 C9, 0xffff0000, C11"]
    cs += [f"v_sub_f32 C{r}, C{r}, C{6+r}" for r in range(4)]
    cs += ["v_cmp_eq_u32 vcc, 2, v1", "v_cvt_pk_bf16_f32 C10, C0, C1", "v_cvt_pk_bf16_f32 C11, C2, C3",
           "v_cndmask_b32 C4, C4, C10, vcc", "v_cndmask_b32 C5, C5, C11, vcc"]
    csa = ["s_mul_i32 s3, s66, 12288", "s_lshr_b32 s6, s64, 1", "s_mul_i32 s6, s6, 6144", "s_add_u32 s3, s3, s6",
           "s_lshr_b32 s6, s65, 1", "s_lshl_b32 s6, s6, 8", "s_add_u32 s3, s3, s6", "s_lshl_b32 s6, s87, 5",
           "s_add_u32 s3, s3, s6", f"s_add_u32 s3, s3, {CS_REL}",
           "v_bfe_u32 v1, v0, 1, 3", "v_lshlrev_b32 C12, 10, v1", "v_and_b32 C13, 1, v0",
           "v_lshl_add_u32 C12, C13, 5, C12", "v_lshrrev_b32 C13, 4, v0",
           "v_lshl_add_u32 C12, C13, 3, C12", "v_cmp_le_u32 vcc, 6, v1", "v_mov_b32 C13, 0x80000000",
           "v_add_u32 C12, s3, C12", "v_cndmask_b32 C12, C12, C13, vcc"]
    import re as _re
    sub = lambda l_: [_re.sub(r"C(\d+)", lambda m_: f"v{Cm[int(m_.group(1))]}", x) for x in l_]
    cs, csa = sub(cs), sub(csa)
    cs_store = [f"buffer_store_dwordx2 v[252:253], v254, {R_MI}, 0 offen sc1"]
    kva = ["v_and_b32 v26, 3, v0", "v_lshlrev_b32 v22, 3, v26", "v_lshlrev_b32 v26, 6, v26",
           "s_lshl_b32 s74, s5, 10", "s_lshl_b32 s3, s64, 8", "s_add_u32 s74, s74, s3",
           "s_lshr_b32 s3, s74, 3", "v_add_u32 v22, s3, v22", f"v_mul_u32_u24 v22, {UR_PITCH}, v22",
           "v_lshrrev_b32 v23, 2, v0", "v_lshlrev_b32 v23, 3, v23", "v_sub_u32 v22, v22, v23",
           "s_lshl_b32 s6, s4, 7", "s_sub_u32 s6, 4088, s6", "v_add_u32 v22, s6, v22",
           "s_lshl_b32 s3, s5, 7", "v_add_u32 v23, s3, v29", f"v_mul_u32_u24 v23, {UR_PITCH}, v23",
           "v_add_u32 v23, 0x1000, v23", "s_lshl_b32 s6, s4, 8", "v_add_u32 v24, s6, v29", "s_movk_i32 s6, 128",
           "v_cmp_gt_u32 vcc, s6, v24", "v_mov_b32 v25, 0x80000000", "s_nop 0", "v_cndmask_b32 v23, v25, v23, vcc"]
    if KVM:
        kva[:15] = ["v_and_b32 v26, 7, v0", "v_lshlrev_b32 v22, 3, v26", "v_lshlrev_b32 v26, 6, v26",
                    "s_lshl_b32 s74, s5, 10", "s_and_b32 s3, s64, 1", "s_lshl_b32 s3, s3, 9", "s_add_u32 s74, s74, s3",
                    "s_lshr_b32 s3, s74, 3", "v_add_u32 v22, s3, v22", f"v_mul_u32_u24 v22, {UR_PITCH}, v22",
                    "v_and_b32 v23, 0x38, v0", "v_sub_u32 v22, v22, v23",
                    "s_lshl_b32 s6, s4, 7", "s_sub_u32 s6, 4088, s6", "s_lshr_b32 s3, s64, 1", "s_lshl_b32 s3, s3, 6",
                    "s_sub_u32 s6, s6, s3", "v_add_u32 v22, s6, v22"]
    wl = [[f"buffer_load_dwordx4 {a(WR[i],4)}, v26, {R_SH}, s74 offen offset:{16*i}"] for i in range(4)]
    q3 = -(-len(sts) // 3)
    sides = {0: kva, 6: csa, 7: ["s_nop 0"] * 5 + cs, 8: sts[:q3], 9: sts[q3:2*q3], 10: sts[2*q3:]}
    extras = {4: wl, 5: xsl, 8: [cs_store], 11: [st_store]}
    needs = {8: ["xs"]}
    KVI = opt.get("kvi", 9)
    KVB = opt.get("kvb", 12)
    extras[KVI] = extras.get(KVI, []) + kvl
    for i in range(KVB):
        tg = {0: "w1", 1: "w2", 2: "w3"}.get(i)
        vmi = min(63, e.vm - e.tag[tg][1]) if tg else None
        body(i, cs_m=(i < NCS), cs_r=(i < NCS - 1), vm=vmi, side=sides.get(i), side0=2, extra=extras.get(i), needs=needs.get(i, ()))
        if i == 3:
            stamp(e, 12)
    stamp(e, 14)
    WF, KF, VF, TMP = 224, [232 + 2 * i for i in range(7)], 246, 1
    OUT = [248, 250, 252, 254, 24, 26, 18, 20]
    kvc = []
    for p in range(4):
        c_ = []
        for h in range(2):
            for d in range(2):
                c_ += [f"v_accvgpr_read_b32 v{TMP}, a{WR[p]+2*h+d}", f"v_lshlrev_b32 v{WF+4*d+h}, 16, v{TMP}",
                       f"v_and_b32 v{WF+4*d+2+h}, 0xffff0000, v{TMP}"]
        for i in range(7):
            c_ += [f"v_accvgpr_read_b32 v{KF[i]+1}, a{KR[i]+p}", f"v_lshlrev_b32 v{KF[i]}, 16, v{KF[i]+1}",
                   f"v_and_b32 v{KF[i]+1}, 0xffff0000, v{KF[i]+1}"]
        for i in range(4):
            c_ += [f"v_accvgpr_read_b32 v{VF+1}, a{VR[i]+p}"]
            c_ += [f"v_mul_f32 v{KF[i]+h}, v{KF[i]+h}, v{WF+6+h}" for h in range(2)]
            c_ += [f"v_lshlrev_b32 v{VF}, 16, v{VF+1}", f"v_and_b32 v{VF+1}, 0xffff0000, v{VF+1}"]
            for j in (2, 1, 0):
                c_ += [f"v_fmac_f32 v{KF[i]+h}, v{KF[i+3-j]+h}, v{WF+2*j+h}" for h in range(2)]
            c_ += [f"v_mul_f32 v{KF[i]+h}, v{KF[i]+h}, v{VF+h}" for h in range(2)]
        for h in range(2):
            o = OUT[2 * p + h]
            c_ += [f"v_cvt_pk_bf16_f32 v{o}, v{KF[3]+h}, v{KF[2]+h}", f"v_cvt_pk_bf16_f32 v{o+1}, v{KF[1]+h}, v{KF[0]+h}"]
        kvc.append(c_)
    kst = lambda ch: [f"s_mov_b32 s3, {ch*UR_PITCH}", f"buffer_store_dwordx2 {v(OUT[ch],2)}, v22, {R_UR}, s3 offen sc1"]
    for i in range(12, 16):
        p = i - 12
        ex_ = [kst(2 * p - 2), kst(2 * p - 1)] if p else None
        body(i, side=kvc[p], side0=0, extra=ex_, needs=(["kv"] if p == 0 else ()))
    for ch in (6, 7):
        flat([kst(ch)])
    for i in range(4):
        e(f"v_mov_b32 v{WF+i}, 0")
    e(f"buffer_store_dwordx4 {v(WF,4)}, v23, {R_UR}, 0 offen sc1")
    stamp(e, 15)
    BG = 0
    e("s_mov_b32 s82, 0")
    e("s_and_b32 s74, s2, 1")
    e("s_lshl_b32 s74, s74, 7")
    def cpf(tagc, va, dst):
        def gl():
            e.l.append(f"    global_load_dword {dst}, v[{va}:{va+1}], off")
            e.vm += 1
        gl.ins = "global_load_dword"
        def pc():
            e("s_getpc_b64 s[6:7]")
            e.label(f"L_pc{tagc}")
        pc.ins = "s_getpc_b64"
        return [pc, "s_lshr_b32 s3, s2, 3", "s_and_b32 s3, s3, 1", "s_lshl_b32 s3, s3, 2", "s_add_u32 s3, s3, s64",
                "s_lshl_b32 s3, s3, 12", f"v_lshlrev_b32 v{va}, 6, v0", f"v_add_u32 v{va}, s3, v{va}",
                f"v_min_u32 v{va}, L_end-L_pc{tagc}, v{va}", f"v_mov_b32 v{va+1}, s7", f"v_add_co_u32 v{va}, vcc, s6, v{va}",
                "s_nop 1", f"v_addc_co_u32 v{va+1}, vcc, 0, v{va+1}, vcc", gl]
    if opt.get("cpf2", 1):
        for x in cpf("b", 228, "a255"):
            x() if callable(x) else e(x)
    STG = opt.get("stg", 0)
    NB = 11 if STG == 2 else 7
    if STG:
        e("s_mov_b32 s101, 0")
        e("s_lshr_b32 s5, s2, 3")
        e("s_and_b32 s5, s5, 7")
        e("s_mul_i32 s6, s69, 7168")
        e("s_add_u32 s7, s6, 4096")
        e("s_lshl_b32 s84, s69, 12")

    def burst(i):
        def f():
            e("s_sub_u32 s5, s5, 1")
            e(f"s_cbranch_scc0 L_nb{i}")
            for q in range(7):
                e.l.append(f"    buffer_load_dwordx4 a[252:255], v2, {R_WD}, {'s6' if q < 4 else 's7'} offen offset:{1024*(q&3)}")
            if STG == 2:
                for q in range(4):
                    e.l.append(f"    buffer_load_dwordx4 a[252:255], v2, {R_SK}, s84 offen offset:{1024*q}")
            e("s_mov_b32 s101, 3")
            e.label(f"L_nb{i}")
        return f
    def f0sig():
        e("s_cmp_lg_u32 s82, 0")
        e("s_cbranch_scc1 L_f0_nosig")
        signal(e, "f0", f"buffer_atomic_add v1, off, {R_DB}, s74 sc1")
    e.label("L_g1_loop")
    for i in range(16, 20):
        body(i, vm=16, relax=(NB if STG else 0), post=(burst(i) if STG else None), pre=(f0sig if i == opt.get("f0s", 18) else None))
    e("s_add_u32 s82, s82, 1")
    e("s_cmp_lt_u32 s82, 2")
    e("s_cbranch_scc1 L_g1_loop")
    for k in range(3):
        e.tag[f"it{21+k}"] = e.tag[f"it{17+k}"]
    e.vm_done = 0
    stamp(e, 13)

    def poll(loadins, cond, lab):
        e("s_mov_b32 s82, 0")
        e.label(f"L_{lab}_chk")
        cond()
        e(f"s_cbranch_scc1 L_{lab}_ok")
        e("s_sleep 1")
        e.l.append("    " + loadins)
        e.l.append("    s_waitcnt vmcnt(0)")
        e("s_add_u32 s82, s82, 1")
        e(f"s_cmp_lt_u32 s82, {SPIN_LIMIT}")
        e(f"s_cbranch_scc1 L_{lab}_chk")
        e.label(f"L_{lab}_ok")

    f0_load = f"buffer_load_dword v18, v27, {R_DB}, 0 offen sc1"

    def f0_cond():
        e("v_cmp_le_u32 vcc, 0x80, v18")
        e("s_cmp_eq_u64 vcc, exec")

    def I(s_, tag=None):
        f = lambda: e(s_, tag=tag)
        f.ins = s_
        return f

    def urdma(c):
        g = [[f"s_add_u32 m0, s70, {c*CV_CP}", f"s_add_u32 s79, s83, {2*c}", f"buffer_load_dwordx4 v2, {R_UR}, s79 offen sc1 lds"]]
        g += [[f"buffer_load_dwordx4 v2, {R_UR}, s79 offen offset:{1024*q} sc1 lds"] for q in range(1, 4)]
        g[-1].append(lambda: e.mark(f"ur{c}", "v"))
        return g

    wdpf0 = [["s_mul_i32 s74, s69, 7168"]] + [[f"buffer_load_dwordx4 a[252:255], v2, {R_WD}, s74 offen offset:{1024*(q&3)}"] + (["s_add_u32 s74, s74, 4096"] if q == 3 else []) for q in range(7)]
    if opt.get("spf"):
        wdpf0 = [[f"buffer_load_dwordx4 a[252:255], v2, {R_SK}, s84 offen offset:{1024*q}"] for q in range(4)] + wdpf0
    RX = NB if STG else 0
    body(24, side=["v_and_b32 v27, 1, v0", "v_lshlrev_b32 v27, 7, v27"], relax=RX)
    F0L = [[f0_load, lambda: e.mark("f0", "v")]]
    body(25, extra=(F0L if opt.get("f0l", 26) == 25 else None), relax=RX)
    body(26, relax=RX, extra=(F0L if opt.get("f0l", 26) == 26 else None), side=["v_and_b32 v19, 15, v0", "v_lshlrev_b32 v19, 3, v19",
                   "s_lshl_b32 s85, s65, 11", "s_lshl_b32 s3, s64, 9", "s_add_u32 s85, s85, s3",
                   f"s_mul_i32 s83, s69, {UR_PITCH}", "s_lshl_b32 s84, s69, 12"])
    stl = [[f"buffer_load_dwordx2 {v(20+2*j,2)}, v19, {R_MI}, s85 offen offset:{ST_REL+128*j} sc1"] for j in range(4)]
    stl[-1].append(lambda: e.mark("st", "v"))
    body(27, xd=False, extra=(wdpf0 if opt.get("wpf", 0 if STG else 27) == 27 else None))
    body(28, xd=False, aug_w=True, pre=lambda: poll(f0_load, f0_cond, "f0"), extra=stl, needs=["f0"])
    body(29, xd=False, wd=False, extra=urdma(0) + urdma(2) + (wdpf0 if opt.get("wpf") == 29 else []))
    body(30, xd=False, wd=False,
         side=["v_and_b32 v3, 15, v0", "v_lshrrev_b32 v28, 4, v0",
               "v_lshrrev_b32 v4, 2, v3", f"v_mul_u32_u24 v4, {CV_CP}, v4", "v_and_b32 v6, 3, v0",
               "v_lshl_add_u32 v4, v6, 4, v4", "v_add_u32 v4, 4096, v4", f"v_add_u32 v5, {CV_HZ}, v2",
               "v_cmp_gt_u32 vcc, 32, v0", "v_add_u32 v29, s70, v2", "v_mov_b32 v248, 0", "v_mov_b32 v249, 0",
               "v_cndmask_b32 v5, v4, v5, vcc", "v_add_u32 v5, s70, v5", "v_mov_b32 v250, 0", "v_mov_b32 v251, 0"])
    hd = [[f"s_add_u32 m0, s70, {CV_H}", "s_nop 0", f"buffer_load_dwordx4 v2, {R_SK}, s84 offen lds"]]
    hd += [[f"buffer_load_dwordx4 v2, {R_SK}, s84 offen offset:{1024*q} lds"] for q in range(1, 4)]
    hd[-1].append(lambda: e.mark("hk", "v"))
    if STG != 2:
        hd = [[x.replace(" lds", " nt lds") if isinstance(x, str) else x for x in g] for g in hd]
    wdpf = [["s_mul_i32 s74, s69, 7168"]]
    wdpf += [[f"buffer_load_dwordx4 a[252:255], v2, {R_WD}, s74 offen offset:{1024*(q&3)}"] + (["s_add_u32 s74, s74, 4096"] if q == 3 else []) for q in range(7)]
    WPF = opt.get("wpf", 27)
    if WPF == 31:
        hd += wdpf
    bb = ["v_cmp_gt_u32 vcc, 48, v0", "ds_write_b128 v5, v[248:251]"]
    for j in range(4):
        bb += [f"v_lshrrev_b32 v1, 16, v{20+2*j}", f"v_or_b32 v1, v1, v{20+2*j}", "v_cndmask_b32 v1, 0, v1, vcc"]
        bb += [f"v_accvgpr_write_b32 a{FA[0]+56+4*j+r}, v1" for r in range(4)]
    for j in range(4):
        bb += [f"v_mul_f32 v{20+2*j}, 0xbfb8aa3b, v{21+2*j}", f"v_mul_f32 v{21+2*j}, v{21+2*j}, v{21+2*j}",
               f"v_rcp_f32 v{21+2*j}, v{21+2*j}"]
    body(31, xd=False, wd=False, do_b=False, extra=hd, side=bb, side0=4, needs=["st"])
    TB = [224, 236]
    def odr(q):
        b = TB[q & 1]
        return [I(f"ds_read_b128 {v(b,4)}, v29 offset:{1024*q}"),
                I(f"ds_read_b128 {v(b+4,4)}, v29 offset:{2*CV_CP+1024*q}"),
                I(f"ds_read_b32 v{b+8}, v29 offset:{2*CV_CP+1024*q+16}", tag=f"od{q}")]
    def odc(q):
        b = TB[q & 1]
        r = [lambda: e.need(f"od{q}")]
        r += [I(f"v_alignbit_b32 v{b+i}, v{b+4+i}, v{b+i}, 16") for i in range(4)]
        r.append(I(f"ds_write_b128 v29, {v(b,4)} offset:{CV_CP+1024*q}"))
        r += [I(f"v_alignbit_b32 v{b+4+i}, v{b+5+i}, v{b+4+i}, 16") for i in range(4)]
        r.append(I(f"ds_write_b128 v29, {v(b+4,4)} offset:{3*CV_CP+1024*q}"))
        return r
    ha = ["s_lshl_b32 s3, s65, 4", "s_lshl_b32 s6, s64, 2", "s_add_u32 s3, s3, s6",
          f"s_mul_i32 s3, s3, {H_SB}", "s_mul_i32 s6, s66, 3584", "s_add_u32 s3, s3, s6",
          "v_lshrrev_b32 v18, 1, v28", "v_lshlrev_b32 v18, 8, v18", "v_lshl_add_u32 v18, v3, 4, v18",
          "v_add_u32 v18, s3, v18", "v_and_b32 v1, 1, v28", f"v_mul_u32_u24 v19, {H_SB}, v1",
          "v_add_u32 v19, v19, v18", "v_lshl_add_u32 v18, v1, 9, v18"]
    ca = ["v_and_b32 v4, 3, v3", "v_sub_u32 v4, 3, v4", f"v_mul_u32_u24 v16, {CV_CP}, v4",
          "v_and_b32 v4, 12, v3", "v_lshlrev_b32 v4, 1, v4", "v_sub_u32 v16, v16, v4",
          "v_lshl_add_u32 v16, v28, 4, v16", f"s_add_u32 s3, s70, {2*2028 - 3584}", "v_add_u32 v16, s3, v16",
          "v_lshlrev_b32 v17, 5, v3", "v_lshl_add_u32 v17, v28, 4, v17", f"s_add_u32 s3, s70, {CV_H - 32}",
          "v_add_u32 v17, s3, v17"]
    seq = odr(0) + odr(1) + ha + odc(0) + odr(2) + odc(1) + odr(3) + ca[:6] + odc(2) + ca[6:] + odc(3)
    body(32, xd=False, wd=False, rd=False, side=seq, side0=0, needs=["ur2"])
    stamp(e, 3)

    e.c("SwiGLU epilogue")
    HSC = " sc1" if opt.get("hsc", 1) else ""

    pend = []

    def flush_st():
        while pend:
            o_, st_ = pend.pop(0)
            e(f"v_permlane16_swap_b32 v{o_}, v{o_+2}")
            e(f"v_permlane16_swap_b32 v{o_+1}, v{o_+3}")
            e(st_, tag="hst")
            if o_ == 244:
                e(f"s_mov_b32 s78, {2*H_SB}")

    def swiglu(g, u, tmp, out, kc):
        for q in range(2):
            e(f"v_pk_mul_f32 {v(tmp+2*q,2)}, {v(g+2*q,2)}, {v(kc,2)} op_sel_hi:[1,0]")
        flush_st()
        for q in range(4):
            e(f"v_exp_f32 v{tmp+q}, v{tmp+q}")
        for q in range(2):
            e(f"v_pk_mul_f32 {v(g+2*q,2)}, {v(g+2*q,2)}, {v(u+2*q,2)}")
        for q in range(2):
            e(f"v_pk_fma_f32 {v(tmp+2*q,2)}, {v(tmp+2*q,2)}, {v(kc,2)}, {v(kc,2)} op_sel:[0,1,1] op_sel_hi:[1,1,1]")
        for q in (2, 3, 0, 1):
            e(f"v_rcp_f32 v{tmp+q}, v{tmp+q}")
        for q in (1, 0):
            e(f"v_pk_mul_f32 {v(g+2*q,2)}, {v(g+2*q,2)}, {v(tmp+2*q,2)}")
        for q in (1, 0):
            e(f"v_cvt_pk_bf16_f32 v{out+q}, v{g+2*q}, v{g+2*q+1}")

    def cv_reads(fs):
        o = 64 * fs
        r = []
        for i in range(8):
            r.append(f"ds_read_b128 {a(o+32+4*i,4)}, v17 offset:{512*i}")
            r.append(f"ds_read_b64 {a(o+4*i,2)}, v16 offset:{(7-i)*512}")
            r.append(f"ds_read_b64 {a(o+4*i+2,2)}, v16 offset:{(7-i)*512+8}")
        r += ["v_subrev_u32 v16, 64, v16", "v_subrev_u32 v17, 64, v17"]
        return r

    e("s_nop 4")
    n = 0
    for j in range(4):
        if j in (0, 1, 3):
            e(f"s_mov_b32 s{78+(j&1)}, {j*H_SB}")
        for i in range(4):
            o = 8 + 4 * (n & 1)
            if i < 3:
                for k in range(2):
                    t_ = 2 * i + k
                    swiglu(acc(t_, j), acc(7 + t_, j), 4, o + 2 * k, 20 + 2 * j)
                pend.append((o, f"buffer_store_dwordx4 {v(o,4)}, v18, {R_H}, s{78+(j&1)} offen offset:{1024*i}{HSC}"))
                n += 1
            else:
                for r in range(4):
                    e(f"v_accvgpr_read_b32 v{248+r}, a{AC6+4*j+r}")
                    e(f"v_accvgpr_read_b32 v{252+r}, a{AC6+16+4*j+r}")
                flush_st()
                swiglu(248, 252, 4, 244 + 2 * (j & 1), 20 + 2 * j)
                if j & 1:
                    pend.append((244, f"buffer_store_dwordx4 v[244:247], v19, {R_H}, s78 offen offset:3072{HSC}"))
        if j == 3:
            e("s_nop 1")
            flush_st()
        if j == opt.get("cvj", 3):
            e.need("hk")
            for x in cv_reads(0):
                e(x)
    if WPF == 33:
        flat(wdpf)
    stamp(e, 4)

    e.c("long conv")
    CA = 32

    def cv_mfmas(fs, first):
        o = 64 * fs
        prs = [(p, w) for p in range(8) for w in (range(8 - p) if p % 2 == 0 else range(7 - p, -1, -1))]
        return [f"{MF} {v(CA+4*(p+w),4)}, {a(o+4*p,4)}, {a(o+32+4*w,4)}, {'0' if (first and p == 0) else v(CA+4*(p+w),4)}"
                for p, w in prs]

    def cv_body(r, rd=True, extra=None, early=None):
        fs = r & 1
        e.wait(lg=0)
        ex_ = list(early or []) + [x for g in (extra or []) for x in g]
        mem_ = ex_ if any(_ins(x) and " lds" in _ins(x) for x in ex_) else []
        sd = [] if mem_ or not ex_ else [(ex_, 0)]
        rl = []
        if rd:
            cr = cv_reads(1 - fs)
            rl = [(x, False) for x in cr[:-2]]
            sd.append((cr[-2:], 32))
        merge(e, cv_mfmas(fs, r == 0), pack(36, mem=mem_, reads=rl, sides=sd, first=2, rlim=30, tail=4))

    G_H, G_WD, G_A, G_B = 192, 194, 196, 200
    G2ROT = opt.get("g2rot", 0)
    W2B = 81920
    G_D = 210
    ZL = 65536
    g2s = [["s_lshr_b32 s72, s64, 1", "s_and_b32 s73, s64, 1", "s_and_b32 s4, s2, 1"],
           ["v_bfe_u32 v6, v0, 1, 3", "v_xor_b32 v6, v6, v28"],
           ["s_lshl_b32 s78, s64, 3", "v_add_u32 v7, s78, v28", "v_and_b32 v4, 1, v0"],
           [f"v_lshlrev_b32 v{G_WD}, 11, v7", f"v_lshl_add_u32 v{G_WD}, v4, 4, v{G_WD}"],
           ["s_lshl_b32 s78, s68, 8", f"v_add_u32 v{G_WD}, s78, v{G_WD}", "v_xor_b32 v7, 4, v6"],
           [f"v_lshl_add_u32 v{G_WD+1}, v7, 5, v{G_WD}", f"v_lshl_add_u32 v{G_WD}, v6, 5, v{G_WD}"],
           [f"v_add_u32 v{G_WD+1}, 7168, v{G_WD+1}", "s_lshl_b32 s74, s64, 11", f"s_add_u32 s71, s74, {W2B}"],
           [f"s_mul_i32 s75, s4, {56*1024}", "s_lshl_b32 s76, s75, 6"],
           ["s_lshl_b32 s78, s67, 3", "s_lshl_b32 s79, s64, 1", "s_add_u32 s78, s78, s79"],
           [f"s_mul_i32 s78, s78, {H_SB}", f"v_add_u32 v{G_H}, s78, v2", f"v_add_u32 v{G_H+1}, {H_SB-1024}, v{G_H}"],
           ["v_bfe_u32 v6, v0, 2, 2", "v_and_b32 v7, 3, v0"],
           ["v_lshl_add_u32 v4, v28, 2, v6", "v_and_b32 v5, 7, v4"],
           ["v_lshlrev_b32 v4, 8, v4", "v_lshl_add_u32 v4, v7, 3, v4"],
           [f"v_add_u32 v4, {W2B}, v4", "s_lshl_b32 s78, s73, 2", "v_xor_b32 v5, s78, v5"]]
    for dt in range(4):
        g2s.append([f"v_xor_b32 v7, {dt}, v5", f"v_lshl_add_u32 v{G_A+dt}, v7, 5, v4"])
    g2s += [["s_lshl_b32 s78, s72, 12", "s_lshl_b32 s79, s4, 11", "s_add_u32 s78, s78, s79"],
            ["v_lshrrev_b32 v4, 1, v28", "v_lshlrev_b32 v4, 8, v4"],
            ["v_lshl_add_u32 v4, v3, 4, v4", "v_and_b32 v5, 1, v28"],
            ["v_lshl_add_u32 v4, v5, 3, v4", f"v_add_u32 v{G_B}, s78, v4"],
            [f"v_xor_b32 v{G_B+1}, 0x800, v{G_B}"],
            ["v_lshlrev_b32 v23, 2, v3", "s_lshr_b32 s77, s67, 1", "s_lshl_b32 s77, s77, 7"],
            ["s_lshl_b32 s78, s4, 6", "s_add_u32 s77, s77, s78", f"s_add_u32 s77, s77, {HF_REL}"],
            [f"s_add_u32 s56, s88, 0x{PX_OFF:x}", "s_addc_u32 s57, s89, 0", f"s_mov_b32 s58, 0x{PX_SIZE:x}"]]
    R_PX = R_V

    def m0set(base, off):
        if isinstance(off, int):
            return [f"s_add_u32 m0, {base}, {off}", "s_nop 0"]
        return [f"s_add_u32 s3, {base}, s66", f"s_add_u32 m0, s3, {off[1]}", "s_nop 0"] if off[1] else [f"s_add_u32 m0, {base}, s66", "s_nop 0"]

    def wd2(off):
        return [m0set("s71", off) + [f"buffer_load_dwordx4 v{G_WD}, {R_WD}, s76 offen lds"],
                [f"buffer_load_dwordx4 v{G_WD+1}, {R_WD}, s76 offen offset:1024 lds", "s_add_u32 s76, s76, 0x10000"]]

    def h2(off):
        return [m0set("s74", off) + [f"buffer_load_dwordx4 v{G_H}, {R_H}, s75 offen sc1 lds"],
                [f"buffer_load_dwordx4 v{G_H+1}, {R_H}, s75 offen offset:1024 sc1 lds", "s_add_u32 s75, s75, 1024"]]

    sloc = lambda st_: ((st_ + 2) % 10) * 8192

    fl_load = f"buffer_load_dword v22, v23, {R_MI}, s77 offen sc1"

    def flag_cond():
        e("v_cmp_ne_u32 vcc, 0, v22")
        e("s_cmp_eq_u64 vcc, exec")

    R_SIG = opt.get("rsig", 3)
    wdp = sum([wd2(sloc(s_)) for s_ in range(8)], [])
    ex_by_r = {0: g2s[:10], 1: g2s[10:20], 2: g2s[20:], 4: wdp[:8], 5: wdp[8:]}
    if opt.get("cpf3", 1):
        c3_ = cpf("c", 204, "a255")
        ex_by_r[3] = [c3_[k:k+2] for k in range(0, len(c3_), 2)]
    if opt.get("wdearly"):
        ex_by_r = {0: g2s[:10], 1: wdp[:8], 2: wdp[8:], 3: g2s[10:20], 4: g2s[20:]}
    UZ = 224
    pre_z = ["v_lshlrev_b32 v12, 5, v3", "v_lshl_add_u32 v12, v28, 3, v12", f"s_add_u32 s78, s70, {2*2044 - 3584}",
             "v_sub_u32 v13, s78, v12"] + [f"ds_read_b64 {v(UZ+2*i,2)}, v13 offset:{(7-i)*512}" for i in range(8)]
    for r in range(7):
        if r == R_SIG:
            e.need("hst")
            e("s_barrier")
            signal(e, "f1", f"buffer_store_dword v1, off, {R_MI}, s80 sc1")
        cv_body(r, extra=ex_by_r.get(r), early=([I(fl_load, tag="f1")] if r == 6 else None))
    cv_body(7, rd=False, extra=[[x] for x in pre_z])
    e.wait(lg=0)
    e.need("f1")
    poll(fl_load, flag_cond, "f1")
    e("s_barrier")
    stamp(e, 6)
    for s_ in range(8):
        flat(h2(sloc(s_)))
        e.mark(f"h{s_}", "v")
    e("s_and_b32 s78, s69, 1")
    e("s_lshl_b32 s78, s78, 4")
    e("s_lshr_b32 s90, s90, s78")
    e("s_lshl_b32 s90, s90, 16")
    e("v_lshlrev_b32 v12, 5, v3")
    e("v_lshrrev_b32 v13, 1, v28")
    e("v_lshl_add_u32 v12, v13, 4, v12")
    e("v_and_b32 v13, 1, v28")
    e("v_lshl_add_u32 v12, v13, 9, v12")
    for i in range(8):
        u0, u1 = UZ + 2 * i, UZ + 2 * i + 1
        y = CA + 4 * i
        e(f"v_and_b32 v4, 0xffff0000, v{u1}")
        e(f"v_lshlrev_b32 v5, 16, v{u1}")
        e(f"v_and_b32 v6, 0xffff0000, v{u0}")
        e(f"v_lshlrev_b32 v7, 16, v{u0}")
        for q in range(4):
            e(f"v_fmac_f32 v{y+q}, s90, v{4+q}")
        e(f"v_cvt_pk_bf16_f32 v{u0}, v{y}, v{y+1}")
        e(f"v_cvt_pk_bf16_f32 v{u1}, v{y+2}, v{y+3}")
    e("s_nop 1")
    for k in range(4):
        b = UZ + 4 * k
        e(f"v_permlane16_swap_b32 v{b}, v{b+2}")
        e(f"v_permlane16_swap_b32 v{b+1}, v{b+3}")
        e(f"buffer_store_dwordx4 {v(b,4)}, v12, {R_ZT}, s84 offen offset:{1024*k} sc1", tag="zst")
    stamp(e, 7)

    e.c("GEMM2")
    A2 = 64

    def acc2(dt, jj):
        return A2 + (jj * 4 + dt) * 4

    NS = 56

    def rd2(step):
        so = (step & 1) * 8192
        o = 32 * (step & (7 if step >= 48 else 3))
        d = G_D + 6 * ((step >> 1) & 1)
        al = [f"ds_read_b64_tr_b16 {a(o+4*dt+2*h,2)}, v{d+dt} offset:{so+h*4096}" for dt in range(4) for h in range(2)]
        bl = [f"ds_read_b64 {a(o+16+4*jj+2*h,2)}, v{d+4+(jj>>1)} offset:{so+(jj&1)*1024+h*512}" for jj in range(4) for h in range(2)]
        return bl[:2] + al + bl[2:]

    def adv(r_):
        return [f"s_add_u32 {r_}, {r_}, 16384", f"s_cmp_eq_u32 {r_}, {W2B}", f"s_cselect_b32 {r_}, 0, {r_}"]

    def radr(pair):
        d = G_D + 6 * (pair & 1)
        return [f"v_add_u32 v{d+4}, s7, v{G_B}"] + [f"v_add_u32 v{d+dt}, s7, v{G_A+dt}" for dt in range(4)] + [f"v_add_u32 v{d+5}, s7, v{G_B+1}"]

    fo = lambda step: 32 * (step & (7 if step >= 48 else 3))

    def mf2(step, jjs=(0, 1, 2, 3)):
        o = fo(step)
        if opt.get("m2order", 1):
            od = [(dt, jj) for dt in range(4) for jj in (jjs if dt % 2 == 0 else jjs[::-1])]
        else:
            od = [(dt, jj) for jj in jjs for dt in range(4)]
        return [f"{MF} {v(acc2(dt,jj),4)}, {a(o+4*dt,4)}, {a(o+16+4*jj,4)}, {'0' if step == 0 else v(acc2(dt,jj),4)}"
                for dt, jj in od]

    def it2(I_, vm=None, extra=None, side=None, pre=None, needs=(), mf=None):
        if vm is None:
            vm = min(63, e.vm - max(e.tag[t_][1] for t_ in needs))
        e.wait(vm=vm, lg=(15 if mf is None else 0))
        e("s_barrier")
        if pre:
            pre()
        custom = mf is not None
        mf = mf or mf2(2 * I_) + mf2(2 * I_ + 1)
        n = len(mf)
        g = []
        if 2 * I_ + 8 < NS:
            for hf in range(2):
                g += h2(("d", hf * 8192)) + wd2(("d", hf * 8192))
            g.append([lambda: e.mark(f"g{I_}", "v")])
            g.append(adv("s66"))
        g += (extra or [])
        rl = [(x, False) for x in rd2(2 * I_ + 2) + rd2(2 * I_ + 3)]
        sd = ([(adv("s7") + radr(I_ + 2), 0)] if 2 * I_ + 4 < NS else []) + ([(side, 0)] if side else [])
        slots = pack(n, mem=[x for g_ in g for x in g_], reads=rl, sides=sd, first=1, rlim=n, tail=4)
        lg0 = e.lg
        if not custom:
            slots.setdefault(n // 2 - 1, []).append(lambda: e.wait(lg=min(15, e.lg - lg0)))
        merge(e, mf, slots)

    XR, SR, ZR, PR = 32, 48, 224, 128
    fa = ["v_and_b32 v6, 1, v28", "v_lshrrev_b32 v7, 1, v28", "v_lshl_or_b32 v6, v6, 1, v7",
          "s_lshl_b32 s85, s67, 3", "s_lshl_b32 s78, s72, 2", "s_add_u32 s85, s85, s78", "s_lshl_b32 s78, s4, 1",
          "s_add_u32 s85, s85, s78",
          "s_lshl_b32 s87, s68, 1", "s_add_u32 s87, s87, s73",
          "s_lshl_b32 s78, s85, 15", "s_lshl_b32 s79, s87, 7", "s_add_u32 s78, s78, s79",
          "v_lshlrev_b32 v24, 11, v3", "v_lshl_add_u32 v24, v6, 4, v24", "v_add_u32 v24, s78, v24",
          "v_add_u32 v25, 0x8000, v24", "v_lshlrev_b32 v26, 3, v3", "s_lshl_b32 s86, s85, 7",
          "s_lshl_b32 s77, s87, 6", f"s_add_u32 s77, s77, {ZF_REL}",
          "v_lshrrev_b32 v21, 2, v0", "v_lshlrev_b32 v21, 12, v21", "v_and_b32 v27, 3, v0",
          "v_lshl_add_u32 v21, v27, 4, v21", "s_lshl_b32 s78, s87, 18", "s_lshl_b32 s79, s85, 5",
          "s_add_u32 s78, s78, s79", "v_add_u32 v21, s78, v21",
          "s_lshl_b32 s5, s64, 12", f"s_add_u32 s5, s5, {ZL}",
          "v_bfe_u32 v7, v0, 2, 2", "v_lshl_add_u32 v7, v6, 3, v7", "v_lshlrev_b32 v7, 6, v7",
          "v_lshl_add_u32 v7, v27, 3, v7", "v_add_u32 v7, s5, v7",
          "s_lshl_b32 s83, s69, 13", "s_xor_b32 s84, s83, 0x8000", "v_add_u32 v13, 0x1000, v2",
          "s_lshl_b32 s78, s69, 7", f"s_add_u32 s80, s78, {PF_REL}", "s_xor_b32 s78, s78, 0x200", f"s_add_u32 s91, s78, {PF_REL}"]
    e("s_movk_i32 s7, 16384")
    e("s_mov_b32 s66, 0")
    for x in radr(0) + adv("s7") + radr(1) + fa:
        e(x)
    e.need("h1")
    e("s_barrier")
    for x in rd2(0) + rd2(1):
        e(x)
    it2(0, needs=["h3"])
    it2(1, needs=["h5"])
    it2(2, needs=["h7"])
    it2(3, needs=["g0", "zst"], pre=lambda: signal(e, "f2", f"buffer_store_dword v1, off, {R_MI}, s81 sc1"))
    stamp(e, 1)
    e("s_mov_b32 s82, 0")
    e.label("L_g2_loop")
    for I_ in (4, 5):
        it2(I_, vm=16)
    e("s_add_u32 s82, s82, 1")
    e("s_cmp_lt_u32 s82, 10")
    e("s_cbranch_scc1 L_g2_loop")
    for k in range(3):
        e.tag[f"g{21+k}"] = ("v", e.vm - 8 * (2 - k))
    e.vm_done = 0
    stamp(e, 5)
    ex = [[fl_load, lambda: e.mark("zf", "v")]]
    for e2 in range(2):
        for pr in range(2):
            ex.append([f"buffer_load_dwordx4 {v(XR+4*(2*e2+pr),4)}, v{24+e2}, {R_X}, 0 offen offset:{64*pr}"])
        ex.append([f"buffer_load_dwordx2 {v(SR+2*e2,2)}, v26, {R_MI}, s86 offen offset:{ST_REL+128*e2} sc1"])
    zd = [["s_mov_b32 m0, s5", f"buffer_load_dwordx4 v21, {R_ZT}, 0 offen sc1 lds"]]
    for i in range(1, 4):
        zd.append([f"s_mov_b32 s78, {i*(65536-1024)}", f"buffer_load_dwordx4 v21, {R_ZT}, s78 offen offset:{1024*i} sc1 lds"])
    if opt.get("tail8", 1):
        it2(24, needs=["g21"], extra=ex, mf=mf2(48, (2, 3)) + mf2(49, (2, 3)) + mf2(48, (0,)))
        it2(25, needs=["g22"], mf=mf2(50, (2, 3)) + mf2(51, (2, 3)) + mf2(48, (1,)))
        it2(26, needs=["g23", "zf"], pre=lambda: poll(fl_load, flag_cond, "f2"), extra=zd,
            mf=mf2(52, (2, 3)) + mf2(53, (2, 3)) + mf2(49, (0, 1)))
        own = sum([mf2(s_, (0, 1)) for s_ in range(50, 56)], [])
    else:
        it2(24, needs=["g21"], extra=ex)
        it2(25, needs=["g22"])
        it2(26, needs=["g23", "zf"], pre=lambda: poll(fl_load, flag_cond, "f2"), extra=zd,
            mf=mf2(52, (2, 3)) + mf2(53, (2, 3)) + mf2(52, (0, 1)))
        own = mf2(53, (0, 1)) + mf2(54, (0, 1)) + mf2(55, (0, 1))
    e.wait(lg=0)
    for x in mf2(54, (2, 3)) + mf2(55, (2, 3)):
        e(x)
    stamp(e, 8)
    BFX = opt.get("bfx", 1)
    O0 = acc2(0, 2)
    slots = {0: ["s_nop 3"]}
    if BFX:
        for q in range(16):
            slots.setdefault(4 + q // 2, []).append(f"v_cvt_pk_bf16_f32 v{PR+q}, v{O0+2*q}, v{O0+2*q+1}")
        for q in range(4):
            slots.setdefault(6 + 2 * q, []).append(f"buffer_store_dwordx4 {v(PR+4*q,4)}, v2, {R_PX}, s83 offen offset:{1024*q} sc1")
    else:
        for q in range(8):
            slots[5 + q] = [f"buffer_store_dwordx4 {v(O0+4*q,4)}, v{2 if q < 4 else 13}, {R_PX}, s83 offen offset:{1024*(q&3)} sc1"]
    merge(e, own, slots)
    e.wait(vm=0)
    e("v_mov_b32 v1, 1")
    e("s_mov_b64 exec, 1")
    e(f"buffer_store_dword v1, off, {R_MI}, s80 sc1")
    e("s_mov_b64 exec, -1")
    pf_load = f"buffer_load_dword v22, off, {R_MI}, s91 sc1"
    for e2 in range(2):
        for pr in range(2):
            for hh in range(2):
                e(f"ds_read_b64_tr_b16 {v(ZR+4*(2*e2+pr)+2*hh,2)}, v7 offset:{(32*pr+4*hh)*64 + 32*e2}")
    e.wait(lg=0)
    PB = 160
    for e2 in range(2):
        st = SR + 2 * e2
        for pr in range(2):
            i = 2 * e2 + pr
            if i == opt.get("pfi", 1):
                e(pf_load)
            for q in range(4):
                d_ = PB + 8 * i + 2 * q
                unpack(e, d_, XR + 4 * i + q)
                unpack(e, 56, ZR + 4 * i + q)
                e(f"v_pk_add_f32 v[54:55], {v(d_,2)}, {v(st,2)} op_sel_hi:[1,0]")
                e(f"v_pk_mul_f32 v[54:55], v[54:55], {v(st,2)} op_sel:[0,1] op_sel_hi:[1,1]")
                e(f"v_pk_fma_f32 {v(d_,2)}, v[54:55], v[56:57], {v(d_,2)}")
    e.wait(vm=0)
    poll(pf_load, flag_cond, "px")
    stamp(e, 9)
    for q in range(4 if BFX else 8):
        e(f"buffer_load_dwordx4 {v(PR+4*q,4)}, v{2 if q < 4 else 13}, {R_PX}, s84 offen offset:{1024*(q&3)} sc1", tag=f"p{q}")
    for e2 in range(2):
        for pr in range(2):
            i = 2 * e2 + pr
            A0 = acc2(2 * pr, e2)
            if BFX:
                e.need(f"p{i}")
                for q in range(4):
                    unpack(e, 52 + 2 * q, PR + 4 * i + q)
                for q in range(4):
                    e(f"v_pk_add_f32 {v(A0+2*q,2)}, {v(A0+2*q,2)}, {v(52+2*q,2)}")
            else:
                e.need(f"p{2*i+1}")
                for q in range(4):
                    e(f"v_pk_add_f32 {v(A0+2*q,2)}, {v(A0+2*q,2)}, {v(PR+8*i+2*q,2)}")
            e("s_nop 1")
            for r in range(4):
                e(f"v_permlane16_swap_b32 v{A0+r}, v{A0+4+r}")
            for q in range(4):
                e(f"v_pk_add_f32 {v(A0+2*q,2)}, {v(A0+2*q,2)}, {v(PB+8*i+2*q,2)}")
            for q in range(4):
                e(f"v_cvt_pk_bf16_f32 v{96+4*i+q}, v{A0+2*q}, v{A0+2*q+1}")
            e(f"buffer_store_dwordx4 {v(96+4*i,4)}, v{24+e2}, {R_OUT}, 0 offen offset:{64*pr} sc1")
    stamp(e, 10)
    if STAMPS or DST:
        e.wait(vm=0)
    stamp(e, 11)
    e.label("L_end")
    name = NAME + "_kernel"
    return f""".globl {name}
.p2align 8
.type {name},@function
{name}:
{e.text()}    s_endpgm
.section .rodata,"a"
.p2align 6
.amdhsa_kernel {name}
  .amdhsa_next_free_vgpr 512
  .amdhsa_next_free_sgpr 102
  .amdhsa_accum_offset 256
  .amdhsa_group_segment_fixed_size 0
  .amdhsa_kernarg_size 104
  .amdhsa_user_sgpr_count 2
  .amdhsa_user_sgpr_kernarg_segment_ptr 1
  .amdhsa_system_sgpr_workgroup_id_x 1
  .amdhsa_float_denorm_mode_32 3
.end_amdhsa_kernel
"""


def main(opt=None):
    opt = opt or {}
    ref = open("cdna_kernels/" + NAME + ".s.ref").read().split("\n")
    hdr = [l for l in ref if l.startswith(";") and "@launch" not in l]
    out = "\n".join(hdr) + "\n"
    out += f"; @launch grid=(256,1,1) block=(256,1,1) lds={LDS_SIZE}\n"
    out += '.amdgcn_target "amdgcn-amd-amdhsa--gfx950"\n.text\n'
    out += gen(opt)
    return out


if __name__ == "__main__":
    args = [x for x in sys.argv[1:] if not x.startswith("-")]
    opt = {}
    for x in sys.argv[1:]:
        if x == "-stamps":
            STAMPS = True
        elif x == "-light":
            STAMPS = LIGHT = True
        elif x.startswith("-dst"):
            DST = int(x.split("=")[1])
        elif x.startswith("-"):
            k, _, val = x[1:].partition("=")
            opt[k] = int(val) if val else 1
    path = args[0] if args else "cdna_kernels/" + NAME + ".s"
    open(path, "w").write(main(opt))
    print("wrote", path)
```

```python
import sys

NAME = "parallel_sum__ssm_conv_h3__swiglu_ffn__prompt"
S, D, F = 2048, 1024, 3584
KA_Q, KA_K, KA_V, KA_SHK, KA_SSMK, KA_SSMD, KA_BX, KA_WG, KA_WU, KA_WD, KA_OUT, KA_DBG, KA_WS = [8 * i for i in range(13)]

MISC_OFF = 0
ST_REL = 0
HF_REL = 16384
ZF_REL = 16384 + 1024
KF_REL = 16384 + 2048
CS_REL = 32768
PF_REL = CS_REL + 32 * 12288
PX_REL = 1 << 20
MISC_SIZE = PX_REL + (4 << 20)
UR_OFF = 6 << 20
UR_PITCH = 4096 + 128
UR_SIZE = D * UR_PITCH
ZT_OFF = 11 << 20
ZT_SIZE = S * D * 2
H_OFF = 16 << 20
H_SIZE = S * F * 2
H_SB = 112 * 1024
STAMP_OFF = 64 << 20

LDS_SIZE = 163840
XWREG = 24576
WB = 4 * XWREG
CV_CP = 4160
CV_HZ = 4 * CV_CP
CV_H = CV_HZ + 512
WSTEP = 32 * 7168
SPIN_LIMIT = 200000

STAMPS = False


class E:
    def __init__(self):
        self.l = []
        self.vm = 0
        self.vm_done = 0
        self.lg = 0
        self.lg_done = 0
        self.tag = {}

    def __call__(self, s, tag=None):
        for ln in s.strip("\n").split("\n"):
            ln = ln.strip()
            if ln.startswith("buffer_"):
                if ln.endswith(" lds") and self.l and " m0," in self.l[-1]:
                    self.l.append("    s_nop 0")
                self.vm += 1
                if tag:
                    self.tag[tag] = ("v", self.vm)
            elif ln.startswith("ds_"):
                self.lg += 1
                if tag:
                    self.tag[tag] = ("l", self.lg)
            self.l.append("    " + ln)

    def mark(self, tag, kind):
        self.tag[tag] = (kind, self.vm if kind == "v" else self.lg)

    def need(self, *tags):
        nv = max([self.tag[t][1] for t in tags if self.tag[t][0] == "v"] + [0])
        nl = max([self.tag[t][1] for t in tags if self.tag[t][0] == "l"] + [0])
        w = []
        if nv > self.vm_done:
            n = min(self.vm - nv, 63)
            w.append(f"vmcnt({n})")
            self.vm_done = self.vm - n
        if nl > self.lg_done:
            n = min(self.lg - nl, 15)
            w.append(f"lgkmcnt({n})")
            self.lg_done = self.lg - n
        if w:
            self.l.append("    s_waitcnt " + " ".join(w))

    def wait(self, vm=None, lg=None):
        w = []
        if vm is not None:
            w.append(f"vmcnt({vm})")
            self.vm_done = max(self.vm_done, self.vm - vm)
        if lg is not None:
            w.append(f"lgkmcnt({lg})")
            self.lg_done = max(self.lg_done, self.lg - lg)
        self.l.append("    s_waitcnt " + " ".join(w))

    def label(self, s):
        self.l.append(s + ":")

    def c(self, s):
        self.l.append("    ; " + s)

    def text(self):
        return "\n".join(self.l) + "\n"


def v(i, n=1):
    return f"v{i}" if n == 1 else f"v[{i}:{i+n-1}]"


def a(i, n=1):
    return f"a{i}" if n == 1 else f"a[{i}:{i+n-1}]"


DST = False
LIGHT = False
DMAP = {2: 2, 12: 3, 14: 4, 15: 5, 13: 6, 3: 7, 4: 8, 5: 9, 6: 10, 7: 11, 8: 12, 9: 13, 10: 14, 11: 15}


def stamp(e, i):
    if DST and i in DMAP:
        e("s_memrealtime s[96:97]")
        e.wait(lg=0)
        e("s_sub_u32 s96, s96, s98")
        e(f"v_writelane_b32 v31, s96, {DMAP[i]}")
        if i == 11:
            e(f"s_cmp_lg_u32 s69, {DST}")
            e("s_cbranch_scc1 L_end")
            e("v_lshlrev_b32 v30, 2, v0")
            e("s_mov_b64 exec, 0xfffc")
            e("buffer_store_dword v31, v30, s[40:43], 0 offen")
        return
    if not STAMPS or (LIGHT and i not in (3, 7, 11)):
        return
    e("s_memrealtime s[96:97]")
    e("s_memtime s[98:99]")
    e.wait(lg=0)
    e("v_mov_b32 v30, s96")
    e("v_mov_b32 v31, s98")
    e(f"buffer_store_dwordx2 v[30:31], off, s[92:95], s100 offset:{8*i}")


def unpack(e, dst, src):
    e(f"v_lshlrev_b32 v{dst}, 16, v{src}")
    e(f"v_and_b32 v{dst+1}, 0xffff0000, v{src}")


def allreduce32(e, r, t):
    e("s_nop 1")
    for m in ("quad_perm:[1,0,3,2]", "quad_perm:[2,3,0,1]", "row_half_mirror", "row_mirror"):
        e(f"v_add_f32_dpp v{r}, v{r}, v{r} {m} row_mask:0xf bank_mask:0xf")
        e("s_nop 1")
    e(f"v_mov_b32 v{t}, v{r}")
    e("s_nop 1")
    e(f"v_permlane16_swap_b32 v{r}, v{t}")
    e("s_nop 1")
    e(f"v_add_f32 v{r}, v{r}, v{t}")


def round_bf16(e, r):
    e(f"v_cvt_pk_bf16_f32 v{r}, v{r}, v{r}")
    e(f"v_lshlrev_b32 v{r}, 16, v{r}")


R_X, R_WG, R_WU, R_H, R_UR, R_SK, R_ZT, R_MI, R_DB, R_WD, R_OUT, R_K, R_V, R_SH = [f"s[{8+4*i}:{11+4*i}]" for i in range(14)]
MF = "v_mfma_f32_16x16x32_bf16"


def merge(e, mf, slots):
    def do(x):
        if callable(x):
            x()
        else:
            e(x)
    for i, m in enumerate(mf):
        e(m)
        for x in slots.get(i, []):
            do(x)
    for k in sorted(slots):
        if k >= len(mf):
            for x in slots[k]:
                do(x)


def _ins(x):
    return x if isinstance(x, str) else getattr(x, "ins", None)


def _cost(x):
    s_ = _ins(x)
    if s_ is None:
        return 0
    if s_.startswith("ds_"):
        return 8
    if s_.startswith("s_nop"):
        return 4 * (int(s_.split()[1]) + 1)
    if s_.split()[0] in ("v_exp_f32", "v_rcp_f32", "v_sqrt_f32"):
        return 8
    return 4


def _isv(x):
    s_ = _ins(x)
    return s_ is not None and s_.startswith("v_")


def _ismem(x):
    s_ = _ins(x)
    return s_ is not None and (s_.startswith("buffer_") or s_.startswith("global_"))


def units(seq, dropnop=False):
    out = []
    for x in seq:
        s_ = _ins(x)
        if dropnop and s_ == "s_nop 0":
            continue
        if out and (s_ is None or s_.split()[0] in ("s_cselect_b32", "s_cselect_b64", "s_addc_u32")):
            out[-1].append(x)
        else:
            out.append([x])
    return out


def pack(n, mem=(), reads=(), sides=(), head=(), first=1, rlim=None, tail=8, minsp=4):
    load = [0] * (n + 1)
    vload = [0] * (n + 1)
    nv = [[] for _ in range(n + 1)]
    vv = [[] for _ in range(n + 1)]
    load[n - 1] += tail

    def put(g, u, front=False):
        g = min(g, n)
        c = sum(_cost(x) for x in u)
        load[g] += c
        if any(_isv(x) for x in u):
            vload[g] += c
        if front:
            nv[g] = list(u) + nv[g]
        else:
            vv[g].extend(u)
    pos = -1
    for u in units(head):
        pos += 1
        put(pos, u)
    hpos = pos
    mu = units(mem, dropnop=True)
    nm = sum(1 for u in mu if any(_ismem(x) for x in u))
    sp = max(1.0, min(7.0, (n - (0 if n <= 32 else first + 1.0)) / max(1, nm)))
    pos = hpos
    k = 0
    lastm = -99
    for idx, u in enumerate(mu):
        if any(_ismem(x) for x in u):
            pos = max(pos + 1, int(first + k * sp), lastm + min(minsp, int(sp)))
            lastm = pos
            k += 1
        else:
            nxt = next((j for j in range(idx, len(mu)) if any(_ismem(x) for x in mu[j])), None)
            want = int(first + k * sp) - (nxt - idx) if nxt is not None else pos + 1
            pos = max(pos + 1, want)
        put(pos, u)
    rlim = n if rlim is None else rlim
    pos = 0
    nr = len(reads)
    for k, (x, after_head) in enumerate(reads):
        if after_head:
            pos = max(pos, hpos + 1)
        remaining = nr - k
        while pos < rlim and load[pos] + 8 > 12 and sum(1 for g in range(pos + 1, rlim) if load[g] + 8 <= 12) >= remaining:
            pos += 1
        g = min(pos, rlim - 1)
        load[g] += 8
        nv[g].append(x)
        if load[g] + 8 > 12 and sum(1 for q in range(g + 1, rlim)) >= remaining - 1:
            pos = g + 1
    for side, s0 in sides:
        su = units(side)
        prev = s0
        for k, u in enumerate(su):
            c = sum(_cost(x) for x in u)
            isv = any(_isv(x) for x in u)
            tgt = max(prev, s0 + (k * (n - s0)) // len(su) - 2)
            hi = min(n - 1, s0 + (k * (n - s0)) // len(su) + 3)
            cand = [g for g in range(tgt, hi + 1) if load[g] + c <= 12 and (not isv or vload[g] + c <= 8)]
            g = cand[0] if cand else min(range(tgt, hi + 1), key=lambda q: (max(load[q] + c - 12, (vload[q] + c - 8) if isv else -99) - max(load[q] - 12, vload[q] - 8, 0), q))
            put(g, u)
            prev = g
    return {g: nv[g] + vv[g] for g in range(n + 1) if nv[g] or vv[g]}


def signal(e, lab, ins):
    e("s_cmp_lg_u32 s64, 0")
    e(f"s_cbranch_scc1 L_{lab}_nosig")
    e("v_mov_b32 v1, 1")
    e("s_mov_b64 exec, 1")
    e.l.append("    " + ins)
    e("s_mov_b64 exec, -1")
    e.label(f"L_{lab}_nosig")


def gen(opt):
    e = E()
    ACC = 32

    AC6 = 180

    def acc(ai, j):
        t, m = ai % 7, ai // 7
        assert t < 6
        return ACC + ((m * 6 + t) * 4 + j) * 4

    def accr(ai, j):
        if ai % 7 == 6:
            return a(AC6 + (ai // 7) * 16 + 4 * j, 4)
        return v(acc(ai, j), 4)
    FA = [0, 72]
    CSF, CSS, CSA = 144, 160, 176

    e("s_cmp_ge_u32 s2, 256")
    e("s_cbranch_scc1 L_end")
    if STAMPS:
        e("s_memrealtime s[96:97]")
        e("s_memtime s[98:99]")
    if opt.get("x_thr"):
        e("s_memrealtime s[98:99]")
    if DST:
        e("s_memrealtime s[98:99]")
        e("v_mov_b32 v31, 0")
    for reg, off in ((8, KA_Q), (12, KA_WG), (16, KA_WU), (88, KA_WS), (28, KA_SSMK), (40, KA_DBG), (44, KA_WD),
                     (48, KA_OUT), (52, KA_K), (56, KA_V), (60, KA_SHK), (86, KA_SSMD)):
        e(f"s_load_dwordx2 s[{reg}:{reg+1}], s[0:1], {off}")
    if opt.get("cpf", 1):
        e("s_getpc_b64 s[82:83]")
        e.label("L_pc")
        e("s_lshr_b32 s78, s2, 3")
        e("s_and_b32 s78, s78, 3")
        e("s_lshl_b32 s78, s78, 14")
        e("v_lshlrev_b32 v50, 6, v0")
        e("v_add_u32 v50, s78, v50")
        e("v_min_u32 v50, L_end-L_pc, v50")
        e("v_mov_b32 v51, s83")
        e("v_add_co_u32 v50, vcc, s82, v50")
        e("s_nop 1")
        e("v_addc_co_u32 v51, vcc, 0, v51, vcc")
        e.l.append("    global_load_dword a255, v[50:51], off")
        e.vm += 1
    e("v_lshrrev_b32 v1, 6, v0")
    e("v_mov_b32 v29, v0")
    e("v_and_b32 v0, 63, v0")
    e("v_readfirstlane_b32 s64, v1")
    e("v_lshlrev_b32 v2, 4, v0")
    e("v_lshrrev_b32 v39, 5, v29")
    e("v_and_b32 v40, 31, v29")
    e("s_lshl_b32 s7, s2, 14")
    e("v_lshlrev_b32 v41, 11, v39")
    e("v_lshl_add_u32 v41, v40, 4, v41")
    e("v_add_u32 v41, s7, v41")
    for reg, size in ((8, S * D * 2), (12, D * F * 2), (16, D * F * 2)):
        e(f"s_mov_b32 s{reg+2}, 0x{size:x}")
        e(f"s_mov_b32 s{reg+3}, 0x20000")
    e("s_and_b32 s6, s2, 7")
    e("s_lshr_b32 s7, s2, 3")
    if opt.get("map1", 0) == 3:
        e("s_mov_b32 s65, s6")
        e("s_mov_b32 s66, s7")
    elif opt.get("map1", 0) == 1:
        e("s_and_b32 s65, s7, 3")
        e("s_lshl_b32 s65, s65, 1")
        e("s_and_b32 s78, s6, 1")
        e("s_add_u32 s65, s65, s78")
        e("s_lshr_b32 s66, s7, 2")
        e("s_lshr_b32 s78, s6, 1")
        e("s_lshl_b32 s78, s78, 3")
        e("s_add_u32 s66, s66, s78")
    elif opt.get("map1", 0) == 2:
        e("s_and_b32 s65, s7, 1")
        e("s_lshl_b32 s65, s65, 2")
        e("s_and_b32 s78, s6, 3")
        e("s_add_u32 s65, s65, s78")
        e("s_lshr_b32 s66, s7, 1")
        e("s_lshr_b32 s78, s6, 2")
        e("s_lshl_b32 s78, s78, 4")
        e("s_add_u32 s66, s66, s78")
    else:
        e("s_and_b32 s65, s7, 7")
        e("s_lshr_b32 s66, s7, 3")
        e("s_lshl_b32 s78, s6, 2")
        e("s_add_u32 s66, s66, s78")
    e(f"s_mul_i32 s70, s64, {XWREG}")
    e("s_lshl_b32 s71, s64, 11")
    e(f"s_add_u32 s71, s71, {WB}")
    NCS = 8
    e("s_lshr_b32 s3, s65, 1")
    e(f"s_mul_i32 s72, s3, {NCS*WSTEP}")
    e("s_add_u32 s73, s72, 27648")
    e("v_lshrrev_b32 v22, 4, v0")
    e("v_bfe_u32 v23, v0, 1, 3")
    e("s_and_b32 s78, s64, 1")
    e("s_lshl_b32 s78, s78, 2")
    e("v_or_b32 v24, s78, v22")
    e("v_xor_b32 v23, v23, v24")
    e("v_and_b32 v25, 1, v0")
    e("s_lshl_b32 s78, s64, 3")
    e("v_lshlrev_b32 v3, 5, v23")
    e("v_lshl_add_u32 v3, v25, 4, v3")
    e("v_add_u32 v26, s78, v22")
    e("v_mul_u32_u24 v27, 7168, v26")
    e("v_add_u32 v3, v3, v27")
    e("s_mul_i32 s78, s66, 224")
    e("v_add_u32 v3, s78, v3")
    e("v_cmp_eq_u32 vcc, 7, v23")
    e("v_mov_b32 v27, 0x80000000")
    e("v_lshlrev_b32 v28, 8, v26")
    e("v_cndmask_b32 v3, v3, v27, vcc")
    e("v_lshl_add_u32 v28, v23, 5, v28")
    e("v_lshl_add_u32 v28, v25, 4, v28")
    e("v_lshrrev_b32 v23, 3, v0")
    e("v_and_b32 v24, 7, v0")
    e("v_xor_b32 v24, v24, v22")
    e("s_lshl_b32 s78, s65, 19")
    e("s_lshl_b32 s79, s64, 17")
    e("s_add_u32 s78, s78, s79")
    e("v_lshlrev_b32 v4, 11, v23")
    e("v_add_u32 v4, s78, v4")
    e("v_xor_b32 v25, 4, v24")
    e("v_lshl_add_u32 v5, v25, 4, v4")
    e("v_lshl_add_u32 v4, v24, 4, v4")
    e("v_add_u32 v5, 15360, v5")
    e("v_add_u32 v6, 30720, v4")
    e("v_add_u32 v7, 30720, v5")
    e(f"s_mul_i32 s77, s3, {NCS*64}")
    e("s_add_u32 s76, s70, 16384")
    e(f"s_add_u32 s91, s70, {XWREG}")

    wstep = [0]

    def wdma(u, aug=False):
        g = []
        nt = " nt" if (opt.get("ntw", 0) == 2 or (opt.get("ntw", 0) == 1 and wstep[0] < NCS)) else ""
        wstep[0] += 1
        if aug:
            g.append([f"s_add_u32 m0, s71, {u*16384}", "s_nop 0", f"buffer_load_dwordx4 v28, {R_MI}, 0 offen sc1 lds"])
            g.append([f"buffer_load_dwordx4 v28, {R_MI}, 0 offen offset:1024 sc1 lds"])
            g.append([f"s_add_u32 m0, s71, {u*16384+8192}", "s_movk_i32 s78, 6144", f"buffer_load_dwordx4 v28, {R_MI}, s78 offen sc1 lds"])
            g.append([f"buffer_load_dwordx4 v28, {R_MI}, s78 offen offset:1024 sc1 lds"])
            return g
        g.append([f"s_add_u32 m0, s71, {u*16384}", "s_nop 0", f"buffer_load_dwordx4 v3, {R_WG}, s72 offen{nt} lds"])
        g.append([f"buffer_load_dwordx4 v3, {R_WG}, s73 offen offset:1024{nt} lds"])
        g.append([f"s_add_u32 m0, s71, {u*16384+8192}", "s_nop 0", f"buffer_load_dwordx4 v3, {R_WU}, s72 offen{nt} lds"])
        g.append([f"buffer_load_dwordx4 v3, {R_WU}, s73 offen offset:1024{nt} lds", f"s_add_u32 s72, s72, {WSTEP}"])
        g.append([f"s_cmp_eq_u32 s72, {32*WSTEP}", "s_cselect_b32 s72, 0, s72", "s_add_u32 s73, s72, 27648"])
        return g

    def xdma(hf):
        g = []
        if hf == 0:
            g.append(["s_mov_b32 m0, s76", "s_nop 0", f"buffer_load_dwordx4 v4, {R_X}, s77 offen lds"])
            so = "s77"
        else:
            g.append(["s_add_u32 m0, s76, 4096", "s_add_u32 s79, s77, 0x10000", f"buffer_load_dwordx4 v4, {R_X}, s79 offen lds"])
            so = "s79"
        for q in range(1, 4):
            g.append([f"buffer_load_dwordx4 v{4+q}, {R_X}, {so} offen offset:{1024*q} lds"])
        if hf == 1:
            g[-1] += ["s_add_u32 s77, s77, 128", "s_and_b32 s77, s77, 0x7ff"]
            g.append(["s_add_u32 s76, s76, 8192", "s_cmp_eq_u32 s76, s91", "s_cselect_b32 s76, s70, s76"])
        return g

    def flat(gs):
        for g in gs:
            for x in g:
                e(x)

    e.wait(lg=0)
    XS = 224
    flat(wdma(0)); flat(xdma(0)); flat(xdma(1)); e.mark("w0", "v")
    flat(wdma(1)); e.mark("w1", "v")
    XSI = opt.get("xsi", 5)
    xsl = [[f"buffer_load_dwordx4 {v(XS+4*j,4)}, v{41 if XSI < 0 else 245}, {R_X}, 0 offen offset:{512*j}"] for j in range(4)]
    xsl[-1].append(lambda: e.mark("xs", "v"))
    if XSI < 0:
        for g_ in xsl:
            e(g_[0])
    for reg, size in ((52, S * D * 2), (56, S * D * 2)):
        e(f"s_mov_b32 s{reg+2}, 0x{size:x}")
        e(f"s_mov_b32 s{reg+3}, 0x20000")
    e("s_and_b32 s4, s2, 31")
    e("s_lshr_b32 s5, s2, 5")
    e("s_lshl_b32 s78, s4, 17")
    e("s_lshl_b32 s79, s5, 8")
    e("s_add_u32 s78, s78, s79")
    KVM = opt.get("kvm", 1)
    if KVM:
        e("s_and_b32 s79, s64, 1")
        e("s_lshl_b32 s79, s79, 7")
        e("s_add_u32 s78, s78, s79")
        e("s_lshr_b32 s79, s64, 1")
        e("s_lshl_b32 s79, s79, 16")
        e("s_add_u32 s78, s78, s79")
        e("v_and_b32 v52, 7, v0")
        e("v_lshrrev_b32 v248, 3, v0")
    else:
        e("s_lshl_b32 s79, s64, 6")
        e("s_add_u32 s78, s78, s79")
        e("v_and_b32 v52, 3, v0")
        e("v_lshrrev_b32 v248, 2, v0")
    e("v_lshlrev_b32 v248, 13, v248")
    e("v_lshl_add_u32 v248, v52, 4, v248")
    e("v_add_u32 v248, s78, v248")
    e("v_add_u32 v249, 0xffffe000, v248")
    e("v_add_u32 v250, 0xfffff000, v248")
    e("v_add_u32 v251, 0x1000, v248")
    KR, VR, WR = [212 + 4 * i for i in range(7)], [240 + 4 * i for i in range(4)], [152, 156, 168, 172]
    kaddr = [(249, 2048), (250, 0), (250, 2048), (248, 0), (248, 2048), (251, 0), (251, 2048)]
    ntk = " nt" if opt.get("ntkv", 1) else ""
    kvl = [[f"buffer_load_dwordx4 {a(VR[i],4)}, v{r}, {R_V}, 0 offen offset:{o}{ntk}"] for i, (r, o) in enumerate(kaddr[3:])]
    kvl += [[f"buffer_load_dwordx4 {a(KR[i],4)}, v{r}, {R_K}, 0 offen offset:{o}{ntk}"] for i, (r, o) in enumerate(kaddr)]
    kvl[-1].append(lambda: e.mark("kv", "v"))
    for reg, size in ((28, D * S * 2), (40, 256), (44, F * D * 2), (48, S * D * 2), (60, D * 8)):
        e(f"s_mov_b32 s{reg+2}, 0x{size:x}")
        e(f"s_mov_b32 s{reg+3}, 0x20000")
    wsr = [(20, H_OFF, H_SIZE), (24, UR_OFF, UR_SIZE), (32, ZT_OFF, ZT_SIZE), (36, MISC_OFF, MISC_SIZE)]
    if STAMPS:
        wsr.append((92, STAMP_OFF, 1 << 20))
    for reg, off, size in wsr:
        if reg != 92:
            off += opt.get("wsoff", 0) << 20
        e(f"s_add_u32 s{reg}, s88, 0x{off:x}")
        e(f"s_addc_u32 s{reg+1}, s89, 0")
        e(f"s_mov_b32 s{reg+2}, 0x{size:x}")
        e(f"s_mov_b32 s{reg+3}, 0x20000")
    if STAMPS:
        e("s_lshl_b32 s100, s2, 2")
        e("s_add_u32 s100, s100, s64")
        e("s_lshl_b32 s100, s100, 7")
        e("v_mov_b32 v30, s96")
        e("v_mov_b32 v31, s98")
        e("buffer_store_dwordx2 v[30:31], off, s[92:95], s100")
    e("s_lshl_b32 s69, s2, 2")
    e("s_add_u32 s69, s69, s64")
    e("s_lshr_b32 s78, s69, 1")
    e("s_lshl_b32 s78, s78, 2")
    e("s_load_dword s90, s[86:87], s78")
    e("s_bfe_u32 s67, s6, 0x10001")
    e("s_lshl_b32 s67, s67, 3")
    e("s_and_b32 s78, s7, 7")
    e("s_add_u32 s67, s67, s78")
    e("s_lshr_b32 s68, s6, 2")
    e("s_lshl_b32 s68, s68, 2")
    e("s_lshr_b32 s78, s7, 3")
    e("s_add_u32 s68, s68, s78")
    e("s_mul_i32 s78, s66, 12288")
    e(f"s_add_u32 s78, s78, {CS_REL}")
    e("s_cmp_eq_u32 s64, 3")
    e("s_cselect_b32 s78, 0x80000000, s78")
    e("v_add_u32 v28, s78, v28")
    e("v_bfe_u32 v24, v0, 2, 2")
    e("v_and_b32 v25, 3, v0")
    e("v_lshl_add_u32 v26, v22, 3, v24")
    e("v_lshlrev_b32 v26, 8, v26")
    e("v_lshl_add_u32 v26, v25, 3, v26")
    e(f"v_add_u32 v26, {WB}, v26")
    e("v_and_b32 v27, 1, v22")
    e("v_lshl_or_b32 v27, v27, 2, v24")
    for t in range(7):
        e(f"v_xor_b32 v1, {t}, v27")
        e(f"v_lshl_add_u32 v{8+t}, v1, 5, v26")
    e("s_lshr_b32 s78, s64, 1")
    e("s_lshl_b32 s78, s78, 13")
    e("v_add_u32 v26, s78, v26")
    e("s_and_b32 s78, s64, 1")
    e("s_lshl_b32 s78, s78, 1")
    e("s_and_b32 s79, s65, 1")
    e("s_add_u32 s78, s78, s79")
    e("s_lshl_b32 s87, s78, 1")
    e("v_xor_b32 v27, s87, v27")
    for q in range(2):
        e(f"v_xor_b32 v1, {q}, v27")
        e(f"v_lshl_add_u32 v{18+q}, v1, 5, v26")
    e("v_and_b32 v24, 15, v0")
    e("v_lshrrev_b32 v25, 1, v24")
    e("v_xor_b32 v25, v25, v22")
    e("v_lshlrev_b32 v15, 7, v24")
    e("v_lshl_add_u32 v15, v25, 4, v15")
    e("v_add_u32 v15, s70, v15")
    e("v_xor_b32 v16, 64, v15")
    e("v_and_b32 v24, 3, v0")
    e("v_mov_b32 v25, 0x3f803f80")
    for q in range(2):
        e(f"v_cmp_eq_u32 vcc, {q}, v24")
        e("s_nop 1")
        e("v_cndmask_b32 v26, 0, v25, vcc")
        for r in range(4):
            e(f"v_accvgpr_write_b32 a{CSS+4*q+r}, v26")
    e("s_lshl_b32 s78, s65, 5")
    e("s_add_u32 s78, s78, s66")
    e("s_lshl_b32 s78, s78, 2")
    e(f"s_add_u32 s80, s78, {HF_REL}")
    e("s_lshl_b32 s78, s2, 2")
    e(f"s_add_u32 s81, s78, {ZF_REL}")
    e("v_mov_b32 v47, s80")
    e("v_cmp_eq_u32 vcc, 1, v29")
    e("v_mov_b32 v45, 0x80000000")
    e("v_mov_b32 v48, s81")
    e("v_cndmask_b32 v48, v48, v47, vcc")
    e("v_mov_b32 v46, 0")
    e("v_cmp_gt_u32 vcc, 2, v29")
    e("s_lshl_b32 s78, s2, 6")
    e("v_lshlrev_b32 v49, 3, v39")
    e("v_cndmask_b32 v48, v45, v48, vcc")
    e("v_add_u32 v49, s78, v49")
    e("v_cmp_eq_u32 vcc, 0, v40")
    e(f"buffer_store_dword v46, v48, {R_MI}, 0 offen sc1")
    e("s_nop 0")
    e("v_cndmask_b32 v244, v45, v49, vcc")
    e("v_mov_b32 v245, v41")

    flat(xdma(0)); flat(xdma(1)); flat(wdma(2)); e.mark("w2", "v")
    e.need("w0")
    e.wait(lg=0)
    e("s_barrier")
    stamp(e, 2)

    def ared(r, tmp):
        o = []
        for m in ("quad_perm:[1,0,3,2]", "quad_perm:[2,3,0,1]", "row_half_mirror", "row_mirror"):
            o += ["s_nop 1", f"v_add_f32_dpp v{r}, v{r}, v{r} {m} row_mask:0xf bank_mask:0xf"]
        o += [f"v_mov_b32 v{tmp}, v{r}", "s_nop 1", f"v_permlane16_swap_b32 v{r}, v{tmp}", "s_nop 1", f"v_add_f32 v{r}, v{r}, v{tmp}"]
        return o
    rb = lambda r: [f"v_cvt_pk_bf16_f32 v{r}, v{r}, v{r}", f"v_lshlrev_b32 v{r}, 16, v{r}"]
    sts = [f"v_lshlrev_b32 v240, 16, v{XS}", f"v_and_b32 v241, 0xffff0000, v{XS}"]
    for i in range(1, 16):
        sts += [f"v_lshlrev_b32 v242, 16, v{XS+i}", f"v_and_b32 v243, 0xffff0000, v{XS+i}",
                "v_add_f32 v240, v240, v242", "v_add_f32 v241, v241, v243"]
    sts += ["v_add_f32 v246, v240, v241"] + ared(246, 242) + ["v_mul_f32 v246, 0xba800000, v246"]
    for i in range(16):
        sts += [f"v_lshlrev_b32 v242, 16, v{XS+i}", f"v_and_b32 v243, 0xffff0000, v{XS+i}",
                "v_add_f32 v242, v242, v246", "v_add_f32 v243, v243, v246"]
        sts += (["v_mul_f32 v240, v242, v242", "v_mul_f32 v241, v243, v243"] if i == 0 else
                ["v_fmac_f32 v240, v242, v242", "v_fmac_f32 v241, v243, v243"])
    sts += ["v_add_f32 v247, v240, v241"] + ared(247, 242) + ["v_mul_f32 v247, 0x3a800000, v247"] + rb(247)
    sts += ["v_add_f32 v247, 0x3727c5ac, v247"] + rb(247) + ["v_sqrt_f32 v247, v247"] + rb(246) + rb(247)
    sts += ["v_rcp_f32 v247, v247", "s_nop 0"]
    st_store = [f"buffer_store_dwordx2 v[246:247], v244, {R_MI}, 0 offen offset:{ST_REL} sc1"]

    def reads(step_u, fs, cs=False, do_b=True):
        fa = FA[fs]
        al = []
        for ai in range(14):
            for h in range(2):
                al.append(f"ds_read_b64_tr_b16 {a(fa+4*ai+2*h,2)}, v{8+ai%7} offset:{step_u*16384 + (ai//7)*8192 + h*1024}")
        bl = [f"ds_read_b128 {a(fa+56+4*j,4)}, v17 offset:{2048*j}" for j in range(4)] if do_b else []
        cl = []
        if cs:
            for q in range(2):
                for h in range(2):
                    cl.append(f"ds_read_b64_tr_b16 {a(CSF+4*q+2*h,2)}, v{18+q} offset:{step_u*16384 + h*1024}")
        return bl + al + cl

    def mfmas(fs, first=False):
        fa = FA[fs]
        mo = opt.get("morder", 2)
        if mo == 0:
            od = [(ai, j) for ai in range(14) for j in range(4)]
        elif mo == 1:
            od = [(ai, j) for j in range(4) for ai in range(14)]
        elif mo == 2:
            od = [(ai, j if ai % 2 == 0 else 3 - j) for ai in range(14) for j in range(4)]
        elif mo == 3:
            od = [(ai if j % 2 == 0 else 13 - ai, j) for j in range(4) for ai in range(14)]
        else:
            od = [((k * 5) % 14, k % 4) for k in range(28)] + [((k * 5 + 1) % 14, (k + 2) % 4) for k in range(28)]
            od = [(ai, (j + ai) % 4) for j in range(4) for ai in range(14)]
        if opt.get("swapab"):
            return [f"{MF} {accr(ai,j)}, {a(fa+56+4*j,4)}, {a(fa+4*ai,4)}, {'0' if first else accr(ai,j)}" for ai, j in od]
        return [f"{MF} {accr(ai,j)}, {a(fa+4*ai,4)}, {a(fa+56+4*j,4)}, {'0' if first else accr(ai,j)}" for ai, j in od]

    e("s_movk_i32 s75, 16384")
    e("v_add_u32 v17, s75, v15")
    for x in reads(0, 0, cs=True):
        e(x)
    flat(wdma(3)); e.mark("w3", "v")
    flat(xdma(0))

    def body(i, wd=True, xd=True, rd=True, cs_m=False, cs_r=False, extra=None, pre=None, aug_w=False, do_b=True,
             vm=None, side=None, side0=12, needs=(), relax=0, post=None):
        u = i & 3
        fs = i & 1
        if vm is None:
            tags = [t_ for t_ in [f"it{i-3}"] + list(needs) if t_ in e.tag]
            vm = min(63, e.vm - max(e.tag[t_][1] for t_ in tags))
        if relax:
            e("s_sub_u32 s101, s101, 1")
            e(f"s_cbranch_scc0 L_rx{i}")
            e("s_mov_b32 s101, 0")
            e.l.append(f"    s_waitcnt vmcnt({vm})")
            e.label(f"L_rx{i}")
            e.l.append(f"    s_waitcnt vmcnt({min(63, vm + relax)}) lgkmcnt(0)")
            e.lg_done = e.lg
        else:
            e.wait(vm=vm, lg=0)
        if not (opt.get("x_nobar") and i > 0 and i & opt["x_nobar"]):
            e("s_barrier")
        if pre:
            pre()
        mf = mfmas(fs, first=(i == 0))
        if cs_m:
            cm = [f"{MF} {a(CSA,4)}, {a(CSF+4*q,4)}, {a(CSS+4*q,4)}, {'0' if (i == 0 and q == 0) else a(CSA,4)}" for q in range(2)]
            mf = cm + mf
        groups = []
        if xd:
            groups += xdma(1 - (i & 1))
        if wd:
            groups += wdma(u, aug_w)
        mk = lambda: e.mark(f"it{i}", "v")
        if not groups:
            mk()
        else:
            groups.append([mk])
        if extra:
            groups += extra
        head, rl = [], []
        if rd:
            hk = (i + 1) & 1
            if do_b:
                head = (["s_add_u32 s75, s75, 8192", f"s_cmp_eq_u32 s75, {XWREG}", "s_cselect_b32 s75, 0, s75", "v_add_u32 v17, s75, v15"]
                        if hk == 0 else ["v_add_u32 v17, s75, v16"])
            r_ = reads((u + 1) & 3, 1 - fs, cs_r, do_b)
            rl = [(x, False) for x in r_[4:8]] + [(x, True) for x in r_[:4]] + [(x, False) for x in r_[8:]] if do_b else [(x, False) for x in r_]
        slots = pack(len(mf), mem=[x for g in groups for x in g], reads=rl, sides=([(side, side0)] if side else []),
                     head=head, first=4, rlim=len(mf) - 8)
        merge(e, mf, slots)
        if post:
            post()

    Cm = [240, 241, 242, 243, 252, 253, 246, 247, 20, 21, 24, 25, 254, 255]
    cs = [f"v_accvgpr_read_b32 C{r}, a{CSA+r}" for r in range(4)]
    cs += ["v_cvt_pk_bf16_f32 C4, C0, C1", "v_cvt_pk_bf16_f32 C5, C2, C3",
           "v_lshlrev_b32 C6, 16, C4", "v_and_b32 C7, 0xffff0000, C4", "v_lshlrev_b32 C8, 16, C5", "v_and_b32 C9, 0xffff0000, C5"]
    cs += [f"v_sub_f32 C{r}, C{r}, C{6+r}" for r in range(4)]
    cs += ["v_bfe_u32 v1, v0, 2, 2", "v_cmp_eq_u32 vcc, 1, v1",
           "v_cvt_pk_bf16_f32 C10, C0, C1", "v_cvt_pk_bf16_f32 C11, C2, C3",
           "v_cndmask_b32 C4, C4, C10, vcc", "v_cndmask_b32 C5, C5, C11, vcc",
           "v_lshlrev_b32 C6, 16, C10", "v_and_b32 C7, 0xffff0000, C10", "v_lshlrev_b32 C8, 16, C11", "v_and_b32 C9, 0xffff0000, C11"]
    cs += [f"v_sub_f32 C{r}, C{r}, C{6+r}" for r in range(4)]
    cs += ["v_cmp_eq_u32 vcc, 2, v1", "v_cvt_pk_bf16_f32 C10, C0, C1", "v_cvt_pk_bf16_f32 C11, C2, C3",
           "v_cndmask_b32 C4, C4, C10, vcc", "v_cndmask_b32 C5, C5, C11, vcc"]
    csa = ["s_mul_i32 s3, s66, 12288", "s_lshr_b32 s6, s64, 1", "s_mul_i32 s6, s6, 6144", "s_add_u32 s3, s3, s6",
           "s_lshr_b32 s6, s65, 1", "s_lshl_b32 s6, s6, 8", "s_add_u32 s3, s3, s6", "s_lshl_b32 s6, s87, 5",
           "s_add_u32 s3, s3, s6", f"s_add_u32 s3, s3, {CS_REL}",
           "v_bfe_u32 v1, v0, 1, 3", "v_lshlrev_b32 C12, 10, v1", "v_and_b32 C13, 1, v0",
           "v_lshl_add_u32 C12, C13, 5, C12", "v_lshrrev_b32 C13, 4, v0",
           "v_lshl_add_u32 C12, C13, 3, C12", "v_cmp_le_u32 vcc, 6, v1", "v_mov_b32 C13, 0x80000000",
           "v_add_u32 C12, s3, C12", "v_cndmask_b32 C12, C12, C13, vcc"]
    import re as _re
    sub = lambda l_: [_re.sub(r"C(\d+)", lambda m_: f"v{Cm[int(m_.group(1))]}", x) for x in l_]
    cs, csa = sub(cs), sub(csa)
    cs_store = [f"buffer_store_dwordx2 v[252:253], v254, {R_MI}, 0 offen sc1"]
    kva = ["v_and_b32 v26, 3, v0", "v_lshlrev_b32 v22, 3, v26", "v_lshlrev_b32 v26, 6, v26",
           "s_lshl_b32 s74, s5, 10", "s_lshl_b32 s3, s64, 8", "s_add_u32 s74, s74, s3",
           "s_lshr_b32 s3, s74, 3", "v_add_u32 v22, s3, v22", f"v_mul_u32_u24 v22, {UR_PITCH}, v22",
           "v_lshrrev_b32 v23, 2, v0", "v_lshlrev_b32 v23, 3, v23", "v_sub_u32 v22, v22, v23",
           "s_lshl_b32 s6, s4, 7", "s_sub_u32 s6, 4088, s6", "v_add_u32 v22, s6, v22",
           "s_lshl_b32 s3, s5, 7", "v_add_u32 v23, s3, v29", f"v_mul_u32_u24 v23, {UR_PITCH}, v23",
           "v_add_u32 v23, 0x1000, v23", "s_lshl_b32 s6, s4, 8", "v_add_u32 v24, s6, v29", "s_movk_i32 s6, 128",
           "v_cmp_gt_u32 vcc, s6, v24", "v_mov_b32 v25, 0x80000000", "s_nop 0", "v_cndmask_b32 v23, v25, v23, vcc"]
    if KVM:
        kva[:15] = ["v_and_b32 v26, 7, v0", "v_lshlrev_b32 v22, 3, v26", "v_lshlrev_b32 v26, 6, v26",
                    "s_lshl_b32 s74, s5, 10", "s_and_b32 s3, s64, 1", "s_lshl_b32 s3, s3, 9", "s_add_u32 s74, s74, s3",
                    "s_lshr_b32 s3, s74, 3", "v_add_u32 v22, s3, v22", f"v_mul_u32_u24 v22, {UR_PITCH}, v22",
                    "v_and_b32 v23, 0x38, v0", "v_sub_u32 v22, v22, v23",
                    "s_lshl_b32 s6, s4, 7", "s_sub_u32 s6, 4088, s6", "s_lshr_b32 s3, s64, 1", "s_lshl_b32 s3, s3, 6",
                    "s_sub_u32 s6, s6, s3", "v_add_u32 v22, s6, v22"]
    wl = [[f"buffer_load_dwordx4 {a(WR[i],4)}, v26, {R_SH}, s74 offen offset:{16*i}"] for i in range(4)]
    q3 = -(-len(sts) // 3)
    sides = {0: kva, 6: csa, 7: ["s_nop 0"] * 5 + cs, 8: sts[:q3], 9: sts[q3:2*q3], 10: sts[2*q3:]}
    extras = {4: wl, 5: xsl, 8: [cs_store], 11: [st_store]}
    needs = {8: ["xs"]}
    KVI = opt.get("kvi", 9)
    KVB = opt.get("kvb", 12)
    extras[KVI] = extras.get(KVI, []) + kvl
    for i in range(KVB):
        tg = {0: "w1", 1: "w2", 2: "w3"}.get(i)
        vmi = min(63, e.vm - e.tag[tg][1]) if tg else None
        body(i, cs_m=(i < NCS), cs_r=(i < NCS - 1), vm=vmi, side=sides.get(i), side0=2, extra=extras.get(i), needs=needs.get(i, ()))
        if i == 3:
            stamp(e, 12)
    stamp(e, 14)
    WF, KF, VF, TMP = 224, [232 + 2 * i for i in range(7)], 246, 1
    OUT = [248, 250, 252, 254, 24, 26, 18, 20]
    kvc = []
    for p in range(4):
        c_ = []
        for h in range(2):
            for d in range(2):
                c_ += [f"v_accvgpr_read_b32 v{TMP}, a{WR[p]+2*h+d}", f"v_lshlrev_b32 v{WF+4*d+h}, 16, v{TMP}",
                       f"v_and_b32 v{WF+4*d+2+h}, 0xffff0000, v{TMP}"]
        for i in range(7):
            c_ += [f"v_accvgpr_read_b32 v{KF[i]+1}, a{KR[i]+p}", f"v_lshlrev_b32 v{KF[i]}, 16, v{KF[i]+1}",
                   f"v_and_b32 v{KF[i]+1}, 0xffff0000, v{KF[i]+1}"]
        for i in range(4):
            c_ += [f"v_accvgpr_read_b32 v{VF+1}, a{VR[i]+p}"]
            c_ += [f"v_mul_f32 v{KF[i]+h}, v{KF[i]+h}, v{WF+6+h}" for h in range(2)]
            c_ += [f"v_lshlrev_b32 v{VF}, 16, v{VF+1}", f"v_and_b32 v{VF+1}, 0xffff0000, v{VF+1}"]
            for j in (2, 1, 0):
                c_ += [f"v_fmac_f32 v{KF[i]+h}, v{KF[i+3-j]+h}, v{WF+2*j+h}" for h in range(2)]
            c_ += [f"v_mul_f32 v{KF[i]+h}, v{KF[i]+h}, v{VF+h}" for h in range(2)]
        for h in range(2):
            o = OUT[2 * p + h]
            c_ += [f"v_cvt_pk_bf16_f32 v{o}, v{KF[3]+h}, v{KF[2]+h}", f"v_cvt_pk_bf16_f32 v{o+1}, v{KF[1]+h}, v{KF[0]+h}"]
        kvc.append(c_)
    kst = lambda ch: [f"s_mov_b32 s3, {ch*UR_PITCH}", f"buffer_store_dwordx2 {v(OUT[ch],2)}, v22, {R_UR}, s3 offen sc1"]
    for i in range(12, 16):
        p = i - 12
        ex_ = [kst(2 * p - 2), kst(2 * p - 1)] if p else None
        body(i, side=kvc[p], side0=0, extra=ex_, needs=(["kv"] if p == 0 else ()))
    for ch in (6, 7):
        flat([kst(ch)])
    for i in range(4):
        e(f"v_mov_b32 v{WF+i}, 0")
    e(f"buffer_store_dwordx4 {v(WF,4)}, v23, {R_UR}, 0 offen sc1")
    stamp(e, 15)
    BG = 0
    e("s_mov_b32 s82, 0")
    e("s_and_b32 s74, s2, 1")
    e("s_lshl_b32 s74, s74, 7")
    def cpf(tagc, va, dst):
        def gl():
            e.l.append(f"    global_load_dword {dst}, v[{va}:{va+1}], off")
            e.vm += 1
        gl.ins = "global_load_dword"
        def pc():
            e("s_getpc_b64 s[6:7]")
            e.label(f"L_pc{tagc}")
        pc.ins = "s_getpc_b64"
        return [pc, "s_lshr_b32 s3, s2, 3", "s_and_b32 s3, s3, 1", "s_lshl_b32 s3, s3, 2", "s_add_u32 s3, s3, s64",
                "s_lshl_b32 s3, s3, 12", f"v_lshlrev_b32 v{va}, 6, v0", f"v_add_u32 v{va}, s3, v{va}",
                f"v_min_u32 v{va}, L_end-L_pc{tagc}, v{va}", f"v_mov_b32 v{va+1}, s7", f"v_add_co_u32 v{va}, vcc, s6, v{va}",
                "s_nop 1", f"v_addc_co_u32 v{va+1}, vcc, 0, v{va+1}, vcc", gl]
    if opt.get("cpf2", 1):
        for x in cpf("b", 228, "a255"):
            x() if callable(x) else e(x)
    STG = opt.get("stg", 0)
    NB = 11 if STG == 2 else 7
    if STG:
        e("s_mov_b32 s101, 0")
        e("s_lshr_b32 s5, s2, 3")
        e("s_and_b32 s5, s5, 7")
        e("s_mul_i32 s6, s69, 7168")
        e("s_add_u32 s7, s6, 4096")
        e("s_lshl_b32 s84, s69, 12")

    def burst(i):
        def f():
            e("s_sub_u32 s5, s5, 1")
            e(f"s_cbranch_scc0 L_nb{i}")
            for q in range(7):
                e.l.append(f"    buffer_load_dwordx4 a[252:255], v2, {R_WD}, {'s6' if q < 4 else 's7'} offen offset:{1024*(q&3)}")
            if STG == 2:
                for q in range(4):
                    e.l.append(f"    buffer_load_dwordx4 a[252:255], v2, {R_SK}, s84 offen offset:{1024*q}")
            e("s_mov_b32 s101, 3")
            e.label(f"L_nb{i}")
        return f
    def f0sig():
        e("s_cmp_lg_u32 s82, 0")
        e("s_cbranch_scc1 L_f0_nosig")
        signal(e, "f0", f"buffer_atomic_add v1, off, {R_DB}, s74 sc1")
    e.label("L_g1_loop")
    for i in range(16, 20):
        body(i, vm=16, relax=(NB if STG else 0), post=(burst(i) if STG else None), pre=(f0sig if i == opt.get("f0s", 18) else None))
    e("s_add_u32 s82, s82, 1")
    e("s_cmp_lt_u32 s82, 2")
    e("s_cbranch_scc1 L_g1_loop")
    for k in range(3):
        e.tag[f"it{21+k}"] = e.tag[f"it{17+k}"]
    e.vm_done = 0
    stamp(e, 13)

    def poll(loadins, cond, lab):
        e("s_mov_b32 s82, 0")
        e.label(f"L_{lab}_chk")
        cond()
        e(f"s_cbranch_scc1 L_{lab}_ok")
        e("s_sleep 1")
        e.l.append("    " + loadins)
        e.l.append("    s_waitcnt vmcnt(0)")
        e("s_add_u32 s82, s82, 1")
        e(f"s_cmp_lt_u32 s82, {SPIN_LIMIT}")
        e(f"s_cbranch_scc1 L_{lab}_chk")
        e.label(f"L_{lab}_ok")

    f0_load = f"buffer_load_dword v18, v27, {R_DB}, 0 offen sc1"

    def f0_cond():
        e("v_cmp_le_u32 vcc, 0x80, v18")
        e("s_cmp_eq_u64 vcc, exec")

    def I(s_, tag=None):
        f = lambda: e(s_, tag=tag)
        f.ins = s_
        return f

    def urdma(c):
        g = [[f"s_add_u32 m0, s70, {c*CV_CP}", f"s_add_u32 s79, s83, {2*c}", f"buffer_load_dwordx4 v2, {R_UR}, s79 offen sc1 lds"]]
        g += [[f"buffer_load_dwordx4 v2, {R_UR}, s79 offen offset:{1024*q} sc1 lds"] for q in range(1, 4)]
        g[-1].append(lambda: e.mark(f"ur{c}", "v"))
        return g

    wdpf0 = [["s_mul_i32 s74, s69, 7168"]] + [[f"buffer_load_dwordx4 a[252:255], v2, {R_WD}, s74 offen offset:{1024*(q&3)}"] + (["s_add_u32 s74, s74, 4096"] if q == 3 else []) for q in range(7)]
    if opt.get("spf"):
        wdpf0 = [[f"buffer_load_dwordx4 a[252:255], v2, {R_SK}, s84 offen offset:{1024*q}"] for q in range(4)] + wdpf0
    RX = NB if STG else 0
    body(24, side=["v_and_b32 v27, 1, v0", "v_lshlrev_b32 v27, 7, v27"], relax=RX)
    F0L = [[f0_load, lambda: e.mark("f0", "v")]]
    body(25, extra=(F0L if opt.get("f0l", 26) == 25 else None), relax=RX)
    body(26, relax=RX, extra=(F0L if opt.get("f0l", 26) == 26 else None), side=["v_and_b32 v19, 15, v0", "v_lshlrev_b32 v19, 3, v19",
                   "s_lshl_b32 s85, s65, 11", "s_lshl_b32 s3, s64, 9", "s_add_u32 s85, s85, s3",
                   f"s_mul_i32 s83, s69, {UR_PITCH}", "s_lshl_b32 s84, s69, 12"])
    stl = [[f"buffer_load_dwordx2 {v(20+2*j,2)}, v19, {R_MI}, s85 offen offset:{ST_REL+128*j} sc1"] for j in range(4)]
    stl[-1].append(lambda: e.mark("st", "v"))
    body(27, xd=False, extra=(wdpf0 if opt.get("wpf", 0 if STG else 27) == 27 else None))
    body(28, xd=False, aug_w=True, pre=lambda: poll(f0_load, f0_cond, "f0"), extra=stl, needs=["f0"])
    body(29, xd=False, wd=False, extra=urdma(0) + urdma(2) + (wdpf0 if opt.get("wpf") == 29 else []))
    body(30, xd=False, wd=False,
         side=["v_and_b32 v3, 15, v0", "v_lshrrev_b32 v28, 4, v0",
               "v_lshrrev_b32 v4, 2, v3", f"v_mul_u32_u24 v4, {CV_CP}, v4", "v_and_b32 v6, 3, v0",
               "v_lshl_add_u32 v4, v6, 4, v4", "v_add_u32 v4, 4096, v4", f"v_add_u32 v5, {CV_HZ}, v2",
               "v_cmp_gt_u32 vcc, 32, v0", "v_add_u32 v29, s70, v2", "v_mov_b32 v248, 0", "v_mov_b32 v249, 0",
               "v_cndmask_b32 v5, v4, v5, vcc", "v_add_u32 v5, s70, v5", "v_mov_b32 v250, 0", "v_mov_b32 v251, 0"])
    hd = [[f"s_add_u32 m0, s70, {CV_H}", "s_nop 0", f"buffer_load_dwordx4 v2, {R_SK}, s84 offen lds"]]
    hd += [[f"buffer_load_dwordx4 v2, {R_SK}, s84 offen offset:{1024*q} lds"] for q in range(1, 4)]
    hd[-1].append(lambda: e.mark("hk", "v"))
    if STG != 2:
        hd = [[x.replace(" lds", " nt lds") if isinstance(x, str) else x for x in g] for g in hd]
    wdpf = [["s_mul_i32 s74, s69, 7168"]]
    wdpf += [[f"buffer_load_dwordx4 a[252:255], v2, {R_WD}, s74 offen offset:{1024*(q&3)}"] + (["s_add_u32 s74, s74, 4096"] if q == 3 else []) for q in range(7)]
    WPF = opt.get("wpf", 27)
    if WPF == 31:
        hd += wdpf
    bb = ["v_cmp_gt_u32 vcc, 48, v0", "ds_write_b128 v5, v[248:251]"]
    for j in range(4):
        bb += [f"v_lshrrev_b32 v1, 16, v{20+2*j}", f"v_or_b32 v1, v1, v{20+2*j}", "v_cndmask_b32 v1, 0, v1, vcc"]
        bb += [f"v_accvgpr_write_b32 a{FA[0]+56+4*j+r}, v1" for r in range(4)]
    for j in range(4):
        bb += [f"v_mul_f32 v{20+2*j}, 0xbfb8aa3b, v{21+2*j}", f"v_mul_f32 v{21+2*j}, v{21+2*j}, v{21+2*j}",
               f"v_rcp_f32 v{21+2*j}, v{21+2*j}"]
    body(31, xd=False, wd=False, do_b=False, extra=hd, side=bb, side0=4, needs=["st"])
    TB = [224, 236]
    def odr(q):
        b = TB[q & 1]
        return [I(f"ds_read_b128 {v(b,4)}, v29 offset:{1024*q}"),
                I(f"ds_read_b128 {v(b+4,4)}, v29 offset:{2*CV_CP+1024*q}"),
                I(f"ds_read_b32 v{b+8}, v29 offset:{2*CV_CP+1024*q+16}", tag=f"od{q}")]
    def odc(q):
        b = TB[q & 1]
        r = [lambda: e.need(f"od{q}")]
        r += [I(f"v_alignbit_b32 v{b+i}, v{b+4+i}, v{b+i}, 16") for i in range(4)]
        r.append(I(f"ds_write_b128 v29, {v(b,4)} offset:{CV_CP+1024*q}"))
        r += [I(f"v_alignbit_b32 v{b+4+i}, v{b+5+i}, v{b+4+i}, 16") for i in range(4)]
        r.append(I(f"ds_write_b128 v29, {v(b+4,4)} offset:{3*CV_CP+1024*q}"))
        return r
    ha = ["s_lshl_b32 s3, s65, 4", "s_lshl_b32 s6, s64, 2", "s_add_u32 s3, s3, s6",
          f"s_mul_i32 s3, s3, {H_SB}", "s_mul_i32 s6, s66, 3584", "s_add_u32 s3, s3, s6",
          "v_lshrrev_b32 v18, 1, v28", "v_lshlrev_b32 v18, 8, v18", "v_lshl_add_u32 v18, v3, 4, v18",
          "v_add_u32 v18, s3, v18", "v_and_b32 v1, 1, v28", f"v_mul_u32_u24 v19, {H_SB}, v1",
          "v_add_u32 v19, v19, v18", "v_lshl_add_u32 v18, v1, 9, v18"]
    ca = ["v_and_b32 v4, 3, v3", "v_sub_u32 v4, 3, v4", f"v_mul_u32_u24 v16, {CV_CP}, v4",
          "v_and_b32 v4, 12, v3", "v_lshlrev_b32 v4, 1, v4", "v_sub_u32 v16, v16, v4",
          "v_lshl_add_u32 v16, v28, 4, v16", f"s_add_u32 s3, s70, {2*2028 - 3584}", "v_add_u32 v16, s3, v16",
          "v_lshlrev_b32 v17, 5, v3", "v_lshl_add_u32 v17, v28, 4, v17", f"s_add_u32 s3, s70, {CV_H - 32}",
          "v_add_u32 v17, s3, v17"]
    seq = odr(0) + odr(1) + ha + odc(0) + odr(2) + odc(1) + odr(3) + ca[:6] + odc(2) + ca[6:] + odc(3)
    body(32, xd=False, wd=False, rd=False, side=seq, side0=0, needs=["ur2"])
    stamp(e, 3)

    e.c("SwiGLU epilogue")
    HSC = " sc1" if opt.get("hsc", 1) else ""

    pend = []

    def flush_st():
        while pend:
            o_, st_ = pend.pop(0)
            e(f"v_permlane16_swap_b32 v{o_}, v{o_+2}")
            e(f"v_permlane16_swap_b32 v{o_+1}, v{o_+3}")
            e(st_, tag="hst")
            if o_ == 244:
                e(f"s_mov_b32 s78, {2*H_SB}")

    def swiglu(g, u, tmp, out, kc):
        for q in range(2):
            e(f"v_pk_mul_f32 {v(tmp+2*q,2)}, {v(g+2*q,2)}, {v(kc,2)} op_sel_hi:[1,0]")
        flush_st()
        for q in range(4):
            e(f"v_exp_f32 v{tmp+q}, v{tmp+q}")
        for q in range(2):
            e(f"v_pk_mul_f32 {v(g+2*q,2)}, {v(g+2*q,2)}, {v(u+2*q,2)}")
        for q in range(2):
            e(f"v_pk_fma_f32 {v(tmp+2*q,2)}, {v(tmp+2*q,2)}, {v(kc,2)}, {v(kc,2)} op_sel:[0,1,1] op_sel_hi:[1,1,1]")
        for q in (2, 3, 0, 1):
            e(f"v_rcp_f32 v{tmp+q}, v{tmp+q}")
        for q in (1, 0):
            e(f"v_pk_mul_f32 {v(g+2*q,2)}, {v(g+2*q,2)}, {v(tmp+2*q,2)}")
        for q in (1, 0):
            e(f"v_cvt_pk_bf16_f32 v{out+q}, v{g+2*q}, v{g+2*q+1}")

    def cv_reads(fs):
        o = 64 * fs
        r = []
        for i in range(8):
            r.append(f"ds_read_b128 {a(o+32+4*i,4)}, v17 offset:{512*i}")
            r.append(f"ds_read_b64 {a(o+4*i,2)}, v16 offset:{(7-i)*512}")
            r.append(f"ds_read_b64 {a(o+4*i+2,2)}, v16 offset:{(7-i)*512+8}")
        r += ["v_subrev_u32 v16, 64, v16", "v_subrev_u32 v17, 64, v17"]
        return r

    e("s_nop 4")
    n = 0
    for j in range(4):
        if j in (0, 1, 3):
            e(f"s_mov_b32 s{78+(j&1)}, {j*H_SB}")
        for i in range(4):
            o = 8 + 4 * (n & 1)
            if i < 3:
                for k in range(2):
                    t_ = 2 * i + k
                    swiglu(acc(t_, j), acc(7 + t_, j), 4, o + 2 * k, 20 + 2 * j)
                pend.append((o, f"buffer_store_dwordx4 {v(o,4)}, v18, {R_H}, s{78+(j&1)} offen offset:{1024*i}{HSC}"))
                n += 1
            else:
                for r in range(4):
                    e(f"v_accvgpr_read_b32 v{248+r}, a{AC6+4*j+r}")
                    e(f"v_accvgpr_read_b32 v{252+r}, a{AC6+16+4*j+r}")
                flush_st()
                swiglu(248, 252, 4, 244 + 2 * (j & 1), 20 + 2 * j)
                if j & 1:
                    pend.append((244, f"buffer_store_dwordx4 v[244:247], v19, {R_H}, s78 offen offset:3072{HSC}"))
        if j == 3:
            e("s_nop 1")
            flush_st()
        if j == opt.get("cvj", 3):
            e.need("hk")
            for x in cv_reads(0):
                e(x)
    if WPF == 33:
        flat(wdpf)
    stamp(e, 4)

    e.c("long conv")
    CA = 32

    def cv_mfmas(fs, first):
        o = 64 * fs
        prs = [(p, w) for p in range(8) for w in (range(8 - p) if p % 2 == 0 else range(7 - p, -1, -1))]
        return [f"{MF} {v(CA+4*(p+w),4)}, {a(o+4*p,4)}, {a(o+32+4*w,4)}, {'0' if (first and p == 0) else v(CA+4*(p+w),4)}"
                for p, w in prs]

    def cv_body(r, rd=True, extra=None, early=None):
        fs = r & 1
        e.wait(lg=0)
        ex_ = list(early or []) + [x for g in (extra or []) for x in g]
        mem_ = ex_ if any(_ins(x) and " lds" in _ins(x) for x in ex_) else []
        sd = [] if mem_ or not ex_ else [(ex_, 0)]
        rl = []
        if rd:
            cr = cv_reads(1 - fs)
            rl = [(x, False) for x in cr[:-2]]
            sd.append((cr[-2:], 32))
        merge(e, cv_mfmas(fs, r == 0), pack(36, mem=mem_, reads=rl, sides=sd, first=2, rlim=30, tail=4))

    G_H, G_WD, G_A, G_B = 192, 194, 196, 200
    G2ROT = opt.get("g2rot", 0)
    W2B = 81920
    G_D = 210
    ZL = 65536
    g2s = [["s_lshr_b32 s72, s64, 1", "s_and_b32 s73, s64, 1", "s_and_b32 s4, s2, 1"],
           ["v_bfe_u32 v6, v0, 1, 3", "v_xor_b32 v6, v6, v28"],
           ["s_lshl_b32 s78, s64, 3", "v_add_u32 v7, s78, v28", "v_and_b32 v4, 1, v0"],
           [f"v_lshlrev_b32 v{G_WD}, 11, v7", f"v_lshl_add_u32 v{G_WD}, v4, 4, v{G_WD}"],
           ["s_lshl_b32 s78, s68, 8", f"v_add_u32 v{G_WD}, s78, v{G_WD}", "v_xor_b32 v7, 4, v6"],
           [f"v_lshl_add_u32 v{G_WD+1}, v7, 5, v{G_WD}", f"v_lshl_add_u32 v{G_WD}, v6, 5, v{G_WD}"],
           [f"v_add_u32 v{G_WD+1}, 7168, v{G_WD+1}", "s_lshl_b32 s74, s64, 11", f"s_add_u32 s71, s74, {W2B}"],
           [f"s_mul_i32 s75, s4, {56*1024}", "s_lshl_b32 s76, s75, 6"],
           ["s_lshl_b32 s78, s67, 3", "s_lshl_b32 s79, s64, 1", "s_add_u32 s78, s78, s79"],
           [f"s_mul_i32 s78, s78, {H_SB}", f"v_add_u32 v{G_H}, s78, v2", f"v_add_u32 v{G_H+1}, {H_SB-1024}, v{G_H}"],
           ["v_bfe_u32 v6, v0, 2, 2", "v_and_b32 v7, 3, v0"],
           ["v_lshl_add_u32 v4, v28, 2, v6", "v_and_b32 v5, 7, v4"],
           ["v_lshlrev_b32 v4, 8, v4", "v_lshl_add_u32 v4, v7, 3, v4"],
           [f"v_add_u32 v4, {W2B}, v4", "s_lshl_b32 s78, s73, 2", "v_xor_b32 v5, s78, v5"]]
    for dt in range(4):
        g2s.append([f"v_xor_b32 v7, {dt}, v5", f"v_lshl_add_u32 v{G_A+dt}, v7, 5, v4"])
    g2s += [["s_lshl_b32 s78, s72, 12", "s_lshl_b32 s79, s4, 11", "s_add_u32 s78, s78, s79"],
            ["v_lshrrev_b32 v4, 1, v28", "v_lshlrev_b32 v4, 8, v4"],
            ["v_lshl_add_u32 v4, v3, 4, v4", "v_and_b32 v5, 1, v28"],
            ["v_lshl_add_u32 v4, v5, 3, v4", f"v_add_u32 v{G_B}, s78, v4"],
            [f"v_xor_b32 v{G_B+1}, 0x800, v{G_B}"],
            ["v_lshlrev_b32 v23, 2, v3", "s_lshr_b32 s77, s67, 1", "s_lshl_b32 s77, s77, 7"],
            ["s_lshl_b32 s78, s4, 6", "s_add_u32 s77, s77, s78", f"s_add_u32 s77, s77, {HF_REL}"]]
    R_PX = R_MI

    def m0set(base, off):
        if isinstance(off, int):
            return [f"s_add_u32 m0, {base}, {off}", "s_nop 0"]
        return [f"s_add_u32 s3, {base}, s66", f"s_add_u32 m0, s3, {off[1]}", "s_nop 0"] if off[1] else [f"s_add_u32 m0, {base}, s66", "s_nop 0"]

    def wd2(off):
        return [m0set("s71", off) + [f"buffer_load_dwordx4 v{G_WD}, {R_WD}, s76 offen lds"],
                [f"buffer_load_dwordx4 v{G_WD+1}, {R_WD}, s76 offen offset:1024 lds", "s_add_u32 s76, s76, 0x10000"]]

    def h2(off):
        return [m0set("s74", off) + [f"buffer_load_dwordx4 v{G_H}, {R_H}, s75 offen sc1 lds"],
                [f"buffer_load_dwordx4 v{G_H+1}, {R_H}, s75 offen offset:1024 sc1 lds", "s_add_u32 s75, s75, 1024"]]

    sloc = lambda st_: ((st_ + 2) % 10) * 8192

    fl_load = f"buffer_load_dword v22, v23, {R_MI}, s77 offen sc1"

    def flag_cond():
        e("v_cmp_ne_u32 vcc, 0, v22")
        e("s_cmp_eq_u64 vcc, exec")

    R_SIG = opt.get("rsig", 3)
    wdp = sum([wd2(sloc(s_)) for s_ in range(8)], [])
    ex_by_r = {0: g2s[:10], 1: g2s[10:20], 2: g2s[20:], 4: wdp[:8], 5: wdp[8:]}
    if opt.get("cpf3", 1):
        c3_ = cpf("c", 204, "a255")
        ex_by_r[3] = [c3_[k:k+2] for k in range(0, len(c3_), 2)]
    if opt.get("wdearly"):
        ex_by_r = {0: g2s[:10], 1: wdp[:8], 2: wdp[8:], 3: g2s[10:20], 4: g2s[20:]}
    UZ = 224
    pre_z = ["v_lshlrev_b32 v12, 5, v3", "v_lshl_add_u32 v12, v28, 3, v12", f"s_add_u32 s78, s70, {2*2044 - 3584}",
             "v_sub_u32 v13, s78, v12"] + [f"ds_read_b64 {v(UZ+2*i,2)}, v13 offset:{(7-i)*512}" for i in range(8)]
    for r in range(7):
        if r == R_SIG:
            e.need("hst")
            e("s_barrier")
            signal(e, "f1", f"buffer_store_dword v1, off, {R_MI}, s80 sc1")
        cv_body(r, extra=ex_by_r.get(r), early=([I(fl_load, tag="f1")] if r == opt.get("rpoll", 6) else None))
    cv_body(7, rd=False, extra=[[x] for x in pre_z], early=([I(fl_load, tag="f1")] if opt.get("rpoll", 6) == 7 else None))
    def zmath():
        e("s_and_b32 s78, s69, 1")
        e("s_lshl_b32 s78, s78, 4")
        e("s_lshr_b32 s90, s90, s78")
        e("s_lshl_b32 s90, s90, 16")
        e("v_lshlrev_b32 v12, 5, v3")
        e("v_lshrrev_b32 v13, 1, v28")
        e("v_lshl_add_u32 v12, v13, 4, v12")
        e("v_and_b32 v13, 1, v28")
        e("v_lshl_add_u32 v12, v13, 9, v12")
        for i in range(8):
            u0, u1 = UZ + 2 * i, UZ + 2 * i + 1
            y = CA + 4 * i
            e(f"v_and_b32 v4, 0xffff0000, v{u1}")
            e(f"v_lshlrev_b32 v5, 16, v{u1}")
            e(f"v_and_b32 v6, 0xffff0000, v{u0}")
            e(f"v_lshlrev_b32 v7, 16, v{u0}")
            for q in range(4):
                e(f"v_fmac_f32 v{y+q}, s90, v{4+q}")
            e(f"v_cvt_pk_bf16_f32 v{u0}, v{y}, v{y+1}")
            e(f"v_cvt_pk_bf16_f32 v{u1}, v{y+2}, v{y+3}")
        e("s_nop 1")
        for k in range(4):
            b = UZ + 4 * k
            e(f"v_permlane16_swap_b32 v{b}, v{b+2}")
            e(f"v_permlane16_swap_b32 v{b+1}, v{b+3}")
    e.wait(lg=0)
    ZM = opt.get("zm", 0)
    if ZM:
        zmath()
    e.need("f1")
    poll(fl_load, flag_cond, "f1")
    e("s_barrier")
    stamp(e, 6)
    for s_ in range(8):
        flat(h2(sloc(s_)))
        e.mark(f"h{s_}", "v")
    if not ZM:
        zmath()
    for k in range(4):
        e(f"buffer_store_dwordx4 {v(UZ+4*k,4)}, v12, {R_ZT}, s84 offen offset:{1024*k} sc1", tag="zst")
    for q in range(4):
        e(f"v_mov_b32 v{240+q}, -1")
    e("s_lshl_b32 s83, s69, 12")
    e(f"s_add_u32 s83, s83, {PX_REL}")
    for q in range(4):
        e(f"buffer_store_dwordx4 v[240:243], v2, {R_MI}, s83 offen offset:{1024*q} sc1", tag="zst")
    stamp(e, 7)

    e.c("GEMM2")
    A2 = 64

    def acc2(dt, jj):
        return A2 + (jj * 4 + dt) * 4

    NS = 56

    def rd2(step):
        so = (step & 1) * 8192
        o = 32 * (step & (7 if step >= 48 else 3))
        d = G_D + 6 * ((step >> 1) & 1)
        al = [f"ds_read_b64_tr_b16 {a(o+4*dt+2*h,2)}, v{d+dt} offset:{so+h*4096}" for dt in range(4) for h in range(2)]
        bl = [f"ds_read_b64 {a(o+16+4*jj+2*h,2)}, v{d+4+(jj>>1)} offset:{so+(jj&1)*1024+h*512}" for jj in range(4) for h in range(2)]
        return bl[:2] + al + bl[2:]

    def adv(r_):
        return [f"s_add_u32 {r_}, {r_}, 16384", f"s_cmp_eq_u32 {r_}, {W2B}", f"s_cselect_b32 {r_}, 0, {r_}"]

    def radr(pair):
        d = G_D + 6 * (pair & 1)
        return [f"v_add_u32 v{d+4}, s7, v{G_B}"] + [f"v_add_u32 v{d+dt}, s7, v{G_A+dt}" for dt in range(4)] + [f"v_add_u32 v{d+5}, s7, v{G_B+1}"]

    fo = lambda step: 32 * (step & (7 if step >= 48 else 3))

    def mf2(step, jjs=(0, 1, 2, 3)):
        o = fo(step)
        if opt.get("m2order", 1):
            od = [(dt, jj) for dt in range(4) for jj in (jjs if dt % 2 == 0 else jjs[::-1])]
        else:
            od = [(dt, jj) for jj in jjs for dt in range(4)]
        return [f"{MF} {v(acc2(dt,jj),4)}, {a(o+4*dt,4)}, {a(o+16+4*jj,4)}, {'0' if step == 0 else v(acc2(dt,jj),4)}"
                for dt, jj in od]

    def it2(I_, vm=None, extra=None, side=None, pre=None, needs=(), mf=None):
        if vm is None:
            vm = min(63, e.vm - max(e.tag[t_][1] for t_ in needs))
        e.wait(vm=vm, lg=(15 if mf is None else 0))
        e("s_barrier")
        if pre:
            pre()
        custom = mf is not None
        mf = mf or mf2(2 * I_) + mf2(2 * I_ + 1)
        n = len(mf)
        g = []
        if 2 * I_ + 8 < NS:
            for hf in range(2):
                g += h2(("d", hf * 8192)) + wd2(("d", hf * 8192))
            g.append([lambda: e.mark(f"g{I_}", "v")])
            g.append(adv("s66"))
        g += (extra or [])
        rl = [(x, False) for x in rd2(2 * I_ + 2) + rd2(2 * I_ + 3)]
        sd = ([(adv("s7") + radr(I_ + 2), 0)] if 2 * I_ + 4 < NS else []) + ([(side, 0)] if side else [])
        slots = pack(n, mem=[x for g_ in g for x in g_], reads=rl, sides=sd, first=1, rlim=n, tail=4)
        lg0 = e.lg
        if not custom:
            slots.setdefault(n // 2 - 1, []).append(lambda: e.wait(lg=min(15, e.lg - lg0)))
        merge(e, mf, slots)

    XR, SR, ZR, PR = 32, 48, 224, 128
    fa = ["v_and_b32 v6, 1, v28", "v_lshrrev_b32 v7, 1, v28", "v_lshl_or_b32 v6, v6, 1, v7",
          "s_lshl_b32 s85, s67, 3", "s_lshl_b32 s78, s72, 2", "s_add_u32 s85, s85, s78", "s_lshl_b32 s78, s4, 1",
          "s_add_u32 s85, s85, s78",
          "s_lshl_b32 s87, s68, 1", "s_add_u32 s87, s87, s73",
          "s_lshl_b32 s78, s85, 15", "s_lshl_b32 s79, s87, 7", "s_add_u32 s78, s78, s79",
          "v_lshlrev_b32 v24, 11, v3", "v_lshl_add_u32 v24, v6, 4, v24", "v_add_u32 v24, s78, v24",
          "v_add_u32 v25, 0x8000, v24", "v_lshlrev_b32 v26, 3, v3", "s_lshl_b32 s86, s85, 7",
          "s_lshl_b32 s77, s87, 6", "v_add_u32 v23, s77, v23", "s_xor_b32 s77, s2, 1", "s_lshl_b32 s77, s77, 2",
          "v_mov_b32 v4, s77", "v_cmp_gt_u32 vcc, 16, v0", f"s_movk_i32 s77, {ZF_REL}", "s_nop 0", "v_cndmask_b32 v23, v4, v23, vcc",
          "v_lshrrev_b32 v21, 2, v0", "v_lshlrev_b32 v21, 12, v21", "v_and_b32 v27, 3, v0",
          "v_lshl_add_u32 v21, v27, 4, v21", "s_lshl_b32 s78, s87, 18", "s_lshl_b32 s79, s85, 5",
          "s_add_u32 s78, s78, s79", "v_add_u32 v21, s78, v21",
          "s_lshl_b32 s5, s64, 12", f"s_add_u32 s5, s5, {ZL}",
          "v_bfe_u32 v7, v0, 2, 2", "v_lshl_add_u32 v7, v6, 3, v7", "v_lshlrev_b32 v7, 6, v7",
          "v_lshl_add_u32 v7, v27, 3, v7", "v_add_u32 v7, s5, v7",
          "s_xor_b32 s84, s83, 0x4000"]
    e("s_movk_i32 s7, 16384")
    e("s_mov_b32 s66, 0")
    for x in radr(0) + adv("s7") + radr(1) + fa:
        e(x)
    e.need("h1")
    e("s_barrier")
    for x in rd2(0) + rd2(1):
        e(x)
    it2(0, needs=["h3"])
    it2(1, needs=["h5"])
    it2(2, needs=["h7"])
    it2(3, needs=["g0", "zst"], pre=lambda: signal(e, "f2", f"buffer_store_dword v1, off, {R_MI}, s81 sc1"))
    stamp(e, 1)
    e("s_mov_b32 s82, 0")
    e.label("L_g2_loop")
    for I_ in (4, 5):
        it2(I_, vm=16)
    e("s_add_u32 s82, s82, 1")
    e("s_cmp_lt_u32 s82, 10")
    e("s_cbranch_scc1 L_g2_loop")
    for k in range(3):
        e.tag[f"g{21+k}"] = ("v", e.vm - 8 * (2 - k))
    e.vm_done = 0
    stamp(e, 5)
    ex = [[fl_load, lambda: e.mark("zf", "v")]]
    for e2 in range(2):
        for pr in range(2):
            ex.append([f"buffer_load_dwordx4 {v(XR+4*(2*e2+pr),4)}, v{24+e2}, {R_X}, 0 offen offset:{64*pr}"])
        ex.append([f"buffer_load_dwordx2 {v(SR+2*e2,2)}, v26, {R_MI}, s86 offen offset:{ST_REL+128*e2} sc1"])
    zd = [["s_mov_b32 m0, s5", f"buffer_load_dwordx4 v21, {R_ZT}, 0 offen sc1 lds"]]
    for i in range(1, 4):
        zd.append([f"s_mov_b32 s78, {i*(65536-1024)}", f"buffer_load_dwordx4 v21, {R_ZT}, s78 offen offset:{1024*i} sc1 lds"])
    if opt.get("tail8", 0):
        it2(24, needs=["g21"], extra=ex, mf=mf2(48, (2, 3)) + mf2(49, (2, 3)) + mf2(48, (0,)))
        it2(25, needs=["g22"], mf=mf2(50, (2, 3)) + mf2(51, (2, 3)) + mf2(48, (1,)))
        it2(26, needs=["g23", "zf"], pre=lambda: poll(fl_load, flag_cond, "f2"), extra=zd,
            mf=mf2(52, (2, 3)) + mf2(53, (2, 3)) + mf2(49, (0, 1)))
        own = sum([mf2(s_, (0, 1)) for s_ in range(50, 56)], [])
    else:
        it2(24, needs=["g21"], extra=ex)
        it2(25, needs=["g22"])
        it2(26, needs=["g23", "zf"], pre=lambda: poll(fl_load, flag_cond, "f2"), extra=zd,
            mf=mf2(52, (2, 3)) + mf2(53, (2, 3)) + mf2(52, (0, 1)))
        own = mf2(53, (0, 1)) + mf2(54, (0, 1)) + mf2(55, (0, 1))
    e.wait(lg=0)
    for x in mf2(54, (2, 3)) + mf2(55, (2, 3)):
        e(x)
    stamp(e, 8)
    O0 = acc2(0, 2)
    PS = 144
    slots = {0: ["s_nop 3"]}
    for q in range(16):
        slots.setdefault(4 + q // 2, []).append(f"v_cvt_pk_bf16_f32 v{PS+q}, v{O0+2*q}, v{O0+2*q+1}")
    for q in range(4):
        slots.setdefault(6 + 2 * q, []).append(f"buffer_store_dwordx4 {v(PS+4*q,4)}, v2, {R_PX}, s83 offen offset:{1024*q} sc1")
    slots.setdefault(14, []).append(lambda: e.wait(vm=4))
    for k, (e2, pr, hh) in enumerate([(a_, b_, c_) for a_ in range(2) for b_ in range(2) for c_ in range(2)]):
        slots.setdefault(15 + k, []).append(f"ds_read_b64_tr_b16 {v(ZR+4*(2*e2+pr)+2*hh,2)}, v7 offset:{(32*pr+4*hh)*64 + 32*e2}")
    merge(e, own, slots)
    pld = [f"buffer_load_dwordx4 {v(PR+4*q,4)}, v2, {R_PX}, s84 offen offset:{1024*q} sc1" for q in range(4)]
    e.wait(lg=0)
    e("s_nop 6")
    for e2 in range(2):
        st = SR + 2 * e2
        for pr in range(2):
            i = 2 * e2 + pr
            if i == opt.get("pfi", 0):
                for x in pld:
                    e(x)
            A0 = acc2(2 * pr, e2)
            for r in range(4):
                e(f"v_permlane16_swap_b32 v{A0+r}, v{A0+4+r}")
            for q in range(4):
                unpack(e, 52, XR + 4 * i + q)
                unpack(e, 56, ZR + 4 * i + q)
                e(f"v_pk_add_f32 v[54:55], v[52:53], {v(st,2)} op_sel_hi:[1,0]")
                e(f"v_pk_add_f32 {v(A0+2*q,2)}, {v(A0+2*q,2)}, v[52:53]")
                e(f"v_pk_mul_f32 v[54:55], v[54:55], {v(st,2)} op_sel:[0,1] op_sel_hi:[1,1]")
                e(f"v_pk_fma_f32 {v(A0+2*q,2)}, v[54:55], v[56:57], {v(A0+2*q,2)}")
    e("s_mov_b32 s82, 0")
    e.label("L_px_chk")
    e.wait(vm=0)
    e(f"v_max3_u32 v52, v{PR}, v{PR+1}, v{PR+2}")
    for q in range(3, 15, 2):
        e(f"v_max3_u32 v52, v52, v{PR+q}, v{PR+q+1}")
    e(f"v_max_u32 v52, v52, v{PR+15}")
    e("v_cmp_ne_u32 vcc, -1, v52")
    e("s_cmp_eq_u64 vcc, exec")
    e("s_cbranch_scc1 L_px_ok")
    for x in pld:
        e.l.append("    " + x)
    e("s_add_u32 s82, s82, 1")
    e(f"s_cmp_lt_u32 s82, {SPIN_LIMIT}")
    e("s_cbranch_scc1 L_px_chk")
    e.l.append("    s_waitcnt vmcnt(0)")
    e.label("L_px_ok")
    stamp(e, 9)
    for i in range(4):
        e2, pr = i >> 1, i & 1
        A0 = acc2(2 * pr, e2)
        b = PR + 4 * i
        e(f"v_permlane16_swap_b32 v{b}, v{b+2}")
        e(f"v_permlane16_swap_b32 v{b+1}, v{b+3}")
        for q in range(4):
            unpack(e, 52 + 2 * q, b + q)
        for q in range(4):
            e(f"v_pk_add_f32 {v(A0+2*q,2)}, {v(A0+2*q,2)}, {v(52+2*q,2)}")
        for q in range(4):
            e(f"v_cvt_pk_bf16_f32 v{96+4*i+q}, v{A0+2*q}, v{A0+2*q+1}")
        e(f"buffer_store_dwordx4 {v(96+4*i,4)}, v{24+e2}, {R_OUT}, 0 offen offset:{64*pr} sc1")
    stamp(e, 10)
    if STAMPS or DST:
        e.wait(vm=0)
    stamp(e, 11)
    e.label("L_end")
    name = NAME + "_kernel"
    return f""".globl {name}
.p2align 8
.type {name},@function
{name}:
{e.text()}    s_endpgm
.section .rodata,"a"
.p2align 6
.amdhsa_kernel {name}
  .amdhsa_next_free_vgpr 512
  .amdhsa_next_free_sgpr 102
  .amdhsa_accum_offset 256
  .amdhsa_group_segment_fixed_size 0
  .amdhsa_kernarg_size 104
  .amdhsa_user_sgpr_count 2
  .amdhsa_user_sgpr_kernarg_segment_ptr 1
  .amdhsa_system_sgpr_workgroup_id_x 1
  .amdhsa_float_denorm_mode_32 3
.end_amdhsa_kernel
"""


def main(opt=None):
    opt = opt or {}
    ref = open("cdna_kernels/" + NAME + ".s.ref").read().split("\n")
    hdr = [l for l in ref if l.startswith(";") and "@launch" not in l]
    out = "\n".join(hdr) + "\n"
    out += f"; @launch grid=(256,1,1) block=(256,1,1) lds={LDS_SIZE}\n"
    out += '.amdgcn_target "amdgcn-amd-amdhsa--gfx950"\n.text\n'
    out += gen(opt)
    return out


if __name__ == "__main__":
    args = [x for x in sys.argv[1:] if not x.startswith("-")]
    opt = {}
    for x in sys.argv[1:]:
        if x == "-stamps":
            STAMPS = True
        elif x == "-light":
            STAMPS = LIGHT = True
        elif x.startswith("-dst"):
            DST = int(x.split("=")[1])
        elif x.startswith("-"):
            k, _, val = x[1:].partition("=")
            opt[k] = int(val) if val else 1
    path = args[0] if args else "cdna_kernels/" + NAME + ".s"
    open(path, "w").write(main(opt))
    print("wrote", path)
```

```python
import sys

NAME = "parallel_sum__ssm_conv_h3__swiglu_ffn__prompt"
S, D, F = 2048, 1024, 3584
KA_Q, KA_K, KA_V, KA_SHK, KA_SSMK, KA_SSMD, KA_BX, KA_WG, KA_WU, KA_WD, KA_OUT, KA_DBG, KA_WS = [8 * i for i in range(13)]

MISC_OFF = 0
ST_REL = 0
HF_REL = 16384
ZF_REL = 16384 + 1024
KF_REL = 16384 + 2048
CS_REL = 32768
PF_REL = CS_REL + 32 * 12288
PX_REL = 1 << 20
MISC_SIZE = PX_REL + (4 << 20)
UR_OFF = 6 << 20
UR_PITCH = 4096 + 128
UR_SIZE = D * UR_PITCH
ZT_OFF = 11 << 20
ZT_SIZE = S * D * 2
H_OFF = 16 << 20
H_SIZE = S * F * 2
H_SB = 112 * 1024
STAMP_OFF = 64 << 20

LDS_SIZE = 163840
XWREG = 24576
WB = 4 * XWREG
CV_CP = 4160
CV_HZ = 4 * CV_CP
CV_H = CV_HZ + 512
WSTEP = 32 * 7168
SPIN_LIMIT = 200000

STAMPS = False


class E:
    def __init__(self):
        self.l = []
        self.vm = 0
        self.vm_done = 0
        self.lg = 0
        self.lg_done = 0
        self.tag = {}

    def __call__(self, s, tag=None):
        for ln in s.strip("\n").split("\n"):
            ln = ln.strip()
            if ln.startswith("buffer_"):
                if ln.endswith(" lds") and self.l and " m0," in self.l[-1]:
                    self.l.append("    s_nop 0")
                self.vm += 1
                if tag:
                    self.tag[tag] = ("v", self.vm)
            elif ln.startswith("ds_"):
                self.lg += 1
                if tag:
                    self.tag[tag] = ("l", self.lg)
            self.l.append("    " + ln)

    def mark(self, tag, kind):
        self.tag[tag] = (kind, self.vm if kind == "v" else self.lg)

    def need(self, *tags):
        nv = max([self.tag[t][1] for t in tags if self.tag[t][0] == "v"] + [0])
        nl = max([self.tag[t][1] for t in tags if self.tag[t][0] == "l"] + [0])
        w = []
        if nv > self.vm_done:
            n = min(self.vm - nv, 63)
            w.append(f"vmcnt({n})")
            self.vm_done = self.vm - n
        if nl > self.lg_done:
            n = min(self.lg - nl, 15)
            w.append(f"lgkmcnt({n})")
            self.lg_done = self.lg - n
        if w:
            self.l.append("    s_waitcnt " + " ".join(w))

    def wait(self, vm=None, lg=None):
        w = []
        if vm is not None:
            w.append(f"vmcnt({vm})")
            self.vm_done = max(self.vm_done, self.vm - vm)
        if lg is not None:
            w.append(f"lgkmcnt({lg})")
            self.lg_done = max(self.lg_done, self.lg - lg)
        self.l.append("    s_waitcnt " + " ".join(w))

    def label(self, s):
        self.l.append(s + ":")

    def c(self, s):
        self.l.append("    ; " + s)

    def text(self):
        return "\n".join(self.l) + "\n"


def v(i, n=1):
    return f"v{i}" if n == 1 else f"v[{i}:{i+n-1}]"


def a(i, n=1):
    return f"a{i}" if n == 1 else f"a[{i}:{i+n-1}]"


DST = False
LIGHT = False
DMAP = {2: 2, 12: 3, 14: 4, 15: 5, 13: 6, 3: 7, 4: 8, 5: 9, 6: 10, 7: 11, 8: 12, 9: 13, 10: 14, 11: 15}


def stamp(e, i):
    if DST and i in DMAP:
        e("s_memrealtime s[96:97]")
        e.wait(lg=0)
        e("s_sub_u32 s96, s96, s98")
        e(f"v_writelane_b32 v31, s96, {DMAP[i]}")
        if i == 11:
            e(f"s_cmp_lg_u32 s69, {DST}")
            e("s_cbranch_scc1 L_end")
            e("v_lshlrev_b32 v30, 2, v0")
            e("s_mov_b64 exec, 0xfffc")
            e("buffer_store_dword v31, v30, s[40:43], 0 offen")
        return
    if not STAMPS or (LIGHT and i not in (3, 7, 11)):
        return
    e("s_memrealtime s[96:97]")
    e("s_memtime s[98:99]")
    e.wait(lg=0)
    e("v_mov_b32 v30, s96")
    e("v_mov_b32 v31, s98")
    e(f"buffer_store_dwordx2 v[30:31], off, s[92:95], s100 offset:{8*i}")


def unpack(e, dst, src):
    e(f"v_lshlrev_b32 v{dst}, 16, v{src}")
    e(f"v_and_b32 v{dst+1}, 0xffff0000, v{src}")


def allreduce32(e, r, t):
    e("s_nop 1")
    for m in ("quad_perm:[1,0,3,2]", "quad_perm:[2,3,0,1]", "row_half_mirror", "row_mirror"):
        e(f"v_add_f32_dpp v{r}, v{r}, v{r} {m} row_mask:0xf bank_mask:0xf")
        e("s_nop 1")
    e(f"v_mov_b32 v{t}, v{r}")
    e("s_nop 1")
    e(f"v_permlane16_swap_b32 v{r}, v{t}")
    e("s_nop 1")
    e(f"v_add_f32 v{r}, v{r}, v{t}")


def round_bf16(e, r):
    e(f"v_cvt_pk_bf16_f32 v{r}, v{r}, v{r}")
    e(f"v_lshlrev_b32 v{r}, 16, v{r}")


R_X, R_WG, R_WU, R_H, R_UR, R_SK, R_ZT, R_MI, R_DB, R_WD, R_OUT, R_K, R_V, R_SH = [f"s[{8+4*i}:{11+4*i}]" for i in range(14)]
MF = "v_mfma_f32_16x16x32_bf16"


def merge(e, mf, slots):
    def do(x):
        if callable(x):
            x()
        else:
            e(x)
    for i, m in enumerate(mf):
        e(m)
        for x in slots.get(i, []):
            do(x)
    for k in sorted(slots):
        if k >= len(mf):
            for x in slots[k]:
                do(x)


def _ins(x):
    return x if isinstance(x, str) else getattr(x, "ins", None)


def _cost(x):
    s_ = _ins(x)
    if s_ is None:
        return 0
    if s_.startswith("ds_"):
        return 8
    if s_.startswith("s_nop"):
        return 4 * (int(s_.split()[1]) + 1)
    if s_.split()[0] in ("v_exp_f32", "v_rcp_f32", "v_sqrt_f32"):
        return 8
    return 4


def _isv(x):
    s_ = _ins(x)
    return s_ is not None and s_.startswith("v_")


def _ismem(x):
    s_ = _ins(x)
    return s_ is not None and (s_.startswith("buffer_") or s_.startswith("global_"))


def units(seq, dropnop=False):
    out = []
    for x in seq:
        s_ = _ins(x)
        if dropnop and s_ == "s_nop 0":
            continue
        if out and (s_ is None or s_.split()[0] in ("s_cselect_b32", "s_cselect_b64", "s_addc_u32")):
            out[-1].append(x)
        else:
            out.append([x])
    return out


def pack(n, mem=(), reads=(), sides=(), head=(), first=1, rlim=None, tail=8, minsp=4):
    load = [0] * (n + 1)
    vload = [0] * (n + 1)
    nv = [[] for _ in range(n + 1)]
    vv = [[] for _ in range(n + 1)]
    load[n - 1] += tail

    def put(g, u, front=False):
        g = min(g, n)
        c = sum(_cost(x) for x in u)
        load[g] += c
        if any(_isv(x) for x in u):
            vload[g] += c
        if front:
            nv[g] = list(u) + nv[g]
        else:
            vv[g].extend(u)
    pos = -1
    for u in units(head):
        pos += 1
        put(pos, u)
    hpos = pos
    mu = units(mem, dropnop=True)
    nm = sum(1 for u in mu if any(_ismem(x) for x in u))
    sp = max(1.0, min(7.0, (n - (0 if n <= 32 else first + 1.0)) / max(1, nm)))
    pos = hpos
    k = 0
    lastm = -99
    for idx, u in enumerate(mu):
        if any(_ismem(x) for x in u):
            pos = max(pos + 1, int(first + k * sp), lastm + min(minsp, int(sp)))
            lastm = pos
            k += 1
        else:
            nxt = next((j for j in range(idx, len(mu)) if any(_ismem(x) for x in mu[j])), None)
            want = int(first + k * sp) - (nxt - idx) if nxt is not None else pos + 1
            pos = max(pos + 1, want)
        put(pos, u)
    rlim = n if rlim is None else rlim
    pos = 0
    nr = len(reads)
    for k, (x, after_head) in enumerate(reads):
        if after_head:
            pos = max(pos, hpos + 1)
        remaining = nr - k
        while pos < rlim and load[pos] + 8 > 12 and sum(1 for g in range(pos + 1, rlim) if load[g] + 8 <= 12) >= remaining:
            pos += 1
        g = min(pos, rlim - 1)
        load[g] += 8
        nv[g].append(x)
        if load[g] + 8 > 12 and sum(1 for q in range(g + 1, rlim)) >= remaining - 1:
            pos = g + 1
    for side, s0 in sides:
        su = units(side)
        prev = s0
        for k, u in enumerate(su):
            c = sum(_cost(x) for x in u)
            isv = any(_isv(x) for x in u)
            tgt = max(prev, s0 + (k * (n - s0)) // len(su) - 2)
            hi = min(n - 1, s0 + (k * (n - s0)) // len(su) + 3)
            cand = [g for g in range(tgt, hi + 1) if load[g] + c <= 12 and (not isv or vload[g] + c <= 8)]
            g = cand[0] if cand else min(range(tgt, hi + 1), key=lambda q: (max(load[q] + c - 12, (vload[q] + c - 8) if isv else -99) - max(load[q] - 12, vload[q] - 8, 0), q))
            put(g, u)
            prev = g
    return {g: nv[g] + vv[g] for g in range(n + 1) if nv[g] or vv[g]}


def signal(e, lab, ins):
    e("s_cmp_lg_u32 s64, 0")
    e(f"s_cbranch_scc1 L_{lab}_nosig")
    e("v_mov_b32 v1, 1")
    e("s_mov_b64 exec, 1")
    e.l.append("    " + ins)
    e("s_mov_b64 exec, -1")
    e.label(f"L_{lab}_nosig")


def gen(opt):
    e = E()
    ACC = 32

    AC6 = 180

    def acc(ai, j):
        t, m = ai % 7, ai // 7
        assert t < 6
        return ACC + ((m * 6 + t) * 4 + j) * 4

    def accr(ai, j):
        if ai % 7 == 6:
            return a(AC6 + (ai // 7) * 16 + 4 * j, 4)
        return v(acc(ai, j), 4)
    FA = [0, 72]
    CSF, CSS, CSA = 144, 160, 176

    e("s_cmp_ge_u32 s2, 256")
    e("s_cbranch_scc1 L_end")
    if STAMPS:
        e("s_memrealtime s[96:97]")
        e("s_memtime s[98:99]")
    if opt.get("x_thr"):
        e("s_memrealtime s[98:99]")
    if DST:
        e("s_memrealtime s[98:99]")
        e("v_mov_b32 v31, 0")
    for reg, off in ((8, KA_Q), (12, KA_WG), (16, KA_WU), (88, KA_WS), (28, KA_SSMK), (40, KA_DBG), (44, KA_WD),
                     (48, KA_OUT), (52, KA_K), (56, KA_V), (60, KA_SHK), (86, KA_SSMD)):
        e(f"s_load_dwordx2 s[{reg}:{reg+1}], s[0:1], {off}")
    if opt.get("cpf", 1):
        e("s_getpc_b64 s[82:83]")
        e.label("L_pc")
        e("s_lshr_b32 s78, s2, 3")
        e("s_and_b32 s78, s78, 3")
        e("s_lshl_b32 s78, s78, 14")
        e("v_lshlrev_b32 v50, 6, v0")
        e("v_add_u32 v50, s78, v50")
        e("v_min_u32 v50, L_end-L_pc, v50")
        e("v_mov_b32 v51, s83")
        e("v_add_co_u32 v50, vcc, s82, v50")
        e("s_nop 1")
        e("v_addc_co_u32 v51, vcc, 0, v51, vcc")
        e.l.append("    global_load_dword a255, v[50:51], off")
        e.vm += 1
    e("v_lshrrev_b32 v1, 6, v0")
    e("v_mov_b32 v29, v0")
    e("v_and_b32 v0, 63, v0")
    e("v_readfirstlane_b32 s64, v1")
    e("v_lshlrev_b32 v2, 4, v0")
    for reg, size in ((8, S * D * 2), (12, D * F * 2), (16, D * F * 2)):
        e(f"s_mov_b32 s{reg+2}, 0x{size:x}")
        e(f"s_mov_b32 s{reg+3}, 0x20000")
    e("s_and_b32 s6, s2, 7")
    e("s_lshr_b32 s7, s2, 3")
    if opt.get("map1", 0) == 3:
        e("s_mov_b32 s65, s6")
        e("s_mov_b32 s66, s7")
    elif opt.get("map1", 0) == 1:
        e("s_and_b32 s65, s7, 3")
        e("s_lshl_b32 s65, s65, 1")
        e("s_and_b32 s78, s6, 1")
        e("s_add_u32 s65, s65, s78")
        e("s_lshr_b32 s66, s7, 2")
        e("s_lshr_b32 s78, s6, 1")
        e("s_lshl_b32 s78, s78, 3")
        e("s_add_u32 s66, s66, s78")
    elif opt.get("map1", 0) == 2:
        e("s_and_b32 s65, s7, 1")
        e("s_lshl_b32 s65, s65, 2")
        e("s_and_b32 s78, s6, 3")
        e("s_add_u32 s65, s65, s78")
        e("s_lshr_b32 s66, s7, 1")
        e("s_lshr_b32 s78, s6, 2")
        e("s_lshl_b32 s78, s78, 4")
        e("s_add_u32 s66, s66, s78")
    else:
        e("s_and_b32 s65, s7, 7")
        e("s_lshr_b32 s66, s7, 3")
        e("s_lshl_b32 s78, s6, 2")
        e("s_add_u32 s66, s66, s78")
    e(f"s_mul_i32 s70, s64, {XWREG}")
    e("s_lshl_b32 s71, s64, 11")
    e(f"s_add_u32 s71, s71, {WB}")
    NCS = 8
    e("s_lshr_b32 s3, s65, 1")
    e(f"s_mul_i32 s72, s3, {NCS*WSTEP}")
    e("s_add_u32 s73, s72, 27648")
    e("v_lshrrev_b32 v22, 4, v0")
    e("v_bfe_u32 v23, v0, 1, 3")
    e("s_and_b32 s78, s64, 1")
    e("s_lshl_b32 s78, s78, 2")
    e("v_or_b32 v24, s78, v22")
    e("v_xor_b32 v23, v23, v24")
    e("v_and_b32 v25, 1, v0")
    e("s_lshl_b32 s78, s64, 3")
    e("v_lshlrev_b32 v3, 5, v23")
    e("v_lshl_add_u32 v3, v25, 4, v3")
    e("v_add_u32 v26, s78, v22")
    e("v_mul_u32_u24 v27, 7168, v26")
    e("v_add_u32 v3, v3, v27")
    e("s_mul_i32 s78, s66, 224")
    e("v_add_u32 v3, s78, v3")
    e("v_cmp_eq_u32 vcc, 7, v23")
    e("v_mov_b32 v27, 0x80000000")
    e("v_lshlrev_b32 v28, 8, v26")
    e("v_cndmask_b32 v3, v3, v27, vcc")
    e("v_lshl_add_u32 v28, v23, 5, v28")
    e("v_lshl_add_u32 v28, v25, 4, v28")
    e("v_lshrrev_b32 v23, 3, v0")
    e("v_and_b32 v24, 7, v0")
    e("v_xor_b32 v24, v24, v22")
    e("s_lshl_b32 s78, s65, 19")
    e("s_lshl_b32 s79, s64, 17")
    e("s_add_u32 s78, s78, s79")
    e("v_lshlrev_b32 v4, 11, v23")
    e("v_add_u32 v4, s78, v4")
    e("v_xor_b32 v25, 4, v24")
    e("v_lshl_add_u32 v5, v25, 4, v4")
    e("v_lshl_add_u32 v4, v24, 4, v4")
    e("v_add_u32 v5, 15360, v5")
    e("v_add_u32 v6, 30720, v4")
    e("v_add_u32 v7, 30720, v5")
    e(f"s_mul_i32 s77, s3, {NCS*64}")
    e("s_add_u32 s76, s70, 16384")
    e(f"s_add_u32 s91, s70, {XWREG}")

    wstep = [0]

    def wdma(u, aug=False):
        g = []
        nt = " nt" if (opt.get("ntw", 0) == 2 or (opt.get("ntw", 0) == 1 and wstep[0] < NCS)) else ""
        wstep[0] += 1
        if aug:
            g.append([f"s_add_u32 m0, s71, {u*16384}", "s_nop 0", f"buffer_load_dwordx4 v28, {R_MI}, 0 offen sc1 lds"])
            g.append([f"buffer_load_dwordx4 v28, {R_MI}, 0 offen offset:1024 sc1 lds"])
            g.append([f"s_add_u32 m0, s71, {u*16384+8192}", "s_movk_i32 s78, 6144", f"buffer_load_dwordx4 v28, {R_MI}, s78 offen sc1 lds"])
            g.append([f"buffer_load_dwordx4 v28, {R_MI}, s78 offen offset:1024 sc1 lds"])
            return g
        g.append([f"s_add_u32 m0, s71, {u*16384}", "s_nop 0", f"buffer_load_dwordx4 v3, {R_WG}, s72 offen{nt} lds"])
        g.append([f"buffer_load_dwordx4 v3, {R_WG}, s73 offen offset:1024{nt} lds"])
        g.append([f"s_add_u32 m0, s71, {u*16384+8192}", "s_nop 0", f"buffer_load_dwordx4 v3, {R_WU}, s72 offen{nt} lds"])
        g.append([f"buffer_load_dwordx4 v3, {R_WU}, s73 offen offset:1024{nt} lds", f"s_add_u32 s72, s72, {WSTEP}"])
        g.append([f"s_cmp_eq_u32 s72, {32*WSTEP}", "s_cselect_b32 s72, 0, s72", "s_add_u32 s73, s72, 27648"])
        return g

    def xdma(hf):
        g = []
        if hf == 0:
            g.append(["s_mov_b32 m0, s76", "s_nop 0", f"buffer_load_dwordx4 v4, {R_X}, s77 offen lds"])
            so = "s77"
        else:
            g.append(["s_add_u32 m0, s76, 4096", "s_add_u32 s79, s77, 0x10000", f"buffer_load_dwordx4 v4, {R_X}, s79 offen lds"])
            so = "s79"
        for q in range(1, 4):
            g.append([f"buffer_load_dwordx4 v{4+q}, {R_X}, {so} offen offset:{1024*q} lds"])
        if hf == 1:
            g[-1] += ["s_add_u32 s77, s77, 128", "s_and_b32 s77, s77, 0x7ff"]
            g.append(["s_add_u32 s76, s76, 8192", "s_cmp_eq_u32 s76, s91", "s_cselect_b32 s76, s70, s76"])
        return g

    def flat(gs):
        for g in gs:
            for x in g:
                e(x)

    e.wait(lg=0)
    XS = 224
    flat(wdma(0)); flat(xdma(0)); flat(xdma(1)); e.mark("w0", "v")
    flat(wdma(1)); e.mark("w1", "v")
    e("s_lshl_b32 s69, s2, 2")
    e("s_add_u32 s69, s69, s64")
    e("s_lshr_b32 s78, s69, 1")
    e("s_lshl_b32 s78, s78, 2")
    e("s_load_dword s90, s[86:87], s78")
    flat(xdma(0)); flat(xdma(1)); flat(wdma(2)); e.mark("w2", "v")
    xsl = [[f"buffer_load_dwordx4 {v(XS+4*j,4)}, v245, {R_X}, 0 offen offset:{512*j}"] for j in range(4)]
    xsl[-1].append(lambda: e.mark("xs", "v"))
    KVM = 1
    KR, VR, WR = [212 + 4 * i for i in range(7)], [240 + 4 * i for i in range(4)], [152, 156, 168, 172]
    kaddr = [(249, 2048), (250, 0), (250, 2048), (248, 0), (248, 2048), (251, 0), (251, 2048)]
    ntk = " nt" if opt.get("ntkv", 1) else ""
    kvl = [[f"buffer_load_dwordx4 {a(VR[i],4)}, v{r}, {R_V}, 0 offen offset:{o}{ntk}"] for i, (r, o) in enumerate(kaddr[3:])]
    kvl += [[f"buffer_load_dwordx4 {a(KR[i],4)}, v{r}, {R_K}, 0 offen offset:{o}{ntk}"] for i, (r, o) in enumerate(kaddr)]
    kvl[-1].append(lambda: e.mark("kv", "v"))
    if STAMPS:
        e(f"s_add_u32 s92, s88, 0x{STAMP_OFF:x}")
        e("s_addc_u32 s93, s89, 0")
        e("s_mov_b32 s94, 0x100000")
        e("s_mov_b32 s95, 0x20000")
        e("s_lshl_b32 s100, s69, 7")
        e("v_mov_b32 v30, s96")
        e("v_mov_b32 v31, s98")
        e("buffer_store_dwordx2 v[30:31], off, s[92:95], s100")
    d0 = []
    for reg, off, size in [(36, MISC_OFF, MISC_SIZE), (20, H_OFF, H_SIZE), (24, UR_OFF, UR_SIZE), (32, ZT_OFF, ZT_SIZE)]:
        d0 += [f"s_add_u32 s{reg}, s88, 0x{off:x}", f"s_addc_u32 s{reg+1}, s89, 0", f"s_mov_b32 s{reg+2}, 0x{size:x}", f"s_mov_b32 s{reg+3}, 0x20000"]
    for reg, size in ((52, S * D * 2), (56, S * D * 2), (28, D * S * 2), (40, 256), (44, F * D * 2), (48, S * D * 2), (60, D * 8)):
        d0 += [f"s_mov_b32 s{reg+2}, 0x{size:x}", f"s_mov_b32 s{reg+3}, 0x20000"]
    d0 += ["s_bfe_u32 s67, s6, 0x10001", "s_lshl_b32 s67, s67, 3", "s_and_b32 s78, s7, 7", "s_add_u32 s67, s67, s78",
           "s_lshr_b32 s68, s6, 2", "s_lshl_b32 s68, s68, 2", "s_lshr_b32 s78, s7, 3", "s_add_u32 s68, s68, s78",
           "s_mul_i32 s78, s66, 12288", f"s_add_u32 s78, s78, {CS_REL}", "s_cmp_eq_u32 s64, 3",
           "s_cselect_b32 s78, 0x80000000, s78", "v_add_u32 v28, s78, v28",
           "s_and_b32 s4, s2, 31", "s_lshr_b32 s5, s2, 5"]
    d1 = ["s_lshl_b32 s78, s4, 17", "s_lshl_b32 s3, s5, 8", "s_add_u32 s78, s78, s3", "s_and_b32 s3, s64, 1",
          "s_lshl_b32 s3, s3, 7", "s_add_u32 s78, s78, s3", "s_lshr_b32 s3, s64, 1", "s_lshl_b32 s3, s3, 16",
          "s_add_u32 s78, s78, s3", "v_and_b32 v224, 7, v0", "v_lshrrev_b32 v248, 3, v0", "v_lshlrev_b32 v248, 13, v248",
          "v_lshl_add_u32 v248, v224, 4, v248", "v_add_u32 v248, s78, v248", "v_add_u32 v249, 0xffffe000, v248",
          "v_add_u32 v250, 0xfffff000, v248", "v_add_u32 v251, 0x1000, v248",
          "s_lshl_b32 s78, s65, 5", "s_add_u32 s78, s78, s66", "s_lshl_b32 s78, s78, 2", f"s_add_u32 s80, s78, {HF_REL}",
          "s_lshl_b32 s78, s2, 2", f"s_add_u32 s81, s78, {ZF_REL}",
          "v_mov_b32 v225, s80", "v_cmp_eq_u32 vcc, 1, v29", "v_mov_b32 v226, 0x80000000", "v_mov_b32 v227, s81",
          "v_cndmask_b32 v227, v227, v225, vcc", "v_mov_b32 v228, 0", "v_cmp_gt_u32 vcc, 2, v29",
          "v_lshrrev_b32 v229, 5, v29", "v_and_b32 v230, 31, v29", "v_cndmask_b32 v227, v226, v227, vcc",
          "s_lshl_b32 s78, s2, 14", "v_lshlrev_b32 v245, 11, v229", "v_lshl_add_u32 v245, v230, 4, v245",
          "v_add_u32 v245, s78, v245", "s_lshl_b32 s78, s2, 6", "v_cmp_eq_u32 vcc, 0, v230",
          "v_lshlrev_b32 v244, 3, v229", "v_add_u32 v244, s78, v244", "v_cndmask_b32 v244, v226, v244, vcc"]
    fz_store = [f"buffer_store_dword v228, v227, {R_MI}, 0 offen sc1"]
    e("v_bfe_u32 v24, v0, 2, 2")
    e("v_and_b32 v25, 3, v0")
    e("v_lshl_add_u32 v26, v22, 3, v24")
    e("v_lshlrev_b32 v26, 8, v26")
    e("v_lshl_add_u32 v26, v25, 3, v26")
    e(f"v_add_u32 v26, {WB}, v26")
    e("v_and_b32 v27, 1, v22")
    e("v_lshl_or_b32 v27, v27, 2, v24")
    for t in range(7):
        e(f"v_xor_b32 v1, {t}, v27")
        e(f"v_lshl_add_u32 v{8+t}, v1, 5, v26")
    e("s_lshr_b32 s78, s64, 1")
    e("s_lshl_b32 s78, s78, 13")
    e("v_add_u32 v26, s78, v26")
    e("s_and_b32 s78, s64, 1")
    e("s_lshl_b32 s78, s78, 1")
    e("s_and_b32 s79, s65, 1")
    e("s_add_u32 s78, s78, s79")
    e("s_lshl_b32 s85, s78, 1")
    e("v_xor_b32 v27, s85, v27")
    for q in range(2):
        e(f"v_xor_b32 v1, {q}, v27")
        e(f"v_lshl_add_u32 v{18+q}, v1, 5, v26")
    e("v_and_b32 v24, 15, v0")
    e("v_lshrrev_b32 v25, 1, v24")
    e("v_xor_b32 v25, v25, v22")
    e("v_lshlrev_b32 v15, 7, v24")
    e("v_lshl_add_u32 v15, v25, 4, v15")
    e("v_add_u32 v15, s70, v15")
    e("v_xor_b32 v16, 64, v15")
    e("v_and_b32 v24, 3, v0")
    e("v_mov_b32 v25, 0x3f803f80")
    for q in range(2):
        e(f"v_cmp_eq_u32 vcc, {q}, v24")
        e("s_nop 1")
        e("v_cndmask_b32 v26, 0, v25, vcc")
        for r in range(4):
            e(f"v_accvgpr_write_b32 a{CSS+4*q+r}, v26")
    e.need("w0")
    e.wait(lg=0)
    e("s_barrier")
    stamp(e, 2)

    def ared(r, tmp):
        o = []
        for m in ("quad_perm:[1,0,3,2]", "quad_perm:[2,3,0,1]", "row_half_mirror", "row_mirror"):
            o += ["s_nop 1", f"v_add_f32_dpp v{r}, v{r}, v{r} {m} row_mask:0xf bank_mask:0xf"]
        o += [f"v_mov_b32 v{tmp}, v{r}", "s_nop 1", f"v_permlane16_swap_b32 v{r}, v{tmp}", "s_nop 1", f"v_add_f32 v{r}, v{r}, v{tmp}"]
        return o
    rb = lambda r: [f"v_cvt_pk_bf16_f32 v{r}, v{r}, v{r}", f"v_lshlrev_b32 v{r}, 16, v{r}"]
    sts = [f"v_lshlrev_b32 v240, 16, v{XS}", f"v_and_b32 v241, 0xffff0000, v{XS}"]
    for i in range(1, 16):
        sts += [f"v_lshlrev_b32 v242, 16, v{XS+i}", f"v_and_b32 v243, 0xffff0000, v{XS+i}",
                "v_add_f32 v240, v240, v242", "v_add_f32 v241, v241, v243"]
    sts += ["v_add_f32 v246, v240, v241"] + ared(246, 242) + ["v_mul_f32 v246, 0xba800000, v246"]
    for i in range(16):
        sts += [f"v_lshlrev_b32 v242, 16, v{XS+i}", f"v_and_b32 v243, 0xffff0000, v{XS+i}",
                "v_add_f32 v242, v242, v246", "v_add_f32 v243, v243, v246"]
        sts += (["v_mul_f32 v240, v242, v242", "v_mul_f32 v241, v243, v243"] if i == 0 else
                ["v_fmac_f32 v240, v242, v242", "v_fmac_f32 v241, v243, v243"])
    sts += ["v_add_f32 v247, v240, v241"] + ared(247, 242) + ["v_mul_f32 v247, 0x3a800000, v247"] + rb(247)
    sts += ["v_add_f32 v247, 0x3727c5ac, v247"] + rb(247) + ["v_sqrt_f32 v247, v247"] + rb(246) + rb(247)
    sts += ["v_rcp_f32 v247, v247", "s_nop 0"]
    st_store = [f"buffer_store_dwordx2 v[246:247], v244, {R_MI}, 0 offen offset:{ST_REL} sc1"]

    def reads(step_u, fs, cs=False, do_b=True):
        fa = FA[fs]
        al = []
        for ai in range(14):
            for h in range(2):
                al.append(f"ds_read_b64_tr_b16 {a(fa+4*ai+2*h,2)}, v{8+ai%7} offset:{step_u*16384 + (ai//7)*8192 + h*1024}")
        bl = [f"ds_read_b128 {a(fa+56+4*j,4)}, v17 offset:{2048*j}" for j in range(4)] if do_b else []
        cl = []
        if cs:
            for q in range(2):
                for h in range(2):
                    cl.append(f"ds_read_b64_tr_b16 {a(CSF+4*q+2*h,2)}, v{18+q} offset:{step_u*16384 + h*1024}")
        return bl + al + cl

    def mfmas(fs, first=False):
        fa = FA[fs]
        mo = opt.get("morder", 2)
        if mo == 0:
            od = [(ai, j) for ai in range(14) for j in range(4)]
        elif mo == 1:
            od = [(ai, j) for j in range(4) for ai in range(14)]
        elif mo == 2:
            od = [(ai, j if ai % 2 == 0 else 3 - j) for ai in range(14) for j in range(4)]
        elif mo == 3:
            od = [(ai if j % 2 == 0 else 13 - ai, j) for j in range(4) for ai in range(14)]
        else:
            od = [((k * 5) % 14, k % 4) for k in range(28)] + [((k * 5 + 1) % 14, (k + 2) % 4) for k in range(28)]
            od = [(ai, (j + ai) % 4) for j in range(4) for ai in range(14)]
        if opt.get("swapab"):
            return [f"{MF} {accr(ai,j)}, {a(fa+56+4*j,4)}, {a(fa+4*ai,4)}, {'0' if first else accr(ai,j)}" for ai, j in od]
        return [f"{MF} {accr(ai,j)}, {a(fa+4*ai,4)}, {a(fa+56+4*j,4)}, {'0' if first else accr(ai,j)}" for ai, j in od]

    e("s_movk_i32 s75, 16384")
    e("v_add_u32 v17, s75, v15")
    for x in reads(0, 0, cs=True):
        e(x)
    flat(wdma(3)); e.mark("w3", "v")
    flat(xdma(0))

    def body(i, wd=True, xd=True, rd=True, cs_m=False, cs_r=False, extra=None, pre=None, aug_w=False, do_b=True,
             vm=None, side=None, side0=12, needs=(), relax=0, post=None):
        u = i & 3
        fs = i & 1
        if vm is None:
            tags = [t_ for t_ in [f"it{i-3}"] + list(needs) if t_ in e.tag]
            vm = min(63, e.vm - max(e.tag[t_][1] for t_ in tags))
        if relax:
            e("s_sub_u32 s101, s101, 1")
            e(f"s_cbranch_scc0 L_rx{i}")
            e("s_mov_b32 s101, 0")
            e.l.append(f"    s_waitcnt vmcnt({vm})")
            e.label(f"L_rx{i}")
            e.l.append(f"    s_waitcnt vmcnt({min(63, vm + relax)}) lgkmcnt(0)")
            e.lg_done = e.lg
        else:
            e.wait(vm=vm, lg=0)
        if not (opt.get("x_nobar") and i > 0 and i & opt["x_nobar"]):
            e("s_barrier")
        if pre:
            pre()
        mf = mfmas(fs, first=(i == 0))
        if cs_m:
            cm = [f"{MF} {a(CSA,4)}, {a(CSF+4*q,4)}, {a(CSS+4*q,4)}, {'0' if (i == 0 and q == 0) else a(CSA,4)}" for q in range(2)]
            mf = cm + mf
        groups = []
        if xd:
            groups += xdma(1 - (i & 1))
        if wd:
            groups += wdma(u, aug_w)
        mk = lambda: e.mark(f"it{i}", "v")
        if not groups:
            mk()
        else:
            groups.append([mk])
        if extra:
            groups += extra
        head, rl = [], []
        if rd:
            hk = (i + 1) & 1
            if do_b:
                head = (["s_add_u32 s75, s75, 8192", f"s_cmp_eq_u32 s75, {XWREG}", "s_cselect_b32 s75, 0, s75", "v_add_u32 v17, s75, v15"]
                        if hk == 0 else ["v_add_u32 v17, s75, v16"])
            r_ = reads((u + 1) & 3, 1 - fs, cs_r, do_b)
            rl = [(x, False) for x in r_[4:8]] + [(x, True) for x in r_[:4]] + [(x, False) for x in r_[8:]] if do_b else [(x, False) for x in r_]
        slots = pack(len(mf), mem=[x for g in groups for x in g], reads=rl, sides=([(side, side0)] if side else []),
                     head=head, first=4, rlim=len(mf) - 8)
        merge(e, mf, slots)
        if post:
            post()

    Cm = [240, 241, 242, 243, 252, 253, 246, 247, 20, 21, 24, 25, 254, 255]
    cs = [f"v_accvgpr_read_b32 C{r}, a{CSA+r}" for r in range(4)]
    cs += ["v_cvt_pk_bf16_f32 C4, C0, C1", "v_cvt_pk_bf16_f32 C5, C2, C3",
           "v_lshlrev_b32 C6, 16, C4", "v_and_b32 C7, 0xffff0000, C4", "v_lshlrev_b32 C8, 16, C5", "v_and_b32 C9, 0xffff0000, C5"]
    cs += [f"v_sub_f32 C{r}, C{r}, C{6+r}" for r in range(4)]
    cs += ["v_bfe_u32 v1, v0, 2, 2", "v_cmp_eq_u32 vcc, 1, v1",
           "v_cvt_pk_bf16_f32 C10, C0, C1", "v_cvt_pk_bf16_f32 C11, C2, C3",
           "v_cndmask_b32 C4, C4, C10, vcc", "v_cndmask_b32 C5, C5, C11, vcc",
           "v_lshlrev_b32 C6, 16, C10", "v_and_b32 C7, 0xffff0000, C10", "v_lshlrev_b32 C8, 16, C11", "v_and_b32 C9, 0xffff0000, C11"]
    cs += [f"v_sub_f32 C{r}, C{r}, C{6+r}" for r in range(4)]
    cs += ["v_cmp_eq_u32 vcc, 2, v1", "v_cvt_pk_bf16_f32 C10, C0, C1", "v_cvt_pk_bf16_f32 C11, C2, C3",
           "v_cndmask_b32 C4, C4, C10, vcc", "v_cndmask_b32 C5, C5, C11, vcc"]
    csa = ["s_mul_i32 s3, s66, 12288", "s_lshr_b32 s6, s64, 1", "s_mul_i32 s6, s6, 6144", "s_add_u32 s3, s3, s6",
           "s_lshr_b32 s6, s65, 1", "s_lshl_b32 s6, s6, 8", "s_add_u32 s3, s3, s6", "s_lshl_b32 s6, s85, 5",
           "s_add_u32 s3, s3, s6", f"s_add_u32 s3, s3, {CS_REL}",
           "v_bfe_u32 v1, v0, 1, 3", "v_lshlrev_b32 C12, 10, v1", "v_and_b32 C13, 1, v0",
           "v_lshl_add_u32 C12, C13, 5, C12", "v_lshrrev_b32 C13, 4, v0",
           "v_lshl_add_u32 C12, C13, 3, C12", "v_cmp_le_u32 vcc, 6, v1", "v_mov_b32 C13, 0x80000000",
           "v_add_u32 C12, s3, C12", "v_cndmask_b32 C12, C12, C13, vcc"]
    import re as _re
    sub = lambda l_: [_re.sub(r"C(\d+)", lambda m_: f"v{Cm[int(m_.group(1))]}", x) for x in l_]
    cs, csa = sub(cs), sub(csa)
    cs_store = [f"buffer_store_dwordx2 v[252:253], v254, {R_MI}, 0 offen sc1"]
    kva = ["v_and_b32 v26, 3, v0", "v_lshlrev_b32 v22, 3, v26", "v_lshlrev_b32 v26, 6, v26",
           "s_lshl_b32 s74, s5, 10", "s_lshl_b32 s3, s64, 8", "s_add_u32 s74, s74, s3",
           "s_lshr_b32 s3, s74, 3", "v_add_u32 v22, s3, v22", f"v_mul_u32_u24 v22, {UR_PITCH}, v22",
           "v_lshrrev_b32 v23, 2, v0", "v_lshlrev_b32 v23, 3, v23", "v_sub_u32 v22, v22, v23",
           "s_lshl_b32 s6, s4, 7", "s_sub_u32 s6, 4088, s6", "v_add_u32 v22, s6, v22",
           "s_lshl_b32 s3, s5, 7", "v_add_u32 v23, s3, v29", f"v_mul_u32_u24 v23, {UR_PITCH}, v23",
           "v_add_u32 v23, 0x1000, v23", "s_lshl_b32 s6, s4, 8", "v_add_u32 v24, s6, v29", "s_movk_i32 s6, 128",
           "v_cmp_gt_u32 vcc, s6, v24", "v_mov_b32 v25, 0x80000000", "s_nop 0", "v_cndmask_b32 v23, v25, v23, vcc"]
    if KVM:
        kva[:15] = ["v_and_b32 v26, 7, v0", "v_lshlrev_b32 v22, 3, v26", "v_lshlrev_b32 v26, 6, v26",
                    "s_lshl_b32 s74, s5, 10", "s_and_b32 s3, s64, 1", "s_lshl_b32 s3, s3, 9", "s_add_u32 s74, s74, s3",
                    "s_lshr_b32 s3, s74, 3", "v_add_u32 v22, s3, v22", f"v_mul_u32_u24 v22, {UR_PITCH}, v22",
                    "v_and_b32 v23, 0x38, v0", "v_sub_u32 v22, v22, v23",
                    "s_lshl_b32 s6, s4, 7", "s_sub_u32 s6, 4088, s6", "s_lshr_b32 s3, s64, 1", "s_lshl_b32 s3, s3, 6",
                    "s_sub_u32 s6, s6, s3", "v_add_u32 v22, s6, v22"]
    wl = [[f"buffer_load_dwordx4 {a(WR[i],4)}, v26, {R_SH}, s74 offen offset:{16*i}"] for i in range(4)]
    q3 = -(-len(sts) // 3)
    sides = {0: d0, 1: d1, 2: kva, 6: csa, 7: ["s_nop 0"] * 5 + cs, 8: sts[:q3], 9: sts[q3:2*q3], 10: sts[2*q3:]}
    extras = {2: [fz_store], 4: wl, 5: xsl, 8: [cs_store], 11: [st_store]}
    needs = {8: ["xs"]}
    KVI = opt.get("kvi", 9)
    KVB = opt.get("kvb", 12)
    extras[KVI] = extras.get(KVI, []) + kvl
    for i in range(KVB):
        tg = {0: "w1", 1: "w2", 2: "w3"}.get(i)
        vmi = min(63, e.vm - e.tag[tg][1]) if tg else None
        body(i, cs_m=(i < NCS), cs_r=(i < NCS - 1), vm=vmi, side=sides.get(i), side0=2, extra=extras.get(i), needs=needs.get(i, ()))
        if i == 3:
            stamp(e, 12)
    stamp(e, 14)
    WF, KF, VF, TMP = 224, [232 + 2 * i for i in range(7)], 246, 1
    OUT = [248, 250, 252, 254, 24, 26, 18, 20]
    kvc = []
    for p in range(4):
        c_ = []
        for h in range(2):
            for d in range(2):
                c_ += [f"v_accvgpr_read_b32 v{TMP}, a{WR[p]+2*h+d}", f"v_lshlrev_b32 v{WF+4*d+h}, 16, v{TMP}",
                       f"v_and_b32 v{WF+4*d+2+h}, 0xffff0000, v{TMP}"]
        for i in range(7):
            c_ += [f"v_accvgpr_read_b32 v{KF[i]+1}, a{KR[i]+p}", f"v_lshlrev_b32 v{KF[i]}, 16, v{KF[i]+1}",
                   f"v_and_b32 v{KF[i]+1}, 0xffff0000, v{KF[i]+1}"]
        for i in range(4):
            c_ += [f"v_accvgpr_read_b32 v{VF+1}, a{VR[i]+p}"]
            c_ += [f"v_mul_f32 v{KF[i]+h}, v{KF[i]+h}, v{WF+6+h}" for h in range(2)]
            c_ += [f"v_lshlrev_b32 v{VF}, 16, v{VF+1}", f"v_and_b32 v{VF+1}, 0xffff0000, v{VF+1}"]
            for j in (2, 1, 0):
                c_ += [f"v_fmac_f32 v{KF[i]+h}, v{KF[i+3-j]+h}, v{WF+2*j+h}" for h in range(2)]
            c_ += [f"v_mul_f32 v{KF[i]+h}, v{KF[i]+h}, v{VF+h}" for h in range(2)]
        for h in range(2):
            o = OUT[2 * p + h]
            c_ += [f"v_cvt_pk_bf16_f32 v{o}, v{KF[3]+h}, v{KF[2]+h}", f"v_cvt_pk_bf16_f32 v{o+1}, v{KF[1]+h}, v{KF[0]+h}"]
        kvc.append(c_)
    kst = lambda ch: [f"s_mov_b32 s3, {ch*UR_PITCH}", f"buffer_store_dwordx2 {v(OUT[ch],2)}, v22, {R_UR}, s3 offen sc1"]
    for i in range(12, 16):
        p = i - 12
        ex_ = [kst(2 * p - 2), kst(2 * p - 1)] if p else None
        body(i, side=kvc[p], side0=0, extra=ex_, needs=(["kv"] if p == 0 else ()))
    for ch in (6, 7):
        flat([kst(ch)])
    for i in range(4):
        e(f"v_mov_b32 v{WF+i}, 0")
    e(f"buffer_store_dwordx4 {v(WF,4)}, v23, {R_UR}, 0 offen sc1")
    stamp(e, 15)
    BG = 0
    e("s_mov_b32 s82, 0")
    e("s_and_b32 s74, s2, 1")
    e("s_lshl_b32 s74, s74, 7")
    def cpf(tagc, va, dst):
        def gl():
            e.l.append(f"    global_load_dword {dst}, v[{va}:{va+1}], off")
            e.vm += 1
        gl.ins = "global_load_dword"
        def pc():
            e("s_getpc_b64 s[6:7]")
            e.label(f"L_pc{tagc}")
        pc.ins = "s_getpc_b64"
        return [pc, "s_lshr_b32 s3, s2, 3", "s_and_b32 s3, s3, 1", "s_lshl_b32 s3, s3, 2", "s_add_u32 s3, s3, s64",
                "s_lshl_b32 s3, s3, 12", f"v_lshlrev_b32 v{va}, 6, v0", f"v_add_u32 v{va}, s3, v{va}",
                f"v_min_u32 v{va}, L_end-L_pc{tagc}, v{va}", f"v_mov_b32 v{va+1}, s7", f"v_add_co_u32 v{va}, vcc, s6, v{va}",
                "s_nop 1", f"v_addc_co_u32 v{va+1}, vcc, 0, v{va+1}, vcc", gl]
    if opt.get("cpf2", 1):
        for x in cpf("b", 228, "a255"):
            x() if callable(x) else e(x)
    STG = opt.get("stg", 0)
    NB = 11 if STG == 2 else 7
    if STG:
        e("s_mov_b32 s101, 0")
        e("s_lshr_b32 s5, s2, 3")
        e("s_and_b32 s5, s5, 7")
        e("s_mul_i32 s6, s69, 7168")
        e("s_add_u32 s7, s6, 4096")
        e("s_lshl_b32 s84, s69, 12")

    def burst(i):
        def f():
            e("s_sub_u32 s5, s5, 1")
            e(f"s_cbranch_scc0 L_nb{i}")
            for q in range(7):
                e.l.append(f"    buffer_load_dwordx4 a[252:255], v2, {R_WD}, {'s6' if q < 4 else 's7'} offen offset:{1024*(q&3)}")
            if STG == 2:
                for q in range(4):
                    e.l.append(f"    buffer_load_dwordx4 a[252:255], v2, {R_SK}, s84 offen offset:{1024*q}")
            e("s_mov_b32 s101, 3")
            e.label(f"L_nb{i}")
        return f
    def f0sig():
        e("s_cmp_lg_u32 s82, 0")
        e("s_cbranch_scc1 L_f0_nosig")
        signal(e, "f0", f"buffer_atomic_add v1, off, {R_DB}, s74 sc1")
    e.label("L_g1_loop")
    for i in range(16, 20):
        body(i, vm=16, relax=(NB if STG else 0), post=(burst(i) if STG else None), pre=(f0sig if i == opt.get("f0s", 18) else None))
    e("s_add_u32 s82, s82, 1")
    e("s_cmp_lt_u32 s82, 2")
    e("s_cbranch_scc1 L_g1_loop")
    for k in range(3):
        e.tag[f"it{21+k}"] = e.tag[f"it{17+k}"]
    e.vm_done = 0
    stamp(e, 13)

    def poll(loadins, cond, lab):
        e("s_mov_b32 s82, 0")
        e.label(f"L_{lab}_chk")
        cond()
        e(f"s_cbranch_scc1 L_{lab}_ok")
        e("s_sleep 1")
        e.l.append("    " + loadins)
        e.l.append("    s_waitcnt vmcnt(0)")
        e("s_add_u32 s82, s82, 1")
        e(f"s_cmp_lt_u32 s82, {SPIN_LIMIT}")
        e(f"s_cbranch_scc1 L_{lab}_chk")
        e.label(f"L_{lab}_ok")

    f0_load = f"buffer_load_dword v18, v27, {R_DB}, 0 offen sc1"

    def f0_cond():
        e("v_cmp_le_u32 vcc, 0x80, v18")
        e("s_cmp_eq_u64 vcc, exec")

    def I(s_, tag=None):
        f = lambda: e(s_, tag=tag)
        f.ins = s_
        return f

    def urdma(c):
        g = [[f"s_add_u32 m0, s70, {c*CV_CP}", f"s_add_u32 s79, s83, {2*c}", f"buffer_load_dwordx4 v2, {R_UR}, s79 offen sc1 lds"]]
        g += [[f"buffer_load_dwordx4 v2, {R_UR}, s79 offen offset:{1024*q} sc1 lds"] for q in range(1, 4)]
        g[-1].append(lambda: e.mark(f"ur{c}", "v"))
        return g

    wdpf0 = [["s_mul_i32 s74, s69, 7168"]] + [[f"buffer_load_dwordx4 a[252:255], v2, {R_WD}, s74 offen offset:{1024*(q&3)}"] + (["s_add_u32 s74, s74, 4096"] if q == 3 else []) for q in range(7)]
    if opt.get("spf"):
        wdpf0 = [[f"buffer_load_dwordx4 a[252:255], v2, {R_SK}, s84 offen offset:{1024*q}"] for q in range(4)] + wdpf0
    RX = NB if STG else 0
    body(24, side=["v_and_b32 v27, 1, v0", "v_lshlrev_b32 v27, 7, v27"], relax=RX)
    F0L = [[f0_load, lambda: e.mark("f0", "v")]]
    body(25, extra=(F0L if opt.get("f0l", 26) == 25 else None), relax=RX)
    body(26, relax=RX, extra=(F0L if opt.get("f0l", 26) == 26 else None), side=["v_and_b32 v19, 15, v0", "v_lshlrev_b32 v19, 3, v19",
                   "s_lshl_b32 s85, s65, 11", "s_lshl_b32 s3, s64, 9", "s_add_u32 s85, s85, s3",
                   f"s_mul_i32 s83, s69, {UR_PITCH}", "s_lshl_b32 s84, s69, 12"])
    stl = [[f"buffer_load_dwordx2 {v(20+2*j,2)}, v19, {R_MI}, s85 offen offset:{ST_REL+128*j} sc1"] for j in range(4)]
    stl[-1].append(lambda: e.mark("st", "v"))
    body(27, xd=False, extra=(wdpf0 if opt.get("wpf", 0 if STG else 27) == 27 else None))
    body(28, xd=False, aug_w=True, pre=lambda: poll(f0_load, f0_cond, "f0"), extra=stl, needs=["f0"])
    body(29, xd=False, wd=False, extra=urdma(0) + urdma(2) + (wdpf0 if opt.get("wpf") == 29 else []))
    body(30, xd=False, wd=False,
         side=["v_and_b32 v3, 15, v0", "v_lshrrev_b32 v28, 4, v0",
               "v_lshrrev_b32 v4, 2, v3", f"v_mul_u32_u24 v4, {CV_CP}, v4", "v_and_b32 v6, 3, v0",
               "v_lshl_add_u32 v4, v6, 4, v4", "v_add_u32 v4, 4096, v4", f"v_add_u32 v5, {CV_HZ}, v2",
               "v_cmp_gt_u32 vcc, 32, v0", "v_add_u32 v29, s70, v2", "v_mov_b32 v248, 0", "v_mov_b32 v249, 0",
               "v_cndmask_b32 v5, v4, v5, vcc", "v_add_u32 v5, s70, v5", "v_mov_b32 v250, 0", "v_mov_b32 v251, 0"])
    hd = [[f"s_add_u32 m0, s70, {CV_H}", "s_nop 0", f"buffer_load_dwordx4 v2, {R_SK}, s84 offen lds"]]
    hd += [[f"buffer_load_dwordx4 v2, {R_SK}, s84 offen offset:{1024*q} lds"] for q in range(1, 4)]
    hd[-1].append(lambda: e.mark("hk", "v"))
    if STG != 2:
        hd = [[x.replace(" lds", " nt lds") if isinstance(x, str) else x for x in g] for g in hd]
    wdpf = [["s_mul_i32 s74, s69, 7168"]]
    wdpf += [[f"buffer_load_dwordx4 a[252:255], v2, {R_WD}, s74 offen offset:{1024*(q&3)}"] + (["s_add_u32 s74, s74, 4096"] if q == 3 else []) for q in range(7)]
    WPF = opt.get("wpf", 27)
    if WPF == 31:
        hd += wdpf
    bb = ["v_cmp_gt_u32 vcc, 48, v0", "ds_write_b128 v5, v[248:251]"]
    for j in range(4):
        bb += [f"v_lshrrev_b32 v1, 16, v{20+2*j}", f"v_or_b32 v1, v1, v{20+2*j}", "v_cndmask_b32 v1, 0, v1, vcc"]
        bb += [f"v_accvgpr_write_b32 a{FA[0]+56+4*j+r}, v1" for r in range(4)]
    for j in range(4):
        bb += [f"v_mul_f32 v{20+2*j}, 0xbfb8aa3b, v{21+2*j}", f"v_mul_f32 v{21+2*j}, v{21+2*j}, v{21+2*j}",
               f"v_rcp_f32 v{21+2*j}, v{21+2*j}"]
    body(31, xd=False, wd=False, do_b=False, extra=hd, side=bb, side0=4, needs=["st"])
    TB = [224, 236]
    def odr(q):
        b = TB[q & 1]
        return [I(f"ds_read_b128 {v(b,4)}, v29 offset:{1024*q}"),
                I(f"ds_read_b128 {v(b+4,4)}, v29 offset:{2*CV_CP+1024*q}"),
                I(f"ds_read_b32 v{b+8}, v29 offset:{2*CV_CP+1024*q+16}", tag=f"od{q}")]
    def odc(q):
        b = TB[q & 1]
        r = [lambda: e.need(f"od{q}")]
        r += [I(f"v_alignbit_b32 v{b+i}, v{b+4+i}, v{b+i}, 16") for i in range(4)]
        r.append(I(f"ds_write_b128 v29, {v(b,4)} offset:{CV_CP+1024*q}"))
        r += [I(f"v_alignbit_b32 v{b+4+i}, v{b+5+i}, v{b+4+i}, 16") for i in range(4)]
        r.append(I(f"ds_write_b128 v29, {v(b+4,4)} offset:{3*CV_CP+1024*q}"))
        return r
    ha = ["s_lshl_b32 s3, s65, 4", "s_lshl_b32 s6, s64, 2", "s_add_u32 s3, s3, s6",
          f"s_mul_i32 s3, s3, {H_SB}", "s_mul_i32 s6, s66, 3584", "s_add_u32 s3, s3, s6",
          "v_lshrrev_b32 v18, 1, v28", "v_lshlrev_b32 v18, 8, v18", "v_lshl_add_u32 v18, v3, 4, v18",
          "v_add_u32 v18, s3, v18", "v_and_b32 v1, 1, v28", f"v_mul_u32_u24 v19, {H_SB}, v1",
          "v_add_u32 v19, v19, v18", "v_lshl_add_u32 v18, v1, 9, v18"]
    ca = ["v_and_b32 v4, 3, v3", "v_sub_u32 v4, 3, v4", f"v_mul_u32_u24 v16, {CV_CP}, v4",
          "v_and_b32 v4, 12, v3", "v_lshlrev_b32 v4, 1, v4", "v_sub_u32 v16, v16, v4",
          "v_lshl_add_u32 v16, v28, 4, v16", f"s_add_u32 s3, s70, {2*2028 - 3584}", "v_add_u32 v16, s3, v16",
          "v_lshlrev_b32 v17, 5, v3", "v_lshl_add_u32 v17, v28, 4, v17", f"s_add_u32 s3, s70, {CV_H - 32}",
          "v_add_u32 v17, s3, v17"]
    seq = odr(0) + odr(1) + ha + odc(0) + odr(2) + odc(1) + odr(3) + ca[:6] + odc(2) + ca[6:] + odc(3)
    body(32, xd=False, wd=False, rd=False, side=seq, side0=0, needs=["ur2"])
    stamp(e, 3)

    e.c("SwiGLU epilogue")
    HSC = " sc1" if opt.get("hsc", 1) else ""

    pend = []

    def flush_st():
        while pend:
            o_, st_ = pend.pop(0)
            e(f"v_permlane16_swap_b32 v{o_}, v{o_+2}")
            e(f"v_permlane16_swap_b32 v{o_+1}, v{o_+3}")
            e(st_, tag="hst")
            if o_ == 244:
                e(f"s_mov_b32 s78, {2*H_SB}")

    def swiglu(g, u, tmp, out, kc):
        for q in range(2):
            e(f"v_pk_mul_f32 {v(tmp+2*q,2)}, {v(g+2*q,2)}, {v(kc,2)} op_sel_hi:[1,0]")
        flush_st()
        for q in range(4):
            e(f"v_exp_f32 v{tmp+q}, v{tmp+q}")
        for q in range(2):
            e(f"v_pk_mul_f32 {v(g+2*q,2)}, {v(g+2*q,2)}, {v(u+2*q,2)}")
        for q in range(2):
            e(f"v_pk_fma_f32 {v(tmp+2*q,2)}, {v(tmp+2*q,2)}, {v(kc,2)}, {v(kc,2)} op_sel:[0,1,1] op_sel_hi:[1,1,1]")
        for q in (2, 3, 0, 1):
            e(f"v_rcp_f32 v{tmp+q}, v{tmp+q}")
        for q in (1, 0):
            e(f"v_pk_mul_f32 {v(g+2*q,2)}, {v(g+2*q,2)}, {v(tmp+2*q,2)}")
        for q in (1, 0):
            e(f"v_cvt_pk_bf16_f32 v{out+q}, v{g+2*q}, v{g+2*q+1}")

    def cv_reads(fs):
        o = 64 * fs
        r = []
        for i in range(8):
            r.append(f"ds_read_b128 {a(o+32+4*i,4)}, v17 offset:{512*i}")
            r.append(f"ds_read_b64 {a(o+4*i,2)}, v16 offset:{(7-i)*512}")
            r.append(f"ds_read_b64 {a(o+4*i+2,2)}, v16 offset:{(7-i)*512+8}")
        r += ["v_subrev_u32 v16, 64, v16", "v_subrev_u32 v17, 64, v17"]
        return r

    e("s_nop 4")
    n = 0
    for j in range(4):
        if j in (0, 1, 3):
            e(f"s_mov_b32 s{78+(j&1)}, {j*H_SB}")
        for i in range(4):
            o = 8 + 4 * (n & 1)
            if i < 3:
                for k in range(2):
                    t_ = 2 * i + k
                    swiglu(acc(t_, j), acc(7 + t_, j), 4, o + 2 * k, 20 + 2 * j)
                pend.append((o, f"buffer_store_dwordx4 {v(o,4)}, v18, {R_H}, s{78+(j&1)} offen offset:{1024*i}{HSC}"))
                n += 1
            else:
                for r in range(4):
                    e(f"v_accvgpr_read_b32 v{248+r}, a{AC6+4*j+r}")
                    e(f"v_accvgpr_read_b32 v{252+r}, a{AC6+16+4*j+r}")
                flush_st()
                swiglu(248, 252, 4, 244 + 2 * (j & 1), 20 + 2 * j)
                if j & 1:
                    pend.append((244, f"buffer_store_dwordx4 v[244:247], v19, {R_H}, s78 offen offset:3072{HSC}"))
        if j == 3:
            e("s_nop 1")
            flush_st()
        if j == opt.get("cvj", 3):
            e.need("hk")
            for x in cv_reads(0):
                e(x)
    if WPF == 33:
        flat(wdpf)
    stamp(e, 4)

    e.c("long conv")
    CA = 32

    def cv_mfmas(fs, first):
        o = 64 * fs
        prs = [(p, w) for p in range(8) for w in (range(8 - p) if p % 2 == 0 else range(7 - p, -1, -1))]
        return [f"{MF} {v(CA+4*(p+w),4)}, {a(o+4*p,4)}, {a(o+32+4*w,4)}, {'0' if (first and p == 0) else v(CA+4*(p+w),4)}"
                for p, w in prs]

    def cv_body(r, rd=True, extra=None, early=None):
        fs = r & 1
        e.wait(lg=0)
        ex_ = list(early or []) + [x for g in (extra or []) for x in g]
        mem_ = ex_ if any(_ins(x) and " lds" in _ins(x) for x in ex_) else []
        sd = [] if mem_ or not ex_ else [(ex_, 0)]
        rl = []
        if rd:
            cr = cv_reads(1 - fs)
            rl = [(x, False) for x in cr[:-2]]
            sd.append((cr[-2:], 32))
        merge(e, cv_mfmas(fs, r == 0), pack(36, mem=mem_, reads=rl, sides=sd, first=2, rlim=30, tail=4))

    G_H, G_WD, G_A, G_B = 192, 194, 196, 200
    G2ROT = opt.get("g2rot", 0)
    W2B = 81920
    G_D = 210
    ZL = 65536
    g2s = [["s_lshr_b32 s72, s64, 1", "s_and_b32 s73, s64, 1", "s_and_b32 s4, s2, 1"],
           ["v_bfe_u32 v6, v0, 1, 3", "v_xor_b32 v6, v6, v28"],
           ["s_lshl_b32 s78, s64, 3", "v_add_u32 v7, s78, v28", "v_and_b32 v4, 1, v0"],
           [f"v_lshlrev_b32 v{G_WD}, 11, v7", f"v_lshl_add_u32 v{G_WD}, v4, 4, v{G_WD}"],
           ["s_lshl_b32 s78, s68, 8", f"v_add_u32 v{G_WD}, s78, v{G_WD}", "v_xor_b32 v7, 4, v6"],
           [f"v_lshl_add_u32 v{G_WD+1}, v7, 5, v{G_WD}", f"v_lshl_add_u32 v{G_WD}, v6, 5, v{G_WD}"],
           [f"v_add_u32 v{G_WD+1}, 7168, v{G_WD+1}", "s_lshl_b32 s74, s64, 11", f"s_add_u32 s71, s74, {W2B}"],
           [f"s_mul_i32 s75, s4, {56*1024}", "s_lshl_b32 s76, s75, 6"],
           ["s_lshl_b32 s78, s67, 3", "s_lshl_b32 s79, s64, 1", "s_add_u32 s78, s78, s79"],
           [f"s_mul_i32 s78, s78, {H_SB}", f"v_add_u32 v{G_H}, s78, v2", f"v_add_u32 v{G_H+1}, {H_SB-1024}, v{G_H}"],
           ["v_bfe_u32 v6, v0, 2, 2", "v_and_b32 v7, 3, v0"],
           ["v_lshl_add_u32 v4, v28, 2, v6", "v_and_b32 v5, 7, v4"],
           ["v_lshlrev_b32 v4, 8, v4", "v_lshl_add_u32 v4, v7, 3, v4"],
           [f"v_add_u32 v4, {W2B}, v4", "s_lshl_b32 s78, s73, 2", "v_xor_b32 v5, s78, v5"]]
    for dt in range(4):
        g2s.append([f"v_xor_b32 v7, {dt}, v5", f"v_lshl_add_u32 v{G_A+dt}, v7, 5, v4"])
    g2s += [["s_lshl_b32 s78, s72, 12", "s_lshl_b32 s79, s4, 11", "s_add_u32 s78, s78, s79"],
            ["v_lshrrev_b32 v4, 1, v28", "v_lshlrev_b32 v4, 8, v4"],
            ["v_lshl_add_u32 v4, v3, 4, v4", "v_and_b32 v5, 1, v28"],
            ["v_lshl_add_u32 v4, v5, 3, v4", f"v_add_u32 v{G_B}, s78, v4"],
            [f"v_xor_b32 v{G_B+1}, 0x800, v{G_B}"],
            ["v_lshlrev_b32 v23, 2, v3", "s_lshr_b32 s77, s67, 1", "s_lshl_b32 s77, s77, 7"],
            ["s_lshl_b32 s78, s4, 6", "s_add_u32 s77, s77, s78", f"s_add_u32 s77, s77, {HF_REL}"]]
    R_PX = R_MI

    def m0set(base, off):
        if isinstance(off, int):
            return [f"s_add_u32 m0, {base}, {off}", "s_nop 0"]
        return [f"s_add_u32 s3, {base}, s66", f"s_add_u32 m0, s3, {off[1]}", "s_nop 0"] if off[1] else [f"s_add_u32 m0, {base}, s66", "s_nop 0"]

    def wd2(off):
        return [m0set("s71", off) + [f"buffer_load_dwordx4 v{G_WD}, {R_WD}, s76 offen lds"],
                [f"buffer_load_dwordx4 v{G_WD+1}, {R_WD}, s76 offen offset:1024 lds", "s_add_u32 s76, s76, 0x10000"]]

    def h2(off):
        return [m0set("s74", off) + [f"buffer_load_dwordx4 v{G_H}, {R_H}, s75 offen sc1 lds"],
                [f"buffer_load_dwordx4 v{G_H+1}, {R_H}, s75 offen offset:1024 sc1 lds", "s_add_u32 s75, s75, 1024"]]

    sloc = lambda st_: ((st_ + 2) % 10) * 8192

    fl_load = f"buffer_load_dword v22, v23, {R_MI}, s77 offen sc1"

    def flag_cond():
        e("v_cmp_ne_u32 vcc, 0, v22")
        e("s_cmp_eq_u64 vcc, exec")

    R_SIG = opt.get("rsig", 3)
    wdp = sum([wd2(sloc(s_)) for s_ in range(8)], [])
    ex_by_r = {0: g2s[:10], 1: g2s[10:20], 2: g2s[20:], 4: wdp[:8], 5: wdp[8:]}
    if opt.get("cpf3", 1):
        c3_ = cpf("c", 204, "a255")
        ex_by_r[3] = [c3_[k:k+2] for k in range(0, len(c3_), 2)]
    if opt.get("wdearly"):
        ex_by_r = {0: g2s[:10], 1: wdp[:8], 2: wdp[8:], 3: g2s[10:20], 4: g2s[20:]}
    UZ = 224
    pre_z = ["v_lshlrev_b32 v12, 5, v3", "v_lshl_add_u32 v12, v28, 3, v12", f"s_add_u32 s78, s70, {2*2044 - 3584}",
             "v_sub_u32 v13, s78, v12"] + [f"ds_read_b64 {v(UZ+2*i,2)}, v13 offset:{(7-i)*512}" for i in range(8)]
    for r in range(7):
        if r == R_SIG:
            e.need("hst")
            e("s_barrier")
            signal(e, "f1", f"buffer_store_dword v1, off, {R_MI}, s80 sc1")
        cv_body(r, extra=ex_by_r.get(r), early=([I(fl_load, tag="f1")] if r == opt.get("rpoll", 6) else None))
    cv_body(7, rd=False, extra=[[x] for x in pre_z], early=([I(fl_load, tag="f1")] if opt.get("rpoll", 6) == 7 else None))
    def zmath():
        e("s_and_b32 s78, s69, 1")
        e("s_lshl_b32 s78, s78, 4")
        e("s_lshr_b32 s90, s90, s78")
        e("s_lshl_b32 s90, s90, 16")
        e("v_lshlrev_b32 v12, 5, v3")
        e("v_lshrrev_b32 v13, 1, v28")
        e("v_lshl_add_u32 v12, v13, 4, v12")
        e("v_and_b32 v13, 1, v28")
        e("v_lshl_add_u32 v12, v13, 9, v12")
        for i in range(8):
            u0, u1 = UZ + 2 * i, UZ + 2 * i + 1
            y = CA + 4 * i
            e(f"v_and_b32 v4, 0xffff0000, v{u1}")
            e(f"v_lshlrev_b32 v5, 16, v{u1}")
            e(f"v_and_b32 v6, 0xffff0000, v{u0}")
            e(f"v_lshlrev_b32 v7, 16, v{u0}")
            for q in range(4):
                e(f"v_fmac_f32 v{y+q}, s90, v{4+q}")
            e(f"v_cvt_pk_bf16_f32 v{u0}, v{y}, v{y+1}")
            e(f"v_cvt_pk_bf16_f32 v{u1}, v{y+2}, v{y+3}")
        e("s_nop 1")
        for k in range(4):
            b = UZ + 4 * k
            e(f"v_permlane16_swap_b32 v{b}, v{b+2}")
            e(f"v_permlane16_swap_b32 v{b+1}, v{b+3}")
    e.wait(lg=0)
    ZM = opt.get("zm", 0)
    if ZM:
        zmath()
    e.need("f1")
    poll(fl_load, flag_cond, "f1")
    e("s_barrier")
    stamp(e, 6)
    for s_ in range(8):
        flat(h2(sloc(s_)))
        e.mark(f"h{s_}", "v")
    if not ZM:
        zmath()
    for k in range(4):
        e(f"buffer_store_dwordx4 {v(UZ+4*k,4)}, v12, {R_ZT}, s84 offen offset:{1024*k} sc1", tag="zst")
    for q in range(4):
        e(f"v_mov_b32 v{240+q}, -1")
    e("s_lshl_b32 s83, s69, 12")
    e(f"s_add_u32 s83, s83, {PX_REL}")
    for q in range(4):
        e(f"buffer_store_dwordx4 v[240:243], v2, {R_MI}, s83 offen offset:{1024*q} sc1", tag="zst")
    stamp(e, 7)

    e.c("GEMM2")
    A2 = 64

    def acc2(dt, jj):
        return A2 + (jj * 4 + dt) * 4

    NS = 56

    def rd2(step):
        so = (step & 1) * 8192
        o = 32 * (step & (7 if step >= 48 else 3))
        d = G_D + 6 * ((step >> 1) & 1)
        al = [f"ds_read_b64_tr_b16 {a(o+4*dt+2*h,2)}, v{d+dt} offset:{so+h*4096}" for dt in range(4) for h in range(2)]
        bl = [f"ds_read_b64 {a(o+16+4*jj+2*h,2)}, v{d+4+(jj>>1)} offset:{so+(jj&1)*1024+h*512}" for jj in range(4) for h in range(2)]
        return bl[:2] + al + bl[2:]

    def adv(r_):
        return [f"s_add_u32 {r_}, {r_}, 16384", f"s_cmp_eq_u32 {r_}, {W2B}", f"s_cselect_b32 {r_}, 0, {r_}"]

    def radr(pair):
        d = G_D + 6 * (pair & 1)
        return [f"v_add_u32 v{d+4}, s7, v{G_B}"] + [f"v_add_u32 v{d+dt}, s7, v{G_A+dt}" for dt in range(4)] + [f"v_add_u32 v{d+5}, s7, v{G_B+1}"]

    fo = lambda step: 32 * (step & (7 if step >= 48 else 3))

    def mf2(step, jjs=(0, 1, 2, 3)):
        o = fo(step)
        if opt.get("m2order", 1):
            od = [(dt, jj) for dt in range(4) for jj in (jjs if dt % 2 == 0 else jjs[::-1])]
        else:
            od = [(dt, jj) for jj in jjs for dt in range(4)]
        return [f"{MF} {v(acc2(dt,jj),4)}, {a(o+4*dt,4)}, {a(o+16+4*jj,4)}, {'0' if step == 0 else v(acc2(dt,jj),4)}"
                for dt, jj in od]

    def it2(I_, vm=None, extra=None, side=None, pre=None, needs=(), mf=None):
        if vm is None:
            vm = min(63, e.vm - max(e.tag[t_][1] for t_ in needs))
        e.wait(vm=vm, lg=(15 if mf is None else 0))
        e("s_barrier")
        if pre:
            pre()
        custom = mf is not None
        mf = mf or mf2(2 * I_) + mf2(2 * I_ + 1)
        n = len(mf)
        g = []
        if 2 * I_ + 8 < NS:
            for hf in range(2):
                g += h2(("d", hf * 8192)) + wd2(("d", hf * 8192))
            g.append([lambda: e.mark(f"g{I_}", "v")])
            g.append(adv("s66"))
        g += (extra or [])
        rl = [(x, False) for x in rd2(2 * I_ + 2) + rd2(2 * I_ + 3)]
        sd = ([(adv("s7") + radr(I_ + 2), 0)] if 2 * I_ + 4 < NS else []) + ([(side, 0)] if side else [])
        slots = pack(n, mem=[x for g_ in g for x in g_], reads=rl, sides=sd, first=1, rlim=n, tail=4)
        lg0 = e.lg
        if not custom:
            slots.setdefault(n // 2 - 1, []).append(lambda: e.wait(lg=min(15, e.lg - lg0)))
        merge(e, mf, slots)

    XR, SR, ZR, PR = 32, 48, 224, 128
    fa = ["v_and_b32 v6, 1, v28", "v_lshrrev_b32 v7, 1, v28", "v_lshl_or_b32 v6, v6, 1, v7",
          "s_lshl_b32 s85, s67, 3", "s_lshl_b32 s78, s72, 2", "s_add_u32 s85, s85, s78", "s_lshl_b32 s78, s4, 1",
          "s_add_u32 s85, s85, s78",
          "s_lshl_b32 s87, s68, 1", "s_add_u32 s87, s87, s73",
          "s_lshl_b32 s78, s85, 15", "s_lshl_b32 s79, s87, 7", "s_add_u32 s78, s78, s79",
          "v_lshlrev_b32 v24, 11, v3", "v_lshl_add_u32 v24, v6, 4, v24", "v_add_u32 v24, s78, v24",
          "v_add_u32 v25, 0x8000, v24", "v_lshlrev_b32 v26, 3, v3", "s_lshl_b32 s86, s85, 7",
          "s_lshl_b32 s77, s87, 6", "v_add_u32 v23, s77, v23", "s_xor_b32 s77, s2, 1", "s_lshl_b32 s77, s77, 2",
          "v_mov_b32 v4, s77", "v_cmp_gt_u32 vcc, 16, v0", f"s_movk_i32 s77, {ZF_REL}", "s_nop 0", "v_cndmask_b32 v23, v4, v23, vcc",
          "v_lshrrev_b32 v21, 2, v0", "v_lshlrev_b32 v21, 12, v21", "v_and_b32 v27, 3, v0",
          "v_lshl_add_u32 v21, v27, 4, v21", "s_lshl_b32 s78, s87, 18", "s_lshl_b32 s79, s85, 5",
          "s_add_u32 s78, s78, s79", "v_add_u32 v21, s78, v21",
          "s_lshl_b32 s5, s64, 12", f"s_add_u32 s5, s5, {ZL}",
          "v_bfe_u32 v7, v0, 2, 2", "v_lshl_add_u32 v7, v6, 3, v7", "v_lshlrev_b32 v7, 6, v7",
          "v_lshl_add_u32 v7, v27, 3, v7", "v_add_u32 v7, s5, v7",
          "s_xor_b32 s84, s83, 0x4000"]
    e("s_movk_i32 s7, 16384")
    e("s_mov_b32 s66, 0")
    for x in radr(0) + adv("s7") + radr(1) + fa:
        e(x)
    e.need("h1")
    e("s_barrier")
    for x in rd2(0) + rd2(1):
        e(x)
    it2(0, needs=["h3"])
    it2(1, needs=["h5"])
    it2(2, needs=["h7"])
    it2(3, needs=["g0", "zst"], pre=lambda: signal(e, "f2", f"buffer_store_dword v1, off, {R_MI}, s81 sc1"))
    stamp(e, 1)
    e("s_mov_b32 s82, 0")
    e.label("L_g2_loop")
    for I_ in (4, 5):
        it2(I_, vm=16)
    e("s_add_u32 s82, s82, 1")
    e("s_cmp_lt_u32 s82, 10")
    e("s_cbranch_scc1 L_g2_loop")
    for k in range(3):
        e.tag[f"g{21+k}"] = ("v", e.vm - 8 * (2 - k))
    e.vm_done = 0
    stamp(e, 5)
    ex = [[fl_load, lambda: e.mark("zf", "v")]]
    for e2 in range(2):
        for pr in range(2):
            ex.append([f"buffer_load_dwordx4 {v(XR+4*(2*e2+pr),4)}, v{24+e2}, {R_X}, 0 offen offset:{64*pr}"])
        ex.append([f"buffer_load_dwordx2 {v(SR+2*e2,2)}, v26, {R_MI}, s86 offen offset:{ST_REL+128*e2} sc1"])
    zd = [["s_mov_b32 m0, s5", f"buffer_load_dwordx4 v21, {R_ZT}, 0 offen sc1 lds"]]
    for i in range(1, 4):
        zd.append([f"s_mov_b32 s78, {i*(65536-1024)}", f"buffer_load_dwordx4 v21, {R_ZT}, s78 offen offset:{1024*i} sc1 lds"])
    if opt.get("tail8", 0):
        it2(24, needs=["g21"], extra=ex, mf=mf2(48, (2, 3)) + mf2(49, (2, 3)) + mf2(48, (0,)))
        it2(25, needs=["g22"], mf=mf2(50, (2, 3)) + mf2(51, (2, 3)) + mf2(48, (1,)))
        it2(26, needs=["g23", "zf"], pre=lambda: poll(fl_load, flag_cond, "f2"), extra=zd,
            mf=mf2(52, (2, 3)) + mf2(53, (2, 3)) + mf2(49, (0, 1)))
        own = sum([mf2(s_, (0, 1)) for s_ in range(50, 56)], [])
    else:
        it2(24, needs=["g21"], extra=ex)
        it2(25, needs=["g22"])
        it2(26, needs=["g23", "zf"], pre=lambda: poll(fl_load, flag_cond, "f2"), extra=zd,
            mf=mf2(52, (2, 3)) + mf2(53, (2, 3)) + mf2(52, (0, 1)))
        own = mf2(53, (0, 1)) + mf2(54, (0, 1)) + mf2(55, (0, 1))
    e.wait(lg=0)
    for x in mf2(54, (2, 3)) + mf2(55, (2, 3)):
        e(x)
    stamp(e, 8)
    O0 = acc2(0, 2)
    PS = 144
    slots = {0: ["s_nop 3"]}
    for q in range(16):
        slots.setdefault(4 + q // 2, []).append(f"v_cvt_pk_bf16_f32 v{PS+q}, v{O0+2*q}, v{O0+2*q+1}")
    for q in range(4):
        slots.setdefault(6 + 2 * q, []).append(f"buffer_store_dwordx4 {v(PS+4*q,4)}, v2, {R_PX}, s83 offen offset:{1024*q} sc1")
    slots.setdefault(14, []).append(lambda: e.wait(vm=4))
    for k, (e2, pr, hh) in enumerate([(a_, b_, c_) for a_ in range(2) for b_ in range(2) for c_ in range(2)]):
        slots.setdefault(15 + k, []).append(f"ds_read_b64_tr_b16 {v(ZR+4*(2*e2+pr)+2*hh,2)}, v7 offset:{(32*pr+4*hh)*64 + 32*e2}")
    merge(e, own, slots)
    pld = [f"buffer_load_dwordx4 {v(PR+4*q,4)}, v2, {R_PX}, s84 offen offset:{1024*q} sc1" for q in range(4)]
    e.wait(lg=0)
    e("s_nop 6")
    for e2 in range(2):
        st = SR + 2 * e2
        for pr in range(2):
            i = 2 * e2 + pr
            if i == opt.get("pfi", 0):
                for x in pld:
                    e(x)
            A0 = acc2(2 * pr, e2)
            for r in range(4):
                e(f"v_permlane16_swap_b32 v{A0+r}, v{A0+4+r}")
            for q in range(4):
                unpack(e, 52, XR + 4 * i + q)
                unpack(e, 56, ZR + 4 * i + q)
                e(f"v_pk_add_f32 v[54:55], v[52:53], {v(st,2)} op_sel_hi:[1,0]")
                e(f"v_pk_add_f32 {v(A0+2*q,2)}, {v(A0+2*q,2)}, v[52:53]")
                e(f"v_pk_mul_f32 v[54:55], v[54:55], {v(st,2)} op_sel:[0,1] op_sel_hi:[1,1]")
                e(f"v_pk_fma_f32 {v(A0+2*q,2)}, v[54:55], v[56:57], {v(A0+2*q,2)}")
    e("s_mov_b32 s82, 0")
    e.label("L_px_chk")
    e.wait(vm=0)
    e(f"v_max3_u32 v52, v{PR}, v{PR+1}, v{PR+2}")
    for q in range(3, 15, 2):
        e(f"v_max3_u32 v52, v52, v{PR+q}, v{PR+q+1}")
    e(f"v_max_u32 v52, v52, v{PR+15}")
    e("v_cmp_ne_u32 vcc, -1, v52")
    e("s_cmp_eq_u64 vcc, exec")
    e("s_cbranch_scc1 L_px_ok")
    for x in pld:
        e.l.append("    " + x)
    e("s_add_u32 s82, s82, 1")
    e(f"s_cmp_lt_u32 s82, {SPIN_LIMIT}")
    e("s_cbranch_scc1 L_px_chk")
    e.l.append("    s_waitcnt vmcnt(0)")
    e.label("L_px_ok")
    stamp(e, 9)
    for i in range(4):
        e2, pr = i >> 1, i & 1
        A0 = acc2(2 * pr, e2)
        b = PR + 4 * i
        e(f"v_permlane16_swap_b32 v{b}, v{b+2}")
        e(f"v_permlane16_swap_b32 v{b+1}, v{b+3}")
        for q in range(4):
            unpack(e, 52 + 2 * q, b + q)
        for q in range(4):
            e(f"v_pk_add_f32 {v(A0+2*q,2)}, {v(A0+2*q,2)}, {v(52+2*q,2)}")
        for q in range(4):
            e(f"v_cvt_pk_bf16_f32 v{96+4*i+q}, v{A0+2*q}, v{A0+2*q+1}")
        e(f"buffer_store_dwordx4 {v(96+4*i,4)}, v{24+e2}, {R_OUT}, 0 offen offset:{64*pr} sc1")
    stamp(e, 10)
    if STAMPS or DST:
        e.wait(vm=0)
    stamp(e, 11)
    e.label("L_end")
    name = NAME + "_kernel"
    return f""".globl {name}
.p2align 8
.type {name},@function
{name}:
{e.text()}    s_endpgm
.section .rodata,"a"
.p2align 6
.amdhsa_kernel {name}
  .amdhsa_next_free_vgpr 512
  .amdhsa_next_free_sgpr 102
  .amdhsa_accum_offset 256
  .amdhsa_group_segment_fixed_size 0
  .amdhsa_kernarg_size 104
  .amdhsa_user_sgpr_count 2
  .amdhsa_user_sgpr_kernarg_segment_ptr 1
  .amdhsa_system_sgpr_workgroup_id_x 1
  .amdhsa_float_denorm_mode_32 3
.end_amdhsa_kernel
"""


DOC = """; ---------------------------------------------------------------------------------------------
;  1. GEMM1  [256 s x 112 f x {gate,up}] on the RAW x (LayerNorm folded: rstd*(x.W - mean*colsum(W)));
; poll with sc1 loads (bounded spins) and read with sc1 loads.  d_debug holds the first counter.
; ---------------------------------------------------------------------------------------------
"""


def main(opt=None):
    opt = opt or {}
    ref = open("cdna_kernels/" + NAME + ".s.ref").read().split("\n")
    hdr = [l for l in ref if l.startswith(";") and "@launch" not in l]
    out = "\n".join(hdr) + "\n"
    out += f"; @launch grid=(256,1,1) block=(256,1,1) lds={LDS_SIZE}\n"
    out += DOC
    out += '.amdgcn_target "amdgcn-amd-amdhsa--gfx950"\n.text\n'
    out += gen(opt)
    return out


if __name__ == "__main__":
    args = [x for x in sys.argv[1:] if not x.startswith("-")]
    opt = {}
    for x in sys.argv[1:]:
        if x == "-stamps":
            STAMPS = True
        elif x == "-light":
            STAMPS = LIGHT = True
        elif x.startswith("-dst"):
            DST = int(x.split("=")[1])
        elif x.startswith("-"):
            k, _, val = x[1:].partition("=")
            opt[k] = int(val) if val else 1
    path = args[0] if args else "cdna_kernels/" + NAME + ".s"
    open(path, "w").write(main(opt))
    print("wrote", path)
```
